```python
import torch

def _softmax(x, axis=-1):
    return torch.softmax(x, dim=axis)

def _gelu(x):
    return torch.nn.functional.gelu(x, approximate='tanh')

def _silu(x):
    return torch.nn.functional.silu(x)

def _sigmoid(x):
    return torch.sigmoid(x)

def _layernorm(x, axis=-1, eps=1e-05):
    m = x.mean(dim=axis, keepdim=True)
    v = x.var(dim=axis, keepdim=True, unbiased=False)
    return (x - m) / torch.sqrt(v + eps)

def _scatter_add(tgt, idx, src, axis=0):
    return tgt.clone().index_add_(axis, idx, src)

def _segment_sum(src, seg, n):
    out = torch.zeros((n,) + src.shape[1:], dtype=src.dtype)
    return out.index_add_(0, seg, src)

def _pad(x, pw):
    flat = tuple((v for pair in reversed(pw) for v in pair))
    return torch.nn.functional.pad(x, flat)
kernel_name = 'gather_scatter__tensor_product_equiv_mace__graph'

def setup_inputs():

    _w = lambda a: (lambda t: t.to(torch.bfloat16) if t.is_floating_point() else t)(torch.as_tensor(a))
    N, deg = (10000, 32)
    Lmax, C, De = (1, 128, 4)
    M = (Lmax + 1) ** 2
    E = N * deg
    src = (lambda lo, hi, *s: torch.randint(lo, hi, s))(0, N, E).to(torch.int64)
    dst = (lambda lo, hi, *s: torch.randint(lo, hi, s))(0, N, E).to(torch.int64)
    r = (lambda *s: torch.randn(*s, dtype=torch.bfloat16) * 0.05)(E, 3).to(float)
    r = r / (torch.linalg.norm(r, dim=-1, keepdim=True).to(float) + 1e-06)
    rx, ry, rz = (r[:, 0].clone(), r[:, 1].clone(), r[:, 2].clone())
    x2, y2, z2 = (rx * rx, ry * ry, rz * rz)
    sh_list = [torch.ones_like(rx), rx, ry, rz, rx * ry, ry * rz, 2.0 * z2 - x2 - y2, rx * rz, x2 - y2, ry * (3.0 * x2 - y2), rx * ry * rz, ry * (4.0 * z2 - x2 - y2), rz * (2.0 * z2 - 3.0 * x2 - 3.0 * y2), rx * (4.0 * z2 - x2 - y2), rz * (x2 - y2), rx * (x2 - 3.0 * y2)]
    sh16 = torch.stack(sh_list, dim=-1).to(float)
    pad = max(0, M - 16)
    sh_full = torch.cat([sh16, torch.zeros((E, pad), dtype=float)], dim=-1)[:, :M]
    cg = ((lambda *s: torch.randn(*s, dtype=torch.bfloat16) * 0.05)(M, M, M) * (1.0 / float(M))).to(float)
    return {'x': _w(((lambda *s: torch.randn(*s, dtype=torch.bfloat16) * 0.05)(N, M, C) * 0.3).to(float)), 'src': _w(src), 'dst': _w(dst), 'sh': _w(sh_full.to(float)), 'edge_attr': _w(((lambda *s: torch.randn(*s, dtype=torch.bfloat16) * 0.05)(E, De) * 0.3).to(float)), 'cg': _w(cg), 'w_r': _w(((lambda *s: torch.randn(*s, dtype=torch.bfloat16) * 0.05)(De, C) * (1.0 / float(De) ** 0.5)).to(float)), 'w_out': _w(((lambda *s: torch.randn(*s, dtype=torch.bfloat16) * 0.05)(C, C) * (1.0 / float(C) ** 0.5)).to(float))}

def reference(x, src, dst, sh, edge_attr, cg, w_r, w_out):
    N = x.shape[0]
    M = x.shape[1]
    C = x.shape[2]
    h = x[src]
    tp = torch.einsum('uvw,euc,ev->ewc', cg, h, sh)
    rw = edge_attr @ w_r
    msg = tp * rw[:, None, :]
    msg2 = msg.reshape(-1, M * C)
    agg = _segment_sum(msg2, dst, N).reshape(N, M, C)
    out = torch.einsum('nmc,cd->nmd', agg, w_out)
    return out
```

```python
import sys

NAME = "gather_scatter__tensor_product_equiv_mace__graph"
N = 10000; E = 320000
P = 128; EPC = E // P
NB = 250; NPB = 40
NR = 8
CAPN = 64

REC_OFF = 0
TAG_OFF = REC_OFF + E * 16
OFFS_OFF = TAG_OFF + E * 4
WT_OFF = OFFS_OFF + P * 1024
WR_OFF = WT_OFF + 32768
CG_OFF = WR_OFF + 2048
WS_USED = WT_OFF + 40960 + 4096

out = []
def a(s): out.append(s)

def srd(d, base, nbytes):
    a(f"s_mov_b32 s{d}, s{base}")
    a(f"s_and_b32 s{d+1}, s{base+1}, 0xffff")
    a(f"s_mov_b32 s{d+2}, {nbytes}")
    a(f"s_mov_b32 s{d+3}, 0x20000")

def wave_scan_incl(v):
    for sh in (1, 2, 4, 8):
        a("s_nop 1")
        a(f"v_add_u32_dpp v{v}, v{v}, v{v} row_shr:{sh} row_mask:0xf bank_mask:0xf")
    a("s_nop 1")
    a(f"v_add_u32_dpp v{v}, v{v}, v{v} row_bcast:15 row_mask:0xa bank_mask:0xf")
    a("s_nop 1")
    a(f"v_add_u32_dpp v{v}, v{v}, v{v} row_bcast:31 row_mask:0xc bank_mask:0xf")

K1_T = 640
K1_HIST = 0; K1_OFFS = 1024; K1_TAG = 2048; K1_REC = 12288
K1_LDS = K1_REC + EPC * 16
NWPREP = 4
NTOUCH = 125
K1_GRID = P + NWPREP + NTOUCH

def gen_k1():
    k = "part_kernel"
    a(f".globl {k}\n.p2align 8\n.type {k},@function\n{k}:")
    a(f"s_cmp_ge_u32 s2, {K1_GRID}")
    a("s_cbranch_scc1 K1_end")
    a(f"s_cmp_ge_u32 s2, {P+NWPREP}")
    a("s_cbranch_scc1 K1_touch")
    a(f"s_cmp_ge_u32 s2, {P}")
    a("s_cbranch_scc1 K1_wprep")
    a("s_load_dwordx4 s[4:7], s[0:1], 8")
    a("s_load_dwordx4 s[8:11], s[0:1], 24")
    a("s_load_dwordx2 s[12:13], s[0:1], 80")
    a("v_lshlrev_b32 v1, 4, v0")
    a("v_lshlrev_b32 v2, 5, v0")
    a("v_lshlrev_b32 v3, 2, v0")
    a("v_mov_b32 v4, 0")
    a("v_cmp_gt_u32 vcc, 256, v0")
    a("s_and_saveexec_b64 s[36:37], vcc")
    a(f"ds_write_b32 v3, v4 offset:{K1_HIST}")
    a("s_mov_b64 exec, s[36:37]")
    a(f"s_mul_i32 s14, s2, {EPC*4}")
    a(f"s_mul_i32 s15, s2, {EPC*8}")
    a("s_waitcnt lgkmcnt(0)")
    srd(16, 4, E * 4)
    srd(20, 6, E * 4)
    srd(24, 8, E * 8)
    srd(28, 10, E * 8)
    srd(32, 12, WS_USED)
    a(f"v_cmp_gt_u32 vcc, {EPC//4}, v0")
    a("s_and_saveexec_b64 s[36:37], vcc")
    a("s_mov_b64 s[38:39], exec")
    a("buffer_load_dwordx4 v[8:11], v1, s[20:23], s14 offen")
    a("buffer_load_dwordx4 v[12:15], v1, s[16:19], s14 offen")
    a("buffer_load_dwordx4 v[16:19], v2, s[24:27], s15 offen")
    a("buffer_load_dwordx4 v[20:23], v2, s[24:27], s15 offen offset:16")
    a("buffer_load_dwordx4 v[24:27], v2, s[28:31], s15 offen")
    a("buffer_load_dwordx4 v[28:31], v2, s[28:31], s15 offen offset:16")
    a("s_barrier")
    a("s_mov_b32 s40, 52429")
    a("s_mov_b32 s41, -40")
    a("s_mov_b32 s42, 6711")
    a("v_mov_b32 v5, 1")
    a("s_waitcnt vmcnt(5)")
    for e in range(4):
        a(f"v_mul_u32_u24 v{32+e}, s40, v{8+e}")
        a(f"v_lshrrev_b32 v{32+e}, 21, v{32+e}")
        a(f"v_lshlrev_b32 v{36+e}, 2, v{32+e}")
        a(f"ds_add_rtn_u32 v{40+e}, v{36+e}, v5 offset:{K1_HIST}")
    a("s_waitcnt vmcnt(4)")
    for e in range(4):
        a(f"v_mad_i32_i24 v{8+e}, v{32+e}, s41, v{8+e}")
        a(f"v_mul_u32_u24 v{32+e}, s42, v{12+e}")
        a(f"v_lshrrev_b32 v{32+e}, 22, v{32+e}")
        a(f"v_lshl_add_u32 v{8+e}, v{8+e}, 4, v{32+e}")
        a(f"v_lshl_add_u32 v{12+e}, v{8+e}, 14, v{12+e}")
    a("s_mov_b64 exec, s[36:37]")
    a("v_and_b32 v6, 63, v0")
    a("v_lshlrev_b32 v6, 4, v6")
    a("s_waitcnt lgkmcnt(0)")
    a("s_barrier")
    a(f"ds_read_b128 v[44:47], v6 offset:{K1_HIST}")
    a("s_waitcnt lgkmcnt(0)")
    a("v_add_u32 v48, v44, v45")
    a("v_add3_u32 v48, v48, v46, v47")
    a("v_mov_b32 v49, v48")
    wave_scan_incl(49)
    a("v_sub_u32 v52, v49, v48")
    a("v_add_u32 v53, v52, v44")
    a("v_add_u32 v54, v53, v45")
    a("v_add_u32 v55, v54, v46")
    a(f"ds_write_b128 v6, v[52:55] offset:{K1_OFFS}")
    a("v_cmp_gt_u32 vcc, 64, v0")
    a("s_and_saveexec_b64 s[44:45], vcc")
    a("s_cbranch_execz K1_noffs")
    a("s_lshl_b32 s43, s2, 10")
    a(f"s_add_u32 s43, s43, {OFFS_OFF}")
    a("buffer_store_dwordx4 v[52:55], v6, s[32:35], s43 offen")
    a("K1_noffs:")
    a("s_mov_b64 exec, s[38:39]")
    for e in range(4):
        a(f"ds_read_b32 v{32+e}, v{36+e} offset:{K1_OFFS}")
    a("s_waitcnt vmcnt(0) lgkmcnt(0)")
    for e in range(4):
        a(f"v_add_u32 v{32+e}, v{32+e}, v{40+e}")
        a(f"v_lshlrev_b32 v{36+e}, 4, v{32+e}")
        a(f"v_add_u32 v{36+e}, {K1_REC}, v{36+e}")
        a(f"v_lshlrev_b32 v{32+e}, 2, v{32+e}")
        a(f"ds_write2_b64 v{36+e}, v[{16+2*e}:{17+2*e}], v[{24+2*e}:{25+2*e}] offset0:0 offset1:1")
        a(f"ds_write_b32 v{32+e}, v{12+e} offset:{K1_TAG}")
    a("s_mov_b64 exec, s[36:37]")
    a("s_waitcnt lgkmcnt(0)")
    a("s_barrier")
    for r in range(3):
        a(f"ds_read_b128 v[{8+4*r}:{11+4*r}], v1 offset:{K1_REC + r*K1_T*16}")
    a("s_mov_b64 exec, s[38:39]")
    a(f"ds_read_b128 v[24:27], v1 offset:{K1_TAG}")
    a(f"v_cmp_gt_u32 vcc, {EPC-3*K1_T}, v0")
    a("s_and_b64 s[44:45], vcc, s[36:37]")
    a("s_mov_b64 exec, s[44:45]")
    a(f"ds_read_b128 v[20:23], v1 offset:{K1_REC + 3*K1_T*16}")
    a("s_mov_b64 exec, s[36:37]")
    a(f"s_mul_i32 s43, s2, {EPC*16}")
    a(f"s_add_u32 s46, s14, {TAG_OFF}")
    for r in range(3):
        a(f"s_waitcnt lgkmcnt({4-r})")
        a(f"buffer_store_dwordx4 v[{8+4*r}:{11+4*r}], v1, s[32:35], s43 offen")
        a(f"s_add_u32 s43, s43, {K1_T*16}")
    a("s_waitcnt lgkmcnt(0)")
    a("s_mov_b64 exec, s[38:39]")
    a("buffer_store_dwordx4 v[24:27], v1, s[32:35], s46 offen")
    a("s_mov_b64 exec, s[44:45]")
    a("buffer_store_dwordx4 v[20:23], v1, s[32:35], s43 offen")
    a("s_endpgm")
    a("K1_wprep:")
    a("s_load_dwordx4 s[4:7], s[0:1], 40")
    a("s_load_dwordx2 s[8:9], s[0:1], 56")
    a("s_load_dwordx2 s[12:13], s[0:1], 80")
    a(f"s_sub_u32 s14, s2, {P}")
    a("s_waitcnt lgkmcnt(0)")
    srd(16, 4, 128)
    srd(20, 6, 1024)
    srd(24, 8, 32768)
    srd(32, 12, WS_USED)
    a("v_cmp_gt_u32 vcc, 512, v0")
    a("s_and_saveexec_b64 s[36:37], vcc")
    a("s_cbranch_execz K1_wsmall")
    a("v_bfe_u32 v1, v0, 8, 1")
    a("v_bfe_u32 v2, v0, 6, 2")
    a("v_bfe_u32 v3, v0, 4, 2")
    a("v_bfe_u32 v4, v0, 2, 2")
    a("v_and_b32 v5, 3, v0")
    a("v_lshlrev_b32 v6, 13, v2")
    a("v_lshl_add_u32 v6, v3, 11, v6")
    a("v_lshl_add_u32 v6, v4, 4, v6")
    a("v_lshl_add_u32 v6, v1, 3, v6")
    a("v_lshl_add_u32 v6, v5, 1, v6")
    a("s_lshl_b32 s15, s14, 6")
    for q in range(8):
        a(f"buffer_load_ushort v{16+q}, v6, s[24:27], s15 offen offset:{q*256}")
    a("v_lshlrev_b32 v7, 4, v0")
    a("s_lshl_b32 s15, s14, 13")
    a(f"s_add_u32 s15, s15, {WT_OFF}")
    a("s_waitcnt vmcnt(0)")
    for q in range(4):
        a(f"v_lshl_or_b32 v{8+q}, v{17+2*q}, 16, v{16+2*q}")
    a("buffer_store_dwordx4 v[8:11], v7, s[32:35], s15 offen")
    a("s_endpgm")
    a("K1_wsmall:")
    a("s_mov_b64 exec, s[36:37]")
    a("v_subrev_u32 v1, 512, v0")
    a("s_cmp_eq_u32 s14, 0")
    a("s_cbranch_scc0 K1_wcg")
    a("v_lshlrev_b32 v2, 1, v1")
    for kk in range(4):
        a(f"buffer_load_ushort v{8+kk}, v2, s[20:23], 0 offen offset:{kk*256}")
    a("v_lshlrev_b32 v3, 4, v1")
    a(f"s_mov_b32 s15, {WR_OFF}")
    a("s_waitcnt vmcnt(0)")
    for kk in range(4):
        a(f"v_lshlrev_b32 v{8+kk}, 16, v{8+kk}")
    a("buffer_store_dwordx4 v[8:11], v3, s[32:35], s15 offen")
    a("s_endpgm")
    a("K1_wcg:")
    a("s_cmp_eq_u32 s14, 1")
    a("s_cbranch_scc0 K1_end")
    a("v_cmp_gt_u32 vcc, 32, v1")
    a("s_and_saveexec_b64 s[36:37], vcc")
    a("s_cbranch_execz K1_end")
    a("v_lshrrev_b32 v2, 3, v1")
    a("v_bfe_u32 v3, v1, 1, 2")
    a("v_and_b32 v4, 1, v1")
    a("v_lshlrev_b32 v5, 5, v3")
    a("v_lshl_add_u32 v5, v4, 4, v5")
    a("v_lshl_add_u32 v5, v2, 1, v5")
    a("buffer_load_ushort v8, v5, s[16:19], 0 offen")
    a("buffer_load_ushort v9, v5, s[16:19], 0 offen offset:8")
    a("v_lshlrev_b32 v6, 2, v1")
    a(f"s_mov_b32 s15, {CG_OFF}")
    a("s_waitcnt vmcnt(0)")
    a("v_lshl_or_b32 v8, v9, 16, v8")
    a("buffer_store_dword v8, v6, s[32:35], s15 offen")
    a("s_endpgm")
    a("K1_touch:")
    a("s_load_dwordx2 s[4:5], s[0:1], 0")
    a(f"s_sub_u32 s14, s2, {P+NWPREP}")
    a(f"s_mul_i32 s14, s14, {K1_T*16*8}")
    a("v_lshlrev_b32 v1, 4, v0")
    a("s_waitcnt lgkmcnt(0)")
    srd(16, 4, N * 1024)
    for r in range(8):
        a(f"buffer_load_dwordx4 v[{8+4*r}:{11+4*r}], v1, s[16:19], s14 offen")
        a(f"s_add_u32 s14, s14, {K1_T*16}")
    a("s_waitcnt vmcnt(0)")
    a("K1_end:")
    a("s_endpgm")

K2_T = 512
SLOTS = NPB * CAPN + 4
DUMMY = NPB * CAPN
L_REC = 0
L_SOFF = L_REC + SLOTS * 16
L_HIST = L_SOFF + SLOTS * 4
L_FLAG = L_HIST + NPB * 16
L_PRE = L_FLAG + 16
L_QN = L_PRE + NPB * 16
L_WT = (L_QN + 512 + 255) // 256 * 256
L_WR = L_WT + 32768
L_AGG = L_WT + 40960
AGG_RS = 272
K2_LDS = L_AGG + NPB * 4 * AGG_RS
OOB = 0x7f000000

ACC = 96; XB = 48; OPS = 40; AOP = 38; CG = 30
RECV = 20
AT = 24
V_EA = 28; V_SOFF = 29; V_ADDR = 19; V_COL16 = 18; V_G16 = 17; V_G4 = 16; V_E0 = 15; V_E1 = 14; V_EASEL = 13; V_T0 = 12; V_T1 = 11
V_LANE = 10
S_X = 8; S_WS = 12; S_OUT = 16
S_WAVE = 20; S_SELLO = 21; S_SELHI = 22; S_CNT = 23
S_S0 = 24; S_S1 = 26
S_E = 28
S_POS = 32; S_T = 33; S_I = 34; S_MODE = 35; S_RND = 36; S_MAXC = 37
S_MASK = 40
S_SAVE = 56

uid = [0]
def next_entry(dst):
    uid[0] += 1
    L = f"NE{uid[0]}"
    a(f"s_cmp_eq_u64 s[{S_S0}:{S_S0+1}], 0")
    a(f"s_cbranch_scc0 {L}")
    a(f"s_mov_b64 s[{S_S0}:{S_S0+1}], s[{S_S1}:{S_S1+1}]")
    a(f"s_mov_b64 s[{S_S1}:{S_S1+1}], 0")
    a(f"v_mov_b32 v{V_E0}, v{V_E1}")
    a(f"{L}:")
    a(f"s_ff1_i32_b64 s{S_POS}, s[{S_S0}:{S_S0+1}]")
    a(f"s_bitset0_b64 s[{S_S0}:{S_S0+1}], s{S_POS}")
    a(f"v_readlane_b32 s{dst}, v{V_E0}, s{S_POS}")
    a(f"s_cmp_lt_i32 s{S_POS}, 0")
    a(f"s_cselect_b32 s{dst}, {DUMMY}, s{dst}")

def read_soff(se):
    a(f"s_and_b32 s{S_T}, s{se}, 0xfff")
    a(f"v_lshl_add_u32 v{V_T0}, s{S_T}, 2, v{V_G4}")
    a(f"ds_read_b32 v{V_SOFF}, v{V_T0} offset:{L_SOFF}")

def read_rec(se):
    a(f"s_and_b32 s{S_T}, s{se}, 0xfff")
    a(f"v_lshl_add_u32 v{V_T1}, s{S_T}, 4, v{V_G16}")
    a(f"ds_read_b128 v[{RECV}:{RECV+3}], v{V_T1} offset:{L_REC}")

def issue_loads(b):
    a(f"v_add_u32 v{V_ADDR}, v{V_SOFF}, v{V_COL16}")
    for u in range(4):
        r = XB + 16 * b + 4 * u
        a(f"buffer_load_dwordx4 v[{r}:{r+3}], v{V_ADDR}, s[{S_X}:{S_X+3}], 0 offen offset:{u*256}")

def coefs():
    for u in range(4):
        a(f"v_dot2_f32_bf16 v{AT+u}, v{CG+2*u}, v{RECV}, 0")
    a(f"v_perm_b32 v{V_EA}, v{RECV+3}, v{RECV+2}, v{V_EASEL}")
    for u in range(4):
        a(f"v_dot2_f32_bf16 v{AT+u}, v{CG+2*u+1}, v{RECV+1}, v{AT+u}")

def coefs2():
    for u in range(4):
        a(f"v_mul_f32 v{AT+u}, v{AT+u}, v{V_EA}")
    a(f"v_cvt_pk_bf16_f32 v{AOP}, v{AT}, v{AT+1}")
    a(f"v_cvt_pk_bf16_f32 v{AOP+1}, v{AT+2}, v{AT+3}")

def gen_k2():
    k = "main_kernel"
    a(f".globl {k}\n.p2align 8\n.type {k},@function\n{k}:")
    a(f"s_cmp_ge_u32 s2, {NB}")
    a("s_cbranch_scc1 K2_end")
    a("s_load_dwordx2 s[4:5], s[0:1], 0")
    a("s_load_dwordx2 s[6:7], s[0:1], 80")
    a("s_load_dwordx2 s[58:59], s[0:1], 64")
    a(f"v_and_b32 v{V_LANE}, 63, v0")
    a("v_lshrrev_b32 v1, 6, v0")
    a("v_lshlrev_b32 v2, 2, v0")
    a("v_mov_b32 v3, 0")
    a(f"v_readfirstlane_b32 s{S_WAVE}, v1")
    a(f"v_cmp_gt_u32 vcc, {NPB*4+4}, v0")
    a(f"s_and_saveexec_b64 s[{S_SAVE}:{S_SAVE+1}], vcc")
    a(f"ds_write_b32 v2, v3 offset:{L_HIST}")
    a(f"s_mov_b64 exec, s[{S_SAVE}:{S_SAVE+1}]")
    a("v_lshrrev_b32 v4, 2, v0")
    a("v_and_b32 v5, 3, v0")
    a("v_lshlrev_b32 v6, 10, v4")
    a("s_lshl_b32 s3, s2, 2")
    a(f"s_add_u32 s3, s3, {OFFS_OFF}")
    a("v_lshlrev_b32 v7, 4, v0")
    a(f"v_bfe_u32 v8, v0, 2, 2")
    a("v_lshlrev_b32 v8, 5, v8")
    a("s_waitcnt lgkmcnt(0)")
    srd(S_X, 4, N * 1024)
    srd(S_WS, 6, WS_USED)
    srd(S_OUT, 58, N * 1024)
    a(f"buffer_load_dwordx2 v[2:3], v6, s[{S_WS}:{S_WS+3}], s3 offen")
    a(f"s_mov_b32 s3, {WT_OFF}")
    for r in range(5):
        a(f"buffer_load_dwordx4 v[{ACC+4*r}:{ACC+4*r+3}], v7, s[{S_WS}:{S_WS+3}], s3 offen")
        a(f"s_add_u32 s3, s3, {K2_T*16}")
    a(f"s_mov_b32 s3, {CG_OFF}")
    a(f"buffer_load_dwordx4 v[{CG}:{CG+3}], v8, s[{S_WS}:{S_WS+3}], s3 offen")
    a(f"buffer_load_dwordx4 v[{CG+4}:{CG+7}], v8, s[{S_WS}:{S_WS+3}], s3 offen offset:16")
    a("s_barrier")
    a(f"v_and_b32 v{V_COL16}, 15, v0")
    a(f"v_lshlrev_b32 v{V_COL16}, 4, v{V_COL16}")
    a(f"v_lshrrev_b32 v{V_G4}, 4, v{V_LANE}")
    a(f"v_lshlrev_b32 v{V_G16}, 4, v{V_G4}")
    a(f"v_lshlrev_b32 v{V_G4}, 2, v{V_G4}")
    a(f"v_mul_u32_u24 v{V_EASEL}, 0x0202, v5")
    a(f"v_add_u32 v{V_EASEL}, 0x0100, v{V_EASEL}")
    a(f"v_lshlrev_b32 v{V_EASEL}, 16, v{V_EASEL}")
    a(f"v_or_b32 v{V_EASEL}, 0x0c0c, v{V_EASEL}")
    a(f"s_mov_b32 s{S_SELLO}, 0x05040100")
    a(f"s_mov_b32 s{S_SELHI}, 0x07060302")
    a(f"s_mov_b32 s{S_MODE}, 0")
    a(f"v_mul_u32_u24 v6, {EPC}, v4")
    a("v_add_u32 v6, v6, v5")
    a("s_waitcnt vmcnt(7)")
    a("v_sub_u32 v9, v3, v2")
    a("v_add_u32 v6, v6, v2")
    a("v_sub_u32 v3, v9, v5")
    a("v_lshlrev_b32 v7, 4, v6")
    a("v_lshlrev_b32 v6, 2, v6")
    a(f"s_mov_b32 s3, {TAG_OFF}")
    RB = XB; TG = XB + 32; RK = XB + 40
    for r in range(NR):
        a(f"v_cmp_lt_i32 s[{S_MASK+2*r}:{S_MASK+2*r+1}], {4*r}, v3")
    for r in range(NR):
        a(f"s_mov_b64 exec, s[{S_MASK+2*r}:{S_MASK+2*r+1}]")
        a("s_cbranch_execz K2_ld_done")
        a(f"buffer_load_dword v{TG+r}, v6, s[{S_WS}:{S_WS+3}], s3 offen offset:{16*r}")
        a(f"buffer_load_dwordx4 v[{RB+4*r}:{RB+4*r+3}], v7, s[{S_WS}:{S_WS+3}], 0 offen offset:{64*r}")
    a("K2_ld_done:")
    a("s_mov_b64 exec, -1")
    a(f"v_cmp_lt_u32 s[{S_SAVE}:{S_SAVE+1}], {4*NR}, v9")
    a("v_mov_b32 v1, 1")
    a("v_lshlrev_b32 v2, 4, v0")
    a(f"v_add_u32 v2, {L_WT}, v2")
    a("s_waitcnt vmcnt(0)")
    for r in range(NR):
        a(f"s_mov_b64 exec, s[{S_MASK+2*r}:{S_MASK+2*r+1}]")
        a("s_cbranch_execz K2_h_done")
        a(f"v_lshrrev_b32 v4, 14, v{TG+r}")
        a(f"v_and_b32 v5, 0xffc, v4")
        a(f"v_lshlrev_b32 v4, 3, v4")
        a(f"v_lshlrev_b32 v4, v4, v1")
        a(f"ds_add_rtn_u32 v{RK+r}, v5, v4 offset:{L_HIST}")
    a("K2_h_done:")
    a("s_mov_b64 exec, -1")
    for r in range(5):
        a(f"ds_write_b128 v2, v[{ACC+4*r}:{ACC+4*r+3}] offset:{r*K2_T*16}")
    a("s_waitcnt lgkmcnt(5)")
    for r in range(NR):
        a(f"s_mov_b64 exec, s[{S_MASK+2*r}:{S_MASK+2*r+1}]")
        a("s_cbranch_execz K2_r_done")
        a(f"v_lshrrev_b32 v4, 11, v{TG+r}")
        a(f"v_and_b32 v4, 24, v4")
        a(f"v_bfe_u32 v{RK+r}, v{RK+r}, v4, 8")
        a(f"v_cmp_lt_u32 vcc, {CAPN-1}, v{RK+r}")
        a(f"s_or_b64 s[{S_SAVE}:{S_SAVE+1}], s[{S_SAVE}:{S_SAVE+1}], vcc")
    a("K2_r_done:")
    a("s_mov_b64 exec, -1")
    a(f"s_cmp_eq_u64 s[{S_SAVE}:{S_SAVE+1}], 0")
    a("s_cbranch_scc1 K2_noflag")
    a(f"v_mov_b32 v4, {L_FLAG}")
    a("ds_write_b32 v4, v1")
    a("K2_noflag:")
    a(f"v_lshlrev_b32 v4, 4, v{V_LANE}")
    a(f"v_mov_b32 v5, {L_FLAG}")
    a("s_waitcnt lgkmcnt(0)")
    a("s_barrier")
    a(f"ds_read_b128 v[{RECV}:{RECV+3}], v4 offset:{L_HIST}")
    a("ds_read_b32 v5, v5")
    for r in range(160):
        a(f"v_mov_b32 v{ACC+r}, 0")
    a("s_waitcnt lgkmcnt(0)")
    a("s_mov_b32 s3, 0x01010101")
    a("v_mov_b32 v6, 0")
    for q in range(4):
        H = RECV + q
        a(f"v_lshlrev_b32 v{AT+q}, 8, v{H}")
        a(f"v_lshl_add_u32 v{AT+q}, v{H}, 16, v{AT+q}")
        a(f"v_lshl_add_u32 v{AT+q}, v{H}, 24, v{AT+q}")
        if q > 0:
            a(f"v_mul_lo_u32 v7, v6, s3")
            a(f"v_add_u32 v{AT+q}, v{AT+q}, v7")
        a(f"v_sad_u8 v6, v{H}, 0, v6")
    a(f"v_cmp_gt_u32 vcc, {NPB}, v{V_LANE}")
    a(f"s_and_saveexec_b64 s[{S_SAVE}:{S_SAVE+1}], vcc")
    a(f"ds_write_b128 v4, v[{AT}:{AT+3}] offset:{L_PRE}")
    a(f"v_cmp_lt_u32 vcc, {CAPN}, v6")
    a(f"s_mov_b64 exec, s[{S_SAVE}:{S_SAVE+1}]")
    a("v_readfirstlane_b32 s3, v5")
    a("s_cmp_lg_u64 vcc, 0")
    a("s_cbranch_scc1 K2_slow")
    a("s_cmp_lg_u32 s3, 0")
    a("s_cbranch_scc1 K2_slow")
    a(f"v_and_b32 v7, 7, v{V_LANE}")
    a(f"s_mul_i32 s3, s{S_WAVE}, 5")
    a("v_add_u32 v8, s3, v7")
    a("v_lshlrev_b32 v9, 2, v8")
    a("ds_bpermute_b32 v6, v9, v6")
    for r in range(NR):
        a(f"s_mov_b64 exec, s[{S_MASK+2*r}:{S_MASK+2*r+1}]")
        a("s_cbranch_execz K2_p_done")
        a(f"v_lshrrev_b32 v4, 14, v{TG+r}")
        a(f"ds_read_u8 v{OPS+r}, v4 offset:{L_PRE}")
    a("K2_p_done:")
    a("s_mov_b64 exec, -1")
    a("s_waitcnt lgkmcnt(0)")
    for r in range(NR):
        a(f"s_mov_b64 exec, s[{S_MASK+2*r}:{S_MASK+2*r+1}]")
        a("s_cbranch_execz K2_s_done")
        a(f"v_lshrrev_b32 v4, 18, v{TG+r}")
        a(f"v_lshl_add_u32 v4, v4, 6, v{OPS+r}")
        a(f"v_add_u32 v4, v4, v{RK+r}")
        a(f"v_lshlrev_b32 v5, 4, v4")
        a(f"v_lshlrev_b32 v4, 2, v4")
        a(f"v_and_b32 v{TG+r}, 0x3fff, v{TG+r}")
        a(f"v_lshlrev_b32 v{TG+r}, 10, v{TG+r}")
        a(f"ds_write_b128 v5, v[{RB+4*r}:{RB+4*r+3}] offset:{L_REC}")
        a(f"ds_write_b32 v4, v{TG+r} offset:{L_SOFF}")
    a("K2_s_done:")
    a("s_mov_b64 exec, -1")
    a("v_cmp_gt_u32 vcc, 5, v7")
    a("s_nop 1")
    a("v_cndmask_b32 v6, 0, v6, vcc")
    a("v_add_u32 v9, 3, v6")
    a("v_lshrrev_b32 v9, 2, v9")
    a(f"v_lshrrev_b32 v5, 3, v{V_LANE}")
    a("v_mad_u32_u24 v4, v5, v9, 7")
    a("v_lshlrev_b32 v8, 6, v8")
    a("v_lshl_add_u32 v1, v7, 12, v8")
    for half, (S, EV) in enumerate(((S_S0, V_E0), (S_S1, V_E1))):
        if half:
            a("v_lshl_add_u32 v4, v9, 3, v4")
        a("v_lshrrev_b32 v2, 4, v4")
        a("v_add_u32 v3, v4, v9")
        a("v_lshrrev_b32 v3, 4, v3")
        a(f"v_cmp_ne_u32 s[{S}:{S+1}], v2, v3")
        a(f"v_lshl_add_u32 v{EV}, v2, 2, v1")
    a("v_add_u32 v2, v6, v5")
    a("v_lshlrev_b32 v3, 2, v9")
    a("v_cmp_lt_u32 vcc, v2, v3")
    a("v_add_u32 v2, v8, v2")
    a(f"v_add_u32 v3, {DUMMY}, v7")
    a(f"v_subrev_u32 v4, 24, v{V_LANE}")
    a(f"v_cmp_gt_u32 s[{S_SAVE}:{S_SAVE+1}], 4, v4")
    a("s_nop 1")
    a(f"v_cndmask_b32 v2, v2, v3, s[{S_SAVE}:{S_SAVE+1}]")
    a(f"s_or_b64 exec, vcc, s[{S_SAVE}:{S_SAVE+1}]")
    a("v_lshlrev_b32 v3, 4, v2")
    a("v_lshlrev_b32 v2, 2, v2")
    a(f"v_mov_b32 v4, {OOB}")
    a(f"ds_write_b128 v3, v[{ACC}:{ACC+3}] offset:{L_REC}")
    a(f"ds_write_b32 v2, v4 offset:{L_SOFF}")
    a("s_mov_b64 exec, -1")
    a("s_waitcnt lgkmcnt(0)")
    a("s_barrier")
    a("K2_run:")
    a(f"s_bcnt1_i32_b64 s{S_CNT}, s[{S_S0}:{S_S0+1}]")
    a(f"s_bcnt1_i32_b64 s{S_T}, s[{S_S1}:{S_S1+1}]")
    a(f"s_add_u32 s{S_CNT}, s{S_CNT}, s{S_T}")
    a(f"s_cmp_eq_u32 s{S_CNT}, 0")
    a("s_cbranch_scc1 K2_loop_done")
    next_entry(S_E)
    read_soff(S_E)
    next_entry(S_E + 1)
    a("s_waitcnt lgkmcnt(0)")
    issue_loads(0)
    read_soff(S_E + 1)
    next_entry(S_E + 2)
    a("s_waitcnt lgkmcnt(0)")
    issue_loads(1)
    read_soff(S_E + 2)
    read_rec(S_E)
    for b in range(3):
        a(f"K2_loop{b}:")
        next_entry(S_E + 3)
        a("s_waitcnt lgkmcnt(0)")
        issue_loads((b + 2) % 3)
        coefs()
        read_soff(S_E + 3)
        read_rec(S_E + 1)
        coefs2()
        a(f"s_lshr_b32 s{S_I}, s{S_E}, 12")
        a(f"s_mov_b32 s{S_E}, s{S_E+1}")
        a(f"s_mov_b32 s{S_E+1}, s{S_E+2}")
        a(f"s_mov_b32 s{S_E+2}, s{S_E+3}")
        a("s_waitcnt vmcnt(8)")
        for i in range(1, 5):
            a(f"s_cmp_eq_u32 s{S_I}, {i}")
            a(f"s_cbranch_scc1 K2_blk{b}_{i}")
        for i in range(5):
            a(f"K2_blk{b}_{i}:")
            def mf(j):
                o = OPS + 2 * (j % 4); c = ACC + 32 * i + 4 * j
                a(f"v_mfma_f32_16x16x16_bf16 v[{c}:{c+3}], v[{AOP}:{AOP+1}], v[{o}:{o+1}], v[{c}:{c+3}]")
            for j in range(8):
                m = j >> 1; sel = S_SELHI if j & 1 else S_SELLO
                o = OPS + 2 * (j % 4)
                x = lambda u: XB + 16 * b + 4 * u + m
                a(f"v_perm_b32 v{o}, v{x(1)}, v{x(0)}, s{sel}")
                a(f"v_perm_b32 v{o+1}, v{x(3)}, v{x(2)}, s{sel}")
                if j > 0: mf(j - 1)
            a(f"s_sub_u32 s{S_CNT}, s{S_CNT}, 1")
            a(f"s_cmp_eq_u32 s{S_CNT}, 0")
            mf(7)
            a(f"s_cbranch_scc0 K2_loop{(b+1)%3}")
            a("s_branch K2_loop_done")
    a("K2_loop_done:")
    a(f"s_cmp_lg_u32 s{S_MODE}, 0")
    a("s_cbranch_scc1 K2_slow_next")
    a("K2_epi:")
    a("s_waitcnt vmcnt(0) lgkmcnt(0)")
    a(f"v_lshlrev_b32 v1, 3, v{V_COL16}")
    a(f"v_add_u32 v1, {L_WR}, v1")
    for j in range(8):
        a(f"ds_read_b128 v[{XB+4*j}:{XB+4*j+3}], v1 offset:{16*j}")
    a(f"s_mul_i32 s3, s{S_WAVE}, {20*AGG_RS}")
    a(f"s_add_u32 s3, s3, {L_AGG}")
    a(f"v_lshrrev_b32 v2, 4, v{V_LANE}")
    a(f"v_mul_u32_u24 v2, {AGG_RS}, v2")
    a(f"v_add3_u32 v2, v2, v{V_COL16}, s3")
    a("s_waitcnt lgkmcnt(0)")
    for i in range(5):
        for j in range(8):
            c = ACC + 32 * i + 4 * j; w = XB + 4 * j
            a(f"v_mul_f32 v{c}, v{c}, v{w}")
        for kk in range(1, 4):
            for j in range(8):
                c = ACC + 32 * i + 4 * j; w = XB + 4 * j
                a(f"v_fmac_f32 v{c}, v{c+kk}, v{w+kk}")
        o = OPS + 4 * (i % 2)
        for jj in range(4):
            c = ACC + 32 * i + 8 * jj
            a(f"v_cvt_pk_bf16_f32 v{o+jj}, v{c}, v{c+4}")
        a(f"ds_write_b128 v2, v[{o}:{o+3}] offset:{i*4*AGG_RS}")
    a(f"s_and_b32 s3, s{S_WAVE}, 3")
    a("s_lshl_b32 s4, s3, 13")
    a(f"s_add_u32 s4, s4, {L_WT}")
    a(f"v_lshl_add_u32 v1, v{V_LANE}, 4, s4")
    for x in range(8):
        a(f"ds_read_b128 v[{XB+4*x}:{XB+4*x+3}], v1 offset:{1024*x}")
    a(f"s_lshr_b32 s5, s{S_WAVE}, 2")
    a(f"s_mul_i32 s6, s5, {16*AGG_RS}")
    a(f"s_add_u32 s6, s6, {L_AGG}")
    a(f"v_and_b32 v3, 15, v{V_LANE}")
    a(f"v_mul_u32_u24 v4, {AGG_RS}, v3")
    a(f"v_add3_u32 v4, v4, v{V_G16}, s6")
    a("v_lshlrev_b32 v5, 8, v3")
    a(f"v_add_u32 v5, v5, v{V_G16}")
    a(f"s_mul_i32 s6, s2, {NPB*4*256}")
    a("s_lshl_b32 s7, s5, 12")
    a("s_add_u32 s6, s6, s7")
    a("s_lshl_b32 s7, s3, 6")
    a("s_add_u32 s6, s6, s7")
    a("s_waitcnt lgkmcnt(0)")
    a("s_barrier")
    BB = ACC
    for u in range(5):
        for t in range(4):
            r = BB + 16 * u + 4 * t
            a(f"ds_read_b128 v[{r}:{r+3}], v4 offset:{u*32*AGG_RS + t*64}")
    DD = ACC + 80
    for u in range(5):
        a(f"s_waitcnt lgkmcnt({min(15, 4*(4-u))})")
        for t in range(4):
            r = BB + 16 * u + 4 * t
            for hh in range(2):
                d = DD + 8 * u + 4 * hh; w = XB + 16 * hh + 4 * t
                c = "0" if t == 0 else f"v[{d}:{d+3}]"
                a(f"v_mfma_f32_16x16x32_bf16 v[{d}:{d+3}], v[{w}:{w+3}], v[{r}:{r+3}], {c}")
    a("s_nop 7")
    for u in range(5):
        d = DD + 8 * u
        o = BB + 4 * u
        for x in range(4):
            a(f"v_cvt_pk_bf16_f32 v{o+x}, v{d+2*x}, v{d+2*x+1}")
        a(f"buffer_store_dwordx4 v[{o}:{o+3}], v5, s[{S_OUT}:{S_OUT+3}], s6 offen")
        a(f"s_add_u32 s6, s6, {32*256}")
    a("K2_end:")
    a("s_endpgm")
    a("K2_slow:")
    a(f"s_mov_b32 s{S_MODE}, 1")
    a(f"s_mov_b32 s{S_RND}, 0")
    a("v_lshlrev_b32 v1, 4, v0")
    a("v_lshlrev_b32 v2, 2, v0")
    a(f"v_mov_b32 v4, {OOB}")
    a(f"ds_write_b128 v1, v[{ACC}:{ACC+3}] offset:{L_REC}")
    a(f"ds_write_b32 v2, v4 offset:{L_SOFF}")
    a(f"v_and_b32 v1, 3, v0")
    a(f"v_add_u32 v1, {DUMMY}, v1")
    a("v_lshlrev_b32 v2, 2, v1")
    a("v_lshlrev_b32 v1, 4, v1")
    a(f"ds_write_b128 v1, v[{ACC}:{ACC+3}] offset:{L_REC}")
    a(f"ds_write_b32 v2, v4 offset:{L_SOFF}")
    a(f"v_lshlrev_b32 v1, 10, v{V_LANE}")
    a("s_lshl_b32 s3, s2, 2")
    a(f"s_add_u32 s3, s3, {OFFS_OFF}")
    a(f"buffer_load_dwordx2 v[2:3], v1, s[{S_WS}:{S_WS+3}], s3 offen")
    a("s_add_u32 s3, s3, 65536")
    a(f"buffer_load_dwordx2 v[4:5], v1, s[{S_WS}:{S_WS+3}], s3 offen")
    a("s_waitcnt vmcnt(0)")
    a("v_sub_u32 v3, v3, v2")
    a("v_sub_u32 v5, v5, v4")
    a("v_max_u32 v6, v3, v5")
    for sh in (1, 2, 4, 8):
        a("s_nop 1")
        a(f"v_max_u32_dpp v6, v6, v6 row_shr:{sh} row_mask:0xf bank_mask:0xf")
    a("s_nop 1")
    a("v_max_u32_dpp v6, v6, v6 row_bcast:15 row_mask:0xa bank_mask:0xf")
    a("s_nop 1")
    a("v_max_u32_dpp v6, v6, v6 row_bcast:31 row_mask:0xc bank_mask:0xf")
    a("s_nop 1")
    a(f"v_readlane_b32 s{S_MAXC}, v6, 63")
    a(f"s_cmp_eq_u32 s{S_WAVE}, 1")
    a("s_cselect_b64 vcc, -1, 0")
    a("v_cndmask_b32 v7, v2, v4, vcc")
    a("v_cndmask_b32 v8, v3, v5, vcc")
    a(f"v_mul_u32_u24 v6, {EPC}, v0")
    a("v_add_u32 v7, v7, v6")
    a("K2_slow_round:")
    a("s_waitcnt vmcnt(0) lgkmcnt(0)")
    a("s_barrier")
    a(f"s_cmp_ge_u32 s{S_RND}, s{S_MAXC}")
    a("s_cbranch_scc1 K2_epi")
    a(f"s_cmp_gt_u32 s{S_WAVE}, 1")
    a("s_cbranch_scc1 K2_slow_nofill")
    a("v_mov_b32 v9, -1")
    a(f"v_cmp_lt_u32 vcc, s{S_RND}, v8")
    a(f"s_and_saveexec_b64 s[{S_SAVE}:{S_SAVE+1}], vcc")
    a("s_cbranch_execz K2_slow_noload")
    a(f"v_add_u32 v1, s{S_RND}, v7")
    a("v_lshlrev_b32 v2, 4, v1")
    a("v_lshlrev_b32 v1, 2, v1")
    a(f"s_mov_b32 s3, {TAG_OFF}")
    a(f"buffer_load_dword v3, v1, s[{S_WS}:{S_WS+3}], s3 offen")
    a(f"buffer_load_dwordx4 v[{RECV}:{RECV+3}], v2, s[{S_WS}:{S_WS+3}], 0 offen")
    a("v_lshlrev_b32 v1, 6, v0")
    a("v_lshlrev_b32 v2, 4, v0")
    a("s_waitcnt vmcnt(0)")
    a("v_lshrrev_b32 v9, 18, v3")
    a("v_and_b32 v3, 0x3fff, v3")
    a("v_lshlrev_b32 v3, 10, v3")
    a(f"ds_write_b128 v1, v[{RECV}:{RECV+3}] offset:{L_REC}")
    a(f"ds_write_b32 v2, v3 offset:{L_SOFF}")
    a("K2_slow_noload:")
    a(f"s_mov_b64 exec, s[{S_SAVE}:{S_SAVE+1}]")
    a("v_lshlrev_b32 v1, 2, v0")
    a(f"ds_write_b32 v1, v9 offset:{L_QN}")
    a("K2_slow_nofill:")
    a("s_waitcnt lgkmcnt(0)")
    a("s_barrier")
    a(f"v_lshlrev_b32 v1, 2, v{V_LANE}")
    a(f"ds_read_b32 v2, v1 offset:{L_QN}")
    a(f"ds_read_b32 v3, v1 offset:{L_QN+256}")
    a(f"s_mul_i32 s3, s{S_WAVE}, 5")
    a("s_waitcnt lgkmcnt(0)")
    a("v_subrev_u32 v2, s3, v2")
    a("v_subrev_u32 v3, s3, v3")
    a(f"v_cmp_gt_u32 s[{S_S0}:{S_S0+1}], 5, v2")
    a(f"v_cmp_gt_u32 s[{S_S1}:{S_S1+1}], 5, v3")
    a(f"v_lshl_add_u32 v{V_E0}, v2, 12, v1")
    a("v_add_u32 v1, 256, v1")
    a(f"v_lshl_add_u32 v{V_E1}, v3, 12, v1")
    a("s_branch K2_run")
    a("K2_slow_next:")
    a(f"s_add_u32 s{S_RND}, s{S_RND}, 1")
    a("s_branch K2_slow_round")

def kd(name, nv, ns):
    return f""".p2align 6
.amdhsa_kernel {name}
  .amdhsa_next_free_vgpr {nv}
  .amdhsa_next_free_sgpr {ns}
  .amdhsa_accum_offset {(nv+3)//4*4}
  .amdhsa_group_segment_fixed_size 0
  .amdhsa_kernarg_size 88
  .amdhsa_user_sgpr_count 2
  .amdhsa_user_sgpr_kernarg_segment_ptr 1
  .amdhsa_system_sgpr_workgroup_id_x 1
.end_amdhsa_kernel"""

def main():
    hdr = open("cdna_kernels/" + NAME + ".s.ref").read().split("\n")
    hdr = [l for l in hdr[:12] if l.startswith(";")]
    print("\n".join(hdr))
    print(f"; @launch kernel=part_kernel grid=({K1_GRID},1,1) block=({K1_T},1,1) lds={K1_LDS}")
    print(f"; @launch kernel=main_kernel grid=({NB},1,1) block=({K2_T},1,1) lds={K2_LDS}")
    print('.amdgcn_target "amdgcn-amd-amdhsa--gfx950"')
    print(".text")
    gen_k1()
    gen_k2()
    print("\n".join(("" if (l.endswith(":") or l.startswith(".")) else "    ") + l for l in out))
    print('.section .rodata,"a"')
    print(kd("part_kernel", 64, 48))
    print(kd("main_kernel", 256, 64))

main()
```

```python
import sys

NAME = "gather_scatter__tensor_product_equiv_mace__graph"
N = 10000; E = 320000
P = 128; EPC = E // P
NB = 250; NPB = 40
NR = 8
CAPN = 64

REC_OFF = 0
TAG_OFF = REC_OFF + E * 16
OFFS_OFF = TAG_OFF + E * 4
WT_OFF = OFFS_OFF + P * 1024
WR_OFF = WT_OFF + 32768
CG_OFF = WR_OFF + 2048
WS_USED = WT_OFF + 40960 + 4096

import os
STAMP = int(os.environ.get("STAMP", "0"))
DBG_OFF = 8 << 20
out = []
def a(s): out.append(s)
def stamp(i):
    if STAMP: a(f"s_memrealtime s[{64+2*i}:{65+2*i}]")
def stamp_flush(wsreg, kidx, wavesper, n, vt=1):
    if not STAMP: return
    a("s_mov_b64 exec, -1")
    a("s_load_dwordx2 s[90:91], s[0:1], 80")
    a(f"v_lshrrev_b32 v{vt}, 6, v0")
    a(f"s_mul_i32 s92, s2, {wavesper}")
    a(f"v_add_u32 v{vt}, s92, v{vt}")
    a(f"v_lshlrev_b32 v{vt}, 6, v{vt}")
    a(f"v_add_u32 v{vt}, {DBG_OFF + kidx*(1<<20)}, v{vt}")
    a("s_waitcnt lgkmcnt(0)")
    a("s_mov_b64 exec, 1")
    for i in range(n):
        a(f"v_mov_b32 v{vt+1}, s{64+2*i}")
        a(f"global_store_dword v{vt}, v{vt+1}, s[90:91] offset:{4*i}")

def srd(d, base, nbytes):
    a(f"s_mov_b32 s{d}, s{base}")
    a(f"s_and_b32 s{d+1}, s{base+1}, 0xffff")
    a(f"s_mov_b32 s{d+2}, {nbytes}")
    a(f"s_mov_b32 s{d+3}, 0x20000")

def wave_scan_incl(v):
    for sh in (1, 2, 4, 8):
        a("s_nop 1")
        a(f"v_add_u32_dpp v{v}, v{v}, v{v} row_shr:{sh} row_mask:0xf bank_mask:0xf")
    a("s_nop 1")
    a(f"v_add_u32_dpp v{v}, v{v}, v{v} row_bcast:15 row_mask:0xa bank_mask:0xf")
    a("s_nop 1")
    a(f"v_add_u32_dpp v{v}, v{v}, v{v} row_bcast:31 row_mask:0xc bank_mask:0xf")

K1_T = 640
K1_HIST = 0; K1_OFFS = 1024; K1_TAG = 2048; K1_REC = 12288
K1_LDS = K1_REC + EPC * 16
NWPREP = 4
NTOUCH = int(os.environ.get("NTOUCH", "125"))
K2TOUCH = int(os.environ.get("K2TOUCH", "0"))
STMOD = os.environ.get("STMOD", "")
K1_GRID = P + NWPREP + NTOUCH

def gen_k1():
    k = "part_kernel"
    a(f".globl {k}\n.p2align 8\n.type {k},@function\n{k}:")
    a(f"s_cmp_ge_u32 s2, {K1_GRID}")
    a("s_cbranch_scc1 K1_end")
    a(f"s_cmp_ge_u32 s2, {P+NWPREP}")
    a("s_cbranch_scc1 K1_touch")
    a(f"s_cmp_ge_u32 s2, {P}")
    a("s_cbranch_scc1 K1_wprep")
    stamp(0)
    a("s_load_dwordx4 s[4:7], s[0:1], 8")
    a("s_load_dwordx4 s[8:11], s[0:1], 24")
    a("s_load_dwordx2 s[12:13], s[0:1], 80")
    a("v_lshlrev_b32 v1, 4, v0")
    a("v_lshlrev_b32 v2, 5, v0")
    a("v_lshlrev_b32 v3, 2, v0")
    a("v_mov_b32 v4, 0")
    a("v_cmp_gt_u32 vcc, 256, v0")
    a("s_and_saveexec_b64 s[36:37], vcc")
    a(f"ds_write_b32 v3, v4 offset:{K1_HIST}")
    a("s_mov_b64 exec, s[36:37]")
    a(f"s_mul_i32 s14, s2, {EPC*4}")
    a(f"s_mul_i32 s15, s2, {EPC*8}")
    a("s_waitcnt lgkmcnt(0)")
    srd(16, 4, E * 4)
    srd(20, 6, E * 4)
    srd(24, 8, E * 8)
    srd(28, 10, E * 8)
    srd(32, 12, WS_USED)
    a(f"v_cmp_gt_u32 vcc, {EPC//4}, v0")
    a("s_and_saveexec_b64 s[36:37], vcc")
    a("s_mov_b64 s[38:39], exec")
    a("buffer_load_dwordx4 v[8:11], v1, s[20:23], s14 offen")
    a("buffer_load_dwordx4 v[12:15], v1, s[16:19], s14 offen")
    a("buffer_load_dwordx4 v[16:19], v2, s[24:27], s15 offen")
    a("buffer_load_dwordx4 v[20:23], v2, s[24:27], s15 offen offset:16")
    a("buffer_load_dwordx4 v[24:27], v2, s[28:31], s15 offen")
    a("buffer_load_dwordx4 v[28:31], v2, s[28:31], s15 offen offset:16")
    a("s_barrier")
    a("s_mov_b32 s40, 52429")
    a("s_mov_b32 s41, -40")
    a("s_mov_b32 s42, 6711")
    a("v_mov_b32 v5, 1")
    a("s_waitcnt vmcnt(5)")
    stamp(1)
    for e in range(4):
        a(f"v_mul_u32_u24 v{32+e}, s40, v{8+e}")
        a(f"v_lshrrev_b32 v{32+e}, 21, v{32+e}")
        a(f"v_lshlrev_b32 v{36+e}, 2, v{32+e}")
        a(f"ds_add_rtn_u32 v{40+e}, v{36+e}, v5 offset:{K1_HIST}")
    a("s_waitcnt vmcnt(4)")
    for e in range(4):
        a(f"v_mad_i32_i24 v{8+e}, v{32+e}, s41, v{8+e}")
        a(f"v_mul_u32_u24 v{32+e}, s42, v{12+e}")
        a(f"v_lshrrev_b32 v{32+e}, 22, v{32+e}")
        a(f"v_lshl_add_u32 v{8+e}, v{8+e}, 4, v{32+e}")
        a(f"v_lshl_add_u32 v{12+e}, v{8+e}, 14, v{12+e}")
    a("s_mov_b64 exec, s[36:37]")
    a("v_and_b32 v6, 63, v0")
    a("v_lshlrev_b32 v6, 4, v6")
    a("s_waitcnt lgkmcnt(0)")
    a("s_barrier")
    stamp(2)
    a(f"ds_read_b128 v[44:47], v6 offset:{K1_HIST}")
    a("s_waitcnt lgkmcnt(0)")
    a("v_add_u32 v48, v44, v45")
    a("v_add3_u32 v48, v48, v46, v47")
    a("v_mov_b32 v49, v48")
    wave_scan_incl(49)
    a("v_sub_u32 v52, v49, v48")
    a("v_add_u32 v53, v52, v44")
    a("v_add_u32 v54, v53, v45")
    a("v_add_u32 v55, v54, v46")
    a(f"ds_write_b128 v6, v[52:55] offset:{K1_OFFS}")
    a("v_cmp_gt_u32 vcc, 64, v0")
    a("s_and_saveexec_b64 s[44:45], vcc")
    a("s_cbranch_execz K1_noffs")
    a("s_lshl_b32 s43, s2, 10")
    a(f"s_add_u32 s43, s43, {OFFS_OFF}")
    a(f"buffer_store_dwordx4 v[52:55], v6, s[32:35], s43 offen {STMOD}")
    a("K1_noffs:")
    a("s_mov_b64 exec, s[38:39]")
    for e in range(4):
        a(f"ds_read_b32 v{32+e}, v{36+e} offset:{K1_OFFS}")
    a("s_waitcnt vmcnt(0) lgkmcnt(0)")
    stamp(3)
    for e in range(4):
        a(f"v_add_u32 v{32+e}, v{32+e}, v{40+e}")
        a(f"v_lshlrev_b32 v{36+e}, 4, v{32+e}")
        a(f"v_add_u32 v{36+e}, {K1_REC}, v{36+e}")
        a(f"v_lshlrev_b32 v{32+e}, 2, v{32+e}")
        a(f"ds_write2_b64 v{36+e}, v[{16+2*e}:{17+2*e}], v[{24+2*e}:{25+2*e}] offset0:0 offset1:1")
        a(f"ds_write_b32 v{32+e}, v{12+e} offset:{K1_TAG}")
    a("s_mov_b64 exec, s[36:37]")
    a("s_waitcnt lgkmcnt(0)")
    a("s_barrier")
    stamp(4)
    for r in range(3):
        a(f"ds_read_b128 v[{8+4*r}:{11+4*r}], v1 offset:{K1_REC + r*K1_T*16}")
    a("s_mov_b64 exec, s[38:39]")
    a(f"ds_read_b128 v[24:27], v1 offset:{K1_TAG}")
    a(f"v_cmp_gt_u32 vcc, {EPC-3*K1_T}, v0")
    a("s_and_b64 s[44:45], vcc, s[36:37]")
    a("s_mov_b64 exec, s[44:45]")
    a(f"ds_read_b128 v[20:23], v1 offset:{K1_REC + 3*K1_T*16}")
    a("s_mov_b64 exec, s[36:37]")
    a(f"s_mul_i32 s43, s2, {EPC*16}")
    a(f"s_add_u32 s46, s14, {TAG_OFF}")
    for r in range(3):
        a(f"s_waitcnt lgkmcnt({4-r})")
        a(f"buffer_store_dwordx4 v[{8+4*r}:{11+4*r}], v1, s[32:35], s43 offen {STMOD}")
        a(f"s_add_u32 s43, s43, {K1_T*16}")
    a("s_waitcnt lgkmcnt(0)")
    a("s_mov_b64 exec, s[38:39]")
    a(f"buffer_store_dwordx4 v[24:27], v1, s[32:35], s46 offen {STMOD}")
    a("s_mov_b64 exec, s[44:45]")
    a(f"buffer_store_dwordx4 v[20:23], v1, s[32:35], s43 offen {STMOD}")
    stamp(5)
    if STAMP: a("s_waitcnt vmcnt(0)")
    stamp(6)
    stamp_flush(12, 0, 10, 7, 40)
    a("s_endpgm")
    a("K1_wprep:")
    a("s_load_dwordx4 s[4:7], s[0:1], 40")
    a("s_load_dwordx2 s[8:9], s[0:1], 56")
    a("s_load_dwordx2 s[12:13], s[0:1], 80")
    a(f"s_sub_u32 s14, s2, {P}")
    a("s_waitcnt lgkmcnt(0)")
    srd(16, 4, 128)
    srd(20, 6, 1024)
    srd(24, 8, 32768)
    srd(32, 12, WS_USED)
    a("v_cmp_gt_u32 vcc, 512, v0")
    a("s_and_saveexec_b64 s[36:37], vcc")
    a("s_cbranch_execz K1_wsmall")
    a("v_bfe_u32 v1, v0, 8, 1")
    a("v_bfe_u32 v2, v0, 6, 2")
    a("v_bfe_u32 v3, v0, 4, 2")
    a("v_bfe_u32 v4, v0, 2, 2")
    a("v_and_b32 v5, 3, v0")
    a("v_lshlrev_b32 v6, 13, v2")
    a("v_lshl_add_u32 v6, v3, 11, v6")
    a("v_lshl_add_u32 v6, v4, 4, v6")
    a("v_lshl_add_u32 v6, v1, 3, v6")
    a("v_lshl_add_u32 v6, v5, 1, v6")
    a("s_lshl_b32 s15, s14, 6")
    for q in range(8):
        a(f"buffer_load_ushort v{16+q}, v6, s[24:27], s15 offen offset:{q*256}")
    a("v_lshlrev_b32 v7, 4, v0")
    a("s_lshl_b32 s15, s14, 13")
    a(f"s_add_u32 s15, s15, {WT_OFF}")
    a("s_waitcnt vmcnt(0)")
    for q in range(4):
        a(f"v_lshl_or_b32 v{8+q}, v{17+2*q}, 16, v{16+2*q}")
    a("buffer_store_dwordx4 v[8:11], v7, s[32:35], s15 offen")
    a("s_endpgm")
    a("K1_wsmall:")
    a("s_mov_b64 exec, s[36:37]")
    a("v_subrev_u32 v1, 512, v0")
    a("s_cmp_eq_u32 s14, 0")
    a("s_cbranch_scc0 K1_wcg")
    a("v_lshlrev_b32 v2, 1, v1")
    for kk in range(4):
        a(f"buffer_load_ushort v{8+kk}, v2, s[20:23], 0 offen offset:{kk*256}")
    a("v_lshlrev_b32 v3, 4, v1")
    a(f"s_mov_b32 s15, {WR_OFF}")
    a("s_waitcnt vmcnt(0)")
    for kk in range(4):
        a(f"v_lshlrev_b32 v{8+kk}, 16, v{8+kk}")
    a("buffer_store_dwordx4 v[8:11], v3, s[32:35], s15 offen")
    a("s_endpgm")
    a("K1_wcg:")
    a("s_cmp_eq_u32 s14, 1")
    a("s_cbranch_scc0 K1_end")
    a("v_cmp_gt_u32 vcc, 32, v1")
    a("s_and_saveexec_b64 s[36:37], vcc")
    a("s_cbranch_execz K1_end")
    a("v_lshrrev_b32 v2, 3, v1")
    a("v_bfe_u32 v3, v1, 1, 2")
    a("v_and_b32 v4, 1, v1")
    a("v_lshlrev_b32 v5, 5, v3")
    a("v_lshl_add_u32 v5, v4, 4, v5")
    a("v_lshl_add_u32 v5, v2, 1, v5")
    a("buffer_load_ushort v8, v5, s[16:19], 0 offen")
    a("buffer_load_ushort v9, v5, s[16:19], 0 offen offset:8")
    a("v_lshlrev_b32 v6, 2, v1")
    a(f"s_mov_b32 s15, {CG_OFF}")
    a("s_waitcnt vmcnt(0)")
    a("v_lshl_or_b32 v8, v9, 16, v8")
    a("buffer_store_dword v8, v6, s[32:35], s15 offen")
    a("s_endpgm")
    a("K1_touch:")
    stamp(0)
    a("s_load_dwordx2 s[4:5], s[0:1], 0")
    a(f"s_sub_u32 s14, s2, {P+NWPREP}")
    a(f"s_mul_i32 s14, s14, {K1_T*16*8}")
    a("v_lshlrev_b32 v1, 4, v0")
    a("s_waitcnt lgkmcnt(0)")
    srd(16, 4, N * 1024)
    for r in range(8):
        a(f"buffer_load_dwordx4 v[{8+4*r}:{11+4*r}], v1, s[16:19], s14 offen")
        a(f"s_add_u32 s14, s14, {K1_T*16}")
    stamp(1)
    a("s_waitcnt vmcnt(0)")
    stamp(2)
    stamp_flush(12, 0, 10, 3, 40)
    a("K1_end:")
    a("s_endpgm")

K2_T = 512
SLOTS = NPB * CAPN + 4
DUMMY = NPB * CAPN
L_REC = 0
L_SOFF = L_REC + SLOTS * 16
L_HIST = L_SOFF + SLOTS * 4
L_FLAG = L_HIST + NPB * 16
L_PRE = L_FLAG + 16
L_QN = L_PRE + NPB * 16
L_WT = (L_QN + 512 + 255) // 256 * 256
L_WR = L_WT + 32768
L_AGG = L_WT + 40960
AGG_RS = 272
K2_LDS = L_AGG + NPB * 4 * AGG_RS
OOB = 0x7f000000

ACC = 96; XB = 48; OPS = 40; AOP = 38; CG = 30
RECV = 20
AT = 24
V_EA = 28; V_SOFF = 29; V_ADDR = 19; V_COL16 = 18; V_G16 = 17; V_G4 = 16; V_E0 = 15; V_E1 = 14; V_EASEL = 13; V_T0 = 12; V_T1 = 11
V_LANE = 10
S_X = 8; S_WS = 12; S_OUT = 16
S_WAVE = 20; S_SELLO = 21; S_SELHI = 22; S_CNT = 23
S_S0 = 24; S_S1 = 26
S_E = 28
S_POS = 32; S_T = 33; S_I = 34; S_MODE = 35; S_RND = 36; S_MAXC = 37
S_MASK = 40
S_SAVE = 56

uid = [0]
def next_entry(dst):
    uid[0] += 1
    L = f"NE{uid[0]}"
    a(f"s_cmp_eq_u64 s[{S_S0}:{S_S0+1}], 0")
    a(f"s_cbranch_scc0 {L}")
    a(f"s_mov_b64 s[{S_S0}:{S_S0+1}], s[{S_S1}:{S_S1+1}]")
    a(f"s_mov_b64 s[{S_S1}:{S_S1+1}], 0")
    a(f"v_mov_b32 v{V_E0}, v{V_E1}")
    a(f"{L}:")
    a(f"s_ff1_i32_b64 s{S_POS}, s[{S_S0}:{S_S0+1}]")
    a(f"s_bitset0_b64 s[{S_S0}:{S_S0+1}], s{S_POS}")
    a(f"v_readlane_b32 s{dst}, v{V_E0}, s{S_POS}")
    a(f"s_cmp_lt_i32 s{S_POS}, 0")
    a(f"s_cselect_b32 s{dst}, {DUMMY}, s{dst}")

def read_soff(se):
    a(f"s_and_b32 s{S_T}, s{se}, 0xfff")
    a(f"v_lshl_add_u32 v{V_T0}, s{S_T}, 2, v{V_G4}")
    a(f"ds_read_b32 v{V_SOFF}, v{V_T0} offset:{L_SOFF}")

def read_rec(se):
    a(f"s_and_b32 s{S_T}, s{se}, 0xfff")
    a(f"v_lshl_add_u32 v{V_T1}, s{S_T}, 4, v{V_G16}")
    a(f"ds_read_b128 v[{RECV}:{RECV+3}], v{V_T1} offset:{L_REC}")

def issue_loads(b):
    a(f"v_add_u32 v{V_ADDR}, v{V_SOFF}, v{V_COL16}")
    for u in range(4):
        r = XB + 16 * b + 4 * u
        a(f"buffer_load_dwordx4 v[{r}:{r+3}], v{V_ADDR}, s[{S_X}:{S_X+3}], 0 offen offset:{u*256}")

def coefs():
    for u in range(4):
        a(f"v_dot2_f32_bf16 v{AT+u}, v{CG+2*u}, v{RECV}, 0")
    a(f"v_perm_b32 v{V_EA}, v{RECV+3}, v{RECV+2}, v{V_EASEL}")
    for u in range(4):
        a(f"v_dot2_f32_bf16 v{AT+u}, v{CG+2*u+1}, v{RECV+1}, v{AT+u}")

def coefs2():
    for u in range(4):
        a(f"v_mul_f32 v{AT+u}, v{AT+u}, v{V_EA}")
    a(f"v_cvt_pk_bf16_f32 v{AOP}, v{AT}, v{AT+1}")
    a(f"v_cvt_pk_bf16_f32 v{AOP+1}, v{AT+2}, v{AT+3}")

def gen_k2():
    k = "main_kernel"
    a(f".globl {k}\n.p2align 8\n.type {k},@function\n{k}:")
    a(f"s_cmp_ge_u32 s2, {NB}")
    a("s_cbranch_scc1 K2_end")
    stamp(0)
    a("s_load_dwordx2 s[4:5], s[0:1], 0")
    a("s_load_dwordx2 s[6:7], s[0:1], 80")
    a("s_load_dwordx2 s[58:59], s[0:1], 64")
    a(f"v_and_b32 v{V_LANE}, 63, v0")
    a("v_lshrrev_b32 v1, 6, v0")
    a("v_lshlrev_b32 v2, 2, v0")
    a("v_mov_b32 v3, 0")
    a(f"v_readfirstlane_b32 s{S_WAVE}, v1")
    a(f"v_cmp_gt_u32 vcc, {NPB*4+4}, v0")
    a(f"s_and_saveexec_b64 s[{S_SAVE}:{S_SAVE+1}], vcc")
    a(f"ds_write_b32 v2, v3 offset:{L_HIST}")
    a(f"s_mov_b64 exec, s[{S_SAVE}:{S_SAVE+1}]")
    a("v_lshrrev_b32 v4, 2, v0")
    a("v_and_b32 v5, 3, v0")
    a("v_lshlrev_b32 v6, 10, v4")
    a("s_lshl_b32 s3, s2, 2")
    a(f"s_add_u32 s3, s3, {OFFS_OFF}")
    a("v_lshlrev_b32 v7, 4, v0")
    a(f"v_bfe_u32 v8, v0, 2, 2")
    a("v_lshlrev_b32 v8, 5, v8")
    a("s_waitcnt lgkmcnt(0)")
    srd(S_X, 4, N * 1024)
    srd(S_WS, 6, WS_USED)
    srd(S_OUT, 58, N * 1024)
    a(f"buffer_load_dwordx2 v[2:3], v6, s[{S_WS}:{S_WS+3}], s3 offen")
    a(f"s_mov_b32 s3, {WT_OFF}")
    for r in range(5):
        a(f"buffer_load_dwordx4 v[{ACC+4*r}:{ACC+4*r+3}], v7, s[{S_WS}:{S_WS+3}], s3 offen")
        a(f"s_add_u32 s3, s3, {K2_T*16}")
    a(f"s_mov_b32 s3, {CG_OFF}")
    a(f"buffer_load_dwordx4 v[{CG}:{CG+3}], v8, s[{S_WS}:{S_WS+3}], s3 offen")
    a(f"buffer_load_dwordx4 v[{CG+4}:{CG+7}], v8, s[{S_WS}:{S_WS+3}], s3 offen offset:16")
    a("s_barrier")
    a(f"v_and_b32 v{V_COL16}, 15, v0")
    a(f"v_lshlrev_b32 v{V_COL16}, 4, v{V_COL16}")
    a(f"v_lshrrev_b32 v{V_G4}, 4, v{V_LANE}")
    a(f"v_lshlrev_b32 v{V_G16}, 4, v{V_G4}")
    a(f"v_lshlrev_b32 v{V_G4}, 2, v{V_G4}")
    a(f"v_mul_u32_u24 v{V_EASEL}, 0x0202, v5")
    a(f"v_add_u32 v{V_EASEL}, 0x0100, v{V_EASEL}")
    a(f"v_lshlrev_b32 v{V_EASEL}, 16, v{V_EASEL}")
    a(f"v_or_b32 v{V_EASEL}, 0x0c0c, v{V_EASEL}")
    a(f"s_mov_b32 s{S_SELLO}, 0x05040100")
    a(f"s_mov_b32 s{S_SELHI}, 0x07060302")
    a(f"s_mov_b32 s{S_MODE}, 0")
    a(f"v_mul_u32_u24 v6, {EPC}, v4")
    a("v_add_u32 v6, v6, v5")
    a("s_waitcnt vmcnt(7)")
    stamp(1)
    a("v_sub_u32 v9, v3, v2")
    a("v_add_u32 v6, v6, v2")
    a("v_sub_u32 v3, v9, v5")
    a("v_lshlrev_b32 v7, 4, v6")
    a("v_lshlrev_b32 v6, 2, v6")
    a(f"s_mov_b32 s3, {TAG_OFF}")
    RB = XB; TG = XB + 32; RK = XB + 40
    for r in range(NR):
        a(f"v_cmp_lt_i32 s[{S_MASK+2*r}:{S_MASK+2*r+1}], {4*r}, v3")
    for r in range(NR):
        a(f"s_mov_b64 exec, s[{S_MASK+2*r}:{S_MASK+2*r+1}]")
        a("s_cbranch_execz K2_ld_done")
        a(f"buffer_load_dword v{TG+r}, v6, s[{S_WS}:{S_WS+3}], s3 offen offset:{16*r}")
        a(f"buffer_load_dwordx4 v[{RB+4*r}:{RB+4*r+3}], v7, s[{S_WS}:{S_WS+3}], 0 offen offset:{64*r}")
    a("K2_ld_done:")
    a("s_mov_b64 exec, -1")
    if K2TOUCH:
        a("v_lshlrev_b32 v2, 4, v0")
        a("s_lshl_b32 s3, s2, 13")
        for r in range(5):
            a(f"buffer_load_dwordx4 v[{ACC+20}:{ACC+23}], v2, s[{S_X}:{S_X+3}], s3 offen")
            a(f"s_add_u32 s3, s3, {250*8192}")
    a(f"v_cmp_lt_u32 s[{S_SAVE}:{S_SAVE+1}], {4*NR}, v9")
    a("v_mov_b32 v1, 1")
    a("v_lshlrev_b32 v2, 4, v0")
    a(f"v_add_u32 v2, {L_WT}, v2")
    a("s_waitcnt vmcnt(5)" if K2TOUCH else "s_waitcnt vmcnt(0)")
    stamp(2)
    for r in range(NR):
        a(f"s_mov_b64 exec, s[{S_MASK+2*r}:{S_MASK+2*r+1}]")
        a("s_cbranch_execz K2_h_done")
        a(f"v_lshrrev_b32 v4, 14, v{TG+r}")
        a(f"v_and_b32 v5, 0xffc, v4")
        a(f"v_lshlrev_b32 v4, 3, v4")
        a(f"v_lshlrev_b32 v4, v4, v1")
        a(f"ds_add_rtn_u32 v{RK+r}, v5, v4 offset:{L_HIST}")
    a("K2_h_done:")
    a("s_mov_b64 exec, -1")
    for r in range(5):
        a(f"ds_write_b128 v2, v[{ACC+4*r}:{ACC+4*r+3}] offset:{r*K2_T*16}")
    a("s_waitcnt lgkmcnt(5)")
    for r in range(NR):
        a(f"s_mov_b64 exec, s[{S_MASK+2*r}:{S_MASK+2*r+1}]")
        a("s_cbranch_execz K2_r_done")
        a(f"v_lshrrev_b32 v4, 11, v{TG+r}")
        a(f"v_and_b32 v4, 24, v4")
        a(f"v_bfe_u32 v{RK+r}, v{RK+r}, v4, 8")
        a(f"v_cmp_lt_u32 vcc, {CAPN-1}, v{RK+r}")
        a(f"s_or_b64 s[{S_SAVE}:{S_SAVE+1}], s[{S_SAVE}:{S_SAVE+1}], vcc")
    a("K2_r_done:")
    a("s_mov_b64 exec, -1")
    a(f"s_cmp_eq_u64 s[{S_SAVE}:{S_SAVE+1}], 0")
    a("s_cbranch_scc1 K2_noflag")
    a(f"v_mov_b32 v4, {L_FLAG}")
    a("ds_write_b32 v4, v1")
    a("K2_noflag:")
    a(f"v_lshlrev_b32 v4, 4, v{V_LANE}")
    a(f"v_mov_b32 v5, {L_FLAG}")
    a("s_waitcnt lgkmcnt(0)")
    a("s_barrier")
    stamp(3)
    a(f"ds_read_b128 v[{RECV}:{RECV+3}], v4 offset:{L_HIST}")
    a("ds_read_b32 v5, v5")
    for r in range(160):
        if K2TOUCH and 20 <= r < 24: continue
        a(f"v_mov_b32 v{ACC+r}, 0")
    if K2TOUCH:
        a("s_waitcnt vmcnt(0)")
        for r in range(20, 24):
            a(f"v_mov_b32 v{ACC+r}, 0")
    a("s_waitcnt lgkmcnt(0)")
    a("s_mov_b32 s3, 0x01010101")
    a("v_mov_b32 v6, 0")
    for q in range(4):
        H = RECV + q
        a(f"v_lshlrev_b32 v{AT+q}, 8, v{H}")
        a(f"v_lshl_add_u32 v{AT+q}, v{H}, 16, v{AT+q}")
        a(f"v_lshl_add_u32 v{AT+q}, v{H}, 24, v{AT+q}")
        if q > 0:
            a(f"v_mul_lo_u32 v7, v6, s3")
            a(f"v_add_u32 v{AT+q}, v{AT+q}, v7")
        a(f"v_sad_u8 v6, v{H}, 0, v6")
    a(f"v_cmp_gt_u32 vcc, {NPB}, v{V_LANE}")
    a(f"s_and_saveexec_b64 s[{S_SAVE}:{S_SAVE+1}], vcc")
    a(f"ds_write_b128 v4, v[{AT}:{AT+3}] offset:{L_PRE}")
    a(f"v_cmp_lt_u32 vcc, {CAPN}, v6")
    a(f"s_mov_b64 exec, s[{S_SAVE}:{S_SAVE+1}]")
    a("v_readfirstlane_b32 s3, v5")
    a("s_cmp_lg_u64 vcc, 0")
    a("s_cbranch_scc1 K2_slow")
    a("s_cmp_lg_u32 s3, 0")
    a("s_cbranch_scc1 K2_slow")
    a(f"v_and_b32 v7, 7, v{V_LANE}")
    a(f"s_mul_i32 s3, s{S_WAVE}, 5")
    a("v_add_u32 v8, s3, v7")
    a("v_lshlrev_b32 v9, 2, v8")
    a("ds_bpermute_b32 v6, v9, v6")
    for r in range(NR):
        a(f"s_mov_b64 exec, s[{S_MASK+2*r}:{S_MASK+2*r+1}]")
        a("s_cbranch_execz K2_p_done")
        a(f"v_lshrrev_b32 v4, 14, v{TG+r}")
        a(f"ds_read_u8 v{OPS+r}, v4 offset:{L_PRE}")
    a("K2_p_done:")
    a("s_mov_b64 exec, -1")
    a("s_waitcnt lgkmcnt(0)")
    for r in range(NR):
        a(f"s_mov_b64 exec, s[{S_MASK+2*r}:{S_MASK+2*r+1}]")
        a("s_cbranch_execz K2_s_done")
        a(f"v_lshrrev_b32 v4, 18, v{TG+r}")
        a(f"v_lshl_add_u32 v4, v4, 6, v{OPS+r}")
        a(f"v_add_u32 v4, v4, v{RK+r}")
        a(f"v_lshlrev_b32 v5, 4, v4")
        a(f"v_lshlrev_b32 v4, 2, v4")
        a(f"v_and_b32 v{TG+r}, 0x3fff, v{TG+r}")
        a(f"v_lshlrev_b32 v{TG+r}, 10, v{TG+r}")
        a(f"ds_write_b128 v5, v[{RB+4*r}:{RB+4*r+3}] offset:{L_REC}")
        a(f"ds_write_b32 v4, v{TG+r} offset:{L_SOFF}")
    a("K2_s_done:")
    a("s_mov_b64 exec, -1")
    a("v_cmp_gt_u32 vcc, 5, v7")
    a("s_nop 1")
    a("v_cndmask_b32 v6, 0, v6, vcc")
    a("v_add_u32 v9, 3, v6")
    a("v_lshrrev_b32 v9, 2, v9")
    a(f"v_lshrrev_b32 v5, 3, v{V_LANE}")
    a("v_mad_u32_u24 v4, v5, v9, 7")
    a("v_lshlrev_b32 v8, 6, v8")
    a("v_lshl_add_u32 v1, v7, 12, v8")
    for half, (S, EV) in enumerate(((S_S0, V_E0), (S_S1, V_E1))):
        if half:
            a("v_lshl_add_u32 v4, v9, 3, v4")
        a("v_lshrrev_b32 v2, 4, v4")
        a("v_add_u32 v3, v4, v9")
        a("v_lshrrev_b32 v3, 4, v3")
        a(f"v_cmp_ne_u32 s[{S}:{S+1}], v2, v3")
        a(f"v_lshl_add_u32 v{EV}, v2, 2, v1")
    a("v_add_u32 v2, v6, v5")
    a("v_lshlrev_b32 v3, 2, v9")
    a("v_cmp_lt_u32 vcc, v2, v3")
    a("v_add_u32 v2, v8, v2")
    a(f"v_add_u32 v3, {DUMMY}, v7")
    a(f"v_subrev_u32 v4, 24, v{V_LANE}")
    a(f"v_cmp_gt_u32 s[{S_SAVE}:{S_SAVE+1}], 4, v4")
    a("s_nop 1")
    a(f"v_cndmask_b32 v2, v2, v3, s[{S_SAVE}:{S_SAVE+1}]")
    a(f"s_or_b64 exec, vcc, s[{S_SAVE}:{S_SAVE+1}]")
    a("v_lshlrev_b32 v3, 4, v2")
    a("v_lshlrev_b32 v2, 2, v2")
    a(f"v_mov_b32 v4, {OOB}")
    a(f"ds_write_b128 v3, v[{ACC}:{ACC+3}] offset:{L_REC}")
    a(f"ds_write_b32 v2, v4 offset:{L_SOFF}")
    a("s_mov_b64 exec, -1")
    a("s_waitcnt lgkmcnt(0)")
    a("s_barrier")
    stamp(4)
    a("K2_run:")
    a(f"s_bcnt1_i32_b64 s{S_CNT}, s[{S_S0}:{S_S0+1}]")
    a(f"s_bcnt1_i32_b64 s{S_T}, s[{S_S1}:{S_S1+1}]")
    a(f"s_add_u32 s{S_CNT}, s{S_CNT}, s{S_T}")
    a(f"s_cmp_eq_u32 s{S_CNT}, 0")
    a("s_cbranch_scc1 K2_loop_done")
    next_entry(S_E)
    read_soff(S_E)
    next_entry(S_E + 1)
    a("s_waitcnt lgkmcnt(0)")
    issue_loads(0)
    read_soff(S_E + 1)
    next_entry(S_E + 2)
    a("s_waitcnt lgkmcnt(0)")
    issue_loads(1)
    read_soff(S_E + 2)
    read_rec(S_E)
    for b in range(3):
        a(f"K2_loop{b}:")
        next_entry(S_E + 3)
        a("s_waitcnt lgkmcnt(0)")
        issue_loads((b + 2) % 3)
        coefs()
        read_soff(S_E + 3)
        read_rec(S_E + 1)
        coefs2()
        a(f"s_lshr_b32 s{S_I}, s{S_E}, 12")
        a(f"s_mov_b32 s{S_E}, s{S_E+1}")
        a(f"s_mov_b32 s{S_E+1}, s{S_E+2}")
        a(f"s_mov_b32 s{S_E+2}, s{S_E+3}")
        a("s_waitcnt vmcnt(8)")
        for i in range(1, 5):
            a(f"s_cmp_eq_u32 s{S_I}, {i}")
            a(f"s_cbranch_scc1 K2_blk{b}_{i}")
        for i in range(5):
            a(f"K2_blk{b}_{i}:")
            def mf(j):
                o = OPS + 2 * (j % 4); c = ACC + 32 * i + 4 * j
                a(f"v_mfma_f32_16x16x16_bf16 v[{c}:{c+3}], v[{AOP}:{AOP+1}], v[{o}:{o+1}], v[{c}:{c+3}]")
            for j in range(8):
                m = j >> 1; sel = S_SELHI if j & 1 else S_SELLO
                o = OPS + 2 * (j % 4)
                x = lambda u: XB + 16 * b + 4 * u + m
                a(f"v_perm_b32 v{o}, v{x(1)}, v{x(0)}, s{sel}")
                a(f"v_perm_b32 v{o+1}, v{x(3)}, v{x(2)}, s{sel}")
                if j > 0: mf(j - 1)
            a(f"s_sub_u32 s{S_CNT}, s{S_CNT}, 1")
            a(f"s_cmp_eq_u32 s{S_CNT}, 0")
            mf(7)
            a(f"s_cbranch_scc0 K2_loop{(b+1)%3}")
            a("s_branch K2_loop_done")
    a("K2_loop_done:")
    a(f"s_cmp_lg_u32 s{S_MODE}, 0")
    a("s_cbranch_scc1 K2_slow_next")
    a("K2_epi:")
    stamp(5)
    a("s_waitcnt vmcnt(0) lgkmcnt(0)")
    a(f"v_lshlrev_b32 v1, 3, v{V_COL16}")
    a(f"v_add_u32 v1, {L_WR}, v1")
    for j in range(8):
        a(f"ds_read_b128 v[{XB+4*j}:{XB+4*j+3}], v1 offset:{16*j}")
    a(f"s_mul_i32 s3, s{S_WAVE}, {20*AGG_RS}")
    a(f"s_add_u32 s3, s3, {L_AGG}")
    a(f"v_lshrrev_b32 v2, 4, v{V_LANE}")
    a(f"v_mul_u32_u24 v2, {AGG_RS}, v2")
    a(f"v_add3_u32 v2, v2, v{V_COL16}, s3")
    a("s_waitcnt lgkmcnt(0)")
    for i in range(5):
        for j in range(8):
            c = ACC + 32 * i + 4 * j; w = XB + 4 * j
            a(f"v_mul_f32 v{c}, v{c}, v{w}")
        for kk in range(1, 4):
            for j in range(8):
                c = ACC + 32 * i + 4 * j; w = XB + 4 * j
                a(f"v_fmac_f32 v{c}, v{c+kk}, v{w+kk}")
        o = OPS + 4 * (i % 2)
        for jj in range(4):
            c = ACC + 32 * i + 8 * jj
            a(f"v_cvt_pk_bf16_f32 v{o+jj}, v{c}, v{c+4}")
        a(f"ds_write_b128 v2, v[{o}:{o+3}] offset:{i*4*AGG_RS}")
    a(f"s_and_b32 s3, s{S_WAVE}, 3")
    a("s_lshl_b32 s4, s3, 13")
    a(f"s_add_u32 s4, s4, {L_WT}")
    a(f"v_lshl_add_u32 v1, v{V_LANE}, 4, s4")
    for x in range(8):
        a(f"ds_read_b128 v[{XB+4*x}:{XB+4*x+3}], v1 offset:{1024*x}")
    a(f"s_lshr_b32 s5, s{S_WAVE}, 2")
    a(f"s_mul_i32 s6, s5, {16*AGG_RS}")
    a(f"s_add_u32 s6, s6, {L_AGG}")
    a(f"v_and_b32 v3, 15, v{V_LANE}")
    a(f"v_mul_u32_u24 v4, {AGG_RS}, v3")
    a(f"v_add3_u32 v4, v4, v{V_G16}, s6")
    a("v_lshlrev_b32 v5, 8, v3")
    a(f"v_add_u32 v5, v5, v{V_G16}")
    a(f"s_mul_i32 s6, s2, {NPB*4*256}")
    a("s_lshl_b32 s7, s5, 12")
    a("s_add_u32 s6, s6, s7")
    a("s_lshl_b32 s7, s3, 6")
    a("s_add_u32 s6, s6, s7")
    a("s_waitcnt lgkmcnt(0)")
    a("s_barrier")
    stamp(6)
    BB = ACC
    for u in range(5):
        for t in range(4):
            r = BB + 16 * u + 4 * t
            a(f"ds_read_b128 v[{r}:{r+3}], v4 offset:{u*32*AGG_RS + t*64}")
    DD = ACC + 80
    for u in range(5):
        a(f"s_waitcnt lgkmcnt({min(15, 4*(4-u))})")
        for t in range(4):
            r = BB + 16 * u + 4 * t
            for hh in range(2):
                d = DD + 8 * u + 4 * hh; w = XB + 16 * hh + 4 * t
                c = "0" if t == 0 else f"v[{d}:{d+3}]"
                a(f"v_mfma_f32_16x16x32_bf16 v[{d}:{d+3}], v[{w}:{w+3}], v[{r}:{r+3}], {c}")
    a("s_nop 7")
    for u in range(5):
        d = DD + 8 * u
        o = BB + 4 * u
        for x in range(4):
            a(f"v_cvt_pk_bf16_f32 v{o+x}, v{d+2*x}, v{d+2*x+1}")
        a(f"buffer_store_dwordx4 v[{o}:{o+3}], v5, s[{S_OUT}:{S_OUT+3}], s6 offen")
        a(f"s_add_u32 s6, s6, {32*256}")
    stamp(7)
    if STAMP: a("s_waitcnt vmcnt(0)")
    stamp(8)
    stamp_flush(6, 1, 8, 9, 1)
    a("K2_end:")
    a("s_endpgm")
    a("K2_slow:")
    a(f"s_mov_b32 s{S_MODE}, 1")
    a(f"s_mov_b32 s{S_RND}, 0")
    a("v_lshlrev_b32 v1, 4, v0")
    a("v_lshlrev_b32 v2, 2, v0")
    a(f"v_mov_b32 v4, {OOB}")
    a(f"ds_write_b128 v1, v[{ACC}:{ACC+3}] offset:{L_REC}")
    a(f"ds_write_b32 v2, v4 offset:{L_SOFF}")
    a(f"v_and_b32 v1, 3, v0")
    a(f"v_add_u32 v1, {DUMMY}, v1")
    a("v_lshlrev_b32 v2, 2, v1")
    a("v_lshlrev_b32 v1, 4, v1")
    a(f"ds_write_b128 v1, v[{ACC}:{ACC+3}] offset:{L_REC}")
    a(f"ds_write_b32 v2, v4 offset:{L_SOFF}")
    a(f"v_lshlrev_b32 v1, 10, v{V_LANE}")
    a("s_lshl_b32 s3, s2, 2")
    a(f"s_add_u32 s3, s3, {OFFS_OFF}")
    a(f"buffer_load_dwordx2 v[2:3], v1, s[{S_WS}:{S_WS+3}], s3 offen")
    a("s_add_u32 s3, s3, 65536")
    a(f"buffer_load_dwordx2 v[4:5], v1, s[{S_WS}:{S_WS+3}], s3 offen")
    a("s_waitcnt vmcnt(0)")
    a("v_sub_u32 v3, v3, v2")
    a("v_sub_u32 v5, v5, v4")
    a("v_max_u32 v6, v3, v5")
    for sh in (1, 2, 4, 8):
        a("s_nop 1")
        a(f"v_max_u32_dpp v6, v6, v6 row_shr:{sh} row_mask:0xf bank_mask:0xf")
    a("s_nop 1")
    a("v_max_u32_dpp v6, v6, v6 row_bcast:15 row_mask:0xa bank_mask:0xf")
    a("s_nop 1")
    a("v_max_u32_dpp v6, v6, v6 row_bcast:31 row_mask:0xc bank_mask:0xf")
    a("s_nop 1")
    a(f"v_readlane_b32 s{S_MAXC}, v6, 63")
    a(f"s_cmp_eq_u32 s{S_WAVE}, 1")
    a("s_cselect_b64 vcc, -1, 0")
    a("v_cndmask_b32 v7, v2, v4, vcc")
    a("v_cndmask_b32 v8, v3, v5, vcc")
    a(f"v_mul_u32_u24 v6, {EPC}, v0")
    a("v_add_u32 v7, v7, v6")
    a("K2_slow_round:")
    a("s_waitcnt vmcnt(0) lgkmcnt(0)")
    a("s_barrier")
    a(f"s_cmp_ge_u32 s{S_RND}, s{S_MAXC}")
    a("s_cbranch_scc1 K2_epi")
    a(f"s_cmp_gt_u32 s{S_WAVE}, 1")
    a("s_cbranch_scc1 K2_slow_nofill")
    a("v_mov_b32 v9, -1")
    a(f"v_cmp_lt_u32 vcc, s{S_RND}, v8")
    a(f"s_and_saveexec_b64 s[{S_SAVE}:{S_SAVE+1}], vcc")
    a("s_cbranch_execz K2_slow_noload")
    a(f"v_add_u32 v1, s{S_RND}, v7")
    a("v_lshlrev_b32 v2, 4, v1")
    a("v_lshlrev_b32 v1, 2, v1")
    a(f"s_mov_b32 s3, {TAG_OFF}")
    a(f"buffer_load_dword v3, v1, s[{S_WS}:{S_WS+3}], s3 offen")
    a(f"buffer_load_dwordx4 v[{RECV}:{RECV+3}], v2, s[{S_WS}:{S_WS+3}], 0 offen")
    a("v_lshlrev_b32 v1, 6, v0")
    a("v_lshlrev_b32 v2, 4, v0")
    a("s_waitcnt vmcnt(0)")
    a("v_lshrrev_b32 v9, 18, v3")
    a("v_and_b32 v3, 0x3fff, v3")
    a("v_lshlrev_b32 v3, 10, v3")
    a(f"ds_write_b128 v1, v[{RECV}:{RECV+3}] offset:{L_REC}")
    a(f"ds_write_b32 v2, v3 offset:{L_SOFF}")
    a("K2_slow_noload:")
    a(f"s_mov_b64 exec, s[{S_SAVE}:{S_SAVE+1}]")
    a("v_lshlrev_b32 v1, 2, v0")
    a(f"ds_write_b32 v1, v9 offset:{L_QN}")
    a("K2_slow_nofill:")
    a("s_waitcnt lgkmcnt(0)")
    a("s_barrier")
    a(f"v_lshlrev_b32 v1, 2, v{V_LANE}")
    a(f"ds_read_b32 v2, v1 offset:{L_QN}")
    a(f"ds_read_b32 v3, v1 offset:{L_QN+256}")
    a(f"s_mul_i32 s3, s{S_WAVE}, 5")
    a("s_waitcnt lgkmcnt(0)")
    a("v_subrev_u32 v2, s3, v2")
    a("v_subrev_u32 v3, s3, v3")
    a(f"v_cmp_gt_u32 s[{S_S0}:{S_S0+1}], 5, v2")
    a(f"v_cmp_gt_u32 s[{S_S1}:{S_S1+1}], 5, v3")
    a(f"v_lshl_add_u32 v{V_E0}, v2, 12, v1")
    a("v_add_u32 v1, 256, v1")
    a(f"v_lshl_add_u32 v{V_E1}, v3, 12, v1")
    a("s_branch K2_run")
    a("K2_slow_next:")
    a(f"s_add_u32 s{S_RND}, s{S_RND}, 1")
    a("s_branch K2_slow_round")

def kd(name, nv, ns):
    return f""".p2align 6
.amdhsa_kernel {name}
  .amdhsa_next_free_vgpr {nv}
  .amdhsa_next_free_sgpr {ns}
  .amdhsa_accum_offset {(nv+3)//4*4}
  .amdhsa_group_segment_fixed_size 0
  .amdhsa_kernarg_size 88
  .amdhsa_user_sgpr_count 2
  .amdhsa_user_sgpr_kernarg_segment_ptr 1
  .amdhsa_system_sgpr_workgroup_id_x 1
.end_amdhsa_kernel"""

def main():
    hdr = open("cdna_kernels/" + NAME + ".s.ref").read().split("\n")
    hdr = [l for l in hdr[:12] if l.startswith(";")]
    print("\n".join(hdr))
    print(f"; @launch kernel=part_kernel grid=({K1_GRID},1,1) block=({K1_T},1,1) lds={K1_LDS}")
    print(f"; @launch kernel=main_kernel grid=({NB},1,1) block=({K2_T},1,1) lds={K2_LDS}")
    print('.amdgcn_target "amdgcn-amd-amdhsa--gfx950"')
    print(".text")
    gen_k1()
    gen_k2()
    print("\n".join(("" if (l.endswith(":") or l.startswith(".")) else "    ") + l for l in out))
    print('.section .rodata,"a"')
    print(kd("part_kernel", 64, 96 if STAMP else 48))
    print(kd("main_kernel", 256, 96 if STAMP else 64))

main()
```

```python
import sys, os

NAME = "gather_scatter__tensor_product_equiv_mace__graph"
N = 10000; E = 320000
P = 250; EPC = E // P
NB = 250; NPB = 40
NR = 10
CAPN = 64
env = lambda k, d: type(d)(os.environ.get(k, d))
STAMP = env("STAMP", 0)
STMOD = env("STMOD", "")
K2TOUCH = env("K2TOUCH", 1)
K1TOUCH = env("K1TOUCH", 0)
CODEPF = env("CODEPF", 1)
BAL = env("BAL", 1)
NOCOMP = env("NOCOMP", 0)
NOMEM = env("NOMEM", 0)

REC_OFF = 0
TAG_OFF = REC_OFF + E * 16
OFFS_OFF = TAG_OFF + E * 4
WT_OFF = OFFS_OFF + 256 * 1024
WR_OFF = WT_OFF + 32768
CG_OFF = WR_OFF + 2048
WS_USED = WT_OFF + 40960 + 4096
DBG_OFF = 8 << 20

out = []
def a(s): out.append(s)
def stamp(i):
    if STAMP: a(f"s_memrealtime s[{64+2*i}:{65+2*i}]")
def stamp_flush(kidx, wavesper, n, swave, vt=1):
    if not STAMP: return
    a("s_mov_b64 exec, -1")
    a("s_load_dwordx2 s[90:91], s[0:1], 80")
    a(f"s_mul_i32 s92, s2, {wavesper}")
    a(f"s_add_u32 s92, s92, s{swave}")
    a(f"s_lshl_b32 s92, s92, 6")
    a(f"s_add_u32 s92, s92, {DBG_OFF + kidx*(1<<20)}")
    a(f"v_mov_b32 v{vt}, s92")
    a("s_waitcnt lgkmcnt(0)")
    a("s_mov_b64 exec, 1")
    for i in range(n):
        a(f"v_mov_b32 v{vt+1}, s{64+2*i}")
        a(f"global_store_dword v{vt}, v{vt+1}, s[90:91] offset:{4*i}")

def srd(d, base, nbytes):
    a(f"s_mov_b32 s{d}, s{base}")
    a(f"s_and_b32 s{d+1}, s{base+1}, 0xffff")
    a(f"s_mov_b32 s{d+2}, {nbytes}")
    a(f"s_mov_b32 s{d+3}, 0x20000")

def wave_scan(v, op="v_add_u32_dpp"):
    for sh in (1, 2, 4, 8):
        a("s_nop 1")
        a(f"{op} v{v}, v{v}, v{v} row_shr:{sh} row_mask:0xf bank_mask:0xf")
    a("s_nop 1")
    a(f"{op} v{v}, v{v}, v{v} row_bcast:15 row_mask:0xa bank_mask:0xf")
    a("s_nop 1")
    a(f"{op} v{v}, v{v}, v{v} row_bcast:31 row_mask:0xc bank_mask:0xf")

K1_T = 320
K1_HIST = 0; K1_OFFS = 1024; K1_TAG = 2048; K1_REC = K1_TAG + EPC * 4
K1_LDS = K1_REC + EPC * 16
NWPREP = 8
K1_GRID = P + NWPREP

def gen_k1():
    k = "part_kernel"
    a(f".globl {k}\n.p2align 8\n.type {k},@function\n{k}:")
    a(f"s_cmp_ge_u32 s2, {K1_GRID}")
    a("s_cbranch_scc1 K1_end")
    a(f"s_cmp_ge_u32 s2, {P}")
    a("s_cbranch_scc1 K1_wprep")
    stamp(0)
    a("s_load_dwordx4 s[4:7], s[0:1], 8")
    a("s_load_dwordx4 s[8:11], s[0:1], 24")
    a("s_load_dwordx2 s[12:13], s[0:1], 80")
    if K1TOUCH: a("s_load_dwordx2 s[44:45], s[0:1], 0")
    a("v_lshlrev_b32 v1, 4, v0")
    a("v_lshlrev_b32 v2, 5, v0")
    a("v_lshlrev_b32 v3, 2, v0")
    a("v_mov_b32 v4, 0")
    a(f"ds_write_b32 v3, v4 offset:{K1_HIST}")
    a(f"s_mul_i32 s14, s2, {EPC*4}")
    a(f"s_mul_i32 s15, s2, {EPC*8}")
    a("v_lshrrev_b32 v5, 6, v0")
    a("s_waitcnt lgkmcnt(0)")
    srd(20, 6, E * 4)
    a("buffer_load_dwordx4 v[8:11], v1, s[20:23], s14 offen")
    srd(16, 4, E * 4)
    a("buffer_load_dwordx4 v[12:15], v1, s[16:19], s14 offen")
    srd(24, 8, E * 8)
    srd(28, 10, E * 8)
    srd(32, 12, WS_USED)
    a("v_readfirstlane_b32 s47, v5")
    a("s_barrier")
    a("buffer_load_dwordx4 v[16:19], v2, s[24:27], s15 offen")
    a("buffer_load_dwordx4 v[20:23], v2, s[24:27], s15 offen offset:16")
    a("buffer_load_dwordx4 v[24:27], v2, s[28:31], s15 offen")
    a("buffer_load_dwordx4 v[28:31], v2, s[28:31], s15 offen offset:16")
    a("s_mov_b32 s40, 52429")
    a("s_mov_b32 s41, -40")
    a("s_mov_b32 s42, 6711")
    a("v_mov_b32 v5, 1")
    a("v_and_b32 v6, 63, v0")
    a("v_lshlrev_b32 v6, 4, v6")
    a("s_waitcnt vmcnt(5)")
    stamp(1)
    for e in range(4):
        a(f"v_mul_u32_u24 v{32+e}, s40, v{8+e}")
        a(f"v_lshrrev_b32 v{32+e}, 21, v{32+e}")
        a(f"v_lshlrev_b32 v{36+e}, 2, v{32+e}")
        a(f"ds_add_rtn_u32 v{40+e}, v{36+e}, v5 offset:{K1_HIST}")
    a("s_waitcnt vmcnt(4)")
    for e in range(4):
        a(f"v_mad_i32_i24 v{8+e}, v{32+e}, s41, v{8+e}")
        a(f"v_mul_u32_u24 v{32+e}, s42, v{12+e}")
        a(f"v_lshrrev_b32 v{32+e}, 22, v{32+e}")
        a(f"v_lshl_add_u32 v{8+e}, v{8+e}, 4, v{32+e}")
        a(f"v_lshl_add_u32 v{12+e}, v{8+e}, 14, v{12+e}")
    a("s_waitcnt lgkmcnt(0)")
    a("s_barrier")
    stamp(2)
    if K1TOUCH:
        srd(36, 44, N * 1024)
        a(f"s_mul_i32 s46, s2, {K1_T*16}")
        for r in range(K1TOUCH):
            a("buffer_load_dwordx4 v[56:59], v1, s[36:39], s46 offen")
            a(f"s_add_u32 s46, s46, {P*K1_T*16}")
    a(f"ds_read_b128 v[44:47], v6 offset:{K1_HIST}")
    a("s_waitcnt lgkmcnt(0)")
    a("v_add_u32 v48, v44, v45")
    a("v_add3_u32 v48, v48, v46, v47")
    a("v_mov_b32 v49, v48")
    wave_scan(49)
    a("v_sub_u32 v52, v49, v48")
    a("v_add_u32 v53, v52, v44")
    a("v_add_u32 v54, v53, v45")
    a("v_add_u32 v55, v54, v46")
    a(f"ds_write_b128 v6, v[52:55] offset:{K1_OFFS}")
    for e in range(4):
        a(f"ds_read_b32 v{32+e}, v{36+e} offset:{K1_OFFS}")
    a("s_cmp_lg_u32 s47, 0")
    a("s_cbranch_scc1 K1_noffs")
    a("s_lshl_b32 s43, s2, 10")
    a(f"s_add_u32 s43, s43, {OFFS_OFF}")
    a(f"buffer_store_dwordx4 v[52:55], v6, s[32:35], s43 offen {STMOD}")
    a(f"s_waitcnt vmcnt({K1TOUCH+1}) lgkmcnt(0)")
    a("s_branch K1_go")
    a("K1_noffs:")
    a(f"s_waitcnt vmcnt({K1TOUCH}) lgkmcnt(0)")
    a("K1_go:")
    stamp(3)
    for e in range(4):
        a(f"v_add_u32 v{32+e}, v{32+e}, v{40+e}")
        a(f"v_lshlrev_b32 v{36+e}, 4, v{32+e}")
        a(f"v_add_u32 v{36+e}, {K1_REC}, v{36+e}")
        a(f"v_lshlrev_b32 v{32+e}, 2, v{32+e}")
        a(f"ds_write2_b64 v{36+e}, v[{16+2*e}:{17+2*e}], v[{24+2*e}:{25+2*e}] offset0:0 offset1:1")
        a(f"ds_write_b32 v{32+e}, v{12+e} offset:{K1_TAG}")
    a(f"s_mul_i32 s43, s2, {EPC*16}")
    a(f"s_add_u32 s46, s14, {TAG_OFF}")
    a("s_waitcnt lgkmcnt(0)")
    a("s_barrier")
    stamp(4)
    a(f"ds_read_b128 v[24:27], v1 offset:{K1_TAG}")
    for r in range(4):
        a(f"ds_read_b128 v[{8+4*r}:{11+4*r}], v1 offset:{K1_REC + r*K1_T*16}")
    a("s_waitcnt lgkmcnt(4)")
    a(f"buffer_store_dwordx4 v[24:27], v1, s[32:35], s46 offen {STMOD}")
    for r in range(4):
        a(f"s_waitcnt lgkmcnt({3-r})")
        a(f"buffer_store_dwordx4 v[{8+4*r}:{11+4*r}], v1, s[32:35], s43 offen {STMOD}")
        a(f"s_add_u32 s43, s43, {K1_T*16}")
    stamp(5)
    if STAMP: a("s_waitcnt vmcnt(0)")
    stamp(6)
    stamp_flush(0, 5, 7, 47, 40)
    a("s_endpgm")
    a("K1_wprep:")
    a("s_load_dwordx4 s[4:7], s[0:1], 40")
    a("s_load_dwordx2 s[8:9], s[0:1], 56")
    a("s_load_dwordx2 s[12:13], s[0:1], 80")
    a(f"s_sub_u32 s14, s2, {P}")
    a("s_waitcnt lgkmcnt(0)")
    srd(16, 4, 128)
    srd(20, 6, 1024)
    srd(24, 8, 32768)
    srd(32, 12, WS_USED)
    a("v_cmp_gt_u32 vcc, 256, v0")
    a("s_and_saveexec_b64 s[36:37], vcc")
    a("s_cbranch_execz K1_wsmall")
    a("v_bfe_u32 v2, v0, 6, 2")
    a("v_bfe_u32 v3, v0, 4, 2")
    a("v_bfe_u32 v4, v0, 2, 2")
    a("v_and_b32 v5, 3, v0")
    a("v_lshlrev_b32 v6, 13, v2")
    a("v_lshl_add_u32 v6, v3, 11, v6")
    a("v_lshl_add_u32 v6, v4, 4, v6")
    a("v_lshl_add_u32 v6, v5, 1, v6")
    a("s_lshr_b32 s15, s14, 1")
    a("s_lshl_b32 s15, s15, 6")
    a("s_and_b32 s38, s14, 1")
    a("s_lshl_b32 s38, s38, 3")
    a("s_add_u32 s15, s15, s38")
    for q in range(8):
        a(f"buffer_load_ushort v{16+q}, v6, s[24:27], s15 offen offset:{q*256}")
    a("v_lshlrev_b32 v7, 4, v0")
    a("s_lshl_b32 s15, s14, 12")
    a(f"s_add_u32 s15, s15, {WT_OFF}")
    a("s_waitcnt vmcnt(0)")
    for q in range(4):
        a(f"v_lshl_or_b32 v{8+q}, v{17+2*q}, 16, v{16+2*q}")
    a("buffer_store_dwordx4 v[8:11], v7, s[32:35], s15 offen")
    a("s_endpgm")
    a("K1_wsmall:")
    a("s_mov_b64 exec, s[36:37]")
    a("v_subrev_u32 v1, 256, v0")
    a("s_cmp_lt_u32 s14, 2")
    a("s_cbranch_scc0 K1_wcg")
    a("s_lshl_b32 s15, s14, 6")
    a("v_add_u32 v1, s15, v1")
    a("v_lshlrev_b32 v2, 1, v1")
    for kk in range(4):
        a(f"buffer_load_ushort v{8+kk}, v2, s[20:23], 0 offen offset:{kk*256}")
    a("v_lshlrev_b32 v3, 4, v1")
    a(f"s_mov_b32 s15, {WR_OFF}")
    a("s_waitcnt vmcnt(0)")
    for kk in range(4):
        a(f"v_lshlrev_b32 v{8+kk}, 16, v{8+kk}")
    a("buffer_store_dwordx4 v[8:11], v3, s[32:35], s15 offen")
    a("s_endpgm")
    a("K1_wcg:")
    a("s_cmp_eq_u32 s14, 2")
    a("s_cbranch_scc0 K1_wcode")
    a("v_cmp_gt_u32 vcc, 32, v1")
    a("s_and_saveexec_b64 s[36:37], vcc")
    a("v_lshrrev_b32 v2, 3, v1")
    a("v_bfe_u32 v3, v1, 1, 2")
    a("v_and_b32 v4, 1, v1")
    a("v_lshlrev_b32 v5, 5, v3")
    a("v_lshl_add_u32 v5, v4, 4, v5")
    a("v_lshl_add_u32 v5, v2, 1, v5")
    a("buffer_load_ushort v8, v5, s[16:19], 0 offen")
    a("buffer_load_ushort v9, v5, s[16:19], 0 offen offset:8")
    a("v_lshlrev_b32 v6, 2, v1")
    a(f"s_mov_b32 s15, {CG_OFF}")
    a("s_waitcnt vmcnt(0)")
    a("v_lshl_or_b32 v8, v9, 16, v8")
    a("buffer_store_dword v8, v6, s[32:35], s15 offen")
    a("s_endpgm")
    a("K1_wcode:")
    if CODEPF:
        a("s_cmp_eq_u32 s14, 3")
        a("s_cbranch_scc0 K1_end")
        a("s_getpc_b64 s[40:41]")
        a("K1_pc:")
        a("s_add_u32 s40, s40, main_kernel-K1_pc")
        a("s_addc_u32 s41, s41, 0")
        a("v_lshlrev_b32 v2, 6, v1")
        for r in range(4):
            a("v_cmp_gt_u32 vcc, K2_code_end-main_kernel, v2")
            a("s_and_b64 exec, exec, vcc")
            a("s_cbranch_execz K1_wcode_done")
            a(f"global_load_dword v{8+r}, v2, s[40:41]")
            a("v_add_u32 v2, 4096, v2")
        a("K1_wcode_done:")
        a("s_waitcnt vmcnt(0)")
    a("K1_end:")
    a("s_endpgm")

K2_T = 512
SLOTS = NPB * CAPN + 4
DUMMY = NPB * CAPN
L_REC = 0
L_SOFF = L_REC + SLOTS * 16
L_HIST = L_SOFF + SLOTS * 4
L_FLAG = L_HIST + NPB * 16
L_PRE = L_FLAG + 16
L_QN = L_PRE + NPB * 16
L_WT = (L_QN + 1024 + 255) // 256 * 256
L_WR = L_WT + 32768
L_AGG = L_WT + 32768 + 2048
AGG_RS = 272
K2_LDS = L_AGG + NPB * 4 * AGG_RS
OOB = 0x7f000000
NXB = 4

ACC = 96; XB = 32; CG = 24; OPS = 18; AOP = 16; RECV = 12; AT = 8
V_EA = 7; V_SOFF = 6; V_T = 5; V_COL16 = 4; V_G = 3; V_E0 = 2; V_E1 = 1; V_EASEL = 0
S_X = 8; S_WS = 12; S_OUT = 16
S_WAVE = 20; S_SELLO = 21; S_SELHI = 22; S_CNT = 23
S_S0 = 24; S_S1 = 26
S_E = 28
S_POS = 33; S_T = 34; S_I = 35; S_MODE = 36; S_RND = 37; S_MAXC = 38; S_B = 39
S_MASK = 40
S_SAVE = 60
S_NODE = 94
uid = [0]
def next_entry(dst):
    uid[0] += 1
    L = f"NE{uid[0]}"
    a(f"s_cmp_eq_u64 s[{S_S0}:{S_S0+1}], 0")
    a(f"s_cbranch_scc0 {L}")
    a(f"s_mov_b64 s[{S_S0}:{S_S0+1}], s[{S_S1}:{S_S1+1}]")
    a(f"s_mov_b64 s[{S_S1}:{S_S1+1}], 0")
    a(f"v_mov_b32 v{V_E0}, v{V_E1}")
    a(f"{L}:")
    a(f"s_ff1_i32_b64 s{S_POS}, s[{S_S0}:{S_S0+1}]")
    a(f"s_bitset0_b64 s[{S_S0}:{S_S0+1}], s{S_POS}")
    a(f"v_readlane_b32 s{dst}, v{V_E0}, s{S_POS}")
    a(f"s_cmp_lt_i32 s{S_POS}, 0")
    a(f"s_cselect_b32 s{dst}, {DUMMY}, s{dst}")

def read_soff(se):
    a(f"s_and_b32 s{S_T}, s{se}, 0xfff")
    a(f"v_add_lshl_u32 v{V_T}, s{S_T}, v{V_G}, 2")
    a(f"ds_read_b32 v{V_SOFF}, v{V_T} offset:{L_SOFF}")

def read_rec(se):
    a(f"s_and_b32 s{S_T}, s{se}, 0xfff")
    a(f"v_add_lshl_u32 v{V_T}, s{S_T}, v{V_G}, 4")
    a(f"ds_read_b128 v[{RECV}:{RECV+3}], v{V_T} offset:{L_REC}")

def issue_loads(b):
    a(f"v_add_u32 v{V_T}, v{V_SOFF}, v{V_COL16}")
    if NOMEM == 1: a(f"v_mov_b32 v{V_T}, {OOB}")
    if NOMEM == 2: a(f"v_and_b32 v{V_T}, 0x3fff, v{V_T}")
    if NOMEM == 3: a(f"v_and_b32 v{V_T}, 0xfffff, v{V_T}")
    for u in range(4):
        r = XB + 16 * b + 4 * u
        a(f"buffer_load_dwordx4 v[{r}:{r+3}], v{V_T}, s[{S_X}:{S_X+3}], 0 offen offset:{u*256}")

def coefs():
    for u in range(4):
        a(f"v_dot2_f32_bf16 v{AT+u}, v{CG+2*u}, v{RECV}, 0")
    a(f"v_perm_b32 v{V_EA}, v{RECV+3}, v{RECV+2}, v{V_EASEL}")
    for u in range(4):
        a(f"v_dot2_f32_bf16 v{AT+u}, v{CG+2*u+1}, v{RECV+1}, v{AT+u}")

def coefs2():
    for u in range(4):
        a(f"v_mul_f32 v{AT+u}, v{AT+u}, v{V_EA}")
    a(f"v_cvt_pk_bf16_f32 v{AOP}, v{AT}, v{AT+1}")
    a(f"v_cvt_pk_bf16_f32 v{AOP+1}, v{AT+2}, v{AT+3}")

def lane_id(v):
    a(f"v_mbcnt_lo_u32_b32 v{v}, -1, 0")
    a(f"v_mbcnt_hi_u32_b32 v{v}, -1, v{v}")

def gen_k2():
    k = "main_kernel"
    a(f".globl {k}\n.p2align 8\n.type {k},@function\n{k}:")
    a("s_cmp_ge_u32 s2, 256")
    a("s_cbranch_scc1 K2_end")
    stamp(0)
    a("s_load_dwordx2 s[4:5], s[0:1], 0")
    a("s_load_dwordx2 s[6:7], s[0:1], 80")
    a("s_load_dwordx2 s[62:63], s[0:1], 64")
    a("s_and_b32 s3, s2, 7")
    a(f"s_mul_i32 s3, s3, {NB}")
    a(f"s_add_u32 s{S_T}, s3, {NB}")
    a("s_lshr_b32 s3, s3, 3")
    a(f"s_lshr_b32 s{S_T}, s{S_T}, 3")
    a(f"s_lshr_b32 s{S_B}, s2, 3")
    a(f"s_add_u32 s{S_B}, s{S_B}, s3")
    a(f"s_cmp_ge_u32 s{S_B}, s{S_T}")
    a("s_cbranch_scc1 K2_end")
    TID = 23; LANE = 22
    a(f"v_mov_b32 v{TID}, v0")
    a(f"v_and_b32 v{LANE}, 63, v0")
    a("v_lshrrev_b32 v1, 6, v0")
    a("v_lshlrev_b32 v2, 2, v0")
    a("v_mov_b32 v3, 0")
    a(f"v_readfirstlane_b32 s{S_WAVE}, v1")
    a(f"v_cmp_gt_u32 vcc, {NPB*4+4}, v0")
    a(f"s_and_saveexec_b64 s[{S_SAVE}:{S_SAVE+1}], vcc")
    a(f"ds_write_b32 v2, v3 offset:{L_HIST}")
    a(f"s_mov_b64 exec, s[{S_SAVE}:{S_SAVE+1}]")
    a("v_lshrrev_b32 v8, 1, v0")
    a("v_and_b32 v9, 1, v0")
    a("v_lshlrev_b32 v10, 10, v8")
    a(f"s_lshl_b32 s3, s{S_B}, 2")
    a(f"s_add_u32 s3, s3, {OFFS_OFF}")
    a("s_waitcnt lgkmcnt(0)")
    srd(S_WS, 6, WS_USED)
    a(f"buffer_load_dwordx2 v[12:13], v10, s[{S_WS}:{S_WS+3}], s3 offen")
    a(f"s_lshl_b32 s3, s{S_WAVE}, 8")
    a(f"s_add_u32 s3, s3, {L_WR}")
    a("s_mov_b32 m0, s3")
    a(f"s_mov_b32 s3, {WR_OFF}")
    a(f"buffer_load_dword v2, s[{S_WS}:{S_WS+3}], s3 offen lds")
    srd(S_X, 4, N * 1024)
    srd(S_OUT, 62, N * 1024)
    if CODEPF:
        a("s_getpc_b64 s[4:5]")
        a("K2_pc:")
        a(f"v_lshlrev_b32 v14, 7, v{TID}")
        a("v_cmp_gt_u32 vcc, K2_code_end-K2_pc, v14")
        a(f"s_and_saveexec_b64 s[{S_SAVE}:{S_SAVE+1}], vcc")
        a("s_cbranch_execz K2_nocpf")
        a("global_load_dword v15, v14, s[4:5]")
        a("K2_nocpf:")
        a(f"s_mov_b64 exec, s[{S_SAVE}:{S_SAVE+1}]")
    a("s_barrier")
    for r in range(160):
        a(f"v_mov_b32 v{ACC+r}, 0")
    a(f"v_and_b32 v{V_COL16}, 15, v{TID}")
    a(f"v_lshlrev_b32 v{V_COL16}, 4, v{V_COL16}")
    a(f"v_lshrrev_b32 v{V_G}, 4, v{LANE}")
    a(f"v_and_b32 v{V_EASEL}, 3, v{TID}")
    a(f"v_mul_u32_u24 v{V_EASEL}, 0x0202, v{V_EASEL}")
    a(f"v_add_u32 v{V_EASEL}, 0x0100, v{V_EASEL}")
    a(f"v_lshlrev_b32 v{V_EASEL}, 16, v{V_EASEL}")
    a(f"v_or_b32 v{V_EASEL}, 0x0c0c, v{V_EASEL}")
    a(f"s_mov_b32 s{S_SELLO}, 0x05040100")
    a(f"s_mov_b32 s{S_SELHI}, 0x07060302")
    a(f"s_mov_b32 s{S_MODE}, 0")
    a(f"v_mul_u32_u24 v10, {EPC}, v8")
    a("v_add_u32 v10, v10, v9")
    a(f"v_bfe_u32 v16, v{TID}, 2, 2")
    a("v_lshlrev_b32 v16, 5, v16")
    a(f"v_cmp_gt_u32 vcc, {P}, v8")
    a("s_waitcnt vmcnt(0)")
    stamp(1)
    a("v_sub_u32 v11, v13, v12")
    a("v_cndmask_b32 v11, 0, v11, vcc")
    a("v_add_u32 v10, v10, v12")
    a("v_sub_u32 v13, v11, v9")
    a("v_lshlrev_b32 v14, 4, v10")
    a("v_lshlrev_b32 v10, 2, v10")
    a(f"s_mov_b32 s3, {TAG_OFF}")
    RB = XB; TG = XB + 40; RK = XB + 50
    M = lambda r: f"s[{S_MASK+2*r}:{S_MASK+2*r+1}]"
    for r in range(NR):
        a(f"v_cmp_lt_i32 {M(r)}, {2*r}, v13")
    for r in range(NR):
        a(f"s_mov_b64 exec, {M(r)}")
        a("s_cbranch_execz K2_ld_done")
        a(f"buffer_load_dword v{TG+r}, v10, s[{S_WS}:{S_WS+3}], s3 offen offset:{8*r}")
        a(f"buffer_load_dwordx4 v[{RB+4*r}:{RB+4*r+3}], v14, s[{S_WS}:{S_WS+3}], 0 offen offset:{32*r}")
    a("K2_ld_done:")
    a("s_mov_b64 exec, -1")
    a(f"s_mov_b32 s3, {CG_OFF}")
    a(f"buffer_load_dwordx4 v[{CG}:{CG+3}], v16, s[{S_WS}:{S_WS+3}], s3 offen")
    a(f"buffer_load_dwordx4 v[{CG+4}:{CG+7}], v16, s[{S_WS}:{S_WS+3}], s3 offen offset:16")
    a(f"v_cmp_lt_u32 s[{S_SAVE}:{S_SAVE+1}], {2*NR}, v11")
    a("v_mov_b32 v17, 1")
    a("s_waitcnt vmcnt(2)")
    stamp(2)
    for r in range(NR):
        a(f"s_mov_b64 exec, {M(r)}")
        a("s_cbranch_execz K2_h_done")
        a(f"v_lshrrev_b32 v8, 14, v{TG+r}")
        a(f"v_and_b32 v9, 0xffc, v8")
        a(f"v_lshlrev_b32 v8, 3, v8")
        a(f"v_lshlrev_b32 v8, v8, v17")
        a(f"ds_add_rtn_u32 v{RK+r}, v9, v8 offset:{L_HIST}")
    a("K2_h_done:")
    a("s_mov_b64 exec, -1")
    a("s_waitcnt lgkmcnt(0)")
    for r in range(NR):
        a(f"s_mov_b64 exec, {M(r)}")
        a("s_cbranch_execz K2_r_done")
        a(f"v_lshrrev_b32 v8, 11, v{TG+r}")
        a(f"v_and_b32 v8, 24, v8")
        a(f"v_bfe_u32 v{RK+r}, v{RK+r}, v8, 8")
        a(f"v_cmp_lt_u32 vcc, {CAPN-1}, v{RK+r}")
        a(f"s_or_b64 s[{S_SAVE}:{S_SAVE+1}], s[{S_SAVE}:{S_SAVE+1}], vcc")
    a("K2_r_done:")
    a("s_mov_b64 exec, -1")
    a(f"v_mov_b32 v9, {L_FLAG}")
    a(f"s_cmp_eq_u64 s[{S_SAVE}:{S_SAVE+1}], 0")
    a("s_cbranch_scc1 K2_noflag")
    a("ds_write_b32 v9, v17")
    a("K2_noflag:")
    a(f"v_lshlrev_b32 v8, 4, v{LANE}")
    a("s_waitcnt lgkmcnt(0)")
    a("s_barrier")
    stamp(3)
    a(f"ds_read_b128 v[12:15], v8 offset:{L_HIST}")
    a("ds_read_b32 v9, v9")
    a(f"v_lshlrev_b32 v10, 4, v{TID}")
    a(f"s_lshl_b32 s3, s{S_WAVE}, 10")
    a(f"s_add_u32 s3, s3, {L_WT}")
    a(f"s_mov_b32 s4, {WT_OFF}")
    for r in range(4):
        a("s_mov_b32 m0, s3")
        a(f"s_add_u32 s3, s3, {K2_T*16}")
        a(f"buffer_load_dwordx4 v10, s[{S_WS}:{S_WS+3}], s4 offen lds")
        a(f"s_add_u32 s4, s4, {K2_T*16}")
    if K2TOUCH:
        per = K2_T * 16
        ntot = N * 1024 // (NB * per)
        k1bytes = K1TOUCH * P * K1_T * 16
        a(f"s_lshl_b32 s3, s{S_B}, 13")
        for r in range(ntot):
            if (r + 1) * NB * per <= k1bytes:
                continue
            a(f"s_add_u32 s4, s3, {r*NB*per}")
            a(f"buffer_load_dwordx4 v[{XB+60}:{XB+63}], v10, s[{S_X}:{S_X+3}], s4 offen")
    a("s_waitcnt lgkmcnt(0)")
    a("s_mov_b32 s3, 0x01010101")
    a("v_mov_b32 v10, 0")
    PW = 18
    for q in range(4):
        H = 12 + q
        a(f"v_lshlrev_b32 v{PW+q}, 8, v{H}")
        a(f"v_lshl_add_u32 v{PW+q}, v{H}, 16, v{PW+q}")
        a(f"v_lshl_add_u32 v{PW+q}, v{H}, 24, v{PW+q}")
        if q > 0:
            a(f"v_mul_lo_u32 v11, v10, s3")
            a(f"v_add_u32 v{PW+q}, v{PW+q}, v11")
        a(f"v_sad_u8 v10, v{H}, 0, v10")
    a(f"v_cmp_gt_u32 vcc, {NPB}, v{LANE}")
    a(f"s_and_saveexec_b64 s[{S_SAVE}:{S_SAVE+1}], vcc")
    a(f"ds_write_b128 v8, v[{PW}:{PW+3}] offset:{L_PRE}")
    a(f"v_cmp_lt_u32 vcc, {CAPN}, v10")
    a(f"s_mov_b64 exec, s[{S_SAVE}:{S_SAVE+1}]")
    a("v_readfirstlane_b32 s3, v9")
    a("s_cmp_lg_u64 vcc, 0")
    a("s_cbranch_scc1 K2_slow")
    a("s_cmp_lg_u32 s3, 0")
    a("s_cbranch_scc1 K2_slow")
    PR = [12, 13, 14, 15, 16, 17, 18, 19, 20, 21]
    for r in range(NR):
        a(f"s_mov_b64 exec, {M(r)}")
        a("s_cbranch_execz K2_p_done")
        a(f"v_lshrrev_b32 v8, 14, v{TG+r}")
        a(f"ds_read_u8 v{PR[r]}, v8 offset:{L_PRE}")
    a("K2_p_done:")
    a("s_mov_b64 exec, -1")
    a(f"v_and_b32 v7, 7, v{LANE}")
    if BAL:
        a("v_add_u32 v8, 3, v10")
        a("v_lshrrev_b32 v8, 2, v8")
        a("v_subrev_u32 v8, 5, v8")
        a("v_med3_i32 v8, v8, 0, 7")
        a(f"v_cmp_gt_u32 vcc, {NPB}, v{LANE}")
        a("v_mov_b32 v9, 63")
        a("s_nop 0")
        a("v_cndmask_b32 v8, 64, v8, vcc")
        KM = [24, 26, 28, 30, 32, 82, 84, 86]
        for q in range(8):
            a(f"v_cmp_eq_u32 s[{KM[q]}:{KM[q]+1}], {q}, v8")
        a("s_mov_b32 s3, 0")
        for q in range(7, -1, -1):
            a(f"s_mov_b64 exec, s[{KM[q]}:{KM[q]+1}]")
            a(f"v_mbcnt_lo_u32_b32 v9, s{KM[q]}, 0")
            a(f"v_mbcnt_hi_u32_b32 v9, s{KM[q]+1}, v9")
            a("v_add_u32 v9, s3, v9")
            a(f"s_bcnt1_i32_b64 s4, s[{KM[q]}:{KM[q]+1}]")
            a("s_add_u32 s3, s3, s4")
        a("s_mov_b64 exec, -1")
        a("v_lshlrev_b32 v9, 2, v9")
        a(f"v_lshl_add_u32 v8, v10, 8, v{LANE}")
        a("ds_permute_b32 v8, v9, v8")
        a("v_and_b32 v9, 1, v7")
        a("v_mul_u32_u24 v9, 7, v9")
        a(f"v_xor_b32 v9, s{S_WAVE}, v9")
        a("v_lshl_add_u32 v9, v7, 3, v9")
        a("v_lshlrev_b32 v9, 2, v9")
        a("s_waitcnt lgkmcnt(0)")
        a("ds_bpermute_b32 v11, v9, v8")
    else:
        a(f"s_mul_i32 s3, s{S_WAVE}, 5")
        a("v_add_u32 v9, s3, v7")
        a("v_lshlrev_b32 v9, 2, v9")
        a(f"v_lshl_add_u32 v8, v10, 8, v{LANE}")
        a("s_waitcnt lgkmcnt(0)")
        a("ds_bpermute_b32 v11, v9, v8")
    for r in range(NR):
        a(f"s_mov_b64 exec, {M(r)}")
        a("s_cbranch_execz K2_s_done")
        a(f"v_lshrrev_b32 v8, 18, v{TG+r}")
        a(f"v_lshl_add_u32 v8, v8, 6, v{PR[r]}")
        a(f"v_add_u32 v8, v8, v{RK+r}")
        a(f"v_lshlrev_b32 v9, 4, v8")
        a(f"v_lshlrev_b32 v8, 2, v8")
        a(f"v_and_b32 v{TG+r}, 0x3fff, v{TG+r}")
        a(f"v_lshlrev_b32 v{TG+r}, 10, v{TG+r}")
        a(f"ds_write_b128 v9, v[{RB+4*r}:{RB+4*r+3}] offset:{L_REC}")
        a(f"ds_write_b32 v8, v{TG+r} offset:{L_SOFF}")
    a("K2_s_done:")
    a("s_mov_b64 exec, -1")
    a("v_cmp_gt_u32 vcc, 5, v7")
    a("s_waitcnt lgkmcnt(0)")
    a("v_and_b32 v12, 0xff, v11")
    a("v_lshrrev_b32 v10, 8, v11")
    a("v_cndmask_b32 v10, 0, v10, vcc")
    for i in range(5):
        a(f"v_readlane_b32 s{S_NODE+i}, v12, {i}")
    a("v_add_u32 v13, 3, v10")
    a("v_lshrrev_b32 v13, 2, v13")
    a(f"v_lshrrev_b32 v14, 3, v{LANE}")
    a("v_mad_u32_u24 v15, v14, v13, 7")
    a("v_lshlrev_b32 v12, 6, v12")
    a("v_lshl_add_u32 v16, v7, 12, v12")
    for half, (S, EV) in enumerate(((S_S0, V_E0), (S_S1, V_E1))):
        if half:
            a("v_lshl_add_u32 v15, v13, 3, v15")
        a("v_lshrrev_b32 v17, 4, v15")
        a("v_add_u32 v18, v15, v13")
        a("v_lshrrev_b32 v18, 4, v18")
        a(f"v_cmp_ne_u32 s[{S}:{S+1}], v17, v18")
        a(f"v_lshl_add_u32 v{EV}, v17, 2, v16")
    a("v_add_u32 v17, v10, v14")
    a("v_lshlrev_b32 v18, 2, v13")
    a("v_cmp_lt_u32 vcc, v17, v18")
    a("v_add_u32 v17, v12, v17")
    a(f"v_add_u32 v18, {DUMMY}, v7")
    a(f"v_subrev_u32 v19, 24, v{LANE}")
    a(f"v_cmp_gt_u32 s[{S_SAVE}:{S_SAVE+1}], 4, v19")
    a("s_nop 1")
    a(f"v_cndmask_b32 v17, v17, v18, s[{S_SAVE}:{S_SAVE+1}]")
    a(f"s_or_b64 exec, vcc, s[{S_SAVE}:{S_SAVE+1}]")
    a("v_lshlrev_b32 v18, 4, v17")
    a("v_lshlrev_b32 v17, 2, v17")
    a(f"v_mov_b32 v19, {OOB}")
    a(f"ds_write_b128 v18, v[{ACC}:{ACC+3}] offset:{L_REC}")
    a(f"ds_write_b32 v17, v19 offset:{L_SOFF}")
    a("s_mov_b64 exec, -1")
    a("s_waitcnt lgkmcnt(0)")
    a("s_barrier")
    stamp(4)
    a("K2_run:")
    a(f"s_bcnt1_i32_b64 s{S_CNT}, s[{S_S0}:{S_S0+1}]")
    a(f"s_bcnt1_i32_b64 s{S_T}, s[{S_S1}:{S_S1+1}]")
    a(f"s_add_u32 s{S_CNT}, s{S_CNT}, s{S_T}")
    a(f"s_cmp_eq_u32 s{S_CNT}, 0")
    a("s_cbranch_scc1 K2_loop_done")
    next_entry(S_E)
    read_soff(S_E)
    for b in range(NXB - 1):
        next_entry(S_E + b + 1)
        a("s_waitcnt lgkmcnt(0)")
        issue_loads(b)
        read_soff(S_E + b + 1)
    read_rec(S_E)
    for b in range(NXB):
        a(f"K2_loop{b}:")
        next_entry(S_E + NXB)
        a("s_waitcnt lgkmcnt(0)")
        issue_loads((b + NXB - 1) % NXB)
        coefs()
        read_soff(S_E + NXB)
        read_rec(S_E + 1)
        coefs2()
        a(f"s_lshr_b32 s{S_I}, s{S_E}, 12")
        for x in range(NXB):
            a(f"s_mov_b32 s{S_E+x}, s{S_E+x+1}")
        a(f"s_waitcnt vmcnt({4*(NXB-1)})")
        for i in range(1, 5):
            a(f"s_cmp_eq_u32 s{S_I}, {i}")
            a(f"s_cbranch_scc1 K2_blk{b}_{i}")
        for i in range(5):
            a(f"K2_blk{b}_{i}:")
            def mf(j):
                o = OPS + 2 * (j % 3); c = ACC + 32 * i + 4 * j
                a(f"v_mfma_f32_16x16x16_bf16 v[{c}:{c+3}], v[{AOP}:{AOP+1}], v[{o}:{o+1}], v[{c}:{c+3}]")
            for j in range(8 if not NOCOMP else 0):
                m = j >> 1; sel = S_SELHI if j & 1 else S_SELLO
                o = OPS + 2 * (j % 3)
                x = lambda u: XB + 16 * b + 4 * u + m
                a(f"v_perm_b32 v{o}, v{x(1)}, v{x(0)}, s{sel}")
                a(f"v_perm_b32 v{o+1}, v{x(3)}, v{x(2)}, s{sel}")
                if j > 0: mf(j - 1)
            a(f"s_sub_u32 s{S_CNT}, s{S_CNT}, 1")
            a(f"s_cmp_eq_u32 s{S_CNT}, 0")
            mf(7)
            a(f"s_cbranch_scc0 K2_loop{(b+1)%NXB}")
            a("s_branch K2_loop_done")
    a("K2_loop_done:")
    a(f"s_cmp_lg_u32 s{S_MODE}, 0")
    a("s_cbranch_scc1 K2_slow_next")
    a("K2_epi:")
    stamp(5)
    a("s_waitcnt vmcnt(0) lgkmcnt(0)")
    a(f"v_lshlrev_b32 v1, 3, v{V_COL16}")
    a(f"v_add_u32 v1, {L_WR}, v1")
    for j in range(8):
        a(f"ds_read_b128 v[{XB+4*j}:{XB+4*j+3}], v1 offset:{16*j}")
    lane_id(LANE)
    a(f"s_and_b32 s3, s{S_WAVE}, 3")
    a("s_lshl_b32 s4, s3, 13")
    a(f"s_add_u32 s4, s4, {L_WT}")
    a(f"v_lshl_add_u32 v1, v{LANE}, 4, s4")
    a(f"v_mul_u32_u24 v2, {AGG_RS}, v{V_G}")
    a(f"v_add_u32 v2, v2, v{V_COL16}")
    a(f"v_add_u32 v2, {L_AGG}, v2")
    a("s_waitcnt lgkmcnt(0)")
    for i in range(5):
        for j in range(8):
            c = ACC + 32 * i + 4 * j; w = XB + 4 * j
            a(f"v_mul_f32 v{c}, v{c}, v{w}")
        for kk in range(1, 4):
            for j in range(8):
                c = ACC + 32 * i + 4 * j; w = XB + 4 * j
                a(f"v_fmac_f32 v{c}, v{c+kk}, v{w+kk}")
        o = 8 + 4 * (i % 2)
        a(f"s_mul_i32 s4, s{S_NODE+i}, {4*AGG_RS}")
        for jj in range(4):
            c = ACC + 32 * i + 8 * jj
            a(f"v_cvt_pk_bf16_f32 v{o+jj}, v{c}, v{c+4}")
        a(f"v_add_u32 v{16+i%2}, s4, v2")
        a(f"ds_write_b128 v{16+i%2}, v[{o}:{o+3}]")
    a(f"s_lshr_b32 s5, s{S_WAVE}, 2")
    a(f"s_mul_i32 s6, s5, {16*AGG_RS}")
    a(f"s_add_u32 s6, s6, {L_AGG}")
    a(f"v_and_b32 v6, 15, v{LANE}")
    a(f"v_mul_u32_u24 v7, {AGG_RS}, v6")
    a(f"v_lshl_add_u32 v7, v{V_G}, 4, v7")
    a("v_add_u32 v7, s6, v7")
    a("v_lshlrev_b32 v5, 8, v6")
    a(f"v_lshl_add_u32 v5, v{V_G}, 4, v5")
    a(f"s_mul_i32 s6, s{S_B}, {NPB*4*256}")
    a("s_lshl_b32 s7, s5, 12")
    a("s_add_u32 s6, s6, s7")
    a("s_lshl_b32 s7, s3, 6")
    a("s_add_u32 s6, s6, s7")
    a("s_waitcnt lgkmcnt(0)")
    a("s_barrier")
    stamp(6)
    BB = ACC
    for x in range(8):
        a(f"ds_read_b128 v[{XB+32+4*x}:{XB+32+4*x+3}], v1 offset:{1024*x}")
    for u in range(5):
        for t in range(4):
            r = BB + 16 * u + 4 * t
            a(f"ds_read_b128 v[{r}:{r+3}], v7 offset:{u*32*AGG_RS + t*64}")
    DD = ACC + 80
    def fin(u):
        d = DD + 8 * u
        o = BB + 4 * u
        for x in range(4):
            a(f"v_cvt_pk_bf16_f32 v{o+x}, v{d+2*x}, v{d+2*x+1}")
        a(f"buffer_store_dwordx4 v[{o}:{o+3}], v5, s[{S_OUT}:{S_OUT+3}], s6 offen")
        a(f"s_add_u32 s6, s6, {32*256}")
    for u in range(5):
        a(f"s_waitcnt lgkmcnt({min(15, 4*(4-u))})")
        for t in range(4):
            r = BB + 16 * u + 4 * t
            for hh in range(2):
                d = DD + 8 * u + 4 * hh; w = XB + 32 + 16 * hh + 4 * t
                c = "0" if t == 0 else f"v[{d}:{d+3}]"
                a(f"v_mfma_f32_16x16x32_bf16 v[{d}:{d+3}], v[{w}:{w+3}], v[{r}:{r+3}], {c}")
        if u > 0: fin(u - 1)
    a("s_nop 7")
    fin(4)
    stamp(7)
    if STAMP: a("s_waitcnt vmcnt(0)")
    stamp(8)
    stamp_flush(1, 8, 9, S_WAVE, 1)
    a("K2_end:")
    a("s_endpgm")
    a("K2_slow:")
    a(f"s_mov_b32 s{S_MODE}, 1")
    a(f"s_mov_b32 s{S_RND}, 0")
    a(f"s_mov_b32 s{S_P}, {P}")
    a(f"s_mul_i32 s{S_NODE}, s{S_WAVE}, 5")
    for i in range(1, 5):
        a(f"s_add_u32 s{S_NODE+i}, s{S_NODE}, {i}")
    a(f"v_lshlrev_b32 v8, 4, v{TID}")
    a(f"v_lshlrev_b32 v9, 2, v{TID}")
    a(f"v_mov_b32 v10, {OOB}")
    a(f"ds_write_b128 v8, v[{ACC}:{ACC+3}] offset:{L_REC}")
    a(f"ds_write_b32 v9, v10 offset:{L_SOFF}")
    a(f"v_and_b32 v8, 3, v{TID}")
    a(f"v_add_u32 v8, {DUMMY}, v8")
    a("v_lshlrev_b32 v9, 2, v8")
    a("v_lshlrev_b32 v8, 4, v8")
    a(f"ds_write_b128 v8, v[{ACC}:{ACC+3}] offset:{L_REC}")
    a(f"ds_write_b32 v9, v10 offset:{L_SOFF}")
    a(f"v_lshlrev_b32 v8, 10, v{LANE}")
    a(f"s_lshl_b32 s3, s{S_B}, 2")
    a(f"s_add_u32 s3, s3, {OFFS_OFF}")
    for h in range(4):
        a(f"buffer_load_dwordx2 v[{10+2*h}:{11+2*h}], v8, s[{S_WS}:{S_WS+3}], s3 offen")
        a("s_add_u32 s3, s3, 65536")
    a(f"v_cmp_gt_u32 vcc, {P-192}, v{LANE}")
    a("s_waitcnt vmcnt(0)")
    for h in range(4):
        a(f"v_sub_u32 v{10+2*h}, v{11+2*h}, v{10+2*h}")
    a("v_cndmask_b32 v16, 0, v16, vcc")
    a("v_max_u32 v10, v10, v12")
    a("v_max3_u32 v10, v10, v14, v16")
    wave_scan(10, "v_max_u32_dpp")
    a("s_nop 1")
    a(f"v_readlane_b32 s{S_MAXC}, v10, 63")
    a("s_nop 0")
    a(f"s_lshl_b32 s{S_MAXC}, s{S_MAXC}, 1")
    a("K2_slow_round:")
    a("s_waitcnt vmcnt(0) lgkmcnt(0)")
    a("s_barrier")
    a(f"s_cmp_ge_u32 s{S_RND}, s{S_MAXC}")
    a("s_cbranch_scc1 K2_epi")
    a(f"s_cmp_gt_u32 s{S_WAVE}, 1")
    a("s_cbranch_scc1 K2_slow_nofill")
    lane_id(8)
    a(f"s_lshl_b32 s3, s{S_WAVE}, 6")
    a("v_add_u32 v8, s3, v8")
    a(f"s_and_b32 s3, s{S_RND}, 1")
    a("s_lshl_b32 s3, s3, 7")
    a("v_add_u32 v9, s3, v8")
    a("v_lshlrev_b32 v10, 10, v9")
    a(f"s_lshl_b32 s3, s{S_B}, 2")
    a(f"s_add_u32 s3, s3, {OFFS_OFF}")
    a(f"buffer_load_dwordx2 v[12:13], v10, s[{S_WS}:{S_WS+3}], s3 offen")
    a(f"s_lshr_b32 s4, s{S_RND}, 1")
    a("v_mov_b32 v11, -1")
    a(f"v_cmp_gt_u32 s[{S_SAVE}:{S_SAVE+1}], s{S_P}, v9")
    a("s_waitcnt vmcnt(0)")
    a("v_sub_u32 v13, v13, v12")
    a("v_cmp_lt_u32 vcc, s4, v13")
    a(f"s_and_b64 exec, vcc, s[{S_SAVE}:{S_SAVE+1}]")
    a("s_cbranch_execz K2_slow_noload")
    a(f"v_mul_u32_u24 v10, {EPC}, v9")
    a("v_add3_u32 v10, v10, v12, s4")
    a("v_lshlrev_b32 v9, 4, v10")
    a("v_lshlrev_b32 v10, 2, v10")
    a(f"s_mov_b32 s3, {TAG_OFF}")
    a(f"buffer_load_dword v16, v10, s[{S_WS}:{S_WS+3}], s3 offen")
    a(f"buffer_load_dwordx4 v[12:15], v9, s[{S_WS}:{S_WS+3}], 0 offen")
    a("v_lshlrev_b32 v9, 6, v8")
    a("v_lshlrev_b32 v10, 4, v8")
    a("s_waitcnt vmcnt(0)")
    a("v_lshrrev_b32 v11, 18, v16")
    a("v_and_b32 v16, 0x3fff, v16")
    a("v_lshlrev_b32 v16, 10, v16")
    a(f"ds_write_b128 v9, v[12:15] offset:{L_REC}")
    a(f"ds_write_b32 v10, v16 offset:{L_SOFF}")
    a("K2_slow_noload:")
    a("s_mov_b64 exec, -1")
    a("v_lshlrev_b32 v8, 2, v8")
    a(f"ds_write_b32 v8, v11 offset:{L_QN}")
    a("K2_slow_nofill:")
    a("s_waitcnt lgkmcnt(0)")
    a("s_barrier")
    lane_id(8)
    a("v_lshlrev_b32 v8, 2, v8")
    a(f"ds_read_b32 v9, v8 offset:{L_QN}")
    a(f"ds_read_b32 v10, v8 offset:{L_QN+256}")
    a("s_waitcnt lgkmcnt(0)")
    a(f"v_subrev_u32 v9, s{S_NODE}, v9")
    a(f"v_subrev_u32 v10, s{S_NODE}, v10")
    a(f"v_cmp_gt_u32 s[{S_S0}:{S_S0+1}], 5, v9")
    a(f"v_cmp_gt_u32 s[{S_S1}:{S_S1+1}], 5, v10")
    a(f"v_lshl_add_u32 v{V_E0}, v9, 12, v8")
    a("v_add_u32 v8, 256, v8")
    a(f"v_lshl_add_u32 v{V_E1}, v10, 12, v8")
    a("s_branch K2_run")
    a("K2_slow_next:")
    a(f"s_add_u32 s{S_RND}, s{S_RND}, 1")
    a("s_branch K2_slow_round")
    a("K2_code_end:")
    a("s_endpgm")

S_P = 99

def kd(name, nv, ns):
    return f""".p2align 6
.amdhsa_kernel {name}
  .amdhsa_next_free_vgpr {nv}
  .amdhsa_next_free_sgpr {ns}
  .amdhsa_accum_offset {(nv+3)//4*4}
  .amdhsa_group_segment_fixed_size 0
  .amdhsa_kernarg_size 88
  .amdhsa_user_sgpr_count 2
  .amdhsa_user_sgpr_kernarg_segment_ptr 1
  .amdhsa_system_sgpr_workgroup_id_x 1
.end_amdhsa_kernel"""

def main():
    hdr = open("cdna_kernels/" + NAME + ".s.ref").read().split("\n")
    hdr = [l for l in hdr[:12] if l.startswith(";")]
    print("\n".join(hdr))
    print(f"; @launch kernel=part_kernel grid=({K1_GRID},1,1) block=({K1_T},1,1) lds={K1_LDS}")
    print(f"; @launch kernel=main_kernel grid=(256,1,1) block=({K2_T},1,1) lds={K2_LDS}")
    print('.amdgcn_target "amdgcn-amd-amdhsa--gfx950"')
    print(".text")
    gen_k1()
    gen_k2()
    print("\n".join(("" if (l.endswith(":") or l.startswith(".")) else "    ") + l for l in out))
    print('.section .rodata,"a"')
    print(kd("part_kernel", 64, 96 if STAMP else 48))
    print(kd("main_kernel", 256, 102))

main()
```

```python
import sys, os

NAME = "gather_scatter__tensor_product_equiv_mace__graph"
N = 10000; E = 320000
P = 250; EPC = E // P
NB = 250; NPB = 40
NR = 10
CAPN = 64
env = lambda k, d: type(d)(os.environ.get(k, d))
STAMP = env("STAMP", 0)
STMOD = env("STMOD", "")
K2TOUCH = env("K2TOUCH", 1)
K1TOUCH = env("K1TOUCH", 0)
CODEPF = env("CODEPF", 1)
BAL = env("BAL", 1)
NOCOMP = env("NOCOMP", 0)
NOMEM = env("NOMEM", 0)

REC_OFF = 0
TAG_OFF = REC_OFF + E * 16
OFFS_OFF = TAG_OFF + E * 4
WT_OFF = OFFS_OFF + 256 * 1024
WR_OFF = WT_OFF + 32768
CG_OFF = WR_OFF + 2048
WS_USED = WT_OFF + 40960 + 4096
DBG_OFF = 8 << 20

out = []
def a(s): out.append(s)
def stamp(i):
    if STAMP: a(f"s_memrealtime s[{64+2*i}:{65+2*i}]")
def stamp_flush(kidx, wavesper, n, swave, vt=1):
    if not STAMP: return
    a("s_mov_b64 exec, -1")
    a("s_load_dwordx2 s[90:91], s[0:1], 80")
    a(f"s_mul_i32 s92, s2, {wavesper}")
    a(f"s_add_u32 s92, s92, s{swave}")
    a(f"s_lshl_b32 s92, s92, 6")
    a(f"s_add_u32 s92, s92, {DBG_OFF + kidx*(1<<20)}")
    a(f"v_mov_b32 v{vt}, s92")
    a("s_waitcnt lgkmcnt(0)")
    a("s_mov_b64 exec, 1")
    for i in range(n):
        a(f"v_mov_b32 v{vt+1}, s{64+2*i}")
        a(f"global_store_dword v{vt}, v{vt+1}, s[90:91] offset:{4*i}")

def srd(d, base, nbytes):
    a(f"s_mov_b32 s{d}, s{base}")
    a(f"s_and_b32 s{d+1}, s{base+1}, 0xffff")
    a(f"s_mov_b32 s{d+2}, {nbytes}")
    a(f"s_mov_b32 s{d+3}, 0x20000")

def wave_scan(v, op="v_add_u32_dpp"):
    for sh in (1, 2, 4, 8):
        a("s_nop 1")
        a(f"{op} v{v}, v{v}, v{v} row_shr:{sh} row_mask:0xf bank_mask:0xf")
    a("s_nop 1")
    a(f"{op} v{v}, v{v}, v{v} row_bcast:15 row_mask:0xa bank_mask:0xf")
    a("s_nop 1")
    a(f"{op} v{v}, v{v}, v{v} row_bcast:31 row_mask:0xc bank_mask:0xf")

K1_T = 320
K1_HIST = 0; K1_OFFS = 1024; K1_TAG = 2048; K1_REC = K1_TAG + EPC * 4
K1_LDS = K1_REC + EPC * 16
NWPREP = 8
K1_GRID = P + NWPREP

def gen_k1():
    k = "part_kernel"
    a(f".globl {k}\n.p2align 8\n.type {k},@function\n{k}:")
    a(f"s_cmp_ge_u32 s2, {K1_GRID}")
    a("s_cbranch_scc1 K1_end")
    a(f"s_cmp_ge_u32 s2, {P}")
    a("s_cbranch_scc1 K1_wprep")
    stamp(0)
    a("s_load_dwordx4 s[4:7], s[0:1], 8")
    a("s_load_dwordx4 s[8:11], s[0:1], 24")
    a("s_load_dwordx2 s[12:13], s[0:1], 80")
    if K1TOUCH: a("s_load_dwordx2 s[44:45], s[0:1], 0")
    a("v_lshlrev_b32 v1, 4, v0")
    a("v_lshlrev_b32 v2, 5, v0")
    a("v_lshlrev_b32 v3, 2, v0")
    a("v_mov_b32 v4, 0")
    a(f"ds_write_b32 v3, v4 offset:{K1_HIST}")
    a(f"s_mul_i32 s14, s2, {EPC*4}")
    a(f"s_mul_i32 s15, s2, {EPC*8}")
    a("v_lshrrev_b32 v5, 6, v0")
    a("s_waitcnt lgkmcnt(0)")
    srd(20, 6, E * 4)
    a("buffer_load_dwordx4 v[8:11], v1, s[20:23], s14 offen")
    srd(16, 4, E * 4)
    a("buffer_load_dwordx4 v[12:15], v1, s[16:19], s14 offen")
    srd(24, 8, E * 8)
    srd(28, 10, E * 8)
    srd(32, 12, WS_USED)
    a("v_readfirstlane_b32 s47, v5")
    a("s_barrier")
    a("buffer_load_dwordx4 v[16:19], v2, s[24:27], s15 offen")
    a("buffer_load_dwordx4 v[20:23], v2, s[24:27], s15 offen offset:16")
    a("buffer_load_dwordx4 v[24:27], v2, s[28:31], s15 offen")
    a("buffer_load_dwordx4 v[28:31], v2, s[28:31], s15 offen offset:16")
    a("s_mov_b32 s40, 52429")
    a("s_mov_b32 s41, -40")
    a("s_mov_b32 s42, 6711")
    a("v_mov_b32 v5, 1")
    a("v_and_b32 v6, 63, v0")
    a("v_lshlrev_b32 v6, 4, v6")
    a("s_waitcnt vmcnt(5)")
    stamp(1)
    for e in range(4):
        a(f"v_mul_u32_u24 v{32+e}, s40, v{8+e}")
        a(f"v_lshrrev_b32 v{32+e}, 21, v{32+e}")
        a(f"v_lshlrev_b32 v{36+e}, 2, v{32+e}")
        a(f"ds_add_rtn_u32 v{40+e}, v{36+e}, v5 offset:{K1_HIST}")
    a("s_waitcnt vmcnt(4)")
    for e in range(4):
        a(f"v_mad_i32_i24 v{8+e}, v{32+e}, s41, v{8+e}")
        a(f"v_mul_u32_u24 v{32+e}, s42, v{12+e}")
        a(f"v_lshrrev_b32 v{32+e}, 22, v{32+e}")
        a(f"v_lshl_add_u32 v{8+e}, v{8+e}, 4, v{32+e}")
        a(f"v_lshl_add_u32 v{12+e}, v{8+e}, 14, v{12+e}")
    a("s_waitcnt lgkmcnt(0)")
    a("s_barrier")
    stamp(2)
    if K1TOUCH:
        srd(36, 44, N * 1024)
        a(f"s_mul_i32 s46, s2, {K1_T*16}")
        for r in range(K1TOUCH):
            a("buffer_load_dwordx4 v[56:59], v1, s[36:39], s46 offen")
            a(f"s_add_u32 s46, s46, {P*K1_T*16}")
    a(f"ds_read_b128 v[44:47], v6 offset:{K1_HIST}")
    a("s_waitcnt lgkmcnt(0)")
    a("v_add_u32 v48, v44, v45")
    a("v_add3_u32 v48, v48, v46, v47")
    a("v_mov_b32 v49, v48")
    wave_scan(49)
    a("v_sub_u32 v52, v49, v48")
    a("v_add_u32 v53, v52, v44")
    a("v_add_u32 v54, v53, v45")
    a("v_add_u32 v55, v54, v46")
    a(f"ds_write_b128 v6, v[52:55] offset:{K1_OFFS}")
    for e in range(4):
        a(f"ds_read_b32 v{32+e}, v{36+e} offset:{K1_OFFS}")
    a("s_cmp_lg_u32 s47, 0")
    a("s_cbranch_scc1 K1_noffs")
    a("s_lshl_b32 s43, s2, 10")
    a(f"s_add_u32 s43, s43, {OFFS_OFF}")
    a(f"buffer_store_dwordx4 v[52:55], v6, s[32:35], s43 offen {STMOD}")
    a(f"s_waitcnt vmcnt({K1TOUCH+1}) lgkmcnt(0)")
    a("s_branch K1_go")
    a("K1_noffs:")
    a(f"s_waitcnt vmcnt({K1TOUCH}) lgkmcnt(0)")
    a("K1_go:")
    stamp(3)
    for e in range(4):
        a(f"v_add_u32 v{32+e}, v{32+e}, v{40+e}")
        a(f"v_lshlrev_b32 v{36+e}, 4, v{32+e}")
        a(f"v_add_u32 v{36+e}, {K1_REC}, v{36+e}")
        a(f"v_lshlrev_b32 v{32+e}, 2, v{32+e}")
        a(f"ds_write2_b64 v{36+e}, v[{16+2*e}:{17+2*e}], v[{24+2*e}:{25+2*e}] offset0:0 offset1:1")
        a(f"ds_write_b32 v{32+e}, v{12+e} offset:{K1_TAG}")
    a(f"s_mul_i32 s43, s2, {EPC*16}")
    a(f"s_add_u32 s46, s14, {TAG_OFF}")
    a("s_waitcnt lgkmcnt(0)")
    a("s_barrier")
    stamp(4)
    a(f"ds_read_b128 v[24:27], v1 offset:{K1_TAG}")
    for r in range(4):
        a(f"ds_read_b128 v[{8+4*r}:{11+4*r}], v1 offset:{K1_REC + r*K1_T*16}")
    a("s_waitcnt lgkmcnt(4)")
    a(f"buffer_store_dwordx4 v[24:27], v1, s[32:35], s46 offen {STMOD}")
    for r in range(4):
        a(f"s_waitcnt lgkmcnt({3-r})")
        a(f"buffer_store_dwordx4 v[{8+4*r}:{11+4*r}], v1, s[32:35], s43 offen {STMOD}")
        a(f"s_add_u32 s43, s43, {K1_T*16}")
    stamp(5)
    if STAMP: a("s_waitcnt vmcnt(0)")
    stamp(6)
    stamp_flush(0, 5, 7, 47, 40)
    a("s_endpgm")
    a("K1_wprep:")
    a("s_load_dwordx4 s[4:7], s[0:1], 40")
    a("s_load_dwordx2 s[8:9], s[0:1], 56")
    a("s_load_dwordx2 s[12:13], s[0:1], 80")
    a(f"s_sub_u32 s14, s2, {P}")
    a("s_waitcnt lgkmcnt(0)")
    srd(16, 4, 128)
    srd(20, 6, 1024)
    srd(24, 8, 32768)
    srd(32, 12, WS_USED)
    a("v_cmp_gt_u32 vcc, 256, v0")
    a("s_and_saveexec_b64 s[36:37], vcc")
    a("s_cbranch_execz K1_wsmall")
    a("v_bfe_u32 v2, v0, 6, 2")
    a("v_bfe_u32 v3, v0, 4, 2")
    a("v_bfe_u32 v4, v0, 2, 2")
    a("v_and_b32 v5, 3, v0")
    a("v_lshlrev_b32 v6, 13, v2")
    a("v_lshl_add_u32 v6, v3, 11, v6")
    a("v_lshl_add_u32 v6, v4, 4, v6")
    a("v_lshl_add_u32 v6, v5, 1, v6")
    a("s_lshr_b32 s15, s14, 1")
    a("s_lshl_b32 s15, s15, 6")
    a("s_and_b32 s38, s14, 1")
    a("s_lshl_b32 s38, s38, 3")
    a("s_add_u32 s15, s15, s38")
    for q in range(8):
        a(f"buffer_load_ushort v{16+q}, v6, s[24:27], s15 offen offset:{q*256}")
    a("v_lshlrev_b32 v7, 4, v0")
    a("s_lshl_b32 s15, s14, 12")
    a(f"s_add_u32 s15, s15, {WT_OFF}")
    a("s_waitcnt vmcnt(0)")
    for q in range(4):
        a(f"v_lshl_or_b32 v{8+q}, v{17+2*q}, 16, v{16+2*q}")
    a("buffer_store_dwordx4 v[8:11], v7, s[32:35], s15 offen")
    a("s_endpgm")
    a("K1_wsmall:")
    a("s_mov_b64 exec, s[36:37]")
    a("v_subrev_u32 v1, 256, v0")
    a("s_cmp_lt_u32 s14, 2")
    a("s_cbranch_scc0 K1_wcg")
    a("s_lshl_b32 s15, s14, 6")
    a("v_add_u32 v1, s15, v1")
    a("v_lshlrev_b32 v2, 1, v1")
    for kk in range(4):
        a(f"buffer_load_ushort v{8+kk}, v2, s[20:23], 0 offen offset:{kk*256}")
    a("v_lshlrev_b32 v3, 4, v1")
    a(f"s_mov_b32 s15, {WR_OFF}")
    a("s_waitcnt vmcnt(0)")
    for kk in range(4):
        a(f"v_lshlrev_b32 v{8+kk}, 16, v{8+kk}")
    a("buffer_store_dwordx4 v[8:11], v3, s[32:35], s15 offen")
    a("s_endpgm")
    a("K1_wcg:")
    a("s_cmp_eq_u32 s14, 2")
    a("s_cbranch_scc0 K1_wcode")
    a("v_cmp_gt_u32 vcc, 32, v1")
    a("s_and_saveexec_b64 s[36:37], vcc")
    a("v_lshrrev_b32 v2, 3, v1")
    a("v_bfe_u32 v3, v1, 1, 2")
    a("v_and_b32 v4, 1, v1")
    a("v_lshlrev_b32 v5, 5, v3")
    a("v_lshl_add_u32 v5, v4, 4, v5")
    a("v_lshl_add_u32 v5, v2, 1, v5")
    a("buffer_load_ushort v8, v5, s[16:19], 0 offen")
    a("buffer_load_ushort v9, v5, s[16:19], 0 offen offset:8")
    a("v_lshlrev_b32 v6, 2, v1")
    a(f"s_mov_b32 s15, {CG_OFF}")
    a("s_waitcnt vmcnt(0)")
    a("v_lshl_or_b32 v8, v9, 16, v8")
    a("buffer_store_dword v8, v6, s[32:35], s15 offen")
    a("s_endpgm")
    a("K1_wcode:")
    if CODEPF:
        a("s_cmp_eq_u32 s14, 3")
        a("s_cbranch_scc0 K1_end")
        a("s_getpc_b64 s[40:41]")
        a("K1_pc:")
        a("s_add_u32 s40, s40, main_kernel-K1_pc")
        a("s_addc_u32 s41, s41, 0")
        a("v_lshlrev_b32 v2, 6, v1")
        for r in range(4):
            a("v_cmp_gt_u32 vcc, K2_code_end-main_kernel, v2")
            a("s_and_b64 exec, exec, vcc")
            a("s_cbranch_execz K1_wcode_done")
            a(f"global_load_dword v{8+r}, v2, s[40:41]")
            a("v_add_u32 v2, 4096, v2")
        a("K1_wcode_done:")
        a("s_waitcnt vmcnt(0)")
    a("K1_end:")
    a("s_endpgm")

K2_T = 512
SLOTS = NPB * CAPN + 8
DUMMY = NPB * CAPN
L_REC = 0
L_SOFF = L_REC + SLOTS * 16
L_HIST = L_SOFF + SLOTS * 4
L_FLAG = L_HIST + NPB * 16
L_PRE = L_FLAG + 16
L_WT = (L_PRE + NPB * 16 + 1024 + 255) // 256 * 256
L_WR = L_WT + 32768
L_AGG = L_WT + 32768 + 2048
AGG_RS = 272
K2_LDS = L_AGG + NPB * 4 * AGG_RS
OOB = 0x7f000000
BARK = env("BARK", 1)

ACC = 96; XB = 32; CG = 24; OPS = 20; AOP = 16; RECV = 8
V_SOFF = 6
V_T = 5; V_COL16 = 4; V_G = 3; V_LIST = 2; V_EASEL = 0; V_T2 = 1
S_X = 8; S_WS = 12; S_OUT = 16
S_WAVE = 20; S_SELLO = 21; S_SELHI = 22; S_IDX = 23
S_S0 = 24
S_EA = 26; S_EB = 27
S_T = 34; S_MODE = 36; S_WIN = 37; S_MAXC = 38; S_B = 39
S_MASK = 40
S_SAVE = 60
S_NODE = 94
S_RC = 99

def lane_id(v):
    a(f"v_mbcnt_lo_u32_b32 v{v}, -1, 0")
    a(f"v_mbcnt_hi_u32_b32 v{v}, -1, v{v}")

def ld_x(b, half):
    r = []
    for u in range(4):
        x = XB + 32 * b + 16 * half + 4 * u
        r.append(f"buffer_load_dwordx4 v[{x}:{x+3}], v{V_SOFF+half}, s[{S_X}:{S_X+3}], 0 offen offset:{u*256}")
    return r

def addr_fix():
    for h in range(2):
        a(f"v_add_u32 v{V_SOFF+h}, v{V_SOFF+h}, v{V_COL16}")
        if NOMEM == 1: a(f"v_mov_b32 v{V_SOFF+h}, {OOB}")
        if NOMEM == 3: a(f"v_and_b32 v{V_SOFF+h}, 0xfffff, v{V_SOFF+h}")

def gen_k2():
    k = "main_kernel"
    a(f".globl {k}\n.p2align 8\n.type {k},@function\n{k}:")
    a("s_cmp_ge_u32 s2, 256")
    a("s_cbranch_scc1 K2_end")
    stamp(0)
    a("s_load_dwordx2 s[4:5], s[0:1], 0")
    a("s_load_dwordx2 s[6:7], s[0:1], 80")
    a("s_load_dwordx2 s[62:63], s[0:1], 64")
    a("s_and_b32 s3, s2, 7")
    a(f"s_mul_i32 s3, s3, {NB}")
    a(f"s_add_u32 s{S_T}, s3, {NB}")
    a("s_lshr_b32 s3, s3, 3")
    a(f"s_lshr_b32 s{S_T}, s{S_T}, 3")
    a(f"s_lshr_b32 s{S_B}, s2, 3")
    a(f"s_add_u32 s{S_B}, s{S_B}, s3")
    a(f"s_cmp_ge_u32 s{S_B}, s{S_T}")
    a("s_cbranch_scc1 K2_end")
    TID = 23; LANE = 22
    a(f"v_mov_b32 v{TID}, v0")
    a(f"v_and_b32 v{LANE}, 63, v0")
    a("v_lshrrev_b32 v1, 6, v0")
    a("v_lshlrev_b32 v2, 2, v0")
    a("v_mov_b32 v3, 0")
    a(f"v_readfirstlane_b32 s{S_WAVE}, v1")
    a(f"v_cmp_gt_u32 vcc, {NPB*4+4}, v0")
    a(f"s_and_saveexec_b64 s[{S_SAVE}:{S_SAVE+1}], vcc")
    a(f"ds_write_b32 v2, v3 offset:{L_HIST}")
    a(f"s_mov_b64 exec, s[{S_SAVE}:{S_SAVE+1}]")
    a("v_lshrrev_b32 v8, 1, v0")
    a("v_and_b32 v9, 1, v0")
    a("v_lshlrev_b32 v10, 10, v8")
    a(f"s_lshl_b32 s3, s{S_B}, 2")
    a(f"s_add_u32 s3, s3, {OFFS_OFF}")
    a("s_waitcnt lgkmcnt(0)")
    srd(S_WS, 6, WS_USED)
    a(f"buffer_load_dwordx2 v[12:13], v10, s[{S_WS}:{S_WS+3}], s3 offen")
    a(f"s_lshl_b32 s3, s{S_WAVE}, 8")
    a(f"s_add_u32 s3, s3, {L_WR}")
    a("s_mov_b32 m0, s3")
    a(f"s_mov_b32 s3, {WR_OFF}")
    a(f"buffer_load_dword v2, s[{S_WS}:{S_WS+3}], s3 offen lds")
    srd(S_X, 4, N * 1024)
    srd(S_OUT, 62, N * 1024)
    if CODEPF:
        a("s_getpc_b64 s[4:5]")
        a("K2_pc:")
        a(f"v_lshlrev_b32 v14, 7, v{TID}")
        a("v_cmp_gt_u32 vcc, K2_code_end-K2_pc, v14")
        a(f"s_and_saveexec_b64 s[{S_SAVE}:{S_SAVE+1}], vcc")
        a("s_cbranch_execz K2_nocpf")
        a("global_load_dword v15, v14, s[4:5]")
        a("K2_nocpf:")
        a(f"s_mov_b64 exec, s[{S_SAVE}:{S_SAVE+1}]")
    a("s_barrier")
    for r in range(160):
        a(f"v_mov_b32 v{ACC+r}, 0")
    a(f"v_and_b32 v{V_COL16}, 15, v{TID}")
    a(f"v_lshlrev_b32 v{V_COL16}, 4, v{V_COL16}")
    a(f"v_lshrrev_b32 v{V_G}, 4, v{LANE}")
    a(f"v_and_b32 v{V_EASEL}, 3, v{TID}")
    a(f"v_mul_u32_u24 v{V_EASEL}, 0x0202, v{V_EASEL}")
    a(f"v_add_u32 v{V_EASEL}, 0x0100, v{V_EASEL}")
    a(f"v_lshlrev_b32 v{V_EASEL}, 16, v{V_EASEL}")
    a(f"v_or_b32 v{V_EASEL}, 0x0c0c, v{V_EASEL}")
    a(f"s_mov_b32 s{S_SELLO}, 0x05040100")
    a(f"s_mov_b32 s{S_SELHI}, 0x07060302")
    a(f"s_mov_b32 s{S_MODE}, 0")
    a(f"v_mul_u32_u24 v10, {EPC}, v8")
    a("v_add_u32 v10, v10, v9")
    a(f"v_bfe_u32 v16, v{TID}, 2, 2")
    a("v_lshlrev_b32 v16, 5, v16")
    a(f"v_cmp_gt_u32 vcc, {P}, v8")
    a("s_waitcnt vmcnt(0)")
    stamp(1)
    a("v_sub_u32 v11, v13, v12")
    a("v_cndmask_b32 v11, 0, v11, vcc")
    a("v_add_u32 v10, v10, v12")
    a("v_sub_u32 v13, v11, v9")
    a("v_lshlrev_b32 v14, 4, v10")
    a("v_lshlrev_b32 v10, 2, v10")
    a(f"s_mov_b32 s3, {TAG_OFF}")
    RB = XB; TG = XB + 40; RK = XB + 50
    M = lambda r: f"s[{S_MASK+2*r}:{S_MASK+2*r+1}]"
    for r in range(NR):
        a(f"v_cmp_lt_i32 {M(r)}, {2*r}, v13")
    for r in range(NR):
        a(f"s_mov_b64 exec, {M(r)}")
        a("s_cbranch_execz K2_ld_done")
        a(f"buffer_load_dword v{TG+r}, v10, s[{S_WS}:{S_WS+3}], s3 offen offset:{8*r}")
        a(f"buffer_load_dwordx4 v[{RB+4*r}:{RB+4*r+3}], v14, s[{S_WS}:{S_WS+3}], 0 offen offset:{32*r}")
    a("K2_ld_done:")
    a("s_mov_b64 exec, -1")
    a(f"s_mov_b32 s3, {CG_OFF}")
    a(f"buffer_load_dwordx4 v[{CG}:{CG+3}], v16, s[{S_WS}:{S_WS+3}], s3 offen")
    a(f"buffer_load_dwordx4 v[{CG+4}:{CG+7}], v16, s[{S_WS}:{S_WS+3}], s3 offen offset:16")
    a(f"v_cmp_lt_u32 s[{S_SAVE}:{S_SAVE+1}], {2*NR}, v11")
    a("v_mov_b32 v17, 1")
    a("s_waitcnt vmcnt(2)")
    stamp(2)
    for r in range(NR):
        a(f"s_mov_b64 exec, {M(r)}")
        a("s_cbranch_execz K2_h_done")
        a(f"v_lshrrev_b32 v8, 14, v{TG+r}")
        a(f"v_and_b32 v9, 0xffc, v8")
        a(f"v_lshlrev_b32 v8, 3, v8")
        a(f"v_lshlrev_b32 v8, v8, v17")
        a(f"ds_add_rtn_u32 v{RK+r}, v9, v8 offset:{L_HIST}")
    a("K2_h_done:")
    a("s_mov_b64 exec, -1")
    a("s_waitcnt lgkmcnt(0)")
    for r in range(NR):
        a(f"s_mov_b64 exec, {M(r)}")
        a("s_cbranch_execz K2_r_done")
        a(f"v_lshrrev_b32 v8, 11, v{TG+r}")
        a(f"v_and_b32 v8, 24, v8")
        a(f"v_bfe_u32 v{RK+r}, v{RK+r}, v8, 8")
        a(f"v_cmp_lt_u32 vcc, {CAPN-1}, v{RK+r}")
        a(f"s_or_b64 s[{S_SAVE}:{S_SAVE+1}], s[{S_SAVE}:{S_SAVE+1}], vcc")
    a("K2_r_done:")
    a("s_mov_b64 exec, -1")
    a(f"v_mov_b32 v9, {L_FLAG}")
    a(f"s_cmp_eq_u64 s[{S_SAVE}:{S_SAVE+1}], 0")
    a("s_cbranch_scc1 K2_noflag")
    a("ds_write_b32 v9, v17")
    a("K2_noflag:")
    a(f"v_lshlrev_b32 v8, 4, v{LANE}")
    a("s_waitcnt lgkmcnt(0)")
    a("s_barrier")
    stamp(3)
    a(f"ds_read_b128 v[12:15], v8 offset:{L_HIST}")
    a("ds_read_b32 v9, v9")
    a(f"v_lshlrev_b32 v{V_T}, 4, v{TID}")
    bg = []
    for r in range(4):
        bg.append([f"s_lshl_b32 s5, s{S_WAVE}, 10", f"s_add_u32 s5, s5, {L_WT + r*K2_T*16}", "s_mov_b32 m0, s5",
                   f"s_mov_b32 s5, {WT_OFF + r*K2_T*16}",
                   f"buffer_load_dwordx4 v{V_T}, s[{S_WS}:{S_WS+3}], s5 offen lds"])
    tch = []
    if K2TOUCH:
        per = K2_T * 16
        k1bytes = K1TOUCH * P * K1_T * 16
        for r in range(N * 1024 // (NB * per)):
            if (r + 1) * NB * per <= k1bytes: continue
            tch.append([f"s_lshl_b32 s5, s{S_B}, 13", f"s_add_u32 s5, s5, {r*NB*per}",
                        f"buffer_load_dwordx4 v[{XB+60}:{XB+63}], v{V_T}, s[{S_X}:{S_X+3}], s5 offen"])
    bg = tch + bg
    def bgop(n=1):
        for _ in range(n):
            if bg:
                for x in bg.pop(0): a(x)
    bgop(2)
    a("s_waitcnt lgkmcnt(0)")
    a("s_mov_b32 s3, 0x01010101")
    a("v_mov_b32 v10, 0")
    PW = 18
    for q in range(4):
        H = 12 + q
        a(f"v_lshlrev_b32 v{PW+q}, 8, v{H}")
        a(f"v_lshl_add_u32 v{PW+q}, v{H}, 16, v{PW+q}")
        a(f"v_lshl_add_u32 v{PW+q}, v{H}, 24, v{PW+q}")
        if q > 0:
            a(f"v_mul_lo_u32 v11, v10, s3")
            a(f"v_add_u32 v{PW+q}, v{PW+q}, v11")
        a(f"v_sad_u8 v10, v{H}, 0, v10")
    a(f"v_cmp_gt_u32 vcc, {NPB}, v{LANE}")
    a(f"s_and_saveexec_b64 s[{S_SAVE}:{S_SAVE+1}], vcc")
    a(f"ds_write_b128 v8, v[{PW}:{PW+3}] offset:{L_PRE}")
    a(f"v_cmp_lt_u32 vcc, {CAPN}, v10")
    a(f"s_mov_b64 exec, s[{S_SAVE}:{S_SAVE+1}]")
    a("v_readfirstlane_b32 s3, v9")
    a("s_cmp_lg_u64 vcc, 0")
    a("s_cbranch_scc1 K2_slow")
    a("s_cmp_lg_u32 s3, 0")
    a("s_cbranch_scc1 K2_slow")
    bg_slow = [list(x) for x in bg]
    PR = [12, 13, 14, 15, 16, 17, 18, 19, 20, 21]
    for r in range(NR):
        a(f"s_mov_b64 exec, {M(r)}")
        a("s_cbranch_execz K2_p_done")
        a(f"v_lshrrev_b32 v8, 14, v{TG+r}")
        a(f"ds_read_u8 v{PR[r]}, v8 offset:{L_PRE}")
    a("K2_p_done:")
    a("s_mov_b64 exec, -1")
    bgop(1)
    a(f"v_and_b32 v7, 7, v{LANE}")
    a("v_add_u32 v8, 3, v10")
    a("v_lshrrev_b32 v8, 2, v8")
    a("v_subrev_u32 v8, 5, v8")
    a("v_med3_i32 v8, v8, 0, 7")
    a(f"v_cmp_gt_u32 vcc, {NPB}, v{LANE}")
    a("v_mov_b32 v9, 63")
    a("s_nop 0")
    a("v_cndmask_b32 v8, 64, v8, vcc")
    KM = [24, 26, 28, 30, 32, 82, 84, 86]
    for q in range(8):
        a(f"v_cmp_eq_u32 s[{KM[q]}:{KM[q]+1}], {q}, v8")
    a("s_mov_b32 s3, 0")
    for q in range(7, -1, -1):
        a(f"s_mov_b64 exec, s[{KM[q]}:{KM[q]+1}]")
        a(f"v_mbcnt_lo_u32_b32 v9, s{KM[q]}, 0")
        a(f"v_mbcnt_hi_u32_b32 v9, s{KM[q]+1}, v9")
        a("v_add_u32 v9, s3, v9")
        a(f"s_bcnt1_i32_b64 s4, s[{KM[q]}:{KM[q]+1}]")
        a("s_add_u32 s3, s3, s4")
    a("s_mov_b64 exec, -1")
    a("v_lshlrev_b32 v9, 2, v9")
    a(f"v_lshl_add_u32 v8, v10, 8, v{LANE}")
    a("ds_permute_b32 v8, v9, v8")
    a("v_and_b32 v9, 1, v7")
    a("v_mul_u32_u24 v9, 7, v9")
    a(f"v_xor_b32 v9, s{S_WAVE}, v9")
    a("v_lshl_add_u32 v9, v7, 3, v9")
    a("v_lshlrev_b32 v9, 2, v9")
    bgop(1)
    a("s_waitcnt lgkmcnt(0)")
    a("ds_bpermute_b32 v11, v9, v8")
    for r in range(NR):
        a(f"s_mov_b64 exec, {M(r)}")
        a("s_cbranch_execz K2_s_done")
        a(f"v_lshrrev_b32 v8, 18, v{TG+r}")
        a(f"v_lshl_add_u32 v8, v8, 6, v{PR[r]}")
        a(f"v_add_u32 v8, v8, v{RK+r}")
        a(f"v_lshlrev_b32 v9, 4, v8")
        a(f"v_lshlrev_b32 v8, 2, v8")
        a(f"v_and_b32 v{TG+r}, 0x3fff, v{TG+r}")
        a(f"v_lshlrev_b32 v{TG+r}, 10, v{TG+r}")
        a(f"ds_write_b128 v9, v[{RB+4*r}:{RB+4*r+3}] offset:{L_REC}")
        a(f"ds_write_b32 v8, v{TG+r} offset:{L_SOFF}")
    a("K2_s_done:")
    a("s_mov_b64 exec, -1")
    bgop(1)
    a("K2_sched:")
    a("v_cmp_gt_u32 vcc, 5, v7")
    a("v_mov_b32 v20, 0")
    a("v_mov_b32 v21, 0")
    a("s_waitcnt lgkmcnt(0)")
    a("v_and_b32 v12, 0xff, v11")
    a("v_lshrrev_b32 v10, 8, v11")
    a("v_cndmask_b32 v10, 0, v10, vcc")
    for i in range(5):
        a(f"v_readlane_b32 s{S_NODE+i}, v12, {i}")
    a("v_add_u32 v13, 7, v10")
    a("v_lshrrev_b32 v13, 3, v13")
    a(f"v_lshrrev_b32 v14, 3, v{LANE}")
    a("v_mad_u32_u24 v15, v14, v13, 3")
    a("v_lshlrev_b32 v12, 6, v12")
    a("v_lshrrev_b32 v17, 3, v15")
    a("v_add_u32 v18, v15, v13")
    a("v_lshrrev_b32 v18, 3, v18")
    a(f"v_cmp_ne_u32 s[{S_S0}:{S_S0+1}], v17, v18")
    a("v_lshl_add_u32 v16, v17, 3, v12")
    a(f"v_subrev_u32 v16, {DUMMY}, v16")
    a(f"v_mbcnt_lo_u32_b32 v17, s{S_S0}, 0")
    a(f"v_mbcnt_hi_u32_b32 v17, s{S_S0+1}, v17")
    a("v_lshlrev_b32 v17, 2, v17")
    a(f"v_mov_b32 v19, 252")
    a(f"v_cndmask_b32 v17, v19, v17, s[{S_S0}:{S_S0+1}]")
    a(f"v_cndmask_b32 v16, 0, v16, s[{S_S0}:{S_S0+1}]")
    a(f"ds_permute_b32 v{V_LIST}, v17, v16")
    a("v_add_u32 v17, v10, v14")
    a("v_lshlrev_b32 v18, 3, v13")
    a("v_cmp_lt_u32 vcc, v17, v18")
    a("v_add_u32 v17, v12, v17")
    a(f"v_add_u32 v18, {DUMMY}, v7")
    a(f"v_cmp_lt_u32 s[{S_SAVE}:{S_SAVE+1}], 55, v{LANE}")
    a("v_mov_b32 v22, 0")
    a("v_mov_b32 v23, 0")
    a(f"v_cndmask_b32 v17, v17, v18, s[{S_SAVE}:{S_SAVE+1}]")
    a(f"s_or_b64 exec, vcc, s[{S_SAVE}:{S_SAVE+1}]")
    a("v_lshlrev_b32 v18, 4, v17")
    a("v_lshlrev_b32 v17, 2, v17")
    a(f"v_mov_b32 v19, {OOB}")
    a(f"ds_write_b128 v18, v[20:23] offset:{L_REC}")
    a(f"ds_write_b32 v17, v19 offset:{L_SOFF}")
    a("s_mov_b64 exec, -1")
    a(f"s_bitset1_b32 s{S_S0+1}, 31")
    a("s_waitcnt lgkmcnt(0)")
    a(f"v_add_u32 v{V_LIST}, {DUMMY}, v{V_LIST}")
    a("s_barrier")
    stamp(4)
    a(f"s_cmp_lg_u32 s{S_MODE}, 0")
    a("s_cbranch_scc1 K2_nobg")
    bgop(100)
    a("K2_nobg:")
    def rd_soff(se):
        return [f"v_add_lshl_u32 v{V_T}, s{se}, v{V_G}, 2",
                f"ds_read2_b32 v[{V_SOFF}:{V_SOFF+1}], v{V_T} offset0:0 offset1:4"]
    def rd_rec(se):
        return [f"v_add_lshl_u32 v{V_T2}, s{se}, v{V_G}, 4",
                f"ds_read_b128 v[{RECV}:{RECV+3}], v{V_T2} offset:{L_REC}",
                f"ds_read_b128 v[{RECV+4}:{RECV+7}], v{V_T2} offset:{L_REC+64}"]
    a(f"v_readlane_b32 s{S_EA}, v{V_LIST}, 0")
    a(f"v_readlane_b32 s{S_EB}, v{V_LIST}, 1")
    a(f"s_mov_b32 s{S_IDX}, 2")
    a(f"s_mov_b32 s{S_RC}, 0")
    a(f"s_add_u32 s{S_T}, s{S_EA}, {L_SOFF//4}")
    for x in rd_soff(S_T): a(x)
    for x in rd_rec(S_EA): a(x)
    a(f"s_add_u32 s{S_T}, s{S_EB}, {L_SOFF//4}")
    a("s_waitcnt lgkmcnt(2)")
    addr_fix()
    for h in range(2):
        for x in ld_x(0, h): a(x)
    for x in rd_soff(S_T): a(x)
    a("s_waitcnt lgkmcnt(0)")
    addr_fix()
    for h in range(2):
        for x in ld_x(1, h): a(x)
    a(f"s_mov_b32 s{S_EA}, s{S_EB}")
    a("s_branch K2_t0")
    for s_ in range(10):
        i = s_ % 5; b = s_ % 2
        if i == 0:
            a(f"K2_re{s_}:")
            a(f"s_lshr_b64 s[{S_S0}:{S_S0+1}], s[{S_S0}:{S_S0+1}], 8")
            a("s_cbranch_scc0 K2_loop_done")
            if BARK == 1:
                a("s_barrier")
            elif BARK > 1:
                a(f"s_add_u32 s{S_RC}, s{S_RC}, 1")
                a(f"s_and_b32 s{S_T}, s{S_RC}, {BARK-1}")
                a(f"s_cbranch_scc1 K2_t{s_}")
                a("s_barrier")
        a(f"K2_t{s_}:")
        a(f"s_bitcmp1_b32 s{S_S0}, {i}")
        nxt = (s_ + 6) % 10
        a(f"s_cbranch_scc0 K2_{'re' if nxt % 5 == 0 else 't'}{nxt}")
        a(f"v_readlane_b32 s{S_EB}, v{V_LIST}, s{S_IDX}")
        a("s_waitcnt lgkmcnt(0)")
        T = OPS
        for h in range(2):
            R = RECV + 4 * h
            for u in range(4):
                a(f"v_dot2_f32_bf16 v{T+u}, v{CG+2*u}, v{R}, 0")
            a(f"v_perm_b32 v{R+2}, v{R+3}, v{R+2}, v{V_EASEL}")
            for u in range(4):
                a(f"v_dot2_f32_bf16 v{T+u}, v{CG+2*u+1}, v{R+1}, v{T+u}")
            if h == 0:
                a(f"s_add_u32 s{S_IDX}, s{S_IDX}, 1")
                a(f"s_add_u32 s{S_T}, s{S_EB}, {L_SOFF//4}")
                a(rd_soff(S_T)[0])
            else:
                a(rd_soff(S_T)[1])
                a(rd_rec(S_EA)[0])
                a("s_nop 0")
            for u in range(4):
                a(f"v_mul_f32 v{T+u}, v{T+u}, v{R+2}")
            a(f"v_cvt_pk_bf16_f32 v{AOP+2*h}, v{T}, v{T+1}")
            a(f"v_cvt_pk_bf16_f32 v{AOP+2*h+1}, v{T+2}, v{T+3}")
        fill = rd_rec(S_EA)[1:] + [f"s_mov_b32 s{S_EA}, s{S_EB}"]
        a("s_waitcnt vmcnt(8)")
        for j in range(8 if not NOCOMP else 0):
            m = j >> 1; sel = S_SELHI if j & 1 else S_SELLO
            x = lambda h, u: XB + 32 * b + 16 * h + 4 * u + m
            for h in range(2):
                a(f"v_perm_b32 v{OPS+2*h}, v{x(h,1)}, v{x(h,0)}, s{sel}")
                a(f"v_perm_b32 v{OPS+2*h+1}, v{x(h,3)}, v{x(h,2)}, s{sel}")
            c = ACC + 32 * i + 4 * j
            if j == 7:
                a("s_waitcnt lgkmcnt(2)")
                addr_fix()
            elif len(fill) >= 2:
                a(fill.pop(0)); a(fill.pop(0))
            elif len(fill) == 1:
                a(fill.pop(0)); a("s_nop 0")
            else:
                a("s_nop 1")
            a(f"v_mfma_f32_16x16x32_bf16 v[{c}:{c+3}], v[{AOP}:{AOP+3}], v[{OPS}:{OPS+3}], v[{c}:{c+3}]")
        if NOCOMP:
            for x in fill: a(x)
            a("s_waitcnt lgkmcnt(2)")
            addr_fix()
        for h in range(2):
            for x in ld_x(b, h): a(x)
    a("s_branch K2_re0")
    a("K2_loop_done:")
    a(f"s_cmp_lg_u32 s{S_MODE}, 0")
    a("s_cbranch_scc1 K2_slow_next")
    a("K2_epi:")
    stamp(5)
    a("s_waitcnt vmcnt(0) lgkmcnt(0)")
    a(f"v_lshlrev_b32 v1, 3, v{V_COL16}")
    a(f"v_add_u32 v1, {L_WR}, v1")
    for j in range(8):
        a(f"ds_read_b128 v[{XB+4*j}:{XB+4*j+3}], v1 offset:{16*j}")
    lane_id(LANE)
    a(f"s_and_b32 s3, s{S_WAVE}, 3")
    a("s_lshl_b32 s4, s3, 13")
    a(f"s_add_u32 s4, s4, {L_WT}")
    a(f"v_lshl_add_u32 v1, v{LANE}, 4, s4")
    a(f"v_mul_u32_u24 v2, {AGG_RS}, v{V_G}")
    a(f"v_add_u32 v2, v2, v{V_COL16}")
    a(f"v_add_u32 v2, {L_AGG}, v2")
    a("s_waitcnt lgkmcnt(0)")
    for i in range(5):
        for j in range(8):
            c = ACC + 32 * i + 4 * j; w = XB + 4 * j
            a(f"v_mul_f32 v{c}, v{c}, v{w}")
        for kk in range(1, 4):
            for j in range(8):
                c = ACC + 32 * i + 4 * j; w = XB + 4 * j
                a(f"v_fmac_f32 v{c}, v{c+kk}, v{w+kk}")
        o = 8 + 4 * (i % 2)
        a(f"s_mul_i32 s4, s{S_NODE+i}, {4*AGG_RS}")
        for jj in range(4):
            c = ACC + 32 * i + 8 * jj
            a(f"v_cvt_pk_bf16_f32 v{o+jj}, v{c}, v{c+4}")
        a(f"v_add_u32 v{16+i%2}, s4, v2")
        a(f"ds_write_b128 v{16+i%2}, v[{o}:{o+3}]")
    a(f"s_lshr_b32 s5, s{S_WAVE}, 2")
    a(f"s_mul_i32 s6, s5, {16*AGG_RS}")
    a(f"s_add_u32 s6, s6, {L_AGG}")
    a(f"v_and_b32 v6, 15, v{LANE}")
    a(f"v_mul_u32_u24 v7, {AGG_RS}, v6")
    a(f"v_lshl_add_u32 v7, v{V_G}, 4, v7")
    a("v_add_u32 v7, s6, v7")
    a("v_lshlrev_b32 v5, 8, v6")
    a(f"v_lshl_add_u32 v5, v{V_G}, 4, v5")
    a(f"s_mul_i32 s6, s{S_B}, {NPB*4*256}")
    a("s_lshl_b32 s7, s5, 12")
    a("s_add_u32 s6, s6, s7")
    a("s_lshl_b32 s7, s3, 6")
    a("s_add_u32 s6, s6, s7")
    a("s_waitcnt lgkmcnt(0)")
    a("s_barrier")
    stamp(6)
    BB = ACC
    for x in range(8):
        a(f"ds_read_b128 v[{XB+32+4*x}:{XB+32+4*x+3}], v1 offset:{1024*x}")
    for u in range(5):
        for t in range(4):
            r = BB + 16 * u + 4 * t
            a(f"ds_read_b128 v[{r}:{r+3}], v7 offset:{u*32*AGG_RS + t*64}")
    DD = ACC + 80
    def fin(u):
        d = DD + 8 * u
        o = BB + 4 * u
        for x in range(4):
            a(f"v_cvt_pk_bf16_f32 v{o+x}, v{d+2*x}, v{d+2*x+1}")
        a(f"buffer_store_dwordx4 v[{o}:{o+3}], v5, s[{S_OUT}:{S_OUT+3}], s6 offen")
        a(f"s_add_u32 s6, s6, {32*256}")
    for u in range(5):
        a(f"s_waitcnt lgkmcnt({min(15, 4*(4-u))})")
        for t in range(4):
            r = BB + 16 * u + 4 * t
            for hh in range(2):
                d = DD + 8 * u + 4 * hh; w = XB + 32 + 16 * hh + 4 * t
                c = "0" if t == 0 else f"v[{d}:{d+3}]"
                a(f"v_mfma_f32_16x16x32_bf16 v[{d}:{d+3}], v[{w}:{w+3}], v[{r}:{r+3}], {c}")
        if u > 0: fin(u - 1)
    a("s_nop 7")
    fin(4)
    stamp(7)
    if STAMP: a("s_waitcnt vmcnt(0)")
    stamp(8)
    stamp_flush(1, 8, 9, S_WAVE, 1)
    a("K2_end:")
    a("s_endpgm")
    a("K2_slow:")
    for grp in bg_slow:
        if "lds" in grp[-1]:
            for x in grp: a(x)
    a(f"s_mov_b32 s{S_MODE}, 1")
    a(f"s_mov_b32 s{S_WIN}, 0")
    a(f"v_lshlrev_b32 v8, 10, v{LANE}")
    a(f"s_lshl_b32 s3, s{S_B}, 2")
    a(f"s_add_u32 s3, s3, {OFFS_OFF}")
    for h in range(4):
        a(f"buffer_load_dwordx2 v[{10+2*h}:{11+2*h}], v8, s[{S_WS}:{S_WS+3}], s3 offen")
        a("s_add_u32 s3, s3, 65536")
    a(f"v_cmp_gt_u32 vcc, {P-192}, v{LANE}")
    a("s_waitcnt vmcnt(0)")
    for h in range(4):
        a(f"v_sub_u32 v{10+2*h}, v{11+2*h}, v{10+2*h}")
    a("v_cndmask_b32 v16, 0, v16, vcc")
    a("v_max_u32 v10, v10, v12")
    a("v_max3_u32 v10, v10, v14, v16")
    wave_scan(10, "v_max_u32_dpp")
    a("s_nop 1")
    a(f"v_readlane_b32 s{S_MAXC}, v10, 63")
    a("K2_slow_win:")
    a(f"s_cmp_ge_u32 s{S_WIN}, s{S_MAXC}")
    a("s_cbranch_scc1 K2_slow_fin")
    def seg_setup():
        lane_id(LANE)
        a(f"s_lshl_b32 s3, s{S_WAVE}, 6")
        a(f"v_add_u32 v{TID}, s3, v{LANE}")
        a(f"v_lshrrev_b32 v8, 1, v{TID}")
        a(f"v_and_b32 v9, 1, v{TID}")
        a("v_lshlrev_b32 v10, 10, v8")
        a(f"s_lshl_b32 s3, s{S_B}, 2")
        a(f"s_add_u32 s3, s3, {OFFS_OFF}")
        a(f"buffer_load_dwordx2 v[12:13], v10, s[{S_WS}:{S_WS+3}], s3 offen")
        a(f"v_mul_u32_u24 v10, {EPC}, v8")
        a(f"v_add3_u32 v10, v10, v9, s{S_WIN}")
        a(f"v_cmp_gt_u32 vcc, {P}, v8")
        a("s_waitcnt vmcnt(0)")
        a("v_sub_u32 v11, v13, v12")
        a("v_cndmask_b32 v11, 0, v11, vcc")
        a("v_add_u32 v10, v10, v12")
        a("v_sub_u32 v13, v11, v9")
        a(f"v_subrev_u32 v13, s{S_WIN}, v13")
        a("v_lshlrev_b32 v14, 4, v10")
        a("v_lshlrev_b32 v10, 2, v10")
    seg_setup()
    for r in range(NR):
        a(f"v_cmp_lt_i32 {M(r)}, {2*r}, v13")
    a("K2_slow_batch:")
    a("s_waitcnt vmcnt(0) lgkmcnt(0)")
    a("s_barrier")
    seg_setup()
    a(f"v_lshlrev_b32 v8, 2, v{TID}")
    a("v_mov_b32 v9, 0")
    a(f"v_cmp_gt_u32 vcc, {NPB*4+4}, v{TID}")
    a(f"s_and_saveexec_b64 s[{S_SAVE}:{S_SAVE+1}], vcc")
    a(f"ds_write_b32 v8, v9 offset:{L_HIST}")
    a("s_mov_b64 exec, -1")
    a("s_waitcnt lgkmcnt(0)")
    a("s_barrier")
    a("v_mov_b32 v17, 1")
    a(f"s_mov_b32 s3, {TAG_OFF}")
    a(f"s_mov_b64 s[{S_SAVE}:{S_SAVE+1}], 0")
    for r in range(NR):
        a(f"s_mov_b64 exec, {M(r)}")
        a(f"s_cbranch_execz K2_slow_skip{r}")
        a(f"buffer_load_dword v16, v10, s[{S_WS}:{S_WS+3}], s3 offen offset:{8*r}")
        a(f"buffer_load_dwordx4 v[{XB}:{XB+3}], v14, s[{S_WS}:{S_WS+3}], 0 offen offset:{32*r}")
        a("s_waitcnt vmcnt(0)")
        a("v_lshrrev_b32 v8, 18, v16")
        a("v_lshlrev_b32 v9, 4, v8")
        a(f"ds_add_rtn_u32 v15, v9, v17 offset:{L_HIST}")
        a("v_and_b32 v16, 0x3fff, v16")
        a("v_lshlrev_b32 v16, 10, v16")
        a("s_waitcnt lgkmcnt(0)")
        a(f"v_cmp_gt_u32 vcc, {CAPN}, v15")
        a(f"s_andn2_b64 {M(r)}, {M(r)}, vcc")
        a(f"s_or_b64 s[{S_SAVE}:{S_SAVE+1}], s[{S_SAVE}:{S_SAVE+1}], {M(r)}")
        a("s_mov_b64 exec, vcc")
        a("v_lshl_add_u32 v8, v8, 6, v15")
        a("v_lshlrev_b32 v9, 4, v8")
        a("v_lshlrev_b32 v8, 2, v8")
        a(f"ds_write_b128 v9, v[{XB}:{XB+3}] offset:{L_REC}")
        a(f"ds_write_b32 v8, v16 offset:{L_SOFF}")
        a("s_waitcnt lgkmcnt(0)")
        a(f"K2_slow_skip{r}:")
    a("s_mov_b64 exec, -1")
    a(f"v_mov_b32 v9, {L_FLAG}")
    a(f"s_cmp_eq_u64 s[{S_SAVE}:{S_SAVE+1}], 0")
    a("s_cbranch_scc1 K2_slow_nof")
    a("ds_write_b32 v9, v17")
    a("K2_slow_nof:")
    a("s_waitcnt lgkmcnt(0)")
    a("s_barrier")
    a(f"v_and_b32 v7, 7, v{LANE}")
    a(f"s_mul_i32 s3, s{S_WAVE}, 5")
    a("v_add_u32 v8, s3, v7")
    a("v_lshlrev_b32 v10, 4, v8")
    a(f"ds_read_b32 v10, v10 offset:{L_HIST}")
    a("ds_read_b32 v9, v9")
    a("s_waitcnt lgkmcnt(0)")
    a(f"v_min_u32 v10, {CAPN}, v10")
    a("v_lshl_add_u32 v11, v10, 8, v8")
    a(f"v_readfirstlane_b32 s{S_MODE}, v9")
    a("s_nop 0")
    a(f"s_add_u32 s{S_MODE}, s{S_MODE}, 1")
    a("s_branch K2_sched")
    a("K2_slow_next:")
    a(f"s_cmp_eq_u32 s{S_MODE}, 2")
    a("s_cbranch_scc1 K2_slow_batch")
    a(f"s_add_u32 s{S_WIN}, s{S_WIN}, {2*NR}")
    a("s_waitcnt vmcnt(0) lgkmcnt(0)")
    a("s_branch K2_slow_win")
    a("K2_slow_fin:")
    a("s_branch K2_epi")
    a("K2_code_end:")
    a("s_endpgm")

def gen_report():
    k = "rep_kernel"
    a(f".globl {k}\n.p2align 8\n.type {k},@function\n{k}:")
    a("s_cmp_lg_u32 s2, 0")
    a("s_cbranch_scc1 R_end")
    a("s_load_dwordx4 s[4:7], s[0:1], 72")
    a("s_waitcnt lgkmcnt(0)")
    def red(reg, op):
        wave_scan(reg, op)
    a("v_mov_b32 v10, -1")
    for r in range(11, 30): a(f"v_mov_b32 v{r}, 0")
    a("v_mov_b32 v14, -1")
    a("v_mov_b32 v20, -1")
    a(f"v_lshlrev_b32 v1, 6, v0")
    a(f"v_add_u32 v1, {DBG_OFF}, v1")
    for kx in range(19):
        a("global_load_dwordx4 v[2:5], v1, s[6:7]")
        a("global_load_dwordx4 v[6:9], v1, s[6:7] offset:16")
        a("s_waitcnt vmcnt(0)")
        a("v_min_u32 v10, v10, v2")
        a("v_max_u32 v11, v11, v3")
        a("v_max_u32 v12, v12, v5")
        a("v_max_u32 v13, v13, v8")
        a("v_add_u32 v1, 4096, v1")
    a(f"v_lshlrev_b32 v1, 6, v0")
    a(f"v_add_u32 v1, {DBG_OFF + (1<<20)}, v1")
    for kx in range(31):
        a("global_load_dwordx4 v[2:5], v1, s[6:7]")
        a("global_load_dwordx4 v[6:9], v1, s[6:7] offset:16")
        a("global_load_dword v30, v1, s[6:7] offset:32")
        a("s_waitcnt vmcnt(0)")
        a("v_min_u32 v14, v14, v2")
        a("v_max_u32 v15, v15, v2")
        a("v_max_u32 v16, v16, v3")
        a("v_max_u32 v17, v17, v4")
        a("v_max_u32 v18, v18, v5")
        a("v_max_u32 v19, v19, v6")
        a("v_min_u32 v20, v20, v7")
        a("v_max_u32 v21, v21, v7")
        a("v_max_u32 v22, v22, v8")
        a("v_max_u32 v23, v23, v9")
        a("v_max_u32 v24, v24, v30")
        a("v_add_u32 v1, 4096, v1")
    for r in range(10, 25):
        red(r, "v_min_u32_dpp" if r in (10, 14, 20) else "v_max_u32_dpp")
    a("s_memrealtime s[8:9]")
    a("s_waitcnt lgkmcnt(0)")
    a("v_mov_b32 v25, s8")
    a("s_mov_b32 exec_lo, 0")
    a("s_mov_b32 exec_hi, 0x80000000")
    a("v_mov_b32 v1, 0")
    for r in range(11, 26):
        a(f"v_sub_u32 v2, v{r}, v10")
        a(f"global_store_dword v1, v2, s[4:5] offset:{4*(r-11)}")
    a("R_end:")
    a("s_endpgm")

def kd(name, nv, ns):
    return f""".p2align 6
.amdhsa_kernel {name}
  .amdhsa_next_free_vgpr {nv}
  .amdhsa_next_free_sgpr {ns}
  .amdhsa_accum_offset {(nv+3)//4*4}
  .amdhsa_group_segment_fixed_size 0
  .amdhsa_kernarg_size 88
  .amdhsa_user_sgpr_count 2
  .amdhsa_user_sgpr_kernarg_segment_ptr 1
  .amdhsa_system_sgpr_workgroup_id_x 1
.end_amdhsa_kernel"""

def main():
    hdr = open("cdna_kernels/" + NAME + ".s.ref").read().split("\n")
    hdr = [l for l in hdr[:12] if l.startswith(";")]
    print("\n".join(hdr))
    print(f"; @launch kernel=part_kernel grid=({K1_GRID},1,1) block=({K1_T},1,1) lds={K1_LDS}")
    print(f"; @launch kernel=main_kernel grid=(256,1,1) block=({K2_T},1,1) lds={K2_LDS}")
    if STAMP == 2: print("; @launch kernel=rep_kernel grid=(1,1,1) block=(64,1,1) lds=0")
    print('.amdgcn_target "amdgcn-amd-amdhsa--gfx950"')
    print(".text")
    gen_k1()
    gen_k2()
    if STAMP == 2: gen_report()
    print("\n".join(("" if (l.endswith(":") or l.startswith(".")) else "    ") + l for l in out))
    print('.section .rodata,"a"')
    print(kd("part_kernel", 64, 96 if STAMP else 48))
    print(kd("main_kernel", 256, 102))
    if STAMP == 2: print(kd("rep_kernel", 32, 16))

main()
```

```python
import sys, os

NAME = "gather_scatter__tensor_product_equiv_mace__graph"
N = 10000; E = 320000
P = 250; EPC = E // P
NB = 250; NPB = 40
NR = 10
CAPN = 64
env = lambda k, d: type(d)(os.environ.get(k, d))
STAMP = env("STAMP", 0)
STMOD = env("STMOD", "")
K2TOUCH = env("K2TOUCH", 1)
K1TOUCH = env("K1TOUCH", 0)
CODEPF = env("CODEPF", 1)
BAL = env("BAL", 1)
XP = env("XP", 0)
ILV = env("ILV", 1)
PRIO = env("PRIO", 0)
ROT = env("ROT", 0)
NOCOMP = env("NOCOMP", 0)
NOMEM = env("NOMEM", 0)

REC_OFF = 0
TAG_OFF = REC_OFF + E * 16
OFFS_OFF = TAG_OFF + E * 4
WT_OFF = OFFS_OFF + 256 * 1024
WR_OFF = WT_OFF + 32768
CG_OFF = WR_OFF + 2048
WS_USED = WT_OFF + 40960 + 4096
DBG_OFF = 8 << 20

out = []
def a(s): out.append(s)
def stamp(i):
    if STAMP: a(f"s_memrealtime s[{64+2*i}:{65+2*i}]")
def stamp_flush(kidx, wavesper, n, swave, vt=1):
    if not STAMP: return
    a("s_mov_b64 exec, -1")
    a("s_load_dwordx2 s[90:91], s[0:1], 80")
    a(f"s_mul_i32 s92, s2, {wavesper}")
    a(f"s_add_u32 s92, s92, s{swave}")
    a(f"s_lshl_b32 s92, s92, 6")
    a(f"s_add_u32 s92, s92, {DBG_OFF + kidx*(1<<20)}")
    a(f"v_mov_b32 v{vt}, s92")
    a("s_waitcnt lgkmcnt(0)")
    a("s_mov_b64 exec, 1")
    for i in range(n):
        a(f"v_mov_b32 v{vt+1}, s{64+2*i}")
        a(f"global_store_dword v{vt}, v{vt+1}, s[90:91] offset:{4*i}")

def srd(d, base, nbytes):
    a(f"s_mov_b32 s{d}, s{base}")
    a(f"s_and_b32 s{d+1}, s{base+1}, 0xffff")
    a(f"s_mov_b32 s{d+2}, {nbytes}")
    a(f"s_mov_b32 s{d+3}, 0x20000")

def wave_scan(v, op="v_add_u32_dpp"):
    for sh in (1, 2, 4, 8):
        a("s_nop 1")
        a(f"{op} v{v}, v{v}, v{v} row_shr:{sh} row_mask:0xf bank_mask:0xf")
    a("s_nop 1")
    a(f"{op} v{v}, v{v}, v{v} row_bcast:15 row_mask:0xa bank_mask:0xf")
    a("s_nop 1")
    a(f"{op} v{v}, v{v}, v{v} row_bcast:31 row_mask:0xc bank_mask:0xf")

K1_T = 320
K1_HIST = 0; K1_OFFS = 1024; K1_TAG = 2048; K1_REC = K1_TAG + EPC * 4
K1_LDS = K1_REC + EPC * 16
NWPREP = 8
K1_GRID = P + NWPREP

def gen_k1():
    k = "part_kernel"
    a(f".globl {k}\n.p2align 8\n.type {k},@function\n{k}:")
    a(f"s_cmp_ge_u32 s2, {K1_GRID}")
    a("s_cbranch_scc1 K1_end")
    a(f"s_cmp_ge_u32 s2, {P}")
    a("s_cbranch_scc1 K1_wprep")
    stamp(0)
    a("s_load_dwordx4 s[4:7], s[0:1], 8")
    a("s_load_dwordx4 s[8:11], s[0:1], 24")
    a("s_load_dwordx2 s[12:13], s[0:1], 80")
    if K1TOUCH: a("s_load_dwordx2 s[44:45], s[0:1], 0")
    a("v_lshlrev_b32 v1, 4, v0")
    a("v_lshlrev_b32 v2, 5, v0")
    a("v_lshlrev_b32 v3, 2, v0")
    a("v_mov_b32 v4, 0")
    a(f"ds_write_b32 v3, v4 offset:{K1_HIST}")
    a(f"s_mul_i32 s14, s2, {EPC*4}")
    a(f"s_mul_i32 s15, s2, {EPC*8}")
    a("v_lshrrev_b32 v5, 6, v0")
    a("s_waitcnt lgkmcnt(0)")
    srd(20, 6, E * 4)
    a("buffer_load_dwordx4 v[8:11], v1, s[20:23], s14 offen")
    srd(16, 4, E * 4)
    a("buffer_load_dwordx4 v[12:15], v1, s[16:19], s14 offen")
    srd(24, 8, E * 8)
    srd(28, 10, E * 8)
    srd(32, 12, WS_USED)
    a("v_readfirstlane_b32 s47, v5")
    a("s_barrier")
    a("buffer_load_dwordx4 v[16:19], v2, s[24:27], s15 offen")
    a("buffer_load_dwordx4 v[20:23], v2, s[24:27], s15 offen offset:16")
    a("buffer_load_dwordx4 v[24:27], v2, s[28:31], s15 offen")
    a("buffer_load_dwordx4 v[28:31], v2, s[28:31], s15 offen offset:16")
    a("s_mov_b32 s40, 52429")
    a("s_mov_b32 s41, -40")
    a("s_mov_b32 s42, 6711")
    a("v_mov_b32 v5, 1")
    a("v_and_b32 v6, 63, v0")
    a("v_lshlrev_b32 v6, 4, v6")
    a("s_waitcnt vmcnt(5)")
    stamp(1)
    for e in range(4):
        a(f"v_mul_u32_u24 v{32+e}, s40, v{8+e}")
        a(f"v_lshrrev_b32 v{32+e}, 21, v{32+e}")
        a(f"v_lshlrev_b32 v{36+e}, 2, v{32+e}")
        a(f"ds_add_rtn_u32 v{40+e}, v{36+e}, v5 offset:{K1_HIST}")
    a("s_waitcnt vmcnt(4)")
    for e in range(4):
        a(f"v_mad_i32_i24 v{8+e}, v{32+e}, s41, v{8+e}")
        if ROT:
            a(f"v_lshl_add_u32 v{44+e}, v{32+e}, 3, 7")
            a(f"v_mul_u32_u24 v{44+e}, 4195, v{44+e}")
            a(f"v_lshrrev_b32 v{44+e}, 20, v{44+e}")
            a(f"v_mul_u32_u24 v{44+e}, {ROT}, v{44+e}")
        a(f"v_mul_u32_u24 v{32+e}, s42, v{12+e}")
        a(f"v_lshrrev_b32 v{32+e}, 22, v{32+e}")
        if ROT:
            a(f"v_add_u32 v{32+e}, v{32+e}, v{44+e}")
            a(f"v_and_b32 v{32+e}, 15, v{32+e}")
        a(f"v_lshl_add_u32 v{8+e}, v{8+e}, 4, v{32+e}")
        a(f"v_lshl_add_u32 v{12+e}, v{8+e}, 14, v{12+e}")
    a("s_waitcnt lgkmcnt(0)")
    a("s_barrier")
    stamp(2)
    if K1TOUCH:
        srd(36, 44, N * 1024)
        a(f"s_mul_i32 s46, s2, {K1_T*16}")
        for r in range(K1TOUCH):
            a("buffer_load_dwordx4 v[56:59], v1, s[36:39], s46 offen")
            a(f"s_add_u32 s46, s46, {P*K1_T*16}")
    a(f"ds_read_b128 v[44:47], v6 offset:{K1_HIST}")
    a("s_waitcnt lgkmcnt(0)")
    a("v_add_u32 v48, v44, v45")
    a("v_add3_u32 v48, v48, v46, v47")
    a("v_mov_b32 v49, v48")
    wave_scan(49)
    a("v_sub_u32 v52, v49, v48")
    a("v_add_u32 v53, v52, v44")
    a("v_add_u32 v54, v53, v45")
    a("v_add_u32 v55, v54, v46")
    a(f"ds_write_b128 v6, v[52:55] offset:{K1_OFFS}")
    for e in range(4):
        a(f"ds_read_b32 v{32+e}, v{36+e} offset:{K1_OFFS}")
    a("s_cmp_lg_u32 s47, 0")
    a("s_cbranch_scc1 K1_noffs")
    a("s_lshl_b32 s43, s2, 10")
    a(f"s_add_u32 s43, s43, {OFFS_OFF}")
    a(f"buffer_store_dwordx4 v[52:55], v6, s[32:35], s43 offen {STMOD}")
    a(f"s_waitcnt vmcnt({K1TOUCH+1}) lgkmcnt(0)")
    a("s_branch K1_go")
    a("K1_noffs:")
    a(f"s_waitcnt vmcnt({K1TOUCH}) lgkmcnt(0)")
    a("K1_go:")
    stamp(3)
    for e in range(4):
        a(f"v_add_u32 v{32+e}, v{32+e}, v{40+e}")
        a(f"v_lshlrev_b32 v{36+e}, 4, v{32+e}")
        a(f"v_add_u32 v{36+e}, {K1_REC}, v{36+e}")
        a(f"v_lshlrev_b32 v{32+e}, 2, v{32+e}")
        a(f"ds_write2_b64 v{36+e}, v[{16+2*e}:{17+2*e}], v[{24+2*e}:{25+2*e}] offset0:0 offset1:1")
        a(f"ds_write_b32 v{32+e}, v{12+e} offset:{K1_TAG}")
    a(f"s_mul_i32 s43, s2, {EPC*16}")
    a(f"s_add_u32 s46, s14, {TAG_OFF}")
    a("s_waitcnt lgkmcnt(0)")
    a("s_barrier")
    stamp(4)
    a(f"ds_read_b128 v[24:27], v1 offset:{K1_TAG}")
    for r in range(4):
        a(f"ds_read_b128 v[{8+4*r}:{11+4*r}], v1 offset:{K1_REC + r*K1_T*16}")
    a("s_waitcnt lgkmcnt(4)")
    a(f"buffer_store_dwordx4 v[24:27], v1, s[32:35], s46 offen {STMOD}")
    for r in range(4):
        a(f"s_waitcnt lgkmcnt({3-r})")
        a(f"buffer_store_dwordx4 v[{8+4*r}:{11+4*r}], v1, s[32:35], s43 offen {STMOD}")
        a(f"s_add_u32 s43, s43, {K1_T*16}")
    stamp(5)
    if STAMP: a("s_waitcnt vmcnt(0)")
    stamp(6)
    stamp_flush(0, 5, 7, 47, 40)
    a("s_endpgm")
    a("K1_wprep:")
    a("s_load_dwordx4 s[4:7], s[0:1], 40")
    a("s_load_dwordx2 s[8:9], s[0:1], 56")
    a("s_load_dwordx2 s[12:13], s[0:1], 80")
    a(f"s_sub_u32 s14, s2, {P}")
    a("s_waitcnt lgkmcnt(0)")
    srd(16, 4, 128)
    srd(20, 6, 1024)
    srd(24, 8, 32768)
    srd(32, 12, WS_USED)
    a("v_cmp_gt_u32 vcc, 256, v0")
    a("s_and_saveexec_b64 s[36:37], vcc")
    a("s_cbranch_execz K1_wsmall")
    a("v_bfe_u32 v2, v0, 6, 2")
    a("v_bfe_u32 v3, v0, 4, 2")
    a("v_bfe_u32 v4, v0, 2, 2")
    a("v_and_b32 v5, 3, v0")
    a("v_lshlrev_b32 v6, 13, v2")
    a("v_lshl_add_u32 v6, v3, 11, v6")
    a("v_lshl_add_u32 v6, v4, 4, v6")
    a("v_lshl_add_u32 v6, v5, 1, v6")
    a("s_lshr_b32 s15, s14, 1")
    a("s_lshl_b32 s15, s15, 6")
    a("s_and_b32 s38, s14, 1")
    a("s_lshl_b32 s38, s38, 3")
    a("s_add_u32 s15, s15, s38")
    for q in range(8):
        a(f"buffer_load_ushort v{16+q}, v6, s[24:27], s15 offen offset:{q*256}")
    a("v_lshlrev_b32 v7, 4, v0")
    a("s_lshl_b32 s15, s14, 12")
    a(f"s_add_u32 s15, s15, {WT_OFF}")
    a("s_waitcnt vmcnt(0)")
    for q in range(4):
        a(f"v_lshl_or_b32 v{8+q}, v{17+2*q}, 16, v{16+2*q}")
    a("buffer_store_dwordx4 v[8:11], v7, s[32:35], s15 offen")
    a("s_endpgm")
    a("K1_wsmall:")
    a("s_mov_b64 exec, s[36:37]")
    a("v_subrev_u32 v1, 256, v0")
    a("s_cmp_lt_u32 s14, 2")
    a("s_cbranch_scc0 K1_wcg")
    a("s_lshl_b32 s15, s14, 6")
    a("v_add_u32 v1, s15, v1")
    a("v_lshlrev_b32 v2, 1, v1")
    for kk in range(4):
        a(f"buffer_load_ushort v{8+kk}, v2, s[20:23], 0 offen offset:{kk*256}")
    a("v_lshlrev_b32 v3, 4, v1")
    a(f"s_mov_b32 s15, {WR_OFF}")
    a("s_waitcnt vmcnt(0)")
    for kk in range(4):
        a(f"v_lshlrev_b32 v{8+kk}, 16, v{8+kk}")
    a("buffer_store_dwordx4 v[8:11], v3, s[32:35], s15 offen")
    a("s_endpgm")
    a("K1_wcg:")
    a("s_cmp_eq_u32 s14, 2")
    a("s_cbranch_scc0 K1_wcode")
    a("v_cmp_gt_u32 vcc, 32, v1")
    a("s_and_saveexec_b64 s[36:37], vcc")
    a("v_lshrrev_b32 v2, 3, v1")
    a("v_bfe_u32 v3, v1, 1, 2")
    a("v_and_b32 v4, 1, v1")
    a("v_lshlrev_b32 v5, 5, v3")
    a("v_lshl_add_u32 v5, v4, 4, v5")
    a("v_lshl_add_u32 v5, v2, 1, v5")
    a("buffer_load_ushort v8, v5, s[16:19], 0 offen")
    a("buffer_load_ushort v9, v5, s[16:19], 0 offen offset:8")
    a("v_lshlrev_b32 v6, 2, v1")
    a(f"s_mov_b32 s15, {CG_OFF}")
    a("s_waitcnt vmcnt(0)")
    a("v_lshl_or_b32 v8, v9, 16, v8")
    a("buffer_store_dword v8, v6, s[32:35], s15 offen")
    a("s_endpgm")
    a("K1_wcode:")
    if CODEPF:
        a("s_cmp_eq_u32 s14, 3")
        a("s_cbranch_scc0 K1_end")
        a("s_getpc_b64 s[40:41]")
        a("K1_pc:")
        a("s_add_u32 s40, s40, main_kernel-K1_pc")
        a("s_addc_u32 s41, s41, 0")
        a("v_lshlrev_b32 v2, 6, v1")
        for r in range(4):
            a("v_cmp_gt_u32 vcc, K2_code_end-main_kernel, v2")
            a("s_and_b64 exec, exec, vcc")
            a("s_cbranch_execz K1_wcode_done")
            a(f"global_load_dword v{8+r}, v2, s[40:41]")
            a("v_add_u32 v2, 4096, v2")
        a("K1_wcode_done:")
        a("s_waitcnt vmcnt(0)")
    a("K1_end:")
    a("s_endpgm")

K2_T = 512
SLOTS = NPB * CAPN + 8
DUMMY = NPB * CAPN
L_REC = 0
L_SOFF = L_REC + SLOTS * 16
L_HIST = L_SOFF + SLOTS * 4
L_FLAG = L_HIST + NPB * 16
L_PRE = L_FLAG + 16
L_NODE = L_PRE + NPB * 16 + 512
L_TAB = L_NODE + 512
L_LST = L_TAB + 1024
L_WT = (L_LST + 4096 + 255) // 256 * 256
L_WR = L_WT + 32768
L_AGG = L_WT + 32768 + 2048
AGG_RS = 272
K2_LDS = L_AGG + (NPB * 4 + 12) * AGG_RS
OOB = 0x7f000000
BARK = env("BARK", 2)
NXB = 4

ACC = 96; XB = 32; CG = 24; OPS = 18; AOP = 16; AT = 12; RECV = 8
V_LIST1 = 7; V_SOFF = 6; V_T = 5; V_COL16 = 4; V_G = 3; V_LIST = 2; V_T2 = 1; V_EASEL = 0
S_X = 8; S_WS = 12; S_OUT = 16
S_WAVE = 20; S_SELLO = 21; S_SELHI = 22; S_IDX = 23
S_S0 = 24; S_S1 = 26
S_EA = 28; S_EB = 29; S_IDX2 = 30; S_LEFT = 31; S_RC = 32; S_MORE = 33
S_T = 34; S_PASS = 35; S_MODE = 36; S_WIN = 37; S_MAXC = 38; S_B = 39
S_MASK = 40
S_SAVE = 60

def lane_id(v):
    a(f"v_mbcnt_lo_u32_b32 v{v}, -1, 0")
    a(f"v_mbcnt_hi_u32_b32 v{v}, -1, v{v}")

tail_code = []
uid = [0]
def ld_x(b):
    r = []
    for u in range(4):
        x = XB + 16 * b + 4 * u
        r.append(f"buffer_load_dwordx4 v[{x}:{x+3}], v{V_SOFF}, s[{S_X}:{S_X+3}], 0 offen offset:{u*256}")
    return r
def addr_fix():
    a(f"v_add_u32 v{V_SOFF}, v{V_SOFF}, v{V_COL16}")
    if NOMEM == 1: a(f"v_mov_b32 v{V_SOFF}, {OOB}")
    if NOMEM == 3: a(f"v_and_b32 v{V_SOFF}, 0xfffff, v{V_SOFF}")

def gen_k2():
    k = "main_kernel"
    a(f".globl {k}\n.p2align 8\n.type {k},@function\n{k}:")
    a("s_cmp_ge_u32 s2, 256")
    a("s_cbranch_scc1 K2_end")
    stamp(0)
    a("s_load_dwordx2 s[4:5], s[0:1], 0")
    a("s_load_dwordx2 s[6:7], s[0:1], 80")
    a("s_load_dwordx2 s[62:63], s[0:1], 64")
    a("s_and_b32 s3, s2, 7")
    a(f"s_mul_i32 s3, s3, {NB}")
    a(f"s_add_u32 s{S_T}, s3, {NB}")
    a("s_lshr_b32 s3, s3, 3")
    a(f"s_lshr_b32 s{S_T}, s{S_T}, 3")
    a(f"s_lshr_b32 s{S_B}, s2, 3")
    a(f"s_add_u32 s{S_B}, s{S_B}, s3")
    a(f"s_cmp_ge_u32 s{S_B}, s{S_T}")
    a("s_cbranch_scc1 K2_end")
    TID = 23; LANE = 22
    a(f"v_mov_b32 v{TID}, v0")
    a(f"v_and_b32 v{LANE}, 63, v0")
    a("v_lshrrev_b32 v1, 6, v0")
    a("v_lshlrev_b32 v2, 2, v0")
    a("v_mov_b32 v3, 0")
    a(f"v_readfirstlane_b32 s{S_WAVE}, v1")
    a(f"v_cmp_gt_u32 vcc, {NPB*4+4}, v0")
    a(f"s_and_saveexec_b64 s[{S_SAVE}:{S_SAVE+1}], vcc")
    a(f"ds_write_b32 v2, v3 offset:{L_HIST}")
    a(f"s_mov_b64 exec, s[{S_SAVE}:{S_SAVE+1}]")
    a("v_lshrrev_b32 v8, 1, v0")
    a("v_and_b32 v9, 1, v0")
    a("v_lshlrev_b32 v10, 10, v8")
    a(f"s_lshl_b32 s3, s{S_B}, 2")
    a(f"s_add_u32 s3, s3, {OFFS_OFF}")
    a("s_waitcnt lgkmcnt(0)")
    srd(S_WS, 6, WS_USED)
    a(f"buffer_load_dwordx2 v[12:13], v10, s[{S_WS}:{S_WS+3}], s3 offen")
    a(f"s_lshl_b32 s3, s{S_WAVE}, 8")
    a(f"s_add_u32 s3, s3, {L_WR}")
    a("s_mov_b32 m0, s3")
    a(f"s_mov_b32 s3, {WR_OFF}")
    a(f"buffer_load_dword v2, s[{S_WS}:{S_WS+3}], s3 offen lds")
    srd(S_X, 4, N * 1024)
    srd(S_OUT, 62, N * 1024)
    if CODEPF:
        a("s_getpc_b64 s[4:5]")
        a("K2_pc:")
        a(f"v_lshlrev_b32 v14, 7, v{TID}")
        a("v_cmp_gt_u32 vcc, K2_code_end-K2_pc, v14")
        a(f"s_and_saveexec_b64 s[{S_SAVE}:{S_SAVE+1}], vcc")
        a("s_cbranch_execz K2_nocpf")
        a("global_load_dword v15, v14, s[4:5]")
        a("K2_nocpf:")
        a(f"s_mov_b64 exec, s[{S_SAVE}:{S_SAVE+1}]")
    a("s_barrier")
    for r in range(160):
        a(f"v_mov_b32 v{ACC+r}, 0")
    a(f"v_and_b32 v{V_COL16}, 15, v{TID}")
    a(f"v_lshlrev_b32 v{V_COL16}, 4, v{V_COL16}")
    a(f"v_lshrrev_b32 v{V_G}, 4, v{LANE}")
    a(f"v_and_b32 v{V_EASEL}, 3, v{TID}")
    a(f"v_mul_u32_u24 v{V_EASEL}, 0x0202, v{V_EASEL}")
    a(f"v_add_u32 v{V_EASEL}, 0x0100, v{V_EASEL}")
    a(f"v_lshlrev_b32 v{V_EASEL}, 16, v{V_EASEL}")
    a(f"v_or_b32 v{V_EASEL}, 0x0c0c, v{V_EASEL}")
    a(f"s_mov_b32 s{S_SELLO}, 0x05040100")
    a(f"s_mov_b32 s{S_SELHI}, 0x07060302")
    a(f"s_mov_b32 s{S_MODE}, 0")
    a(f"v_mul_u32_u24 v10, {EPC}, v8")
    a("v_add_u32 v10, v10, v9")
    a(f"v_bfe_u32 v16, v{TID}, 2, 2")
    a("v_lshlrev_b32 v16, 5, v16")
    a(f"v_cmp_gt_u32 vcc, {P}, v8")
    a("s_waitcnt vmcnt(0)")
    stamp(1)
    a("v_sub_u32 v11, v13, v12")
    a("v_cndmask_b32 v11, 0, v11, vcc")
    a("v_add_u32 v10, v10, v12")
    a("v_sub_u32 v13, v11, v9")
    a("v_lshlrev_b32 v14, 4, v10")
    a("v_lshlrev_b32 v10, 2, v10")
    a(f"s_mov_b32 s3, {TAG_OFF}")
    RB = XB; TG = XB + 40; RK = XB + 50
    M = lambda r: f"s[{S_MASK+2*r}:{S_MASK+2*r+1}]"
    for r in range(NR):
        a(f"v_cmp_lt_i32 {M(r)}, {2*r}, v13")
    for r in range(NR):
        a(f"s_mov_b64 exec, {M(r)}")
        a("s_cbranch_execz K2_ld_done")
        a(f"buffer_load_dword v{TG+r}, v10, s[{S_WS}:{S_WS+3}], s3 offen offset:{8*r}")
        a(f"buffer_load_dwordx4 v[{RB+4*r}:{RB+4*r+3}], v14, s[{S_WS}:{S_WS+3}], 0 offen offset:{32*r}")
    a("K2_ld_done:")
    a("s_mov_b64 exec, -1")
    a(f"s_mov_b32 s3, {CG_OFF}")
    a(f"buffer_load_dwordx4 v[{CG}:{CG+3}], v16, s[{S_WS}:{S_WS+3}], s3 offen")
    a(f"buffer_load_dwordx4 v[{CG+4}:{CG+7}], v16, s[{S_WS}:{S_WS+3}], s3 offen offset:16")
    a(f"v_cmp_lt_u32 s[{S_SAVE}:{S_SAVE+1}], {2*NR}, v11")
    a("v_mov_b32 v17, 1")
    a("s_waitcnt vmcnt(2)")
    stamp(2)
    for r in range(NR):
        a(f"s_mov_b64 exec, {M(r)}")
        a("s_cbranch_execz K2_h_done")
        a(f"v_lshrrev_b32 v8, 14, v{TG+r}")
        a(f"v_and_b32 v9, 0xffc, v8")
        a(f"v_lshlrev_b32 v8, 3, v8")
        a(f"v_lshlrev_b32 v8, v8, v17")
        a(f"ds_add_rtn_u32 v{RK+r}, v9, v8 offset:{L_HIST}")
    a("K2_h_done:")
    a("s_mov_b64 exec, -1")
    a("s_waitcnt lgkmcnt(0)")
    for r in range(NR):
        a(f"s_mov_b64 exec, {M(r)}")
        a("s_cbranch_execz K2_r_done")
        a(f"v_lshrrev_b32 v8, 11, v{TG+r}")
        a(f"v_and_b32 v8, 24, v8")
        a(f"v_bfe_u32 v{RK+r}, v{RK+r}, v8, 8")
        a(f"v_cmp_lt_u32 vcc, {CAPN-1}, v{RK+r}")
        a(f"s_or_b64 s[{S_SAVE}:{S_SAVE+1}], s[{S_SAVE}:{S_SAVE+1}], vcc")
    a("K2_r_done:")
    a("s_mov_b64 exec, -1")
    a(f"v_mov_b32 v9, {L_FLAG}")
    a(f"s_cmp_eq_u64 s[{S_SAVE}:{S_SAVE+1}], 0")
    a("s_cbranch_scc1 K2_noflag")
    a("ds_write_b32 v9, v17")
    a("K2_noflag:")
    a(f"v_lshlrev_b32 v8, 4, v{LANE}")
    a("s_waitcnt lgkmcnt(0)")
    a("s_barrier")
    stamp(3)
    a(f"ds_read_b128 v[12:15], v8 offset:{L_HIST}")
    a("ds_read_b32 v9, v9")
    a(f"v_lshlrev_b32 v{V_T}, 4, v{TID}")
    bg = []
    for r in range(4):
        bg.append([f"s_lshl_b32 s5, s{S_WAVE}, 10", f"s_add_u32 s5, s5, {L_WT + r*K2_T*16}", "s_mov_b32 m0, s5",
                   f"s_mov_b32 s5, {WT_OFF + r*K2_T*16}",
                   f"buffer_load_dwordx4 v{V_T}, s[{S_WS}:{S_WS+3}], s5 offen lds"])
    tch = []
    if K2TOUCH:
        per = K2_T * 16
        k1bytes = K1TOUCH * P * K1_T * 16
        for r in range(N * 1024 // (NB * per)):
            if (r + 1) * NB * per <= k1bytes: continue
            tch.append([f"s_lshl_b32 s5, s{S_B}, 13", f"s_add_u32 s5, s5, {r*NB*per}",
                        f"buffer_load_dwordx4 v[{XB+60}:{XB+63}], v{V_T}, s[{S_X}:{S_X+3}], s5 offen"])
    bg = tch + bg
    def bgop(n=1):
        for _ in range(n):
            if bg:
                for x in bg.pop(0): a(x)
    bgop(2)
    a("s_waitcnt lgkmcnt(0)")
    a("s_mov_b32 s3, 0x01010101")
    a("v_mov_b32 v10, 0")
    PW = 18
    for q in range(4):
        H = 12 + q
        a(f"v_lshlrev_b32 v{PW+q}, 8, v{H}")
        a(f"v_lshl_add_u32 v{PW+q}, v{H}, 16, v{PW+q}")
        a(f"v_lshl_add_u32 v{PW+q}, v{H}, 24, v{PW+q}")
        if q > 0:
            a(f"v_mul_lo_u32 v11, v10, s3")
            a(f"v_add_u32 v{PW+q}, v{PW+q}, v11")
        a(f"v_sad_u8 v10, v{H}, 0, v10")
    a(f"v_cmp_gt_u32 vcc, {NPB}, v{LANE}")
    a(f"s_and_saveexec_b64 s[{S_SAVE}:{S_SAVE+1}], vcc")
    a(f"ds_write_b128 v8, v[{PW}:{PW+3}] offset:{L_PRE}")
    a(f"v_cmp_lt_u32 vcc, {CAPN}, v10")
    a(f"s_mov_b64 exec, s[{S_SAVE}:{S_SAVE+1}]")
    a("v_readfirstlane_b32 s3, v9")
    a("s_cmp_lg_u64 vcc, 0")
    a("s_cbranch_scc1 K2_slow")
    a("s_cmp_lg_u32 s3, 0")
    a("s_cbranch_scc1 K2_slow")
    bg_slow = [list(x) for x in bg]
    PR = [12, 13, 14, 15, 16, 17, 18, 19, 20, 21]
    for r in range(NR):
        a(f"s_mov_b64 exec, {M(r)}")
        a("s_cbranch_execz K2_p_done")
        a(f"v_lshrrev_b32 v8, 14, v{TG+r}")
        a(f"ds_read_u8 v{PR[r]}, v8 offset:{L_PRE}")
    a("K2_p_done:")
    a("s_mov_b64 exec, -1")
    bgop(1)
    a(f"v_and_b32 v7, 7, v{LANE}")
    a("v_add_u32 v8, 3, v10")
    a("v_lshrrev_b32 v8, 2, v8")
    a("v_subrev_u32 v8, 5, v8")
    a("v_med3_i32 v8, v8, 0, 7")
    a(f"v_cmp_gt_u32 vcc, {NPB}, v{LANE}")
    a("v_mov_b32 v9, 63")
    a("s_nop 0")
    a("v_cndmask_b32 v8, 64, v8, vcc")
    KM = [24, 26, 28, 30, 32, 82, 84, 86]
    for q in range(8):
        a(f"v_cmp_eq_u32 s[{KM[q]}:{KM[q]+1}], {q}, v8")
    a("s_mov_b32 s3, 0")
    for q in range(7, -1, -1):
        a(f"s_mov_b64 exec, s[{KM[q]}:{KM[q]+1}]")
        a(f"v_mbcnt_lo_u32_b32 v9, s{KM[q]}, 0")
        a(f"v_mbcnt_hi_u32_b32 v9, s{KM[q]+1}, v9")
        a("v_add_u32 v9, s3, v9")
        a(f"s_bcnt1_i32_b64 s4, s[{KM[q]}:{KM[q]+1}]")
        a("s_add_u32 s3, s3, s4")
    a("s_mov_b64 exec, -1")
    a("v_lshlrev_b32 v9, 2, v9")
    a(f"v_lshl_add_u32 v8, v10, 8, v{LANE}")
    a("ds_permute_b32 v8, v9, v8")
    a("v_and_b32 v9, 1, v7")
    a("v_mul_u32_u24 v9, 7, v9")
    a(f"v_xor_b32 v9, s{S_WAVE}, v9")
    a("v_lshl_add_u32 v9, v7, 3, v9")
    a("v_lshlrev_b32 v9, 2, v9")
    a(f"v_and_b32 v6, 1, v{V_G}")
    a("v_mul_u32_u24 v6, 7, v6")
    a(f"v_xor_b32 v6, s{S_WAVE}, v6")
    a(f"v_lshl_add_u32 v6, v{V_G}, 3, v6")
    a("v_lshlrev_b32 v6, 2, v6")
    a(f"s_lshl_b32 s3, s{S_WAVE}, 2")
    a("s_add_u32 s3, s3, 128")
    a("v_mov_b32 v1, s3")
    bgop(1)
    a("s_waitcnt lgkmcnt(0)")
    a("ds_bpermute_b32 v11, v9, v8")
    a("ds_bpermute_b32 v6, v6, v8")
    a("ds_bpermute_b32 v1, v1, v8")
    for r in range(NR):
        a(f"s_mov_b64 exec, {M(r)}")
        a("s_cbranch_execz K2_s_done")
        a(f"v_lshrrev_b32 v8, 18, v{TG+r}")
        a(f"v_lshl_add_u32 v8, v8, 6, v{PR[r]}")
        a(f"v_add_u32 v8, v8, v{RK+r}")
        a(f"v_lshlrev_b32 v9, 4, v8")
        a(f"v_lshlrev_b32 v8, 2, v8")
        a(f"v_and_b32 v{TG+r}, 0x3fff, v{TG+r}")
        a(f"v_lshlrev_b32 v{TG+r}, 10, v{TG+r}")
        a(f"ds_write_b128 v9, v[{RB+4*r}:{RB+4*r+3}] offset:{L_REC}")
        a(f"ds_write_b32 v8, v{TG+r} offset:{L_SOFF}")
    a("K2_s_done:")
    a("s_mov_b64 exec, -1")
    bgop(1)
    a("v_mov_b32 v12, 0")
    a("v_mov_b32 v13, 0")
    a(f"s_mov_b32 s{S_PASS}, 0")
    a("K2_sched:")
    a(f"v_and_b32 v14, 15, v{LANE}")
    a(f"s_lshl_b32 s3, s{S_WAVE}, 6")
    a("v_lshl_add_u32 v15, v7, 2, s3")
    a("s_waitcnt lgkmcnt(0)")
    a(f"ds_write_b32 v15, v11 offset:{L_NODE}")
    BS = [(6, 12, 16, 17, 18), (1, 13, 19, 20, 21)]
    for (vi, vd, vq, vt, ve) in BS:
        a(f"v_and_b32 v{vt}, 0xff, v{vi}")
        a(f"v_lshl_add_u32 v{vt}, v{vt}, 4, v14")
        a(f"ds_read_u8 v{vt}, v{vt} offset:{L_PRE+1}")
        a(f"v_lshrrev_b32 v{vq}, 8, v{vi}")
        a(f"v_add_u32 v{vq}, 3, v{vq}")
        a(f"v_lshrrev_b32 v{vq}, 2, v{vq}")
    a(f"s_cmp_eq_u32 s{S_PASS}, 0")
    a("s_cselect_b32 s4, 15, 0")
    a("v_cmp_le_u32 vcc, s4, v14")
    a("s_waitcnt lgkmcnt(0)")
    for (vi, vd, vq, vt, ve) in BS:
        a(f"v_add_u32 v{vt}, 1, v{vt}")
        a(f"v_lshrrev_b32 v{vt}, 2, v{vt}")
        a(f"v_cndmask_b32 v{vt}, v{vt}, v{vq}, vcc")
        a(f"v_sub_u32 v{vt}, v{vt}, v14")
        a(f"v_add_u32 v{ve}, 1, v{vd}")
        a(f"v_min_i32 v{vt}, v{vt}, v{ve}")
    for sh in (1, 2, 4, 8):
        a("s_nop 0")
        for (vi, vd, vq, vt, ve) in BS:
            a(f"v_min_i32_dpp v{vt}, v{vt}, v{vt} row_shr:{sh} row_mask:0xf bank_mask:0xf")
    for (vi, vd, vq, vt, ve) in BS:
        a(f"v_subrev_u32 v{ve}, 15, v{vq}")
        a(f"v_max_i32 v{vt}, v{vt}, v{ve}")
    for (vi, vd, vq, vt, ve) in BS:
        a(f"v_add_u32 v{ve}, v{vt}, v14")
    a("s_nop 0")
    for (vi, vd, vq, vt, ve) in BS:
        a(f"v_mov_b32_dpp v{vd}, v{ve} row_shr:1 row_mask:0xf bank_mask:0xf")
    a(f"s_lshl_b32 s4, s{S_WAVE}, 7")
    a("v_lshl_add_u32 v15, v14, 3, s4")
    for k_, (vi, vd, vq, vt, ve) in enumerate(BS):
        a(f"v_sub_u32 v{vt}, v{ve}, v{vd}")
        a(f"v_lshl_or_b32 v{vt}, v{vt}, 7, v{vd}")
        if k_ == 0:
            a(f"v_add_u32 v{vi}, v15, v{V_G}")
            a(f"ds_write_b8 v{vi}, v{vt} offset:{L_TAB}")
        else:
            a(f"ds_write_b8 v15, v{vt} offset:{L_TAB+4}")
    a(f"v_add_u32 v15, s4, v{LANE}")
    a(f"ds_read_u8 v12, v15 offset:{L_TAB}")
    a(f"ds_read_u8 v13, v15 offset:{L_TAB+64}")
    a("v_and_b32 v16, 0xff, v11")
    a("v_lshlrev_b32 v16, 6, v16")
    a("v_lshrrev_b32 v10, 8, v11")
    a("v_cmp_gt_u32 vcc, 5, v7")
    a("v_mov_b32 v20, 0")
    a("v_mov_b32 v21, 0")
    a("v_cndmask_b32 v10, 0, v10, vcc")
    a("s_waitcnt lgkmcnt(0)")
    a("v_cndmask_b32 v12, 0, v12, vcc")
    a("v_cndmask_b32 v13, 0, v13, vcc")
    a(f"v_cmp_lt_u32 s[{S_S0}:{S_S0+1}], 64, v12")
    a(f"v_cmp_lt_u32 s[{S_S1}:{S_S1+1}], 64, v13")
    a("v_and_b32 v12, 0x7f, v12")
    a("v_and_b32 v13, 0x7f, v13")
    a("v_lshl_add_u32 v12, v12, 2, v16")
    a("v_lshl_add_u32 v13, v13, 2, v16")
    a(f"s_bcnt1_i32_b64 s4, s[{S_S0}:{S_S0+1}]")
    a(f"s_bcnt1_i32_b64 s{S_LEFT}, s[{S_S1}:{S_S1+1}]")
    a(f"s_add_u32 s{S_LEFT}, s{S_LEFT}, s4")
    a(f"s_lshl_b32 s5, s{S_WAVE}, 7")
    a("s_add_u32 s4, s4, s5")
    a(f"v_mbcnt_lo_u32_b32 v17, s{S_S0}, 0")
    a(f"v_mbcnt_hi_u32_b32 v17, s{S_S0+1}, v17")
    a(f"v_mbcnt_lo_u32_b32 v18, s{S_S1}, 0")
    a(f"v_mbcnt_hi_u32_b32 v18, s{S_S1+1}, v18")
    a("v_add_lshl_u32 v17, s5, v17, 2")
    a("v_add_lshl_u32 v18, s4, v18, 2")
    a(f"s_mov_b64 exec, s[{S_S0}:{S_S0+1}]")
    a(f"ds_write_b32 v17, v12 offset:{L_LST}")
    a(f"s_mov_b64 exec, s[{S_S1}:{S_S1+1}]")
    a(f"ds_write_b32 v18, v13 offset:{L_LST}")
    a("s_mov_b64 exec, -1")
    a("s_mov_b32 s3, s5")
    a(f"v_lshrrev_b32 v14, 3, v{LANE}")
    a("v_add_u32 v15, 3, v10")
    a("v_and_b32 v15, 0xfc, v15")
    a("v_add_u32 v14, v10, v14")
    a("v_cmp_lt_u32 vcc, v14, v15")
    a("v_add_u32 v14, v16, v14")
    a(f"v_add_u32 v15, {DUMMY}, v7")
    a(f"v_subrev_u32 v19, 24, v{LANE}")
    a(f"v_cmp_gt_u32 s[{S_SAVE}:{S_SAVE+1}], 4, v19")
    a(f"v_cmp_gt_u32 s[4:5], s{S_LEFT}, v{LANE}")
    a(f"v_add_u32 v19, 64, v{LANE}")
    a(f"v_cmp_gt_u32 s[6:7], s{S_LEFT}, v19")
    a(f"v_add_lshl_u32 v17, s3, v{LANE}, 2")
    a("v_mov_b32 v22, 0")
    a("v_mov_b32 v23, 0")
    a(f"v_cndmask_b32 v14, v14, v15, s[{S_SAVE}:{S_SAVE+1}]")
    a(f"ds_read_b32 v{V_LIST}, v17 offset:{L_LST}")
    a(f"ds_read_b32 v{V_LIST1}, v17 offset:{L_LST+256}")
    a(f"s_or_b64 exec, vcc, s[{S_SAVE}:{S_SAVE+1}]")
    a("v_lshlrev_b32 v15, 4, v14")
    a("v_lshlrev_b32 v14, 2, v14")
    a(f"v_mov_b32 v19, {OOB}")
    a(f"ds_write_b128 v15, v[20:23] offset:{L_REC}")
    a(f"ds_write_b32 v14, v19 offset:{L_SOFF}")
    a("s_mov_b64 exec, -1")
    a(f"v_mov_b32 v19, {DUMMY}")
    a("s_waitcnt lgkmcnt(0)")
    a(f"v_cndmask_b32 v{V_LIST}, v19, v{V_LIST}, s[4:5]")
    a(f"v_cndmask_b32 v{V_LIST1}, v19, v{V_LIST1}, s[6:7]")
    a("s_barrier")
    stamp(4)
    a(f"s_cmp_lg_u32 s{S_PASS}, 0")
    a("s_cbranch_scc1 K2_nobg")
    bgop(100)
    a("K2_nobg:")
    def rd_soff(se):
        return [f"v_add_lshl_u32 v{V_T}, s{se}, v{V_G}, 2", f"ds_read_b32 v{V_SOFF}, v{V_T} offset:{L_SOFF}"]
    def rd_rec(se):
        return [f"v_add_lshl_u32 v{V_T2}, s{se}, v{V_G}, 4", f"ds_read_b128 v[{RECV}:{RECV+3}], v{V_T2} offset:{L_REC}"]
    for q in range(NXB):
        a(f"v_readlane_b32 s{4+q}, v{V_LIST}, {q}")
    a(f"s_mov_b32 s{S_IDX}, {NXB}")
    a(f"s_mov_b32 s{S_IDX2}, 1")
    a(f"s_mov_b32 s{S_RC}, 0")
    if PRIO == 2:
        a(f"s_cmp_lt_u32 s{S_WAVE}, 4")
        a("s_cbranch_scc1 K2_pr_done")
        a("s_setprio 1")
        a("K2_pr_done:")
    for x in rd_soff(4): a(x)
    for x in rd_rec(4): a(x)
    for q in range(NXB - 1):
        a(f"s_cmp_gt_u32 s{S_LEFT}, {q}")
        a("s_cbranch_scc0 K2_pre_done")
        a("s_waitcnt lgkmcnt(1)" if q == 0 else "s_waitcnt lgkmcnt(0)")
        addr_fix()
        for x in ld_x(q): a(x)
        for x in rd_soff(5 + q): a(x)
    a("K2_pre_done:")
    a(f"s_cmp_lg_u32 s{S_LEFT}, 0")
    a("s_cbranch_scc1 K2_t0")
    a("s_waitcnt vmcnt(0)")
    a("s_branch K2_t0")
    NS = 5 * NXB
    for s_ in range(NS):
        i = s_ % 5; b = s_ % NXB
        if i == 0:
            a(f"K2_re{s_}:")
            a(f"s_add_u32 s{S_RC}, s{S_RC}, 1")
            if PRIO == 1:
                a(f"s_lshr_b32 s{S_T}, s{S_WAVE}, 2")
                a(f"s_add_u32 s{S_T}, s{S_T}, s{S_RC}")
                a("s_setprio 0")
                a(f"s_bitcmp1_b32 s{S_T}, 0")
                a(f"s_cbranch_scc0 K2_pr{s_}")
                a("s_setprio 1")
                a(f"K2_pr{s_}:")
            a(f"s_lshr_b64 s[{S_S0}:{S_S0+1}], s[{S_S0}:{S_S0+1}], 8")
            a(f"s_and_b32 s{S_T}, s{S_RC}, {BARK-1}")
            a(f"s_cbranch_scc0 K2_rx{s_}")
            t = [f"K2_rx{s_}:",
                 f"s_cmp_eq_u32 s{S_RC}, 16", "s_cbranch_scc1 K2_loop_done",
                 f"s_cmp_lg_u32 s{S_RC}, 8", f"s_cbranch_scc1 K2_ry{s_}",
                 f"s_mov_b64 s[{S_S0}:{S_S0+1}], s[{S_S1}:{S_S1+1}]",
                 f"s_cmp_lg_u32 s{S_IDX2}, 1", f"s_cbranch_scc1 K2_ry{s_}",
                 "s_waitcnt vmcnt(0)",
                 f"K2_ry{s_}:",
                 f"s_cmp_lt_u32 s{S_IDX2}, 20", f"s_cbranch_scc1 K2_rz{s_}",
                 "s_mov_b64 exec, 0xfffff", f"v_mov_b32 v{V_LIST}, v{V_LIST1}", "s_mov_b64 exec, -1",
                 f"K2_rz{s_}:",
                 f"s_cmp_lg_u32 s{S_PASS}, 0", f"s_cbranch_scc1 K2_t{s_}",
                 "s_barrier", f"s_branch K2_t{s_}"]
            tail_code.extend(t)
        a(f"K2_t{s_}:")
        a(f"s_bitcmp1_b32 s{S_S0}, {i}")
        nxt = (s_ + 16) % NS
        a(f"s_cbranch_scc0 K2_{'re' if nxt % 5 == 0 else 't'}{nxt}")
        a(f"v_readlane_b32 s{S_EB}, v{V_LIST}, s{S_IDX}")
        a(f"v_readlane_b32 s{S_EA}, v{V_LIST}, s{S_IDX2}")
        a(f"s_sub_u32 s{S_LEFT}, s{S_LEFT}, 1")
        a("s_waitcnt lgkmcnt(0)")
        a(f"s_cmp_lt_u32 s{S_LEFT}, {NXB-1}")
        lds_ = ld_x((b + NXB - 1) % NXB)
        cnt_ = [0]
        def gl(n=1):
            cnt_[0] += 1
            a(f"s_cbranch_scc1 K2_nl{s_}_{cnt_[0]}")
            for _ in range(n): a(lds_.pop(0).replace(f"v{V_SOFF},", f"v{V_T},"))
            a(f"K2_nl{s_}_{cnt_[0]}:")
        a(f"v_add_u32 v{V_T}, v{V_SOFF}, v{V_COL16}")
        if NOMEM == 1: a(f"v_mov_b32 v{V_T}, {OOB}")
        pre = {0: 4, 1: 2, 2: 1, 3: 0}[ILV]
        if ILV == 0: gl(4)
        if ILV in (1, 2): gl(1)
        for u in range(4 if XP != 3 else 0):
            a(f"v_dot2_f32_bf16 v{AT+u}, v{CG+2*u}, v{RECV}, 0")
        a(f"v_perm_b32 v{AOP}, v{RECV+3}, v{RECV+2}, v{V_EASEL}")
        for u in range(4 if XP != 3 else 0):
            a(f"v_dot2_f32_bf16 v{AT+u}, v{CG+2*u+1}, v{RECV+1}, v{AT+u}")
        a(f"v_add_lshl_u32 v{V_T2}, s{S_EB}, v{V_G}, 2")
        a(f"ds_read_b32 v{V_SOFF}, v{V_T2} offset:{L_SOFF}")
        for x in rd_rec(S_EA): a(x)
        if ILV == 1: gl(1)
        for u in range(4):
            a(f"v_mul_f32 v{AT+u}, v{AT+u}, v{AOP}")
        a(f"v_cvt_pk_bf16_f32 v{AOP}, v{AT}, v{AT+1}")
        a(f"v_cvt_pk_bf16_f32 v{AOP+1}, v{AT+2}, v{AT+3}")
        a(f"s_cbranch_scc1 K2_wx{s_}")
        a(f"s_waitcnt vmcnt({4*(NXB-2)+pre})")
        a(f"K2_wr{s_}:")
        t = [f"K2_wx{s_}:", "s_waitcnt vmcnt(8)", f"s_cmp_eq_u32 s{S_LEFT}, 2", f"s_cbranch_scc1 K2_wr{s_}",
             "s_waitcnt vmcnt(4)", f"s_cmp_eq_u32 s{S_LEFT}, 1", f"s_cbranch_scc1 K2_wr{s_}",
             "s_waitcnt vmcnt(0)", f"s_cmp_eq_u32 s{S_LEFT}, 0", f"s_branch K2_wr{s_}"]
        tail_code.extend(t)
        def mf(j):
            if XP == 1: return
            o = OPS + 2 * (j % 3); c = ACC + 32 * i + 4 * j
            a(f"v_mfma_f32_16x16x16_bf16 v[{c}:{c+3}], v[{AOP}:{AOP+1}], v[{o}:{o+1}], v[{c}:{c+3}]")
        after = {0: [], 1: [2, 5], 2: [1, 3, 6], 3: [0, 2, 4, 6]}[ILV]
        for j in range(8):
            m = j >> 1; sel = S_SELHI if j & 1 else S_SELLO
            o = OPS + 2 * (j % 3)
            x = lambda u: XB + 16 * b + 4 * u + m
            if not NOCOMP:
                if XP != 2:
                    a(f"v_perm_b32 v{o}, v{x(1)}, v{x(0)}, s{sel}")
                    a(f"v_perm_b32 v{o+1}, v{x(3)}, v{x(2)}, s{sel}")
                if j > 0: mf(j - 1)
            if j in after: gl(1)
        a(f"s_add_u32 s{S_IDX}, s{S_IDX}, 1")
        a(f"s_add_u32 s{S_IDX2}, s{S_IDX2}, 1")
        if not NOCOMP: mf(7)
    a("s_branch K2_re0")
    for x in tail_code: a(x)
    a("K2_loop_done:")
    a(f"s_cmp_lg_u32 s{S_MODE}, 0")
    a("s_cbranch_scc1 K2_slow_next")
    a("K2_epi:")
    stamp(5)
    a("s_waitcnt vmcnt(0) lgkmcnt(0)")
    lane_id(LANE)
    a(f"s_lshl_b32 s3, s{S_WAVE}, 6")
    a(f"v_and_b32 v6, 15, v{LANE}")
    a("v_and_b32 v5, 12, v6")
    a("v_add_u32 v5, s3, v5")
    a(f"ds_read_b32 v16, v5 offset:{L_NODE}")
    a("v_mov_b32 v5, s3")
    a(f"ds_read_b32 v17, v5 offset:{L_NODE+16}")
    a(f"v_lshlrev_b32 v1, 3, v{V_COL16}")
    a(f"v_add_u32 v1, {L_WR}, v1")
    for j in range(8):
        a(f"ds_read_b128 v[{XB+4*j}:{XB+4*j+3}], v1 offset:{16*j}")
    a(f"v_lshlrev_b32 v1, 4, v{LANE}")
    a(f"v_add_u32 v1, {L_WT}, v1")
    a(f"s_mul_i32 s4, s{S_WAVE}, {20*AGG_RS}")
    a(f"s_add_u32 s4, s4, {L_AGG}")
    a(f"v_mul_u32_u24 v2, {AGG_RS}, v{V_G}")
    a(f"v_add3_u32 v2, v2, v{V_COL16}, s4")
    a(f"v_mul_u32_u24 v7, {AGG_RS}, v6")
    a(f"v_lshl_add_u32 v7, v{V_G}, 4, v7")
    a("v_add_u32 v7, s4, v7")
    AW = [XB + 32, ACC, ACC + 32, ACC + 64]
    def rd_a(m):
        for x in range(8):
            a(f"ds_read_b128 v[{AW[m]+4*x}:{AW[m]+4*x+3}], v1 offset:{8192*m + 1024*x}")
    a("s_waitcnt lgkmcnt(0)")
    rd_a(0)
    for i in range(5):
        for j in range(8):
            c = ACC + 32 * i + 4 * j; w = XB + 4 * j
            a(f"v_mul_f32 v{c}, v{c}, v{w}")
        for kk in range(1, 4):
            for j in range(8):
                c = ACC + 32 * i + 4 * j; w = XB + 4 * j
                a(f"v_fmac_f32 v{c}, v{c+kk}, v{w+kk}")
        o = 8 + 4 * (i % 2)
        for jj in range(4):
            c = ACC + 32 * i + 8 * jj
            a(f"v_cvt_pk_bf16_f32 v{o+jj}, v{c}, v{c+4}")
        a(f"ds_write_b128 v2, v[{o}:{o+3}] offset:{i*4*AGG_RS}")
        if i < 3: rd_a(i + 1)
    stamp(6)
    BB = XB
    for ct in range(2):
        for t in range(4):
            r = BB + 16 * ct + 4 * t
            a(f"ds_read_b128 v[{r}:{r+3}], v7 offset:{ct*16*AGG_RS + t*64}")
    a("v_and_b32 v5, 3, v6")
    a("v_lshlrev_b32 v5, 8, v5")
    a(f"v_lshl_add_u32 v5, v{V_G}, 4, v5")
    a("v_and_b32 v16, 0xff, v16")
    a("v_and_b32 v17, 0xff, v17")
    a("v_lshl_add_u32 v16, v16, 10, v5")
    a("v_lshl_add_u32 v17, v17, 10, v5")
    a(f"v_mov_b32 v18, {OOB}")
    a("v_cmp_gt_u32 vcc, 4, v6")
    a(f"s_mul_i32 s6, s{S_B}, {NPB*1024}")
    a("s_nop 0")
    a("v_cndmask_b32 v17, v18, v17, vcc")
    DD = ACC + 96
    units = [(ct, m) for ct in range(2) for m in range(4)]
    def fin(u):
        ct, m = units[u]
        d = DD + 8 * u
        for x in range(4):
            a(f"v_cvt_pk_bf16_f32 v{d+x}, v{d+2*x}, v{d+2*x+1}")
        a(f"buffer_store_dwordx4 v[{d}:{d+3}], v{16+ct}, s[{S_OUT}:{S_OUT+3}], s6 offen offset:{64*m}")
    for u, (ct, m) in enumerate(units):
        if u == 0: a("s_waitcnt lgkmcnt(4)")
        if u == 4: a("s_waitcnt lgkmcnt(0)")
        for t in range(4):
            r = BB + 16 * ct + 4 * t
            for hh in range(2):
                d = DD + 8 * u + 4 * hh; w = AW[m] + 16 * hh + 4 * t
                c = "0" if t == 0 else f"v[{d}:{d+3}]"
                a(f"v_mfma_f32_16x16x32_bf16 v[{d}:{d+3}], v[{w}:{w+3}], v[{r}:{r+3}], {c}")
        if u > 0: fin(u - 1)
    a("s_nop 7")
    fin(7)
    stamp(7)
    if STAMP: a("s_waitcnt vmcnt(0)")
    stamp(8)
    stamp_flush(1, 8, 9, S_WAVE, 1)
    a("K2_end:")
    a("s_endpgm")
    a("K2_slow:")
    for grp in bg_slow:
        if "lds" in grp[-1]:
            for x in grp: a(x)
    a(f"s_mov_b32 s{S_MODE}, 1")
    a(f"s_mov_b32 s{S_WIN}, 0")
    a(f"v_lshlrev_b32 v8, 10, v{LANE}")
    a(f"s_lshl_b32 s3, s{S_B}, 2")
    a(f"s_add_u32 s3, s3, {OFFS_OFF}")
    for h in range(4):
        a(f"buffer_load_dwordx2 v[{10+2*h}:{11+2*h}], v8, s[{S_WS}:{S_WS+3}], s3 offen")
        a("s_add_u32 s3, s3, 65536")
    a(f"v_cmp_gt_u32 vcc, {P-192}, v{LANE}")
    a("s_waitcnt vmcnt(0)")
    for h in range(4):
        a(f"v_sub_u32 v{10+2*h}, v{11+2*h}, v{10+2*h}")
    a("v_cndmask_b32 v16, 0, v16, vcc")
    a("v_max_u32 v10, v10, v12")
    a("v_max3_u32 v10, v10, v14, v16")
    wave_scan(10, "v_max_u32_dpp")
    a("s_nop 1")
    a(f"v_readlane_b32 s{S_MAXC}, v10, 63")
    a("K2_slow_win:")
    a(f"s_cmp_ge_u32 s{S_WIN}, s{S_MAXC}")
    a("s_cbranch_scc1 K2_slow_fin")
    def seg_setup():
        lane_id(LANE)
        a(f"s_lshl_b32 s3, s{S_WAVE}, 6")
        a(f"v_add_u32 v{TID}, s3, v{LANE}")
        a(f"v_lshrrev_b32 v8, 1, v{TID}")
        a(f"v_and_b32 v9, 1, v{TID}")
        a("v_lshlrev_b32 v10, 10, v8")
        a(f"s_lshl_b32 s3, s{S_B}, 2")
        a(f"s_add_u32 s3, s3, {OFFS_OFF}")
        a(f"buffer_load_dwordx2 v[12:13], v10, s[{S_WS}:{S_WS+3}], s3 offen")
        a(f"v_mul_u32_u24 v10, {EPC}, v8")
        a(f"v_add3_u32 v10, v10, v9, s{S_WIN}")
        a(f"v_cmp_gt_u32 vcc, {P}, v8")
        a("s_waitcnt vmcnt(0)")
        a("v_sub_u32 v11, v13, v12")
        a("v_cndmask_b32 v11, 0, v11, vcc")
        a("v_add_u32 v10, v10, v12")
        a("v_sub_u32 v13, v11, v9")
        a(f"v_subrev_u32 v13, s{S_WIN}, v13")
        a("v_lshlrev_b32 v14, 4, v10")
        a("v_lshlrev_b32 v10, 2, v10")
    seg_setup()
    for r in range(NR):
        a(f"v_cmp_lt_i32 {M(r)}, {2*r}, v13")
    a("K2_slow_batch:")
    a("s_waitcnt vmcnt(0) lgkmcnt(0)")
    a("s_barrier")
    seg_setup()
    a(f"v_lshlrev_b32 v8, 2, v{TID}")
    a("v_mov_b32 v9, 0")
    a(f"v_cmp_gt_u32 vcc, {NPB*4+4}, v{TID}")
    a(f"s_and_saveexec_b64 s[{S_SAVE}:{S_SAVE+1}], vcc")
    a(f"ds_write_b32 v8, v9 offset:{L_HIST}")
    a("s_mov_b64 exec, -1")
    a("s_waitcnt lgkmcnt(0)")
    a("s_barrier")
    a("v_mov_b32 v17, 1")
    a(f"s_mov_b32 s3, {TAG_OFF}")
    a(f"s_mov_b64 s[{S_SAVE}:{S_SAVE+1}], 0")
    for r in range(NR):
        a(f"s_mov_b64 exec, {M(r)}")
        a(f"s_cbranch_execz K2_slow_skip{r}")
        a(f"buffer_load_dword v16, v10, s[{S_WS}:{S_WS+3}], s3 offen offset:{8*r}")
        a(f"buffer_load_dwordx4 v[{XB}:{XB+3}], v14, s[{S_WS}:{S_WS+3}], 0 offen offset:{32*r}")
        a("s_waitcnt vmcnt(0)")
        a("v_lshrrev_b32 v8, 18, v16")
        a("v_lshlrev_b32 v9, 4, v8")
        a(f"ds_add_rtn_u32 v15, v9, v17 offset:{L_HIST}")
        a("v_and_b32 v16, 0x3fff, v16")
        a("v_lshlrev_b32 v16, 10, v16")
        a("s_waitcnt lgkmcnt(0)")
        a(f"v_cmp_gt_u32 vcc, {CAPN}, v15")
        a(f"s_andn2_b64 {M(r)}, {M(r)}, vcc")
        a(f"s_or_b64 s[{S_SAVE}:{S_SAVE+1}], s[{S_SAVE}:{S_SAVE+1}], {M(r)}")
        a("s_mov_b64 exec, vcc")
        a("v_lshl_add_u32 v8, v8, 6, v15")
        a("v_lshlrev_b32 v9, 4, v8")
        a("v_lshlrev_b32 v8, 2, v8")
        a(f"ds_write_b128 v9, v[{XB}:{XB+3}] offset:{L_REC}")
        a(f"ds_write_b32 v8, v16 offset:{L_SOFF}")
        a("s_waitcnt lgkmcnt(0)")
        a(f"K2_slow_skip{r}:")
    a("s_mov_b64 exec, -1")
    a(f"v_mov_b32 v9, {L_FLAG}")
    a(f"s_cmp_eq_u64 s[{S_SAVE}:{S_SAVE+1}], 0")
    a("s_cbranch_scc1 K2_slow_nof")
    a("ds_write_b32 v9, v17")
    a("K2_slow_nof:")
    a("s_waitcnt lgkmcnt(0)")
    a("s_barrier")
    a(f"v_and_b32 v7, 7, v{LANE}")
    a(f"s_mul_i32 s3, s{S_WAVE}, 5")
    a("v_add_u32 v11, s3, v7")
    a(f"v_add_u32 v6, s3, v{V_G}")
    a("s_add_u32 s3, s3, 4")
    a("v_mov_b32 v1, s3")
    for (vn, vt) in ((11, 12), (6, 13), (1, 14)):
        a(f"v_lshlrev_b32 v{vt}, 4, v{vn}")
        a(f"ds_read_b32 v{vt}, v{vt} offset:{L_HIST}")
    a("ds_read_b32 v9, v9")
    a("s_waitcnt lgkmcnt(0)")
    for (vn, vt) in ((11, 12), (6, 13), (1, 14)):
        a(f"v_min_u32 v{vt}, {CAPN}, v{vt}")
        a(f"v_lshl_add_u32 v{vn}, v{vt}, 8, v{vn}")
    a(f"v_readfirstlane_b32 s{S_MODE}, v9")
    a("v_mov_b32 v12, 0")
    a("v_mov_b32 v13, 0")
    a(f"s_add_u32 s{S_MODE}, s{S_MODE}, 1")
    a(f"s_mov_b32 s{S_PASS}, 1")
    a("s_branch K2_sched")
    a("K2_slow_next:")
    a(f"s_cmp_eq_u32 s{S_MODE}, 2")
    a("s_cbranch_scc1 K2_slow_batch")
    a(f"s_add_u32 s{S_WIN}, s{S_WIN}, {2*NR}")
    a("s_waitcnt vmcnt(0) lgkmcnt(0)")
    a("s_branch K2_slow_win")
    a("K2_slow_fin:")
    a("s_branch K2_epi")
    a("K2_code_end:")
    a("s_endpgm")

def gen_report():
    k = "rep_kernel"
    a(f".globl {k}\n.p2align 8\n.type {k},@function\n{k}:")
    a("s_cmp_lg_u32 s2, 0")
    a("s_cbranch_scc1 R_end")
    a("s_load_dwordx4 s[4:7], s[0:1], 72")
    a("s_waitcnt lgkmcnt(0)")
    def red(reg, op):
        wave_scan(reg, op)
    a("v_mov_b32 v10, -1")
    for r in range(11, 30): a(f"v_mov_b32 v{r}, 0")
    a("v_mov_b32 v14, -1")
    a("v_mov_b32 v20, -1")
    a(f"v_lshlrev_b32 v1, 6, v0")
    a(f"v_add_u32 v1, {DBG_OFF}, v1")
    for kx in range(19):
        a("global_load_dwordx4 v[2:5], v1, s[6:7]")
        a("global_load_dwordx4 v[6:9], v1, s[6:7] offset:16")
        a("s_waitcnt vmcnt(0)")
        a("v_min_u32 v10, v10, v2")
        a("v_max_u32 v11, v11, v3")
        a("v_max_u32 v12, v12, v5")
        a("v_max_u32 v13, v13, v8")
        a("v_add_u32 v1, 4096, v1")
    a(f"v_lshlrev_b32 v1, 6, v0")
    a(f"v_add_u32 v1, {DBG_OFF + (1<<20)}, v1")
    for kx in range(31):
        a("global_load_dwordx4 v[2:5], v1, s[6:7]")
        a("global_load_dwordx4 v[6:9], v1, s[6:7] offset:16")
        a("global_load_dword v30, v1, s[6:7] offset:32")
        a("s_waitcnt vmcnt(0)")
        a("v_min_u32 v14, v14, v2")
        a("v_max_u32 v15, v15, v2")
        a("v_max_u32 v16, v16, v3")
        a("v_max_u32 v17, v17, v4")
        a("v_max_u32 v18, v18, v5")
        a("v_max_u32 v19, v19, v6")
        a("v_min_u32 v20, v20, v7")
        a("v_max_u32 v21, v21, v7")
        a("v_max_u32 v22, v22, v8")
        a("v_max_u32 v23, v23, v9")
        a("v_max_u32 v24, v24, v30")
        a("v_add_u32 v1, 4096, v1")
    for r in range(10, 25):
        red(r, "v_min_u32_dpp" if r in (10, 14, 20) else "v_max_u32_dpp")
    a("s_memrealtime s[8:9]")
    a("s_waitcnt lgkmcnt(0)")
    a("v_mov_b32 v25, s8")
    a("s_mov_b32 exec_lo, 0")
    a("s_mov_b32 exec_hi, 0x80000000")
    a("v_mov_b32 v1, 0")
    for r in range(11, 26):
        a(f"v_sub_u32 v2, v{r}, v10")
        a(f"global_store_dword v1, v2, s[4:5] offset:{4*(r-11)}")
    a("R_end:")
    a("s_endpgm")

def kd(name, nv, ns):
    return f""".p2align 6
.amdhsa_kernel {name}
  .amdhsa_next_free_vgpr {nv}
  .amdhsa_next_free_sgpr {ns}
  .amdhsa_accum_offset {(nv+3)//4*4}
  .amdhsa_group_segment_fixed_size 0
  .amdhsa_kernarg_size 88
  .amdhsa_user_sgpr_count 2
  .amdhsa_user_sgpr_kernarg_segment_ptr 1
  .amdhsa_system_sgpr_workgroup_id_x 1
.end_amdhsa_kernel"""

def main():
    hdr = open("cdna_kernels/" + NAME + ".s.ref").read().split("\n")
    hdr = [l for l in hdr[:12] if l.startswith(";")]
    print("\n".join(hdr))
    print(f"; @launch kernel=part_kernel grid=({K1_GRID},1,1) block=({K1_T},1,1) lds={K1_LDS}")
    print(f"; @launch kernel=main_kernel grid=(256,1,1) block=({K2_T},1,1) lds={K2_LDS}")
    if STAMP == 2: print("; @launch kernel=rep_kernel grid=(1,1,1) block=(64,1,1) lds=0")
    print('.amdgcn_target "amdgcn-amd-amdhsa--gfx950"')
    print(".text")
    gen_k1()
    gen_k2()
    if STAMP == 2: gen_report()
    print("\n".join(("" if (l.endswith(":") or l.startswith(".")) else "    ") + l for l in out))
    print('.section .rodata,"a"')
    print(kd("part_kernel", 64, 96 if STAMP else 48))
    print(kd("main_kernel", 256, 102))
    if STAMP == 2: print(kd("rep_kernel", 32, 16))

main()
```

```python
import sys, os

NAME = "gather_scatter__tensor_product_equiv_mace__graph"
N = 10000; E = 320000
P = 250; EPC = E // P
NB = 250; NPB = 40
NR = 10
CAPN = 64
env = lambda k, d: type(d)(os.environ.get(k, d))
STAMP = env("STAMP", 0)
STMOD = env("STMOD", "")
K2TOUCH = env("K2TOUCH", 1)
K1TOUCH = env("K1TOUCH", 0)
CODEPF = env("CODEPF", 1)
BAL = env("BAL", 1)
SC = "sc1"
TCH0 = env("TCH0", 0)
TCH1 = env("TCH1", 0)
XP = env("XP", 0)
ILV = env("ILV", 1)
PRIO = env("PRIO", 0)
ROT = env("ROT", 0)
NOCOMP = env("NOCOMP", 0)
NOMEM = env("NOMEM", 0)

REC_OFF = 0
TAG_OFF = REC_OFF + E * 16
OFFS_OFF = TAG_OFF + E * 4
WT_OFF = OFFS_OFF + 256 * 1024
WR_OFF = WT_OFF + 32768
CG_OFF = WR_OFF + 2048
WS_USED = WT_OFF + 40960 + 4096
DBG_OFF = 8 << 20

out = []
def a(s): out.append(s)
def stamp(i):
    if STAMP: a(f"s_memrealtime s[{64+2*i}:{65+2*i}]")
def stamp_flush(kidx, wavesper, n, swave, vt=1):
    if not STAMP: return
    a("s_mov_b64 exec, -1")
    a("s_load_dwordx2 s[94:95], s[0:1], 80")
    a(f"s_mul_i32 s92, s2, {wavesper}")
    a(f"s_add_u32 s92, s92, s{swave}")
    a(f"s_lshl_b32 s92, s92, 6")
    a(f"s_add_u32 s92, s92, {DBG_OFF + kidx*(1<<20)}")
    a(f"v_mov_b32 v{vt}, s92")
    a("s_waitcnt lgkmcnt(0)")
    a("s_mov_b64 exec, 1")
    for i in range(n):
        a(f"v_mov_b32 v{vt+1}, s{64+2*i}")
        a(f"global_store_dword v{vt}, v{vt+1}, s[94:95] offset:{4*i}")

def srd(d, base, nbytes):
    a(f"s_mov_b32 s{d}, s{base}")
    a(f"s_and_b32 s{d+1}, s{base+1}, 0xffff")
    a(f"s_mov_b32 s{d+2}, {nbytes}")
    a(f"s_mov_b32 s{d+3}, 0x20000")

def wave_scan(v, op="v_add_u32_dpp"):
    for sh in (1, 2, 4, 8):
        a("s_nop 1")
        a(f"{op} v{v}, v{v}, v{v} row_shr:{sh} row_mask:0xf bank_mask:0xf")
    a("s_nop 1")
    a(f"{op} v{v}, v{v}, v{v} row_bcast:15 row_mask:0xa bank_mask:0xf")
    a("s_nop 1")
    a(f"{op} v{v}, v{v}, v{v} row_bcast:31 row_mask:0xc bank_mask:0xf")

K1_T = 320
K1_HIST = 0; K1_OFFS = 1024; K1_TAG = 2048; K1_REC = K1_TAG + EPC * 4
K1_LDS = K1_REC + EPC * 16
NWPREP = 8
K1_GRID = P + NWPREP

def gen_k1():
    k = "part_kernel"
    a(f".globl {k}\n.p2align 8\n.type {k},@function\n{k}:")
    a(f"s_cmp_ge_u32 s2, {K1_GRID}")
    a("s_cbranch_scc1 K1_end")
    a(f"s_cmp_ge_u32 s2, {P}")
    a("s_cbranch_scc1 K1_wprep")
    stamp(0)
    a("s_load_dwordx4 s[4:7], s[0:1], 8")
    a("s_load_dwordx4 s[8:11], s[0:1], 24")
    a("s_load_dwordx2 s[12:13], s[0:1], 80")
    if K1TOUCH: a("s_load_dwordx2 s[44:45], s[0:1], 0")
    a("v_lshlrev_b32 v1, 4, v0")
    a("v_lshlrev_b32 v2, 5, v0")
    a("v_lshlrev_b32 v3, 2, v0")
    a("v_mov_b32 v4, 0")
    a(f"ds_write_b32 v3, v4 offset:{K1_HIST}")
    a(f"s_mul_i32 s14, s2, {EPC*4}")
    a(f"s_mul_i32 s15, s2, {EPC*8}")
    a("v_lshrrev_b32 v5, 6, v0")
    a("s_waitcnt lgkmcnt(0)")
    srd(20, 6, E * 4)
    a("buffer_load_dwordx4 v[8:11], v1, s[20:23], s14 offen")
    srd(16, 4, E * 4)
    a("buffer_load_dwordx4 v[12:15], v1, s[16:19], s14 offen")
    srd(24, 8, E * 8)
    srd(28, 10, E * 8)
    srd(32, 12, WS_USED)
    a("v_readfirstlane_b32 s47, v5")
    a("s_barrier")
    a("buffer_load_dwordx4 v[16:19], v2, s[24:27], s15 offen")
    a("buffer_load_dwordx4 v[20:23], v2, s[24:27], s15 offen offset:16")
    a("buffer_load_dwordx4 v[24:27], v2, s[28:31], s15 offen")
    a("buffer_load_dwordx4 v[28:31], v2, s[28:31], s15 offen offset:16")
    a("s_mov_b32 s40, 52429")
    a("s_mov_b32 s41, -40")
    a("s_mov_b32 s42, 6711")
    a("v_mov_b32 v5, 1")
    a("v_and_b32 v6, 63, v0")
    a("v_lshlrev_b32 v6, 4, v6")
    a("s_waitcnt vmcnt(5)")
    stamp(1)
    for e in range(4):
        a(f"v_mul_u32_u24 v{32+e}, s40, v{8+e}")
        a(f"v_lshrrev_b32 v{32+e}, 21, v{32+e}")
        a(f"v_lshlrev_b32 v{36+e}, 2, v{32+e}")
        a(f"ds_add_rtn_u32 v{40+e}, v{36+e}, v5 offset:{K1_HIST}")
    a("s_waitcnt vmcnt(4)")
    for e in range(4):
        a(f"v_mad_i32_i24 v{8+e}, v{32+e}, s41, v{8+e}")
        if ROT:
            a(f"v_lshl_add_u32 v{44+e}, v{32+e}, 3, 7")
            a(f"v_mul_u32_u24 v{44+e}, 4195, v{44+e}")
            a(f"v_lshrrev_b32 v{44+e}, 20, v{44+e}")
            a(f"v_mul_u32_u24 v{44+e}, {ROT}, v{44+e}")
        a(f"v_mul_u32_u24 v{32+e}, s42, v{12+e}")
        a(f"v_lshrrev_b32 v{32+e}, 22, v{32+e}")
        if ROT:
            a(f"v_add_u32 v{32+e}, v{32+e}, v{44+e}")
            a(f"v_and_b32 v{32+e}, 15, v{32+e}")
        a(f"v_lshl_add_u32 v{8+e}, v{8+e}, 4, v{32+e}")
        a(f"v_lshl_add_u32 v{12+e}, v{8+e}, 14, v{12+e}")
    a("s_waitcnt lgkmcnt(0)")
    a("s_barrier")
    stamp(2)
    if K1TOUCH:
        srd(36, 44, N * 1024)
        a(f"s_mul_i32 s46, s2, {K1_T*16}")
        for r in range(K1TOUCH):
            a("buffer_load_dwordx4 v[56:59], v1, s[36:39], s46 offen")
            a(f"s_add_u32 s46, s46, {P*K1_T*16}")
    a(f"ds_read_b128 v[44:47], v6 offset:{K1_HIST}")
    a("s_waitcnt lgkmcnt(0)")
    a("v_add_u32 v48, v44, v45")
    a("v_add3_u32 v48, v48, v46, v47")
    a("v_mov_b32 v49, v48")
    wave_scan(49)
    a("v_sub_u32 v52, v49, v48")
    a("v_add_u32 v53, v52, v44")
    a("v_add_u32 v54, v53, v45")
    a("v_add_u32 v55, v54, v46")
    a(f"ds_write_b128 v6, v[52:55] offset:{K1_OFFS}")
    for e in range(4):
        a(f"ds_read_b32 v{32+e}, v{36+e} offset:{K1_OFFS}")
    a("s_cmp_lg_u32 s47, 0")
    a("s_cbranch_scc1 K1_noffs")
    a("s_lshl_b32 s43, s2, 10")
    a(f"s_add_u32 s43, s43, {OFFS_OFF}")
    a(f"buffer_store_dwordx4 v[52:55], v6, s[32:35], s43 offen {STMOD}")
    a(f"s_waitcnt vmcnt({K1TOUCH+1}) lgkmcnt(0)")
    a("s_branch K1_go")
    a("K1_noffs:")
    a(f"s_waitcnt vmcnt({K1TOUCH}) lgkmcnt(0)")
    a("K1_go:")
    stamp(3)
    for e in range(4):
        a(f"v_add_u32 v{32+e}, v{32+e}, v{40+e}")
        a(f"v_lshlrev_b32 v{36+e}, 4, v{32+e}")
        a(f"v_add_u32 v{36+e}, {K1_REC}, v{36+e}")
        a(f"v_lshlrev_b32 v{32+e}, 2, v{32+e}")
        a(f"ds_write2_b64 v{36+e}, v[{16+2*e}:{17+2*e}], v[{24+2*e}:{25+2*e}] offset0:0 offset1:1")
        a(f"ds_write_b32 v{32+e}, v{12+e} offset:{K1_TAG}")
    a(f"s_mul_i32 s43, s2, {EPC*16}")
    a(f"s_add_u32 s46, s14, {TAG_OFF}")
    a("s_waitcnt lgkmcnt(0)")
    a("s_barrier")
    stamp(4)
    a(f"ds_read_b128 v[24:27], v1 offset:{K1_TAG}")
    for r in range(4):
        a(f"ds_read_b128 v[{8+4*r}:{11+4*r}], v1 offset:{K1_REC + r*K1_T*16}")
    a("s_waitcnt lgkmcnt(4)")
    a(f"buffer_store_dwordx4 v[24:27], v1, s[32:35], s46 offen {STMOD}")
    for r in range(4):
        a(f"s_waitcnt lgkmcnt({3-r})")
        a(f"buffer_store_dwordx4 v[{8+4*r}:{11+4*r}], v1, s[32:35], s43 offen {STMOD}")
        a(f"s_add_u32 s43, s43, {K1_T*16}")
    stamp(5)
    if STAMP: a("s_waitcnt vmcnt(0)")
    stamp(6)
    stamp_flush(0, 5, 7, 47, 40)
    a("s_endpgm")
    a("K1_wprep:")
    a("s_load_dwordx4 s[4:7], s[0:1], 40")
    a("s_load_dwordx2 s[8:9], s[0:1], 56")
    a("s_load_dwordx2 s[12:13], s[0:1], 80")
    a(f"s_sub_u32 s14, s2, {P}")
    a("s_waitcnt lgkmcnt(0)")
    srd(16, 4, 128)
    srd(20, 6, 1024)
    srd(24, 8, 32768)
    srd(32, 12, WS_USED)
    a("v_cmp_gt_u32 vcc, 256, v0")
    a("s_and_saveexec_b64 s[36:37], vcc")
    a("s_cbranch_execz K1_wsmall")
    a("v_bfe_u32 v2, v0, 6, 2")
    a("v_bfe_u32 v3, v0, 4, 2")
    a("v_bfe_u32 v4, v0, 2, 2")
    a("v_and_b32 v5, 3, v0")
    a("v_lshlrev_b32 v6, 13, v2")
    a("v_lshl_add_u32 v6, v3, 11, v6")
    a("v_lshl_add_u32 v6, v4, 4, v6")
    a("v_lshl_add_u32 v6, v5, 1, v6")
    a("s_lshr_b32 s15, s14, 1")
    a("s_lshl_b32 s15, s15, 6")
    a("s_and_b32 s38, s14, 1")
    a("s_lshl_b32 s38, s38, 3")
    a("s_add_u32 s15, s15, s38")
    for q in range(8):
        a(f"buffer_load_ushort v{16+q}, v6, s[24:27], s15 offen offset:{q*256}")
    a("v_lshlrev_b32 v7, 4, v0")
    a("s_lshl_b32 s15, s14, 12")
    a(f"s_add_u32 s15, s15, {WT_OFF}")
    a("s_waitcnt vmcnt(0)")
    for q in range(4):
        a(f"v_lshl_or_b32 v{8+q}, v{17+2*q}, 16, v{16+2*q}")
    a("buffer_store_dwordx4 v[8:11], v7, s[32:35], s15 offen")
    a("s_endpgm")
    a("K1_wsmall:")
    a("s_mov_b64 exec, s[36:37]")
    a("v_subrev_u32 v1, 256, v0")
    a("s_cmp_lt_u32 s14, 2")
    a("s_cbranch_scc0 K1_wcg")
    a("s_lshl_b32 s15, s14, 6")
    a("v_add_u32 v1, s15, v1")
    a("v_lshlrev_b32 v2, 1, v1")
    for kk in range(4):
        a(f"buffer_load_ushort v{8+kk}, v2, s[20:23], 0 offen offset:{kk*256}")
    a("v_lshlrev_b32 v3, 4, v1")
    a(f"s_mov_b32 s15, {WR_OFF}")
    a("s_waitcnt vmcnt(0)")
    for kk in range(4):
        a(f"v_lshlrev_b32 v{8+kk}, 16, v{8+kk}")
    a("buffer_store_dwordx4 v[8:11], v3, s[32:35], s15 offen")
    a("s_endpgm")
    a("K1_wcg:")
    a("s_cmp_eq_u32 s14, 2")
    a("s_cbranch_scc0 K1_wcode")
    a("v_cmp_gt_u32 vcc, 32, v1")
    a("s_and_saveexec_b64 s[36:37], vcc")
    a("v_lshrrev_b32 v2, 3, v1")
    a("v_bfe_u32 v3, v1, 1, 2")
    a("v_and_b32 v4, 1, v1")
    a("v_lshlrev_b32 v5, 5, v3")
    a("v_lshl_add_u32 v5, v4, 4, v5")
    a("v_lshl_add_u32 v5, v2, 1, v5")
    a("buffer_load_ushort v8, v5, s[16:19], 0 offen")
    a("buffer_load_ushort v9, v5, s[16:19], 0 offen offset:8")
    a("v_lshlrev_b32 v6, 2, v1")
    a(f"s_mov_b32 s15, {CG_OFF}")
    a("s_waitcnt vmcnt(0)")
    a("v_lshl_or_b32 v8, v9, 16, v8")
    a("buffer_store_dword v8, v6, s[32:35], s15 offen")
    a("s_endpgm")
    a("K1_wcode:")
    if CODEPF:
        a("s_cmp_eq_u32 s14, 3")
        a("s_cbranch_scc0 K1_end")
        a("s_getpc_b64 s[40:41]")
        a("K1_pc:")
        a("s_add_u32 s40, s40, main_kernel-K1_pc")
        a("s_addc_u32 s41, s41, 0")
        a("v_lshlrev_b32 v2, 6, v1")
        for r in range(4):
            a("v_cmp_gt_u32 vcc, K2_code_end-main_kernel, v2")
            a("s_and_b64 exec, exec, vcc")
            a("s_cbranch_execz K1_wcode_done")
            a(f"global_load_dword v{8+r}, v2, s[40:41]")
            a("v_add_u32 v2, 4096, v2")
        a("K1_wcode_done:")
        a("s_waitcnt vmcnt(0)")
    a("K1_end:")
    a("s_endpgm")

K2_T = 512
SLOTS = NPB * CAPN + 8
DUMMY = NPB * CAPN
L_REC = 0
L_SOFF = L_REC + SLOTS * 16
L_HIST = L_SOFF + SLOTS * 4
L_FLAG = L_HIST + NPB * 16
L_PRE = L_FLAG + 16
L_NODE = L_PRE + NPB * 16 + 512
L_TAB = L_NODE + 512
L_LST = L_TAB + 1024
L_WT = (L_LST + 4096 + 255) // 256 * 256
L_WR = L_WT + 32768
L_AGG = L_WT + 32768 + 2048
AGG_RS = 272
K2_LDS = L_AGG + (NPB * 4 + 12) * AGG_RS
OOB = 0x7f000000
BARK = env("BARK", 2)
NXB = 4

ACC = 96; XB = 32; CG = 24; OPS = 18; AOP = 16; AT = 12; RECV = 8
V_LIST1 = 7; V_SOFF = 6; V_T = 5; V_COL16 = 4; V_G = 3; V_LIST = 2; V_T2 = 1; V_EASEL = 0
S_X = 8; S_WS = 12; S_OUT = 16
S_WAVE = 20; S_SELLO = 21; S_SELHI = 22; S_IDX = 23
S_S0 = 24; S_S1 = 26
S_EA = 28; S_EB = 29; S_IDX2 = 30; S_LEFT = 31; S_RC = 32; S_MORE = 33
S_T = 34; S_PASS = 35; S_MODE = 36; S_WIN = 37; S_MAXC = 38; S_B = 39
S_MASK = 40
S_SAVE = 60

def lane_id(v):
    a(f"v_mbcnt_lo_u32_b32 v{v}, -1, 0")
    a(f"v_mbcnt_hi_u32_b32 v{v}, -1, v{v}")

tail_code = []
uid = [0]
def ld_x(b):
    r = []
    for u in range(4):
        x = XB + 16 * b + 4 * u
        r.append(f"buffer_load_dwordx4 v[{x}:{x+3}], v{V_SOFF}, s[{S_X}:{S_X+3}], 0 offen offset:{u*256}")
    return r
def addr_fix():
    a(f"v_add_u32 v{V_SOFF}, v{V_SOFF}, v{V_COL16}")
    if NOMEM == 1: a(f"v_mov_b32 v{V_SOFF}, {OOB}")
    if NOMEM == 3: a(f"v_and_b32 v{V_SOFF}, 0xfffff, v{V_SOFF}")

S_DBG = 88
def gen_k2():
    k = NAME + "_kernel"
    a(f".globl {k}\n.p2align 8\n.type {k},@function\n{k}:")
    a("s_cmp_ge_u32 s2, 256")
    a("s_cbranch_scc1 K2_end")
    stamp(0)
    a("s_load_dwordx8 s[40:47], s[0:1], 0")
    a("s_load_dwordx2 s[48:49], s[0:1], 32")
    a("s_load_dwordx4 s[60:63], s[0:1], 64")
    a("s_load_dwordx2 s[6:7], s[0:1], 80")
    a("s_and_b32 s4, s2, 7")
    a(f"s_mul_i32 s3, s4, {NB}")
    a(f"s_add_u32 s{S_T}, s3, {NB}")
    a("s_lshr_b32 s3, s3, 3")
    a(f"s_lshr_b32 s{S_T}, s{S_T}, 3")
    a(f"s_lshr_b32 s{S_B}, s2, 3")
    a(f"s_add_u32 s{S_B}, s{S_B}, s3")
    a(f"s_cmp_ge_u32 s{S_B}, s{S_T}")
    a("s_cbranch_scc1 F_spare")
    TID = 23; LANE = 22
    a("v_lshrrev_b32 v5, 6, v0")
    a("v_lshlrev_b32 v1, 4, v0")
    a("v_lshlrev_b32 v2, 5, v0")
    a("v_lshlrev_b32 v3, 2, v0")
    a("v_mov_b32 v4, 0")
    a(f"v_readfirstlane_b32 s{S_WAVE}, v5")
    a(f"ds_write_b32 v3, v4 offset:{K1_HIST}")
    a(f"v_cmp_gt_u32 vcc, {NPB*4+4}, v0")
    a(f"s_and_saveexec_b64 s[4:5], vcc")
    a(f"ds_write_b32 v3, v4 offset:{L_HIST}")
    a(f"s_mov_b64 exec, s[4:5]")
    a(f"s_mul_i32 s58, s{S_B}, {EPC*4}")
    a(f"s_mul_i32 s59, s{S_B}, {EPC*8}")
    a("s_waitcnt lgkmcnt(0)")
    srd(S_X, 40, N * 1024)
    srd(24, 44, E * 4)
    srd(28, 42, E * 4)
    a(f"s_cmp_gt_u32 s{S_WAVE}, 4")
    a("s_cbranch_scc1 F_i0")
    a("buffer_load_dwordx4 v[8:11], v1, s[24:27], s58 offen")
    a("buffer_load_dwordx4 v[12:15], v1, s[28:31], s58 offen")
    a("F_i0:")
    srd(52, 48, E * 8)
    srd(48, 46, E * 8)
    srd(S_WS, 6, WS_USED)
    srd(S_OUT, 60, N * 1024)
    srd(S_DBG, 62, 256)
    a("s_barrier")
    a(f"s_cmp_gt_u32 s{S_WAVE}, 4")
    a("s_cbranch_scc1 F_idle")
    a("buffer_load_dwordx4 v[16:19], v2, s[48:51], s59 offen")
    a("buffer_load_dwordx4 v[20:23], v2, s[48:51], s59 offen offset:16")
    a("buffer_load_dwordx4 v[24:27], v2, s[52:55], s59 offen")
    a("buffer_load_dwordx4 v[28:31], v2, s[52:55], s59 offen offset:16")
    for r in range(160):
        a(f"v_mov_b32 v{ACC+r}, 0")
    a("s_mov_b32 s40, 52429")
    a("s_mov_b32 s41, -40")
    a("s_mov_b32 s42, 6711")
    a("v_mov_b32 v5, 1")
    a("v_and_b32 v6, 63, v0")
    a("v_lshlrev_b32 v6, 4, v6")
    a("s_waitcnt vmcnt(5)")
    for e in range(4):
        a(f"v_mul_u32_u24 v{32+e}, s40, v{8+e}")
        a(f"v_lshrrev_b32 v{32+e}, 21, v{32+e}")
        a(f"v_lshlrev_b32 v{36+e}, 2, v{32+e}")
        a(f"ds_add_rtn_u32 v{40+e}, v{36+e}, v5 offset:{K1_HIST}")
    a("s_waitcnt vmcnt(4)")
    for e in range(4):
        a(f"v_mad_i32_i24 v{8+e}, v{32+e}, s41, v{8+e}")
        a(f"v_mul_u32_u24 v{32+e}, s42, v{12+e}")
        a(f"v_lshrrev_b32 v{32+e}, 22, v{32+e}")
        a(f"v_lshl_add_u32 v{8+e}, v{8+e}, 4, v{32+e}")
        a(f"v_lshl_add_u32 v{12+e}, v{8+e}, 14, v{12+e}")
    a("s_waitcnt lgkmcnt(0)")
    a("s_barrier")
    a(f"ds_read_b128 v[44:47], v6 offset:{K1_HIST}")
    a("s_waitcnt lgkmcnt(0)")
    a("v_add_u32 v48, v44, v45")
    a("v_add3_u32 v48, v48, v46, v47")
    a("v_mov_b32 v49, v48")
    wave_scan(49)
    a("v_sub_u32 v52, v49, v48")
    a("v_add_u32 v53, v52, v44")
    a("v_add_u32 v54, v53, v45")
    a("v_add_u32 v55, v54, v46")
    a(f"ds_write_b128 v6, v[52:55] offset:{K1_OFFS}")
    for e in range(4):
        a(f"ds_read_b32 v{32+e}, v{36+e} offset:{K1_OFFS}")
    a("s_waitcnt vmcnt(0) lgkmcnt(0)")
    a(f"s_cmp_lg_u32 s{S_WAVE}, 0")
    a("s_cbranch_scc1 F_noffs")
    a(f"s_lshl_b32 s43, s{S_B}, 10")
    a(f"s_add_u32 s43, s43, {OFFS_OFF}")
    a(f"buffer_store_dwordx4 v[52:55], v6, s[{S_WS}:{S_WS+3}], s43 offen {SC}")
    a("F_noffs:")
    for e in range(4):
        a(f"v_add_u32 v{32+e}, v{32+e}, v{40+e}")
        a(f"v_lshlrev_b32 v{36+e}, 4, v{32+e}")
        a(f"v_add_u32 v{36+e}, {K1_REC}, v{36+e}")
        a(f"v_lshlrev_b32 v{32+e}, 2, v{32+e}")
        a(f"ds_write2_b64 v{36+e}, v[{16+2*e}:{17+2*e}], v[{24+2*e}:{25+2*e}] offset0:0 offset1:1")
        a(f"ds_write_b32 v{32+e}, v{12+e} offset:{K1_TAG}")
    a(f"s_mul_i32 s43, s{S_B}, {EPC*16}")
    a(f"s_add_u32 s46, s58, {TAG_OFF}")
    a("s_waitcnt lgkmcnt(0)")
    a("s_barrier")
    a(f"ds_read_b128 v[24:27], v1 offset:{K1_TAG}")
    for r in range(4):
        a(f"ds_read_b128 v[{8+4*r}:{11+4*r}], v1 offset:{K1_REC + r*K1_T*16}")
    a("s_waitcnt lgkmcnt(4)")
    a(f"buffer_store_dwordx4 v[24:27], v1, s[{S_WS}:{S_WS+3}], s46 offen {SC}")
    for r in range(4):
        a(f"s_waitcnt lgkmcnt({3-r})")
        a(f"buffer_store_dwordx4 v[{8+4*r}:{11+4*r}], v1, s[{S_WS}:{S_WS+3}], s43 offen {SC}")
        a(f"s_add_u32 s43, s43, {K1_T*16}")
    a("s_branch F_join")
    a("F_idle:")
    if CODEPF:
        a("s_getpc_b64 s[4:5]")
        a("K2_pc:")
        a("v_subrev_u32 v14, 320, v0")
        a("v_lshlrev_b32 v14, 7, v14")
        a("v_cmp_gt_u32 vcc, K2_code_end-K2_pc, v14")
        a(f"s_and_saveexec_b64 s[40:41], vcc")
        a("s_cbranch_execz K2_nocpf")
        a("global_load_dword v15, v14, s[4:5]")
        a("K2_nocpf:")
        a(f"s_mov_b64 exec, s[40:41]")
    for r in range(160):
        a(f"v_mov_b32 v{ACC+r}, 0")
    a("s_barrier")
    tdone = [0]
    def idle_touch(n):
        a("v_subrev_u32 v14, 320, v0")
        a("v_lshlrev_b32 v14, 4, v14")
        for _ in range(n):
            a(f"s_mul_i32 s43, s{S_B}, 3072")
            a(f"s_add_u32 s43, s43, {tdone[0]*NB*3072}")
            a(f"buffer_load_dwordx4 v[16:19], v14, s[{S_X}:{S_X+3}], s43 offen")
            tdone[0] += 1
    idle_touch(TCH0)
    a("s_barrier")
    a("F_join:")
    a(f"v_mov_b32 v{TID}, v0")
    a(f"v_and_b32 v{LANE}, 63, v0")
    a(f"v_and_b32 v{V_COL16}, 15, v{TID}")
    a(f"v_lshlrev_b32 v{V_COL16}, 4, v{V_COL16}")
    a(f"v_lshrrev_b32 v{V_G}, 4, v{LANE}")
    a(f"v_and_b32 v{V_EASEL}, 3, v{TID}")
    a(f"v_mul_u32_u24 v{V_EASEL}, 0x0202, v{V_EASEL}")
    a(f"v_add_u32 v{V_EASEL}, 0x0100, v{V_EASEL}")
    a(f"v_lshlrev_b32 v{V_EASEL}, 16, v{V_EASEL}")
    a(f"v_or_b32 v{V_EASEL}, 0x0c0c, v{V_EASEL}")
    a(f"s_mov_b32 s{S_SELLO}, 0x05040100")
    a(f"s_mov_b32 s{S_SELHI}, 0x07060302")
    a(f"s_mov_b32 s{S_MODE}, 0")
    a(f"v_lshrrev_b32 v28, 1, v{TID}")
    a(f"v_and_b32 v29, 1, v{TID}")
    a("v_lshlrev_b32 v30, 10, v28")
    a("v_and_b32 v31, 0xfc, v28")
    a("v_mov_b32 v1, 1")
    a(f"v_mov_b32 v2, s{S_B}")
    a(f"s_cmp_gt_u32 s{S_WAVE}, 4")
    a("s_cbranch_scc1 F_nw")
    a("s_waitcnt vmcnt(0)")
    a("F_nw:")
    a("s_barrier")
    stamp(1)
    a(f"s_cmp_lg_u32 s{S_WAVE}, 0")
    a("s_cbranch_scc1 F_nopub")
    a("s_mov_b64 exec, 1")
    a(f"buffer_store_byte v1, v2, s[{S_DBG}:{S_DBG+3}], 0 offen {SC}")
    a("s_mov_b64 exec, -1")
    a("F_nopub:")
    a("s_mov_b32 s3, 0x01010101")
    a("s_mov_b32 s4, 0")
    a("F_poll:")
    a(f"buffer_load_dword v12, v31, s[{S_DBG}:{S_DBG+3}], 0 offen {SC}")
    a("s_add_u32 s4, s4, 1")
    a("s_waitcnt vmcnt(0)")
    a("v_cmp_ne_u32 vcc, s3, v12")
    a("s_cmp_eq_u64 vcc, 0")
    a("s_cbranch_scc1 F_go")
    a("s_cmp_gt_u32 s4, 0x40000")
    a("s_cbranch_scc1 K2_end")
    a("s_sleep 1")
    a("s_branch F_poll")
    a("F_go:")
    stamp(2)
    a(f"s_lshl_b32 s3, s{S_B}, 2")
    a(f"s_add_u32 s3, s3, {OFFS_OFF}")
    a(f"buffer_load_dwordx2 v[12:13], v30, s[{S_WS}:{S_WS+3}], s3 offen {SC}")
    a("v_mov_b32 v8, v28")
    a("v_mov_b32 v9, v29")
    a(f"v_mul_u32_u24 v10, {EPC}, v8")
    a("v_add_u32 v10, v10, v9")
    a(f"v_cmp_gt_u32 vcc, {P}, v8")
    a("s_waitcnt vmcnt(0)")
    a("v_sub_u32 v11, v13, v12")
    a("v_cndmask_b32 v11, 0, v11, vcc")
    a("v_add_u32 v10, v10, v12")
    a("v_sub_u32 v13, v11, v9")
    a("v_lshlrev_b32 v14, 4, v10")
    a("v_lshlrev_b32 v10, 2, v10")
    a(f"s_mov_b32 s3, {TAG_OFF}")
    RB = XB; TG = XB + 40; RK = XB + 50
    M = lambda r: f"s[{S_MASK+2*r}:{S_MASK+2*r+1}]"
    for r in range(NR):
        a(f"v_cmp_lt_i32 {M(r)}, {2*r}, v13")
    for r in range(NR):
        a(f"s_mov_b64 exec, {M(r)}")
        a("s_cbranch_execz K2_ld_done")
        a(f"buffer_load_dword v{TG+r}, v10, s[{S_WS}:{S_WS+3}], s3 offen offset:{8*r} {SC}")
        a(f"buffer_load_dwordx4 v[{RB+4*r}:{RB+4*r+3}], v14, s[{S_WS}:{S_WS+3}], 0 offen offset:{32*r} {SC}")
    a("K2_ld_done:")
    a("s_mov_b64 exec, -1")
    a(f"v_cmp_lt_u32 s[{S_SAVE}:{S_SAVE+1}], {2*NR}, v11")
    a("v_mov_b32 v17, 1")
    a("s_waitcnt vmcnt(0)")
    for r in range(NR):
        a(f"s_mov_b64 exec, {M(r)}")
        a("s_cbranch_execz K2_h_done")
        a(f"v_lshrrev_b32 v8, 14, v{TG+r}")
        a(f"v_and_b32 v9, 0xffc, v8")
        a(f"v_lshlrev_b32 v8, 3, v8")
        a(f"v_lshlrev_b32 v8, v8, v17")
        a(f"ds_add_rtn_u32 v{RK+r}, v9, v8 offset:{L_HIST}")
    a("K2_h_done:")
    a("s_mov_b64 exec, -1")
    a("s_waitcnt lgkmcnt(0)")
    for r in range(NR):
        a(f"s_mov_b64 exec, {M(r)}")
        a("s_cbranch_execz K2_r_done")
        a(f"v_lshrrev_b32 v8, 11, v{TG+r}")
        a(f"v_and_b32 v8, 24, v8")
        a(f"v_bfe_u32 v{RK+r}, v{RK+r}, v8, 8")
        a(f"v_cmp_lt_u32 vcc, {CAPN-1}, v{RK+r}")
        a(f"s_or_b64 s[{S_SAVE}:{S_SAVE+1}], s[{S_SAVE}:{S_SAVE+1}], vcc")
    a("K2_r_done:")
    a("s_mov_b64 exec, -1")
    a(f"v_mov_b32 v9, {L_FLAG}")
    a(f"s_cmp_eq_u64 s[{S_SAVE}:{S_SAVE+1}], 0")
    a("s_cbranch_scc1 K2_noflag")
    a("ds_write_b32 v9, v17")
    a("K2_noflag:")
    a(f"v_lshlrev_b32 v8, 4, v{LANE}")
    a("s_waitcnt lgkmcnt(0)")
    a("s_barrier")
    stamp(3)
    a(f"ds_read_b128 v[12:15], v8 offset:{L_HIST}")
    a("ds_read_b32 v9, v9")
    a(f"v_lshlrev_b32 v{V_T}, 4, v{TID}")
    a(f"v_bfe_u32 v16, v{TID}, 2, 2")
    a("v_lshlrev_b32 v16, 5, v16")
    a(f"s_mov_b32 s3, {CG_OFF}")
    a(f"buffer_load_dwordx4 v[{CG}:{CG+3}], v16, s[{S_WS}:{S_WS+3}], s3 offen {SC}")
    a(f"buffer_load_dwordx4 v[{CG+4}:{CG+7}], v16, s[{S_WS}:{S_WS+3}], s3 offen offset:16 {SC}")
    a(f"v_lshlrev_b32 v16, 2, v{TID}")
    a(f"s_lshl_b32 s3, s{S_WAVE}, 8")
    a(f"s_add_u32 s3, s3, {L_WR}")
    a("s_mov_b32 m0, s3")
    a(f"s_mov_b32 s3, {WR_OFF}")
    a(f"buffer_load_dword v16, s[{S_WS}:{S_WS+3}], s3 offen {SC} lds")
    bg = []
    for r in range(4):
        bg.append([f"s_lshl_b32 s5, s{S_WAVE}, 10", f"s_add_u32 s5, s5, {L_WT + r*K2_T*16}", "s_mov_b32 m0, s5",
                   f"s_mov_b32 s5, {WT_OFF + r*K2_T*16}",
                   f"buffer_load_dwordx4 v{V_T}, s[{S_WS}:{S_WS+3}], s5 offen {SC} lds"])
    tch = []
    if K2TOUCH:
        per = K2_T * 16
        k1bytes = tdone[0] * NB * 3072
        for r in range(N * 1024 // (NB * per)):
            if (r + 1) * NB * per <= k1bytes: continue
            tch.append([f"s_lshl_b32 s5, s{S_B}, 13", f"s_add_u32 s5, s5, {r*NB*per}",
                        f"buffer_load_dwordx4 v[{XB+60}:{XB+63}], v{V_T}, s[{S_X}:{S_X+3}], s5 offen"])
    bg = tch + bg
    NBG = len(bg) + 1
    def bgop(n=1):
        for _ in range(n):
            if bg:
                for x in bg.pop(0): a(x)
    bgop(2)
    a("s_waitcnt lgkmcnt(0)")
    a("s_mov_b32 s3, 0x01010101")
    a("v_mov_b32 v10, 0")
    PW = 18
    for q in range(4):
        H = 12 + q
        a(f"v_lshlrev_b32 v{PW+q}, 8, v{H}")
        a(f"v_lshl_add_u32 v{PW+q}, v{H}, 16, v{PW+q}")
        a(f"v_lshl_add_u32 v{PW+q}, v{H}, 24, v{PW+q}")
        if q > 0:
            a(f"v_mul_lo_u32 v11, v10, s3")
            a(f"v_add_u32 v{PW+q}, v{PW+q}, v11")
        a(f"v_sad_u8 v10, v{H}, 0, v10")
    a(f"v_cmp_gt_u32 vcc, {NPB}, v{LANE}")
    a(f"s_and_saveexec_b64 s[{S_SAVE}:{S_SAVE+1}], vcc")
    a(f"ds_write_b128 v8, v[{PW}:{PW+3}] offset:{L_PRE}")
    a(f"v_cmp_lt_u32 vcc, {CAPN}, v10")
    a(f"s_mov_b64 exec, s[{S_SAVE}:{S_SAVE+1}]")
    a("v_readfirstlane_b32 s3, v9")
    a("s_cmp_lg_u64 vcc, 0")
    a("s_cbranch_scc1 K2_slow")
    a("s_cmp_lg_u32 s3, 0")
    a("s_cbranch_scc1 K2_slow")
    bg_slow = [list(x) for x in bg]
    PR = [12, 13, 14, 15, 16, 17, 18, 19, 20, 21]
    for r in range(NR):
        a(f"s_mov_b64 exec, {M(r)}")
        a("s_cbranch_execz K2_p_done")
        a(f"v_lshrrev_b32 v8, 14, v{TG+r}")
        a(f"ds_read_u8 v{PR[r]}, v8 offset:{L_PRE}")
    a("K2_p_done:")
    a("s_mov_b64 exec, -1")
    bgop(1)
    a(f"v_and_b32 v7, 7, v{LANE}")
    a("v_add_u32 v8, 3, v10")
    a("v_lshrrev_b32 v8, 2, v8")
    a("v_subrev_u32 v8, 5, v8")
    a("v_med3_i32 v8, v8, 0, 7")
    a(f"v_cmp_gt_u32 vcc, {NPB}, v{LANE}")
    a("v_mov_b32 v9, 63")
    a("s_nop 0")
    a("v_cndmask_b32 v8, 64, v8, vcc")
    KM = [24, 26, 28, 30, 32, 82, 84, 86]
    for q in range(8):
        a(f"v_cmp_eq_u32 s[{KM[q]}:{KM[q]+1}], {q}, v8")
    a("s_mov_b32 s3, 0")
    for q in range(7, -1, -1):
        a(f"s_mov_b64 exec, s[{KM[q]}:{KM[q]+1}]")
        a(f"v_mbcnt_lo_u32_b32 v9, s{KM[q]}, 0")
        a(f"v_mbcnt_hi_u32_b32 v9, s{KM[q]+1}, v9")
        a("v_add_u32 v9, s3, v9")
        a(f"s_bcnt1_i32_b64 s4, s[{KM[q]}:{KM[q]+1}]")
        a("s_add_u32 s3, s3, s4")
    a("s_mov_b64 exec, -1")
    a("v_lshlrev_b32 v9, 2, v9")
    a(f"v_lshl_add_u32 v8, v10, 8, v{LANE}")
    a("ds_permute_b32 v8, v9, v8")
    a("v_and_b32 v9, 1, v7")
    a("v_mul_u32_u24 v9, 7, v9")
    a(f"v_xor_b32 v9, s{S_WAVE}, v9")
    a("v_lshl_add_u32 v9, v7, 3, v9")
    a("v_lshlrev_b32 v9, 2, v9")
    a(f"v_and_b32 v6, 1, v{V_G}")
    a("v_mul_u32_u24 v6, 7, v6")
    a(f"v_xor_b32 v6, s{S_WAVE}, v6")
    a(f"v_lshl_add_u32 v6, v{V_G}, 3, v6")
    a("v_lshlrev_b32 v6, 2, v6")
    a(f"s_lshl_b32 s3, s{S_WAVE}, 2")
    a("s_add_u32 s3, s3, 128")
    a("v_mov_b32 v1, s3")
    bgop(1)
    a("s_waitcnt lgkmcnt(0)")
    a("ds_bpermute_b32 v11, v9, v8")
    a("ds_bpermute_b32 v6, v6, v8")
    a("ds_bpermute_b32 v1, v1, v8")
    for r in range(NR):
        a(f"s_mov_b64 exec, {M(r)}")
        a("s_cbranch_execz K2_s_done")
        a(f"v_lshrrev_b32 v8, 18, v{TG+r}")
        a(f"v_lshl_add_u32 v8, v8, 6, v{PR[r]}")
        a(f"v_add_u32 v8, v8, v{RK+r}")
        a(f"v_lshlrev_b32 v9, 4, v8")
        a(f"v_lshlrev_b32 v8, 2, v8")
        a(f"v_and_b32 v{TG+r}, 0x3fff, v{TG+r}")
        a(f"v_lshlrev_b32 v{TG+r}, 10, v{TG+r}")
        a(f"ds_write_b128 v9, v[{RB+4*r}:{RB+4*r+3}] offset:{L_REC}")
        a(f"ds_write_b32 v8, v{TG+r} offset:{L_SOFF}")
    a("K2_s_done:")
    a("s_mov_b64 exec, -1")
    bgop(1)
    a("v_mov_b32 v12, 0")
    a("v_mov_b32 v13, 0")
    a(f"s_mov_b32 s{S_PASS}, 0")
    a("K2_sched:")
    a(f"v_and_b32 v14, 15, v{LANE}")
    a(f"s_lshl_b32 s3, s{S_WAVE}, 6")
    a("v_lshl_add_u32 v15, v7, 2, s3")
    a("s_waitcnt lgkmcnt(0)")
    a(f"ds_write_b32 v15, v11 offset:{L_NODE}")
    BS = [(6, 12, 16, 17, 18), (1, 13, 19, 20, 21)]
    for (vi, vd, vq, vt, ve) in BS:
        a(f"v_and_b32 v{vt}, 0xff, v{vi}")
        a(f"v_lshl_add_u32 v{vt}, v{vt}, 4, v14")
        a(f"ds_read_u8 v{vt}, v{vt} offset:{L_PRE+1}")
        a(f"v_lshrrev_b32 v{vq}, 8, v{vi}")
        a(f"v_add_u32 v{vq}, 3, v{vq}")
        a(f"v_lshrrev_b32 v{vq}, 2, v{vq}")
    a(f"s_cmp_eq_u32 s{S_PASS}, 0")
    a("s_cselect_b32 s4, 15, 0")
    a("v_cmp_le_u32 vcc, s4, v14")
    a("s_waitcnt lgkmcnt(0)")
    for (vi, vd, vq, vt, ve) in BS:
        a(f"v_add_u32 v{vt}, 1, v{vt}")
        a(f"v_lshrrev_b32 v{vt}, 2, v{vt}")
        a(f"v_cndmask_b32 v{vt}, v{vt}, v{vq}, vcc")
        a(f"v_sub_u32 v{vt}, v{vt}, v14")
        a(f"v_add_u32 v{ve}, 1, v{vd}")
        a(f"v_min_i32 v{vt}, v{vt}, v{ve}")
    for sh in (1, 2, 4, 8):
        a("s_nop 0")
        for (vi, vd, vq, vt, ve) in BS:
            a(f"v_min_i32_dpp v{vt}, v{vt}, v{vt} row_shr:{sh} row_mask:0xf bank_mask:0xf")
    for (vi, vd, vq, vt, ve) in BS:
        a(f"v_subrev_u32 v{ve}, 15, v{vq}")
        a(f"v_max_i32 v{vt}, v{vt}, v{ve}")
    for (vi, vd, vq, vt, ve) in BS:
        a(f"v_add_u32 v{ve}, v{vt}, v14")
    a("s_nop 0")
    for (vi, vd, vq, vt, ve) in BS:
        a(f"v_mov_b32_dpp v{vd}, v{ve} row_shr:1 row_mask:0xf bank_mask:0xf")
    a(f"s_lshl_b32 s4, s{S_WAVE}, 7")
    a("v_lshl_add_u32 v15, v14, 3, s4")
    for k_, (vi, vd, vq, vt, ve) in enumerate(BS):
        a(f"v_sub_u32 v{vt}, v{ve}, v{vd}")
        a(f"v_lshl_or_b32 v{vt}, v{vt}, 7, v{vd}")
        if k_ == 0:
            a(f"v_add_u32 v{vi}, v15, v{V_G}")
            a(f"ds_write_b8 v{vi}, v{vt} offset:{L_TAB}")
        else:
            a(f"ds_write_b8 v15, v{vt} offset:{L_TAB+4}")
    a(f"v_add_u32 v15, s4, v{LANE}")
    a(f"ds_read_u8 v12, v15 offset:{L_TAB}")
    a(f"ds_read_u8 v13, v15 offset:{L_TAB+64}")
    a("v_and_b32 v16, 0xff, v11")
    a("v_lshlrev_b32 v16, 6, v16")
    a("v_lshrrev_b32 v10, 8, v11")
    a("v_cmp_gt_u32 vcc, 5, v7")
    a("v_mov_b32 v20, 0")
    a("v_mov_b32 v21, 0")
    a("v_cndmask_b32 v10, 0, v10, vcc")
    a("s_waitcnt lgkmcnt(0)")
    a("v_cndmask_b32 v12, 0, v12, vcc")
    a("v_cndmask_b32 v13, 0, v13, vcc")
    a(f"v_cmp_lt_u32 s[{S_S0}:{S_S0+1}], 64, v12")
    a(f"v_cmp_lt_u32 s[{S_S1}:{S_S1+1}], 64, v13")
    a("v_and_b32 v12, 0x7f, v12")
    a("v_and_b32 v13, 0x7f, v13")
    a("v_lshl_add_u32 v12, v12, 2, v16")
    a("v_lshl_add_u32 v13, v13, 2, v16")
    a(f"s_bcnt1_i32_b64 s4, s[{S_S0}:{S_S0+1}]")
    a(f"s_bcnt1_i32_b64 s{S_LEFT}, s[{S_S1}:{S_S1+1}]")
    a(f"s_add_u32 s{S_LEFT}, s{S_LEFT}, s4")
    a(f"s_lshl_b32 s5, s{S_WAVE}, 7")
    a("s_add_u32 s4, s4, s5")
    a(f"v_mbcnt_lo_u32_b32 v17, s{S_S0}, 0")
    a(f"v_mbcnt_hi_u32_b32 v17, s{S_S0+1}, v17")
    a(f"v_mbcnt_lo_u32_b32 v18, s{S_S1}, 0")
    a(f"v_mbcnt_hi_u32_b32 v18, s{S_S1+1}, v18")
    a("v_add_lshl_u32 v17, s5, v17, 2")
    a("v_add_lshl_u32 v18, s4, v18, 2")
    a(f"s_mov_b64 exec, s[{S_S0}:{S_S0+1}]")
    a(f"ds_write_b32 v17, v12 offset:{L_LST}")
    a(f"s_mov_b64 exec, s[{S_S1}:{S_S1+1}]")
    a(f"ds_write_b32 v18, v13 offset:{L_LST}")
    a("s_mov_b64 exec, -1")
    a("s_mov_b32 s3, s5")
    a(f"v_lshrrev_b32 v14, 3, v{LANE}")
    a("v_add_u32 v15, 3, v10")
    a("v_and_b32 v15, 0xfc, v15")
    a("v_add_u32 v14, v10, v14")
    a("v_cmp_lt_u32 vcc, v14, v15")
    a("v_add_u32 v14, v16, v14")
    a(f"v_add_u32 v15, {DUMMY}, v7")
    a(f"v_subrev_u32 v19, 24, v{LANE}")
    a(f"v_cmp_gt_u32 s[{S_SAVE}:{S_SAVE+1}], 4, v19")
    a(f"v_cmp_gt_u32 s[4:5], s{S_LEFT}, v{LANE}")
    a(f"v_add_u32 v19, 64, v{LANE}")
    a(f"v_cmp_gt_u32 s[6:7], s{S_LEFT}, v19")
    a(f"v_add_lshl_u32 v17, s3, v{LANE}, 2")
    a("v_mov_b32 v22, 0")
    a("v_mov_b32 v23, 0")
    a(f"v_cndmask_b32 v14, v14, v15, s[{S_SAVE}:{S_SAVE+1}]")
    a(f"ds_read_b32 v{V_LIST}, v17 offset:{L_LST}")
    a(f"ds_read_b32 v{V_LIST1}, v17 offset:{L_LST+256}")
    a(f"s_or_b64 exec, vcc, s[{S_SAVE}:{S_SAVE+1}]")
    a("v_lshlrev_b32 v15, 4, v14")
    a("v_lshlrev_b32 v14, 2, v14")
    a(f"v_mov_b32 v19, {OOB}")
    a(f"ds_write_b128 v15, v[20:23] offset:{L_REC}")
    a(f"ds_write_b32 v14, v19 offset:{L_SOFF}")
    a("s_mov_b64 exec, -1")
    a(f"v_mov_b32 v19, {DUMMY}")
    a("s_waitcnt lgkmcnt(0)")
    a(f"v_cndmask_b32 v{V_LIST}, v19, v{V_LIST}, s[4:5]")
    a(f"v_cndmask_b32 v{V_LIST1}, v19, v{V_LIST1}, s[6:7]")
    a("s_barrier")
    stamp(4)
    a(f"s_cmp_lg_u32 s{S_PASS}, 0")
    a("s_cbranch_scc1 K2_nobg")
    bgop(100)
    a("K2_nobg:")
    def rd_soff(se):
        return [f"v_add_lshl_u32 v{V_T}, s{se}, v{V_G}, 2", f"ds_read_b32 v{V_SOFF}, v{V_T} offset:{L_SOFF}"]
    def rd_rec(se):
        return [f"v_add_lshl_u32 v{V_T2}, s{se}, v{V_G}, 4", f"ds_read_b128 v[{RECV}:{RECV+3}], v{V_T2} offset:{L_REC}"]
    for q in range(NXB):
        a(f"v_readlane_b32 s{4+q}, v{V_LIST}, {q}")
    a(f"s_waitcnt vmcnt({NBG})")
    a(f"s_mov_b32 s{S_IDX}, {NXB}")
    a(f"s_mov_b32 s{S_IDX2}, 1")
    a(f"s_mov_b32 s{S_RC}, 0")
    if PRIO == 2:
        a(f"s_cmp_lt_u32 s{S_WAVE}, 4")
        a("s_cbranch_scc1 K2_pr_done")
        a("s_setprio 1")
        a("K2_pr_done:")
    for x in rd_soff(4): a(x)
    for x in rd_rec(4): a(x)
    for q in range(NXB - 1):
        a(f"s_cmp_gt_u32 s{S_LEFT}, {q}")
        a("s_cbranch_scc0 K2_pre_done")
        a("s_waitcnt lgkmcnt(1)" if q == 0 else "s_waitcnt lgkmcnt(0)")
        addr_fix()
        for x in ld_x(q): a(x)
        for x in rd_soff(5 + q): a(x)
    a("K2_pre_done:")
    a(f"s_cmp_lg_u32 s{S_LEFT}, 0")
    a("s_cbranch_scc1 K2_t0")
    a("s_waitcnt vmcnt(0)")
    a("s_branch K2_t0")
    NS = 5 * NXB
    for s_ in range(NS):
        i = s_ % 5; b = s_ % NXB
        if i == 0:
            a(f"K2_re{s_}:")
            a(f"s_add_u32 s{S_RC}, s{S_RC}, 1")
            if PRIO == 1:
                a(f"s_lshr_b32 s{S_T}, s{S_WAVE}, 2")
                a(f"s_add_u32 s{S_T}, s{S_T}, s{S_RC}")
                a("s_setprio 0")
                a(f"s_bitcmp1_b32 s{S_T}, 0")
                a(f"s_cbranch_scc0 K2_pr{s_}")
                a("s_setprio 1")
                a(f"K2_pr{s_}:")
            a(f"s_lshr_b64 s[{S_S0}:{S_S0+1}], s[{S_S0}:{S_S0+1}], 8")
            a(f"s_and_b32 s{S_T}, s{S_RC}, {BARK-1}")
            a(f"s_cbranch_scc0 K2_rx{s_}")
            t = [f"K2_rx{s_}:",
                 f"s_cmp_eq_u32 s{S_RC}, 16", "s_cbranch_scc1 K2_loop_done",
                 f"s_cmp_lg_u32 s{S_RC}, 8", f"s_cbranch_scc1 K2_ry{s_}",
                 f"s_mov_b64 s[{S_S0}:{S_S0+1}], s[{S_S1}:{S_S1+1}]",
                 f"s_cmp_lg_u32 s{S_IDX2}, 1", f"s_cbranch_scc1 K2_ry{s_}",
                 "s_waitcnt vmcnt(0)",
                 f"K2_ry{s_}:",
                 f"s_cmp_lt_u32 s{S_IDX2}, 20", f"s_cbranch_scc1 K2_rz{s_}",
                 "s_mov_b64 exec, 0xfffff", f"v_mov_b32 v{V_LIST}, v{V_LIST1}", "s_mov_b64 exec, -1",
                 f"K2_rz{s_}:",
                 f"s_cmp_lg_u32 s{S_PASS}, 0", f"s_cbranch_scc1 K2_t{s_}",
                 "s_barrier", f"s_branch K2_t{s_}"]
            tail_code.extend(t)
        a(f"K2_t{s_}:")
        a(f"s_bitcmp1_b32 s{S_S0}, {i}")
        nxt = (s_ + 16) % NS
        a(f"s_cbranch_scc0 K2_{'re' if nxt % 5 == 0 else 't'}{nxt}")
        a(f"v_readlane_b32 s{S_EB}, v{V_LIST}, s{S_IDX}")
        a(f"v_readlane_b32 s{S_EA}, v{V_LIST}, s{S_IDX2}")
        a(f"s_sub_u32 s{S_LEFT}, s{S_LEFT}, 1")
        a("s_waitcnt lgkmcnt(0)")
        a(f"s_cmp_lt_u32 s{S_LEFT}, {NXB-1}")
        lds_ = ld_x((b + NXB - 1) % NXB)
        cnt_ = [0]
        def gl(n=1):
            cnt_[0] += 1
            a(f"s_cbranch_scc1 K2_nl{s_}_{cnt_[0]}")
            for _ in range(n): a(lds_.pop(0).replace(f"v{V_SOFF},", f"v{V_T},"))
            a(f"K2_nl{s_}_{cnt_[0]}:")
        a(f"v_add_u32 v{V_T}, v{V_SOFF}, v{V_COL16}")
        if NOMEM == 1: a(f"v_mov_b32 v{V_T}, {OOB}")
        pre = {0: 4, 1: 2, 2: 1, 3: 0}[ILV]
        if ILV == 0: gl(4)
        if ILV in (1, 2): gl(1)
        for u in range(4 if XP != 3 else 0):
            a(f"v_dot2_f32_bf16 v{AT+u}, v{CG+2*u}, v{RECV}, 0")
        a(f"v_perm_b32 v{AOP}, v{RECV+3}, v{RECV+2}, v{V_EASEL}")
        for u in range(4 if XP != 3 else 0):
            a(f"v_dot2_f32_bf16 v{AT+u}, v{CG+2*u+1}, v{RECV+1}, v{AT+u}")
        a(f"v_add_lshl_u32 v{V_T2}, s{S_EB}, v{V_G}, 2")
        a(f"ds_read_b32 v{V_SOFF}, v{V_T2} offset:{L_SOFF}")
        for x in rd_rec(S_EA): a(x)
        if ILV == 1: gl(1)
        for u in range(4):
            a(f"v_mul_f32 v{AT+u}, v{AT+u}, v{AOP}")
        a(f"v_cvt_pk_bf16_f32 v{AOP}, v{AT}, v{AT+1}")
        a(f"v_cvt_pk_bf16_f32 v{AOP+1}, v{AT+2}, v{AT+3}")
        a(f"s_cbranch_scc1 K2_wx{s_}")
        a(f"s_waitcnt vmcnt({4*(NXB-2)+pre})")
        a(f"K2_wr{s_}:")
        t = [f"K2_wx{s_}:", "s_waitcnt vmcnt(8)", f"s_cmp_eq_u32 s{S_LEFT}, 2", f"s_cbranch_scc1 K2_wr{s_}",
             "s_waitcnt vmcnt(4)", f"s_cmp_eq_u32 s{S_LEFT}, 1", f"s_cbranch_scc1 K2_wr{s_}",
             "s_waitcnt vmcnt(0)", f"s_cmp_eq_u32 s{S_LEFT}, 0", f"s_branch K2_wr{s_}"]
        tail_code.extend(t)
        def mf(j):
            if XP == 1: return
            o = OPS + 2 * (j % 3); c = ACC + 32 * i + 4 * j
            a(f"v_mfma_f32_16x16x16_bf16 v[{c}:{c+3}], v[{AOP}:{AOP+1}], v[{o}:{o+1}], v[{c}:{c+3}]")
        after = {0: [], 1: [2, 5], 2: [1, 3, 6], 3: [0, 2, 4, 6]}[ILV]
        for j in range(8):
            m = j >> 1; sel = S_SELHI if j & 1 else S_SELLO
            o = OPS + 2 * (j % 3)
            x = lambda u: XB + 16 * b + 4 * u + m
            if not NOCOMP:
                if XP != 2:
                    a(f"v_perm_b32 v{o}, v{x(1)}, v{x(0)}, s{sel}")
                    a(f"v_perm_b32 v{o+1}, v{x(3)}, v{x(2)}, s{sel}")
                if j > 0: mf(j - 1)
            if j in after: gl(1)
        a(f"s_add_u32 s{S_IDX}, s{S_IDX}, 1")
        a(f"s_add_u32 s{S_IDX2}, s{S_IDX2}, 1")
        if not NOCOMP: mf(7)
    a("s_branch K2_re0")
    for x in tail_code: a(x)
    a("K2_loop_done:")
    a(f"s_cmp_lg_u32 s{S_MODE}, 0")
    a("s_cbranch_scc1 K2_slow_next")
    a("K2_epi:")
    stamp(5)
    a("s_waitcnt vmcnt(0) lgkmcnt(0)")
    lane_id(LANE)
    a(f"s_lshl_b32 s3, s{S_WAVE}, 6")
    a(f"v_and_b32 v6, 15, v{LANE}")
    a("v_and_b32 v5, 12, v6")
    a("v_add_u32 v5, s3, v5")
    a(f"ds_read_b32 v16, v5 offset:{L_NODE}")
    a("v_mov_b32 v5, s3")
    a(f"ds_read_b32 v17, v5 offset:{L_NODE+16}")
    a(f"v_lshlrev_b32 v1, 3, v{V_COL16}")
    a(f"v_add_u32 v1, {L_WR}, v1")
    for j in range(8):
        a(f"ds_read_b128 v[{XB+4*j}:{XB+4*j+3}], v1 offset:{16*j}")
    a(f"v_lshlrev_b32 v1, 4, v{LANE}")
    a(f"v_add_u32 v1, {L_WT}, v1")
    a(f"s_mul_i32 s4, s{S_WAVE}, {20*AGG_RS}")
    a(f"s_add_u32 s4, s4, {L_AGG}")
    a(f"v_mul_u32_u24 v2, {AGG_RS}, v{V_G}")
    a(f"v_add3_u32 v2, v2, v{V_COL16}, s4")
    a(f"v_mul_u32_u24 v7, {AGG_RS}, v6")
    a(f"v_lshl_add_u32 v7, v{V_G}, 4, v7")
    a("v_add_u32 v7, s4, v7")
    AW = [XB + 32, ACC, ACC + 32, ACC + 64]
    def rd_a(m):
        for x in range(8):
            a(f"ds_read_b128 v[{AW[m]+4*x}:{AW[m]+4*x+3}], v1 offset:{8192*m + 1024*x}")
    a("s_waitcnt lgkmcnt(0)")
    rd_a(0)
    for i in range(5):
        for j in range(8):
            c = ACC + 32 * i + 4 * j; w = XB + 4 * j
            a(f"v_mul_f32 v{c}, v{c}, v{w}")
        for kk in range(1, 4):
            for j in range(8):
                c = ACC + 32 * i + 4 * j; w = XB + 4 * j
                a(f"v_fmac_f32 v{c}, v{c+kk}, v{w+kk}")
        o = 8 + 4 * (i % 2)
        for jj in range(4):
            c = ACC + 32 * i + 8 * jj
            a(f"v_cvt_pk_bf16_f32 v{o+jj}, v{c}, v{c+4}")
        a(f"ds_write_b128 v2, v[{o}:{o+3}] offset:{i*4*AGG_RS}")
        if i < 3: rd_a(i + 1)
    stamp(6)
    BB = XB
    for ct in range(2):
        for t in range(4):
            r = BB + 16 * ct + 4 * t
            a(f"ds_read_b128 v[{r}:{r+3}], v7 offset:{ct*16*AGG_RS + t*64}")
    a("v_and_b32 v5, 3, v6")
    a("v_lshlrev_b32 v5, 8, v5")
    a(f"v_lshl_add_u32 v5, v{V_G}, 4, v5")
    a("v_and_b32 v16, 0xff, v16")
    a("v_and_b32 v17, 0xff, v17")
    a("v_lshl_add_u32 v16, v16, 10, v5")
    a("v_lshl_add_u32 v17, v17, 10, v5")
    a(f"v_mov_b32 v18, {OOB}")
    a("v_cmp_gt_u32 vcc, 4, v6")
    a(f"s_mul_i32 s6, s{S_B}, {NPB*1024}")
    a("s_nop 0")
    a("v_cndmask_b32 v17, v18, v17, vcc")
    DD = ACC + 96
    units = [(ct, m) for ct in range(2) for m in range(4)]
    def fin(u):
        ct, m = units[u]
        d = DD + 8 * u
        for x in range(4):
            a(f"v_cvt_pk_bf16_f32 v{d+x}, v{d+2*x}, v{d+2*x+1}")
        a(f"buffer_store_dwordx4 v[{d}:{d+3}], v{16+ct}, s[{S_OUT}:{S_OUT+3}], s6 offen offset:{64*m}")
    for u, (ct, m) in enumerate(units):
        if u == 0: a("s_waitcnt lgkmcnt(4)")
        if u == 4: a("s_waitcnt lgkmcnt(0)")
        for t in range(4):
            r = BB + 16 * ct + 4 * t
            for hh in range(2):
                d = DD + 8 * u + 4 * hh; w = AW[m] + 16 * hh + 4 * t
                c = "0" if t == 0 else f"v[{d}:{d+3}]"
                a(f"v_mfma_f32_16x16x32_bf16 v[{d}:{d+3}], v[{w}:{w+3}], v[{r}:{r+3}], {c}")
        if u > 0: fin(u - 1)
    a("s_nop 7")
    fin(7)
    stamp(7)
    if STAMP: a("s_waitcnt vmcnt(0)")
    stamp(8)
    stamp_flush(1, 8, 9, S_WAVE, 1)
    a("K2_end:")
    a("s_endpgm")
    a("K2_slow:")
    for grp in bg_slow:
        if "lds" in grp[-1]:
            for x in grp: a(x)
    a(f"s_mov_b32 s{S_MODE}, 1")
    a(f"s_mov_b32 s{S_WIN}, 0")
    a(f"v_lshlrev_b32 v8, 10, v{LANE}")
    a(f"s_lshl_b32 s3, s{S_B}, 2")
    a(f"s_add_u32 s3, s3, {OFFS_OFF}")
    for h in range(4):
        a(f"buffer_load_dwordx2 v[{10+2*h}:{11+2*h}], v8, s[{S_WS}:{S_WS+3}], s3 offen {SC}")
        a("s_add_u32 s3, s3, 65536")
    a(f"v_cmp_gt_u32 vcc, {P-192}, v{LANE}")
    a("s_waitcnt vmcnt(0)")
    for h in range(4):
        a(f"v_sub_u32 v{10+2*h}, v{11+2*h}, v{10+2*h}")
    a("v_cndmask_b32 v16, 0, v16, vcc")
    a("v_max_u32 v10, v10, v12")
    a("v_max3_u32 v10, v10, v14, v16")
    wave_scan(10, "v_max_u32_dpp")
    a("s_nop 1")
    a(f"v_readlane_b32 s{S_MAXC}, v10, 63")
    a("K2_slow_win:")
    a(f"s_cmp_ge_u32 s{S_WIN}, s{S_MAXC}")
    a("s_cbranch_scc1 K2_slow_fin")
    def seg_setup():
        lane_id(LANE)
        a(f"s_lshl_b32 s3, s{S_WAVE}, 6")
        a(f"v_add_u32 v{TID}, s3, v{LANE}")
        a(f"v_lshrrev_b32 v8, 1, v{TID}")
        a(f"v_and_b32 v9, 1, v{TID}")
        a("v_lshlrev_b32 v10, 10, v8")
        a(f"s_lshl_b32 s3, s{S_B}, 2")
        a(f"s_add_u32 s3, s3, {OFFS_OFF}")
        a(f"buffer_load_dwordx2 v[12:13], v10, s[{S_WS}:{S_WS+3}], s3 offen {SC}")
        a(f"v_mul_u32_u24 v10, {EPC}, v8")
        a(f"v_add3_u32 v10, v10, v9, s{S_WIN}")
        a(f"v_cmp_gt_u32 vcc, {P}, v8")
        a("s_waitcnt vmcnt(0)")
        a("v_sub_u32 v11, v13, v12")
        a("v_cndmask_b32 v11, 0, v11, vcc")
        a("v_add_u32 v10, v10, v12")
        a("v_sub_u32 v13, v11, v9")
        a(f"v_subrev_u32 v13, s{S_WIN}, v13")
        a("v_lshlrev_b32 v14, 4, v10")
        a("v_lshlrev_b32 v10, 2, v10")
    seg_setup()
    for r in range(NR):
        a(f"v_cmp_lt_i32 {M(r)}, {2*r}, v13")
    a("K2_slow_batch:")
    a("s_waitcnt vmcnt(0) lgkmcnt(0)")
    a("s_barrier")
    seg_setup()
    a(f"v_lshlrev_b32 v8, 2, v{TID}")
    a("v_mov_b32 v9, 0")
    a(f"v_cmp_gt_u32 vcc, {NPB*4+4}, v{TID}")
    a(f"s_and_saveexec_b64 s[{S_SAVE}:{S_SAVE+1}], vcc")
    a(f"ds_write_b32 v8, v9 offset:{L_HIST}")
    a("s_mov_b64 exec, -1")
    a("s_waitcnt lgkmcnt(0)")
    a("s_barrier")
    a("v_mov_b32 v17, 1")
    a(f"s_mov_b32 s3, {TAG_OFF}")
    a(f"s_mov_b64 s[{S_SAVE}:{S_SAVE+1}], 0")
    for r in range(NR):
        a(f"s_mov_b64 exec, {M(r)}")
        a(f"s_cbranch_execz K2_slow_skip{r}")
        a(f"buffer_load_dword v16, v10, s[{S_WS}:{S_WS+3}], s3 offen offset:{8*r} {SC}")
        a(f"buffer_load_dwordx4 v[{XB}:{XB+3}], v14, s[{S_WS}:{S_WS+3}], 0 offen offset:{32*r} {SC}")
        a("s_waitcnt vmcnt(0)")
        a("v_lshrrev_b32 v8, 18, v16")
        a("v_lshlrev_b32 v9, 4, v8")
        a(f"ds_add_rtn_u32 v15, v9, v17 offset:{L_HIST}")
        a("v_and_b32 v16, 0x3fff, v16")
        a("v_lshlrev_b32 v16, 10, v16")
        a("s_waitcnt lgkmcnt(0)")
        a(f"v_cmp_gt_u32 vcc, {CAPN}, v15")
        a(f"s_andn2_b64 {M(r)}, {M(r)}, vcc")
        a(f"s_or_b64 s[{S_SAVE}:{S_SAVE+1}], s[{S_SAVE}:{S_SAVE+1}], {M(r)}")
        a("s_mov_b64 exec, vcc")
        a("v_lshl_add_u32 v8, v8, 6, v15")
        a("v_lshlrev_b32 v9, 4, v8")
        a("v_lshlrev_b32 v8, 2, v8")
        a(f"ds_write_b128 v9, v[{XB}:{XB+3}] offset:{L_REC}")
        a(f"ds_write_b32 v8, v16 offset:{L_SOFF}")
        a("s_waitcnt lgkmcnt(0)")
        a(f"K2_slow_skip{r}:")
    a("s_mov_b64 exec, -1")
    a(f"v_mov_b32 v9, {L_FLAG}")
    a(f"s_cmp_eq_u64 s[{S_SAVE}:{S_SAVE+1}], 0")
    a("s_cbranch_scc1 K2_slow_nof")
    a("ds_write_b32 v9, v17")
    a("K2_slow_nof:")
    a("s_waitcnt lgkmcnt(0)")
    a("s_barrier")
    a(f"v_and_b32 v7, 7, v{LANE}")
    a(f"s_mul_i32 s3, s{S_WAVE}, 5")
    a("v_add_u32 v11, s3, v7")
    a(f"v_add_u32 v6, s3, v{V_G}")
    a("s_add_u32 s3, s3, 4")
    a("v_mov_b32 v1, s3")
    for (vn, vt) in ((11, 12), (6, 13), (1, 14)):
        a(f"v_lshlrev_b32 v{vt}, 4, v{vn}")
        a(f"ds_read_b32 v{vt}, v{vt} offset:{L_HIST}")
    a("ds_read_b32 v9, v9")
    a("s_waitcnt lgkmcnt(0)")
    for (vn, vt) in ((11, 12), (6, 13), (1, 14)):
        a(f"v_min_u32 v{vt}, {CAPN}, v{vt}")
        a(f"v_lshl_add_u32 v{vn}, v{vt}, 8, v{vn}")
    a(f"v_readfirstlane_b32 s{S_MODE}, v9")
    a("v_mov_b32 v12, 0")
    a("v_mov_b32 v13, 0")
    a(f"s_add_u32 s{S_MODE}, s{S_MODE}, 1")
    a(f"s_mov_b32 s{S_PASS}, 1")
    a("s_branch K2_sched")
    a("K2_slow_next:")
    a(f"s_cmp_eq_u32 s{S_MODE}, 2")
    a("s_cbranch_scc1 K2_slow_batch")
    a(f"s_add_u32 s{S_WIN}, s{S_WIN}, {2*NR}")
    a("s_waitcnt vmcnt(0) lgkmcnt(0)")
    a("s_branch K2_slow_win")
    a("K2_slow_fin:")
    a("s_branch K2_epi")
    a("F_spare:")
    a("s_load_dwordx4 s[52:55], s[0:1], 40")
    a("s_load_dwordx2 s[56:57], s[0:1], 56")
    a("s_cmp_gt_u32 s4, 3")
    a("s_cselect_b32 s3, 1, 0")
    a("s_sub_u32 s4, s4, s3")
    a("s_waitcnt lgkmcnt(0)")
    srd(24, 52, 128)
    srd(28, 54, 1024)
    srd(48, 56, 32768)
    srd(S_WS, 6, WS_USED)
    srd(S_DBG, 62, 256)
    a("s_cmp_gt_u32 s4, 3")
    a("s_cbranch_scc1 F_sp_small")
    a("v_bfe_u32 v1, v0, 8, 1")
    a("v_bfe_u32 v2, v0, 6, 2")
    a("v_bfe_u32 v3, v0, 4, 2")
    a("v_bfe_u32 v4, v0, 2, 2")
    a("v_and_b32 v5, 3, v0")
    a("v_lshlrev_b32 v6, 13, v2")
    a("v_lshl_add_u32 v6, v3, 11, v6")
    a("v_lshl_add_u32 v6, v4, 4, v6")
    a("v_lshl_add_u32 v6, v1, 3, v6")
    a("v_lshl_add_u32 v6, v5, 1, v6")
    a("s_lshl_b32 s3, s4, 6")
    for q in range(8):
        a(f"buffer_load_ushort v{16+q}, v6, s[48:51], s3 offen offset:{q*256}")
    a("v_lshlrev_b32 v7, 4, v0")
    a("s_lshl_b32 s3, s4, 13")
    a(f"s_add_u32 s3, s3, {WT_OFF}")
    a("s_waitcnt vmcnt(0)")
    for q in range(4):
        a(f"v_lshl_or_b32 v{8+q}, v{17+2*q}, 16, v{16+2*q}")
    a(f"buffer_store_dwordx4 v[8:11], v7, s[{S_WS}:{S_WS+3}], s3 offen {SC}")
    a("s_branch F_sp_pub")
    a("F_sp_small:")
    a("s_cmp_eq_u32 s4, 4")
    a("s_cbranch_scc0 F_sp_cg")
    a("v_cmp_gt_u32 vcc, 128, v0")
    a("s_and_saveexec_b64 s[40:41], vcc")
    a("s_cbranch_execz F_sp_pub")
    a("v_lshlrev_b32 v2, 1, v0")
    for kk in range(4):
        a(f"buffer_load_ushort v{8+kk}, v2, s[28:31], 0 offen offset:{kk*256}")
    a("v_lshlrev_b32 v3, 4, v0")
    a(f"s_mov_b32 s3, {WR_OFF}")
    a("s_waitcnt vmcnt(0)")
    for kk in range(4):
        a(f"v_lshlrev_b32 v{8+kk}, 16, v{8+kk}")
    a(f"buffer_store_dwordx4 v[8:11], v3, s[{S_WS}:{S_WS+3}], s3 offen {SC}")
    a("s_branch F_sp_pub")
    a("F_sp_cg:")
    a("v_cmp_gt_u32 vcc, 32, v0")
    a("s_and_saveexec_b64 s[40:41], vcc")
    a("s_cbranch_execz F_sp_pub")
    a("v_lshrrev_b32 v2, 3, v0")
    a("v_bfe_u32 v3, v0, 1, 2")
    a("v_and_b32 v4, 1, v0")
    a("v_lshlrev_b32 v5, 5, v3")
    a("v_lshl_add_u32 v5, v4, 4, v5")
    a("v_lshl_add_u32 v5, v2, 1, v5")
    a("buffer_load_ushort v8, v5, s[24:27], 0 offen")
    a("buffer_load_ushort v9, v5, s[24:27], 0 offen offset:8")
    a("v_lshlrev_b32 v6, 2, v0")
    a(f"s_mov_b32 s3, {CG_OFF}")
    a("s_waitcnt vmcnt(0)")
    a("v_lshl_or_b32 v8, v9, 16, v8")
    a(f"buffer_store_dword v8, v6, s[{S_WS}:{S_WS+3}], s3 offen {SC}")
    a("F_sp_pub:")
    a("s_mov_b64 exec, -1")
    a(f"s_add_u32 s4, s4, {P}")
    a("v_mov_b32 v1, 1")
    a("v_mov_b32 v2, s4")
    a("s_waitcnt vmcnt(0)")
    a("s_barrier")
    a("v_cmp_eq_u32 vcc, 0, v0")
    a("s_and_saveexec_b64 s[40:41], vcc")
    a("s_cbranch_execz F_sp_end")
    a(f"buffer_store_byte v1, v2, s[{S_DBG}:{S_DBG+3}], 0 offen {SC}")
    a("F_sp_end:")
    a("s_endpgm")
    a("K2_code_end:")
    a("s_endpgm")

def gen_report():
    k = "rep_kernel"
    a(f".globl {k}\n.p2align 8\n.type {k},@function\n{k}:")
    a("s_cmp_lg_u32 s2, 0")
    a("s_cbranch_scc1 R_end")
    a("s_load_dwordx4 s[4:7], s[0:1], 72")
    a("s_waitcnt lgkmcnt(0)")
    def red(reg, op):
        wave_scan(reg, op)
    a("v_mov_b32 v10, -1")
    for r in range(11, 30): a(f"v_mov_b32 v{r}, 0")
    a("v_mov_b32 v14, -1")
    a("v_mov_b32 v20, -1")
    a(f"v_lshlrev_b32 v1, 6, v0")
    a(f"v_add_u32 v1, {DBG_OFF}, v1")
    for kx in range(19):
        a("global_load_dwordx4 v[2:5], v1, s[6:7]")
        a("global_load_dwordx4 v[6:9], v1, s[6:7] offset:16")
        a("s_waitcnt vmcnt(0)")
        a("v_min_u32 v10, v10, v2")
        a("v_max_u32 v11, v11, v3")
        a("v_max_u32 v12, v12, v5")
        a("v_max_u32 v13, v13, v8")
        a("v_add_u32 v1, 4096, v1")
    a(f"v_lshlrev_b32 v1, 6, v0")
    a(f"v_add_u32 v1, {DBG_OFF + (1<<20)}, v1")
    for kx in range(31):
        a("global_load_dwordx4 v[2:5], v1, s[6:7]")
        a("global_load_dwordx4 v[6:9], v1, s[6:7] offset:16")
        a("global_load_dword v30, v1, s[6:7] offset:32")
        a("s_waitcnt vmcnt(0)")
        a("v_min_u32 v14, v14, v2")
        a("v_max_u32 v15, v15, v2")
        a("v_max_u32 v16, v16, v3")
        a("v_max_u32 v17, v17, v4")
        a("v_max_u32 v18, v18, v5")
        a("v_max_u32 v19, v19, v6")
        a("v_min_u32 v20, v20, v7")
        a("v_max_u32 v21, v21, v7")
        a("v_max_u32 v22, v22, v8")
        a("v_max_u32 v23, v23, v9")
        a("v_max_u32 v24, v24, v30")
        a("v_add_u32 v1, 4096, v1")
    for r in range(10, 25):
        red(r, "v_min_u32_dpp" if r in (10, 14, 20) else "v_max_u32_dpp")
    a("s_memrealtime s[8:9]")
    a("s_waitcnt lgkmcnt(0)")
    a("v_mov_b32 v25, s8")
    a("s_mov_b32 exec_lo, 0")
    a("s_mov_b32 exec_hi, 0x80000000")
    a("v_mov_b32 v1, 0")
    for r in range(11, 26):
        a(f"v_sub_u32 v2, v{r}, v10")
        a(f"global_store_dword v1, v2, s[4:5] offset:{4*(r-11)}")
    a("R_end:")
    a("s_endpgm")

def kd(name, nv, ns):
    return f""".p2align 6
.amdhsa_kernel {name}
  .amdhsa_next_free_vgpr {nv}
  .amdhsa_next_free_sgpr {ns}
  .amdhsa_accum_offset {(nv+3)//4*4}
  .amdhsa_group_segment_fixed_size 0
  .amdhsa_kernarg_size 88
  .amdhsa_user_sgpr_count 2
  .amdhsa_user_sgpr_kernarg_segment_ptr 1
  .amdhsa_system_sgpr_workgroup_id_x 1
.end_amdhsa_kernel"""

def main():
    hdr = open("cdna_kernels/" + NAME + ".s.ref").read().split("\n")
    hdr = [l for l in hdr[:12] if l.startswith(";")]
    print("\n".join(hdr))
    if env("ASLIST", 0):
        print(f"; @launch kernel={NAME}_kernel grid=(256,1,1) block=({K2_T},1,1) lds={K2_LDS}")
    else:
        print(f"; @launch grid=(256,1,1) block=({K2_T},1,1) lds={K2_LDS}")
    print('.amdgcn_target "amdgcn-amd-amdhsa--gfx950"')
    print(".text")
    gen_k2()
    print("\n".join(("" if (l.endswith(":") or l.startswith(".")) else "    ") + l for l in out))
    print('.section .rodata,"a"')
    print(kd(NAME + "_kernel", 256, 102))

main()
```

```python
import sys, os

NAME = "gather_scatter__tensor_product_equiv_mace__graph"
N = 10000; E = 320000
P = 250; EPC = E // P
NB = 250; NPB = 40
NR = 10
CAPN = 64
env = lambda k, d: type(d)(os.environ.get(k, d))
STAMP = env("STAMP", 0)
STMOD = env("STMOD", "")
K2TOUCH = env("K2TOUCH", 1)
K1TOUCH = env("K1TOUCH", 0)
CODEPF = env("CODEPF", 1)
BAL = env("BAL", 1)
SC = "sc1"
PSL = env("PSL", 2)
L_NONCE = 30720
TCH0 = env("TCH0", 0)
TCH1 = env("TCH1", 0)
XP = env("XP", 0)
ILV = env("ILV", 1)
PRIO = env("PRIO", 0)
ROT = env("ROT", 0)
NOCOMP = env("NOCOMP", 0)
NOMEM = env("NOMEM", 0)

REC_OFF = 0
TAG_OFF = REC_OFF + E * 16
OFFS_OFF = TAG_OFF + E * 4
WT_OFF = OFFS_OFF + 256 * 2048
WR_OFF = WT_OFF + 32768
CG_OFF = WR_OFF + 2048
WS_USED = WT_OFF + 40960 + 4096
DBG_OFF = 8 << 20

out = []
def a(s): out.append(s)
def stamp(i):
    if STAMP: a(f"s_memrealtime s[{64+2*i}:{65+2*i}]")
def stamp_flush(kidx, wavesper, n, swave, vt=1):
    if not STAMP: return
    a("s_mov_b64 exec, -1")
    a("s_load_dwordx2 s[94:95], s[0:1], 80")
    a(f"s_mul_i32 s92, s2, {wavesper}")
    a(f"s_add_u32 s92, s92, s{swave}")
    a(f"s_lshl_b32 s92, s92, 6")
    a(f"s_add_u32 s92, s92, {DBG_OFF + kidx*(1<<20)}")
    a(f"v_mov_b32 v{vt}, s92")
    a("s_waitcnt lgkmcnt(0)")
    a("s_mov_b64 exec, 1")
    for i in range(n):
        a(f"v_mov_b32 v{vt+1}, s{64+2*i}")
        a(f"global_store_dword v{vt}, v{vt+1}, s[94:95] offset:{4*i}")

def srd(d, base, nbytes):
    a(f"s_mov_b32 s{d}, s{base}")
    a(f"s_and_b32 s{d+1}, s{base+1}, 0xffff")
    a(f"s_mov_b32 s{d+2}, {nbytes}")
    a(f"s_mov_b32 s{d+3}, 0x20000")

def wave_scan(v, op="v_add_u32_dpp"):
    for sh in (1, 2, 4, 8):
        a("s_nop 1")
        a(f"{op} v{v}, v{v}, v{v} row_shr:{sh} row_mask:0xf bank_mask:0xf")
    a("s_nop 1")
    a(f"{op} v{v}, v{v}, v{v} row_bcast:15 row_mask:0xa bank_mask:0xf")
    a("s_nop 1")
    a(f"{op} v{v}, v{v}, v{v} row_bcast:31 row_mask:0xc bank_mask:0xf")

K1_T = 320
K1_HIST = 0; K1_OFFS = 1024; K1_TAG = 2048; K1_REC = K1_TAG + EPC * 4
K1_LDS = K1_REC + EPC * 16
NWPREP = 8
K1_GRID = P + NWPREP

def gen_k1():
    k = "part_kernel"
    a(f".globl {k}\n.p2align 8\n.type {k},@function\n{k}:")
    a(f"s_cmp_ge_u32 s2, {K1_GRID}")
    a("s_cbranch_scc1 K1_end")
    a(f"s_cmp_ge_u32 s2, {P}")
    a("s_cbranch_scc1 K1_wprep")
    stamp(0)
    a("s_load_dwordx4 s[4:7], s[0:1], 8")
    a("s_load_dwordx4 s[8:11], s[0:1], 24")
    a("s_load_dwordx2 s[12:13], s[0:1], 80")
    if K1TOUCH: a("s_load_dwordx2 s[44:45], s[0:1], 0")
    a("v_lshlrev_b32 v1, 4, v0")
    a("v_lshlrev_b32 v2, 5, v0")
    a("v_lshlrev_b32 v3, 2, v0")
    a("v_mov_b32 v4, 0")
    a(f"ds_write_b32 v3, v4 offset:{K1_HIST}")
    a(f"s_mul_i32 s14, s2, {EPC*4}")
    a(f"s_mul_i32 s15, s2, {EPC*8}")
    a("v_lshrrev_b32 v5, 6, v0")
    a("s_waitcnt lgkmcnt(0)")
    srd(20, 6, E * 4)
    a("buffer_load_dwordx4 v[8:11], v1, s[20:23], s14 offen")
    srd(16, 4, E * 4)
    a("buffer_load_dwordx4 v[12:15], v1, s[16:19], s14 offen")
    srd(24, 8, E * 8)
    srd(28, 10, E * 8)
    srd(32, 12, WS_USED)
    a("v_readfirstlane_b32 s47, v5")
    a("s_barrier")
    a("buffer_load_dwordx4 v[16:19], v2, s[24:27], s15 offen")
    a("buffer_load_dwordx4 v[20:23], v2, s[24:27], s15 offen offset:16")
    a("buffer_load_dwordx4 v[24:27], v2, s[28:31], s15 offen")
    a("buffer_load_dwordx4 v[28:31], v2, s[28:31], s15 offen offset:16")
    a("s_mov_b32 s40, 52429")
    a("s_mov_b32 s41, -40")
    a("s_mov_b32 s42, 6711")
    a("v_mov_b32 v5, 1")
    a("v_and_b32 v6, 63, v0")
    a("v_lshlrev_b32 v6, 4, v6")
    a("s_waitcnt vmcnt(5)")
    stamp(1)
    for e in range(4):
        a(f"v_mul_u32_u24 v{32+e}, s40, v{8+e}")
        a(f"v_lshrrev_b32 v{32+e}, 21, v{32+e}")
        a(f"v_lshlrev_b32 v{36+e}, 2, v{32+e}")
        a(f"ds_add_rtn_u32 v{40+e}, v{36+e}, v5 offset:{K1_HIST}")
    a("s_waitcnt vmcnt(4)")
    for e in range(4):
        a(f"v_mad_i32_i24 v{8+e}, v{32+e}, s41, v{8+e}")
        if ROT:
            a(f"v_lshl_add_u32 v{44+e}, v{32+e}, 3, 7")
            a(f"v_mul_u32_u24 v{44+e}, 4195, v{44+e}")
            a(f"v_lshrrev_b32 v{44+e}, 20, v{44+e}")
            a(f"v_mul_u32_u24 v{44+e}, {ROT}, v{44+e}")
        a(f"v_mul_u32_u24 v{32+e}, s42, v{12+e}")
        a(f"v_lshrrev_b32 v{32+e}, 22, v{32+e}")
        if ROT:
            a(f"v_add_u32 v{32+e}, v{32+e}, v{44+e}")
            a(f"v_and_b32 v{32+e}, 15, v{32+e}")
        a(f"v_lshl_add_u32 v{8+e}, v{8+e}, 4, v{32+e}")
        a(f"v_lshl_add_u32 v{12+e}, v{8+e}, 14, v{12+e}")
    a("s_waitcnt lgkmcnt(0)")
    a("s_barrier")
    stamp(2)
    if K1TOUCH:
        srd(36, 44, N * 1024)
        a(f"s_mul_i32 s46, s2, {K1_T*16}")
        for r in range(K1TOUCH):
            a("buffer_load_dwordx4 v[56:59], v1, s[36:39], s46 offen")
            a(f"s_add_u32 s46, s46, {P*K1_T*16}")
    a(f"ds_read_b128 v[44:47], v6 offset:{K1_HIST}")
    a("s_waitcnt lgkmcnt(0)")
    a("v_add_u32 v48, v44, v45")
    a("v_add3_u32 v48, v48, v46, v47")
    a("v_mov_b32 v49, v48")
    wave_scan(49)
    a("v_sub_u32 v52, v49, v48")
    a("v_add_u32 v53, v52, v44")
    a("v_add_u32 v54, v53, v45")
    a("v_add_u32 v55, v54, v46")
    a(f"ds_write_b128 v6, v[52:55] offset:{K1_OFFS}")
    for e in range(4):
        a(f"ds_read_b32 v{32+e}, v{36+e} offset:{K1_OFFS}")
    a("s_cmp_lg_u32 s47, 0")
    a("s_cbranch_scc1 K1_noffs")
    a("s_lshl_b32 s43, s2, 10")
    a(f"s_add_u32 s43, s43, {OFFS_OFF}")
    a(f"buffer_store_dwordx4 v[52:55], v6, s[32:35], s43 offen {STMOD}")
    a(f"s_waitcnt vmcnt({K1TOUCH+1}) lgkmcnt(0)")
    a("s_branch K1_go")
    a("K1_noffs:")
    a(f"s_waitcnt vmcnt({K1TOUCH}) lgkmcnt(0)")
    a("K1_go:")
    stamp(3)
    for e in range(4):
        a(f"v_add_u32 v{32+e}, v{32+e}, v{40+e}")
        a(f"v_lshlrev_b32 v{36+e}, 4, v{32+e}")
        a(f"v_add_u32 v{36+e}, {K1_REC}, v{36+e}")
        a(f"v_lshlrev_b32 v{32+e}, 2, v{32+e}")
        a(f"ds_write2_b64 v{36+e}, v[{16+2*e}:{17+2*e}], v[{24+2*e}:{25+2*e}] offset0:0 offset1:1")
        a(f"ds_write_b32 v{32+e}, v{12+e} offset:{K1_TAG}")
    a(f"s_mul_i32 s43, s2, {EPC*16}")
    a(f"s_add_u32 s46, s14, {TAG_OFF}")
    a("s_waitcnt lgkmcnt(0)")
    a("s_barrier")
    stamp(4)
    a(f"ds_read_b128 v[24:27], v1 offset:{K1_TAG}")
    for r in range(4):
        a(f"ds_read_b128 v[{8+4*r}:{11+4*r}], v1 offset:{K1_REC + r*K1_T*16}")
    a("s_waitcnt lgkmcnt(4)")
    a(f"buffer_store_dwordx4 v[24:27], v1, s[32:35], s46 offen {STMOD}")
    for r in range(4):
        a(f"s_waitcnt lgkmcnt({3-r})")
        a(f"buffer_store_dwordx4 v[{8+4*r}:{11+4*r}], v1, s[32:35], s43 offen {STMOD}")
        a(f"s_add_u32 s43, s43, {K1_T*16}")
    stamp(5)
    if STAMP: a("s_waitcnt vmcnt(0)")
    stamp(6)
    stamp_flush(0, 5, 7, 47, 40)
    a("s_endpgm")
    a("K1_wprep:")
    a("s_load_dwordx4 s[4:7], s[0:1], 40")
    a("s_load_dwordx2 s[8:9], s[0:1], 56")
    a("s_load_dwordx2 s[12:13], s[0:1], 80")
    a(f"s_sub_u32 s14, s2, {P}")
    a("s_waitcnt lgkmcnt(0)")
    srd(16, 4, 128)
    srd(20, 6, 1024)
    srd(24, 8, 32768)
    srd(32, 12, WS_USED)
    a("v_cmp_gt_u32 vcc, 256, v0")
    a("s_and_saveexec_b64 s[36:37], vcc")
    a("s_cbranch_execz K1_wsmall")
    a("v_bfe_u32 v2, v0, 6, 2")
    a("v_bfe_u32 v3, v0, 4, 2")
    a("v_bfe_u32 v4, v0, 2, 2")
    a("v_and_b32 v5, 3, v0")
    a("v_lshlrev_b32 v6, 13, v2")
    a("v_lshl_add_u32 v6, v3, 11, v6")
    a("v_lshl_add_u32 v6, v4, 4, v6")
    a("v_lshl_add_u32 v6, v5, 1, v6")
    a("s_lshr_b32 s15, s14, 1")
    a("s_lshl_b32 s15, s15, 6")
    a("s_and_b32 s38, s14, 1")
    a("s_lshl_b32 s38, s38, 3")
    a("s_add_u32 s15, s15, s38")
    for q in range(8):
        a(f"buffer_load_ushort v{16+q}, v6, s[24:27], s15 offen offset:{q*256}")
    a("v_lshlrev_b32 v7, 4, v0")
    a("s_lshl_b32 s15, s14, 12")
    a(f"s_add_u32 s15, s15, {WT_OFF}")
    a("s_waitcnt vmcnt(0)")
    for q in range(4):
        a(f"v_lshl_or_b32 v{8+q}, v{17+2*q}, 16, v{16+2*q}")
    a("buffer_store_dwordx4 v[8:11], v7, s[32:35], s15 offen")
    a("s_endpgm")
    a("K1_wsmall:")
    a("s_mov_b64 exec, s[36:37]")
    a("v_subrev_u32 v1, 256, v0")
    a("s_cmp_lt_u32 s14, 2")
    a("s_cbranch_scc0 K1_wcg")
    a("s_lshl_b32 s15, s14, 6")
    a("v_add_u32 v1, s15, v1")
    a("v_lshlrev_b32 v2, 1, v1")
    for kk in range(4):
        a(f"buffer_load_ushort v{8+kk}, v2, s[20:23], 0 offen offset:{kk*256}")
    a("v_lshlrev_b32 v3, 4, v1")
    a(f"s_mov_b32 s15, {WR_OFF}")
    a("s_waitcnt vmcnt(0)")
    for kk in range(4):
        a(f"v_lshlrev_b32 v{8+kk}, 16, v{8+kk}")
    a("buffer_store_dwordx4 v[8:11], v3, s[32:35], s15 offen")
    a("s_endpgm")
    a("K1_wcg:")
    a("s_cmp_eq_u32 s14, 2")
    a("s_cbranch_scc0 K1_wcode")
    a("v_cmp_gt_u32 vcc, 32, v1")
    a("s_and_saveexec_b64 s[36:37], vcc")
    a("v_lshrrev_b32 v2, 3, v1")
    a("v_bfe_u32 v3, v1, 1, 2")
    a("v_and_b32 v4, 1, v1")
    a("v_lshlrev_b32 v5, 5, v3")
    a("v_lshl_add_u32 v5, v4, 4, v5")
    a("v_lshl_add_u32 v5, v2, 1, v5")
    a("buffer_load_ushort v8, v5, s[16:19], 0 offen")
    a("buffer_load_ushort v9, v5, s[16:19], 0 offen offset:8")
    a("v_lshlrev_b32 v6, 2, v1")
    a(f"s_mov_b32 s15, {CG_OFF}")
    a("s_waitcnt vmcnt(0)")
    a("v_lshl_or_b32 v8, v9, 16, v8")
    a("buffer_store_dword v8, v6, s[32:35], s15 offen")
    a("s_endpgm")
    a("K1_wcode:")
    if CODEPF:
        a("s_cmp_eq_u32 s14, 3")
        a("s_cbranch_scc0 K1_end")
        a("s_getpc_b64 s[40:41]")
        a("K1_pc:")
        a("s_add_u32 s40, s40, main_kernel-K1_pc")
        a("s_addc_u32 s41, s41, 0")
        a("v_lshlrev_b32 v2, 6, v1")
        for r in range(4):
            a("v_cmp_gt_u32 vcc, K2_code_end-main_kernel, v2")
            a("s_and_b64 exec, exec, vcc")
            a("s_cbranch_execz K1_wcode_done")
            a(f"global_load_dword v{8+r}, v2, s[40:41]")
            a("v_add_u32 v2, 4096, v2")
        a("K1_wcode_done:")
        a("s_waitcnt vmcnt(0)")
    a("K1_end:")
    a("s_endpgm")

K2_T = 512
SLOTS = NPB * CAPN + 8
DUMMY = NPB * CAPN
L_REC = 0
L_SOFF = L_REC + SLOTS * 16
L_HIST = L_SOFF + SLOTS * 4
L_FLAG = L_HIST + NPB * 16
L_PRE = L_FLAG + 16
L_NODE = L_PRE + NPB * 16 + 512
L_TAB = L_NODE + 512
L_LST = L_TAB + 1024
L_WT = (L_LST + 4096 + 255) // 256 * 256
L_WR = L_WT + 32768
L_AGG = L_WT + 32768 + 2048
AGG_RS = 272
K2_LDS = L_AGG + (NPB * 4 + 12) * AGG_RS
OOB = 0x7f000000
BARK = env("BARK", 2)
NXB = 4

ACC = 96; XB = 32; CG = 24; OPS = 18; AOP = 16; AT = 12; RECV = 8
V_LIST1 = 7; V_SOFF = 6; V_T = 5; V_COL16 = 4; V_G = 3; V_LIST = 2; V_T2 = 1; V_EASEL = 0
S_X = 8; S_WS = 12; S_OUT = 16
S_WAVE = 20; S_SELLO = 21; S_SELHI = 22; S_IDX = 23
S_S0 = 24; S_S1 = 26
S_EA = 28; S_EB = 29; S_IDX2 = 30; S_LEFT = 31; S_RC = 32; S_MORE = 33
S_T = 34; S_PASS = 35; S_MODE = 36; S_WIN = 37; S_MAXC = 38; S_B = 39
S_MASK = 40
S_SAVE = 60

def lane_id(v):
    a(f"v_mbcnt_lo_u32_b32 v{v}, -1, 0")
    a(f"v_mbcnt_hi_u32_b32 v{v}, -1, v{v}")

tail_code = []
uid = [0]
def ld_x(b):
    r = []
    for u in range(4):
        x = XB + 16 * b + 4 * u
        r.append(f"buffer_load_dwordx4 v[{x}:{x+3}], v{V_SOFF}, s[{S_X}:{S_X+3}], 0 offen offset:{u*256}")
    return r
def addr_fix():
    a(f"v_add_u32 v{V_SOFF}, v{V_SOFF}, v{V_COL16}")
    if NOMEM == 1: a(f"v_mov_b32 v{V_SOFF}, {OOB}")
    if NOMEM == 3: a(f"v_and_b32 v{V_SOFF}, 0xfffff, v{V_SOFF}")

S_DBG = 88
def nonce_fetch():
    a("s_memrealtime s[4:5]")
    a("v_mov_b32 v21, 0")
    a("v_mov_b32 v19, 0")
    a("s_waitcnt lgkmcnt(0)")
    a("s_or_b32 s4, s4, 1")
    a("v_mov_b32 v20, s4")
    a("v_mov_b32 v18, s4")
    a("s_mov_b64 exec, 1")
    a(f"buffer_atomic_cmpswap v[20:21], v19, s[{S_DBG}:{S_DBG+3}], 0 offen sc0 sc1")
    a("s_mov_b64 exec, -1")
def nonce_finish():
    a("v_readfirstlane_b32 s5, v20")
    a("v_readfirstlane_b32 s4, v18")
    a("s_nop 0")
    a("s_cmp_eq_u32 s5, 0")
    a("s_cselect_b32 s4, s4, s5")
def gen_k2():
    k = NAME + "_kernel"
    a(f".globl {k}\n.p2align 8\n.type {k},@function\n{k}:")
    a("s_cmp_ge_u32 s2, 256")
    a("s_cbranch_scc1 K2_end")
    stamp(0)
    a("s_load_dwordx8 s[40:47], s[0:1], 0")
    a("s_load_dwordx2 s[48:49], s[0:1], 32")
    a("s_load_dwordx4 s[60:63], s[0:1], 64")
    a("s_load_dwordx2 s[6:7], s[0:1], 80")
    a("s_and_b32 s4, s2, 7")
    a(f"s_mul_i32 s3, s4, {NB}")
    a(f"s_add_u32 s{S_T}, s3, {NB}")
    a("s_lshr_b32 s3, s3, 3")
    a(f"s_lshr_b32 s{S_T}, s{S_T}, 3")
    a(f"s_lshr_b32 s{S_B}, s2, 3")
    a(f"s_add_u32 s{S_B}, s{S_B}, s3")
    a(f"s_cmp_ge_u32 s{S_B}, s{S_T}")
    a("s_cbranch_scc1 F_spare")
    TID = 23; LANE = 22
    a("v_lshrrev_b32 v5, 6, v0")
    a("v_lshlrev_b32 v1, 4, v0")
    a("v_lshlrev_b32 v2, 5, v0")
    a("v_lshlrev_b32 v3, 2, v0")
    a("v_mov_b32 v4, 0")
    a(f"v_readfirstlane_b32 s{S_WAVE}, v5")
    a(f"ds_write_b32 v3, v4 offset:{K1_HIST}")
    a(f"v_cmp_gt_u32 vcc, {NPB*4+4}, v0")
    a(f"s_and_saveexec_b64 s[4:5], vcc")
    a(f"ds_write_b32 v3, v4 offset:{L_HIST}")
    a(f"s_mov_b64 exec, s[4:5]")
    a(f"s_mul_i32 s58, s{S_B}, {EPC*4}")
    a(f"s_mul_i32 s59, s{S_B}, {EPC*8}")
    a("s_waitcnt lgkmcnt(0)")
    srd(S_X, 40, N * 1024)
    srd(24, 44, E * 4)
    srd(28, 42, E * 4)
    a(f"s_cmp_gt_u32 s{S_WAVE}, 4")
    a("s_cbranch_scc1 F_i0")
    a("buffer_load_dwordx4 v[8:11], v1, s[24:27], s58 offen")
    a("buffer_load_dwordx4 v[12:15], v1, s[28:31], s58 offen")
    a("F_i0:")
    srd(52, 48, E * 8)
    srd(48, 46, E * 8)
    srd(S_WS, 6, WS_USED)
    srd(S_OUT, 60, N * 1024)
    srd(S_DBG, 62, 256)
    a("s_barrier")
    a(f"s_cmp_gt_u32 s{S_WAVE}, 4")
    a("s_cbranch_scc1 F_idle")
    a("buffer_load_dwordx4 v[16:19], v2, s[48:51], s59 offen")
    a("buffer_load_dwordx4 v[20:23], v2, s[48:51], s59 offen offset:16")
    a("buffer_load_dwordx4 v[24:27], v2, s[52:55], s59 offen")
    a("buffer_load_dwordx4 v[28:31], v2, s[52:55], s59 offen offset:16")
    for r in range(160):
        a(f"v_mov_b32 v{ACC+r}, 0")
    a("s_mov_b32 s40, 52429")
    a("s_mov_b32 s41, -40")
    a("s_mov_b32 s42, 6711")
    a("v_mov_b32 v5, 1")
    a("v_and_b32 v6, 63, v0")
    a("v_lshlrev_b32 v6, 4, v6")
    a("s_waitcnt vmcnt(5)")
    for e in range(4):
        a(f"v_mul_u32_u24 v{32+e}, s40, v{8+e}")
        a(f"v_lshrrev_b32 v{32+e}, 21, v{32+e}")
        a(f"v_lshlrev_b32 v{36+e}, 2, v{32+e}")
        a(f"ds_add_rtn_u32 v{40+e}, v{36+e}, v5 offset:{K1_HIST}")
    a("s_waitcnt vmcnt(4)")
    for e in range(4):
        a(f"v_mad_i32_i24 v{8+e}, v{32+e}, s41, v{8+e}")
        a(f"v_mul_u32_u24 v{32+e}, s42, v{12+e}")
        a(f"v_lshrrev_b32 v{32+e}, 22, v{32+e}")
        a(f"v_lshl_add_u32 v{8+e}, v{8+e}, 4, v{32+e}")
        a(f"v_lshl_add_u32 v{12+e}, v{8+e}, 14, v{12+e}")
    a("s_waitcnt lgkmcnt(0)")
    a("s_barrier")
    a(f"ds_read_b128 v[44:47], v6 offset:{K1_HIST}")
    a("s_waitcnt lgkmcnt(0)")
    a("v_add_u32 v48, v44, v45")
    a("v_add3_u32 v48, v48, v46, v47")
    a("v_mov_b32 v49, v48")
    wave_scan(49)
    a("v_sub_u32 v52, v49, v48")
    a("v_add_u32 v53, v52, v44")
    a("v_add_u32 v54, v53, v45")
    a("v_add_u32 v55, v54, v46")
    a(f"ds_write_b128 v6, v[52:55] offset:{K1_OFFS}")
    for e in range(4):
        a(f"ds_read_b32 v{32+e}, v{36+e} offset:{K1_OFFS}")
    a("s_waitcnt vmcnt(0) lgkmcnt(0)")
    for e in range(4):
        a(f"v_add_u32 v{32+e}, v{32+e}, v{40+e}")
        a(f"v_lshlrev_b32 v{36+e}, 4, v{32+e}")
        a(f"v_add_u32 v{36+e}, {K1_REC}, v{36+e}")
        a(f"v_lshlrev_b32 v{32+e}, 2, v{32+e}")
        a(f"ds_write2_b64 v{36+e}, v[{16+2*e}:{17+2*e}], v[{24+2*e}:{25+2*e}] offset0:0 offset1:1")
        a(f"ds_write_b32 v{32+e}, v{12+e} offset:{K1_TAG}")
    a(f"s_mul_i32 s43, s{S_B}, {EPC*16}")
    a(f"s_add_u32 s46, s58, {TAG_OFF}")
    a("s_waitcnt lgkmcnt(0)")
    a("s_barrier")
    a(f"ds_read_b128 v[24:27], v1 offset:{K1_TAG}")
    for r in range(4):
        a(f"ds_read_b128 v[{8+4*r}:{11+4*r}], v1 offset:{K1_REC + r*K1_T*16}")
    a("s_waitcnt lgkmcnt(4)")
    a(f"buffer_store_dwordx4 v[24:27], v1, s[{S_WS}:{S_WS+3}], s46 offen {SC}")
    for r in range(4):
        a(f"s_waitcnt lgkmcnt({3-r})")
        a(f"buffer_store_dwordx4 v[{8+4*r}:{11+4*r}], v1, s[{S_WS}:{S_WS+3}], s43 offen {SC}")
        a(f"s_add_u32 s43, s43, {K1_T*16}")
    a("s_branch F_join")
    a("F_idle:")
    a(f"s_cmp_lg_u32 s{S_WAVE}, 5")
    a("s_cbranch_scc1 F_nononce")
    nonce_fetch()
    a("F_nononce:")
    if CODEPF:
        a("s_getpc_b64 s[4:5]")
        a("K2_pc:")
        a("v_subrev_u32 v14, 320, v0")
        a("v_lshlrev_b32 v14, 7, v14")
        a("v_cmp_gt_u32 vcc, K2_code_end-K2_pc, v14")
        a(f"s_and_saveexec_b64 s[40:41], vcc")
        a("s_cbranch_execz K2_nocpf")
        a("global_load_dword v15, v14, s[4:5]")
        a("K2_nocpf:")
        a(f"s_mov_b64 exec, s[40:41]")
    for r in range(160):
        a(f"v_mov_b32 v{ACC+r}, 0")
    a("s_barrier")
    tdone = [0]
    def idle_touch(n):
        a("v_subrev_u32 v14, 320, v0")
        a("v_lshlrev_b32 v14, 4, v14")
        for _ in range(n):
            a(f"s_mul_i32 s43, s{S_B}, 3072")
            a(f"s_add_u32 s43, s43, {tdone[0]*NB*3072}")
            a(f"buffer_load_dwordx4 v[16:19], v14, s[{S_X}:{S_X+3}], s43 offen")
            tdone[0] += 1
    a("s_barrier")
    a(f"s_cmp_lg_u32 s{S_WAVE}, 5")
    a("s_cbranch_scc1 F_nononce2")
    a("s_waitcnt vmcnt(0)")
    nonce_finish()
    a(f"v_mov_b32 v19, {L_NONCE}")
    a("v_mov_b32 v20, s4")
    a("ds_write_b32 v19, v20")
    a("s_waitcnt lgkmcnt(0)")
    a("F_nononce2:")
    idle_touch(TCH0)
    a("F_join:")
    a(f"v_mov_b32 v{TID}, v0")
    a(f"v_and_b32 v{LANE}, 63, v0")
    a(f"v_and_b32 v{V_COL16}, 15, v{TID}")
    a(f"v_lshlrev_b32 v{V_COL16}, 4, v{V_COL16}")
    a(f"v_lshrrev_b32 v{V_G}, 4, v{LANE}")
    a(f"v_and_b32 v{V_EASEL}, 3, v{TID}")
    a(f"v_mul_u32_u24 v{V_EASEL}, 0x0202, v{V_EASEL}")
    a(f"v_add_u32 v{V_EASEL}, 0x0100, v{V_EASEL}")
    a(f"v_lshlrev_b32 v{V_EASEL}, 16, v{V_EASEL}")
    a(f"v_or_b32 v{V_EASEL}, 0x0c0c, v{V_EASEL}")
    a(f"s_mov_b32 s{S_SELLO}, 0x05040100")
    a(f"s_mov_b32 s{S_SELHI}, 0x07060302")
    a(f"s_mov_b32 s{S_MODE}, 0")
    a(f"v_lshrrev_b32 v28, 1, v{TID}")
    a(f"v_and_b32 v29, 1, v{TID}")
    a("v_lshlrev_b32 v30, 3, v28")
    a(f"v_mov_b32 v31, {L_NONCE}")
    a(f"s_cmp_gt_u32 s{S_WAVE}, 4")
    a("s_cbranch_scc1 F_nw")
    for e in range(1, 4):
        a(f"s_cmp_eq_u32 s{S_WAVE}, {e}")
        a("s_cselect_b64 vcc, -1, 0")
        a(f"v_cndmask_b32 v44, v44, v{44+e}, vcc")
        a(f"v_cndmask_b32 v52, v52, v{52+e}, vcc")
    a("v_lshl_or_b32 v56, v44, 11, v52")
    a(f"v_lshlrev_b32 v2, 13, v{LANE}")
    a("s_waitcnt vmcnt(0)")
    a("F_nw:")
    a("s_barrier")
    stamp(1)
    a("ds_read_b32 v31, v31")
    a(f"s_lshl_b32 s3, s{S_B}, 11")
    a(f"s_add_u32 s3, s3, {OFFS_OFF}")
    a(f"s_lshl_b32 s4, s{S_WAVE}, 11")
    a(f"s_lshl_b32 s5, s{S_B}, 3")
    a("s_add_u32 s4, s4, s5")
    a(f"s_add_u32 s4, s4, {OFFS_OFF}")
    a("s_waitcnt lgkmcnt(0)")
    a("v_lshlrev_b32 v1, 22, v31")
    a(f"s_cmp_gt_u32 s{S_WAVE}, 3")
    a("s_cbranch_scc1 F_nopub")
    a("v_or_b32 v56, v56, v1")
    a("v_mov_b32 v57, v31")
    a(f"buffer_store_dwordx2 v[56:57], v2, s[{S_WS}:{S_WS+3}], s4 offen {SC}")
    a("F_nopub:")
    a("s_mov_b32 s4, 0")
    a("F_poll:")
    a(f"buffer_load_dwordx2 v[12:13], v30, s[{S_WS}:{S_WS+3}], s3 offen {SC}")
    a("s_add_u32 s4, s4, 1")
    a("s_waitcnt vmcnt(0)")
    a("v_xor_b32 v14, v12, v1")
    a("v_lshrrev_b32 v14, 22, v14")
    a("v_xor_b32 v15, v13, v31")
    a("v_or_b32 v14, v14, v15")
    a("v_cmp_ne_u32 vcc, 0, v14")
    a("s_and_b64 exec, exec, vcc")
    a("s_cbranch_execz F_go")
    a("s_cmp_gt_u32 s4, 0x40000")
    a("s_cbranch_scc1 K2_end")
    a(f"s_sleep {PSL}")
    a("s_branch F_poll")
    a("F_go:")
    a("s_mov_b64 exec, -1")
    stamp(2)
    a("v_mov_b32 v8, v28")
    a("v_mov_b32 v9, v29")
    a(f"v_mul_u32_u24 v10, {EPC}, v8")
    a("v_add_u32 v10, v10, v9")
    a("v_bfe_u32 v11, v12, 11, 11")
    a("v_and_b32 v12, 0x7ff, v12")
    a("v_add_u32 v10, v10, v12")
    a("v_sub_u32 v13, v11, v9")
    a("v_lshlrev_b32 v14, 4, v10")
    a("v_lshlrev_b32 v10, 2, v10")
    a(f"s_mov_b32 s3, {TAG_OFF}")
    RB = XB; TG = XB + 40; RK = XB + 50
    M = lambda r: f"s[{S_MASK+2*r}:{S_MASK+2*r+1}]"
    for r in range(NR):
        a(f"v_cmp_lt_i32 {M(r)}, {2*r}, v13")
    for r in range(NR):
        a(f"s_mov_b64 exec, {M(r)}")
        a("s_cbranch_execz K2_ld_done")
        a(f"buffer_load_dword v{TG+r}, v10, s[{S_WS}:{S_WS+3}], s3 offen offset:{8*r} {SC}")
        a(f"buffer_load_dwordx4 v[{RB+4*r}:{RB+4*r+3}], v14, s[{S_WS}:{S_WS+3}], 0 offen offset:{32*r} {SC}")
    a("K2_ld_done:")
    a("s_mov_b64 exec, -1")
    a(f"v_cmp_lt_u32 s[{S_SAVE}:{S_SAVE+1}], {2*NR}, v11")
    a("v_mov_b32 v17, 1")
    a("s_waitcnt vmcnt(0)")
    for r in range(NR):
        a(f"s_mov_b64 exec, {M(r)}")
        a("s_cbranch_execz K2_h_done")
        a(f"v_lshrrev_b32 v8, 14, v{TG+r}")
        a(f"v_and_b32 v9, 0xffc, v8")
        a(f"v_lshlrev_b32 v8, 3, v8")
        a(f"v_lshlrev_b32 v8, v8, v17")
        a(f"ds_add_rtn_u32 v{RK+r}, v9, v8 offset:{L_HIST}")
    a("K2_h_done:")
    a("s_mov_b64 exec, -1")
    a("s_waitcnt lgkmcnt(0)")
    for r in range(NR):
        a(f"s_mov_b64 exec, {M(r)}")
        a("s_cbranch_execz K2_r_done")
        a(f"v_lshrrev_b32 v8, 11, v{TG+r}")
        a(f"v_and_b32 v8, 24, v8")
        a(f"v_bfe_u32 v{RK+r}, v{RK+r}, v8, 8")
        a(f"v_cmp_lt_u32 vcc, {CAPN-1}, v{RK+r}")
        a(f"s_or_b64 s[{S_SAVE}:{S_SAVE+1}], s[{S_SAVE}:{S_SAVE+1}], vcc")
    a("K2_r_done:")
    a("s_mov_b64 exec, -1")
    a(f"v_mov_b32 v9, {L_FLAG}")
    a(f"s_cmp_eq_u64 s[{S_SAVE}:{S_SAVE+1}], 0")
    a("s_cbranch_scc1 K2_noflag")
    a("ds_write_b32 v9, v17")
    a("K2_noflag:")
    a(f"v_lshlrev_b32 v8, 4, v{LANE}")
    a("s_waitcnt lgkmcnt(0)")
    a("s_barrier")
    stamp(3)
    a(f"ds_read_b128 v[12:15], v8 offset:{L_HIST}")
    a("ds_read_b32 v9, v9")
    a(f"v_lshlrev_b32 v{V_T}, 4, v{TID}")
    a(f"v_bfe_u32 v16, v{TID}, 2, 2")
    a("v_lshlrev_b32 v16, 5, v16")
    a(f"s_mov_b32 s3, {CG_OFF}")
    a(f"buffer_load_dwordx4 v[{CG}:{CG+3}], v16, s[{S_WS}:{S_WS+3}], s3 offen {SC}")
    a(f"buffer_load_dwordx4 v[{CG+4}:{CG+7}], v16, s[{S_WS}:{S_WS+3}], s3 offen offset:16 {SC}")
    a(f"v_lshlrev_b32 v16, 2, v{TID}")
    a(f"s_lshl_b32 s3, s{S_WAVE}, 8")
    a(f"s_add_u32 s3, s3, {L_WR}")
    a("s_mov_b32 m0, s3")
    a(f"s_mov_b32 s3, {WR_OFF}")
    a(f"buffer_load_dword v16, s[{S_WS}:{S_WS+3}], s3 offen {SC} lds")
    bg = []
    for r in range(4):
        bg.append([f"s_lshl_b32 s5, s{S_WAVE}, 10", f"s_add_u32 s5, s5, {L_WT + r*K2_T*16}", "s_mov_b32 m0, s5",
                   f"s_mov_b32 s5, {WT_OFF + r*K2_T*16}",
                   f"buffer_load_dwordx4 v{V_T}, s[{S_WS}:{S_WS+3}], s5 offen {SC} lds"])
    tch = []
    if K2TOUCH:
        per = K2_T * 16
        k1bytes = tdone[0] * NB * 3072
        for r in range(N * 1024 // (NB * per)):
            if (r + 1) * NB * per <= k1bytes: continue
            tch.append([f"s_lshl_b32 s5, s{S_B}, 13", f"s_add_u32 s5, s5, {r*NB*per}",
                        f"buffer_load_dwordx4 v[{XB+60}:{XB+63}], v{V_T}, s[{S_X}:{S_X+3}], s5 offen"])
    bg = tch + bg
    NBG = len(bg) + 1
    def bgop(n=1):
        for _ in range(n):
            if bg:
                for x in bg.pop(0): a(x)
    bgop(2)
    a("s_waitcnt lgkmcnt(0)")
    a("s_mov_b32 s3, 0x01010101")
    a("v_mov_b32 v10, 0")
    PW = 18
    for q in range(4):
        H = 12 + q
        a(f"v_lshlrev_b32 v{PW+q}, 8, v{H}")
        a(f"v_lshl_add_u32 v{PW+q}, v{H}, 16, v{PW+q}")
        a(f"v_lshl_add_u32 v{PW+q}, v{H}, 24, v{PW+q}")
        if q > 0:
            a(f"v_mul_lo_u32 v11, v10, s3")
            a(f"v_add_u32 v{PW+q}, v{PW+q}, v11")
        a(f"v_sad_u8 v10, v{H}, 0, v10")
    a(f"v_cmp_gt_u32 vcc, {NPB}, v{LANE}")
    a(f"s_and_saveexec_b64 s[{S_SAVE}:{S_SAVE+1}], vcc")
    a(f"ds_write_b128 v8, v[{PW}:{PW+3}] offset:{L_PRE}")
    a(f"v_cmp_lt_u32 vcc, {CAPN}, v10")
    a(f"s_mov_b64 exec, s[{S_SAVE}:{S_SAVE+1}]")
    a("v_readfirstlane_b32 s3, v9")
    a("s_cmp_lg_u64 vcc, 0")
    a("s_cbranch_scc1 K2_slow")
    a("s_cmp_lg_u32 s3, 0")
    a("s_cbranch_scc1 K2_slow")
    bg_slow = [list(x) for x in bg]
    PR = [12, 13, 14, 15, 16, 17, 18, 19, 20, 21]
    for r in range(NR):
        a(f"s_mov_b64 exec, {M(r)}")
        a("s_cbranch_execz K2_p_done")
        a(f"v_lshrrev_b32 v8, 14, v{TG+r}")
        a(f"ds_read_u8 v{PR[r]}, v8 offset:{L_PRE}")
    a("K2_p_done:")
    a("s_mov_b64 exec, -1")
    bgop(1)
    a(f"v_and_b32 v7, 7, v{LANE}")
    a("v_add_u32 v8, 3, v10")
    a("v_lshrrev_b32 v8, 2, v8")
    a("v_subrev_u32 v8, 5, v8")
    a("v_med3_i32 v8, v8, 0, 7")
    a(f"v_cmp_gt_u32 vcc, {NPB}, v{LANE}")
    a("v_mov_b32 v9, 63")
    a("s_nop 0")
    a("v_cndmask_b32 v8, 64, v8, vcc")
    KM = [24, 26, 28, 30, 32, 82, 84, 86]
    for q in range(8):
        a(f"v_cmp_eq_u32 s[{KM[q]}:{KM[q]+1}], {q}, v8")
    a("s_mov_b32 s3, 0")
    for q in range(7, -1, -1):
        a(f"s_mov_b64 exec, s[{KM[q]}:{KM[q]+1}]")
        a(f"v_mbcnt_lo_u32_b32 v9, s{KM[q]}, 0")
        a(f"v_mbcnt_hi_u32_b32 v9, s{KM[q]+1}, v9")
        a("v_add_u32 v9, s3, v9")
        a(f"s_bcnt1_i32_b64 s4, s[{KM[q]}:{KM[q]+1}]")
        a("s_add_u32 s3, s3, s4")
    a("s_mov_b64 exec, -1")
    a("v_lshlrev_b32 v9, 2, v9")
    a(f"v_lshl_add_u32 v8, v10, 8, v{LANE}")
    a("ds_permute_b32 v8, v9, v8")
    a("v_and_b32 v9, 1, v7")
    a("v_mul_u32_u24 v9, 7, v9")
    a(f"v_xor_b32 v9, s{S_WAVE}, v9")
    a("v_lshl_add_u32 v9, v7, 3, v9")
    a("v_lshlrev_b32 v9, 2, v9")
    a(f"v_and_b32 v6, 1, v{V_G}")
    a("v_mul_u32_u24 v6, 7, v6")
    a(f"v_xor_b32 v6, s{S_WAVE}, v6")
    a(f"v_lshl_add_u32 v6, v{V_G}, 3, v6")
    a("v_lshlrev_b32 v6, 2, v6")
    a(f"s_lshl_b32 s3, s{S_WAVE}, 2")
    a("s_add_u32 s3, s3, 128")
    a("v_mov_b32 v1, s3")
    bgop(1)
    a("s_waitcnt lgkmcnt(0)")
    a("ds_bpermute_b32 v11, v9, v8")
    a("ds_bpermute_b32 v6, v6, v8")
    a("ds_bpermute_b32 v1, v1, v8")
    for r in range(NR):
        a(f"s_mov_b64 exec, {M(r)}")
        a("s_cbranch_execz K2_s_done")
        a(f"v_lshrrev_b32 v8, 18, v{TG+r}")
        a(f"v_lshl_add_u32 v8, v8, 6, v{PR[r]}")
        a(f"v_add_u32 v8, v8, v{RK+r}")
        a(f"v_lshlrev_b32 v9, 4, v8")
        a(f"v_lshlrev_b32 v8, 2, v8")
        a(f"v_and_b32 v{TG+r}, 0x3fff, v{TG+r}")
        a(f"v_lshlrev_b32 v{TG+r}, 10, v{TG+r}")
        a(f"ds_write_b128 v9, v[{RB+4*r}:{RB+4*r+3}] offset:{L_REC}")
        a(f"ds_write_b32 v8, v{TG+r} offset:{L_SOFF}")
    a("K2_s_done:")
    a("s_mov_b64 exec, -1")
    bgop(1)
    a("v_mov_b32 v12, 0")
    a("v_mov_b32 v13, 0")
    a(f"s_mov_b32 s{S_PASS}, 0")
    a("K2_sched:")
    a(f"v_and_b32 v14, 15, v{LANE}")
    a(f"s_lshl_b32 s3, s{S_WAVE}, 6")
    a("v_lshl_add_u32 v15, v7, 2, s3")
    a("s_waitcnt lgkmcnt(0)")
    a(f"ds_write_b32 v15, v11 offset:{L_NODE}")
    BS = [(6, 12, 16, 17, 18), (1, 13, 19, 20, 21)]
    for (vi, vd, vq, vt, ve) in BS:
        a(f"v_and_b32 v{vt}, 0xff, v{vi}")
        a(f"v_lshl_add_u32 v{vt}, v{vt}, 4, v14")
        a(f"ds_read_u8 v{vt}, v{vt} offset:{L_PRE+1}")
        a(f"v_lshrrev_b32 v{vq}, 8, v{vi}")
        a(f"v_add_u32 v{vq}, 3, v{vq}")
        a(f"v_lshrrev_b32 v{vq}, 2, v{vq}")
    a(f"s_cmp_eq_u32 s{S_PASS}, 0")
    a("s_cselect_b32 s4, 15, 0")
    a("v_cmp_le_u32 vcc, s4, v14")
    a("s_waitcnt lgkmcnt(0)")
    for (vi, vd, vq, vt, ve) in BS:
        a(f"v_add_u32 v{vt}, 1, v{vt}")
        a(f"v_lshrrev_b32 v{vt}, 2, v{vt}")
        a(f"v_cndmask_b32 v{vt}, v{vt}, v{vq}, vcc")
        a(f"v_sub_u32 v{vt}, v{vt}, v14")
        a(f"v_add_u32 v{ve}, 1, v{vd}")
        a(f"v_min_i32 v{vt}, v{vt}, v{ve}")
    for sh in (1, 2, 4, 8):
        a("s_nop 0")
        for (vi, vd, vq, vt, ve) in BS:
            a(f"v_min_i32_dpp v{vt}, v{vt}, v{vt} row_shr:{sh} row_mask:0xf bank_mask:0xf")
    for (vi, vd, vq, vt, ve) in BS:
        a(f"v_subrev_u32 v{ve}, 15, v{vq}")
        a(f"v_max_i32 v{vt}, v{vt}, v{ve}")
    for (vi, vd, vq, vt, ve) in BS:
        a(f"v_add_u32 v{ve}, v{vt}, v14")
    a("s_nop 0")
    for (vi, vd, vq, vt, ve) in BS:
        a(f"v_mov_b32_dpp v{vd}, v{ve} row_shr:1 row_mask:0xf bank_mask:0xf")
    a(f"s_lshl_b32 s4, s{S_WAVE}, 7")
    a("v_lshl_add_u32 v15, v14, 3, s4")
    for k_, (vi, vd, vq, vt, ve) in enumerate(BS):
        a(f"v_sub_u32 v{vt}, v{ve}, v{vd}")
        a(f"v_lshl_or_b32 v{vt}, v{vt}, 7, v{vd}")
        if k_ == 0:
            a(f"v_add_u32 v{vi}, v15, v{V_G}")
            a(f"ds_write_b8 v{vi}, v{vt} offset:{L_TAB}")
        else:
            a(f"ds_write_b8 v15, v{vt} offset:{L_TAB+4}")
    a(f"v_add_u32 v15, s4, v{LANE}")
    a(f"ds_read_u8 v12, v15 offset:{L_TAB}")
    a(f"ds_read_u8 v13, v15 offset:{L_TAB+64}")
    a("v_and_b32 v16, 0xff, v11")
    a("v_lshlrev_b32 v16, 6, v16")
    a("v_lshrrev_b32 v10, 8, v11")
    a("v_cmp_gt_u32 vcc, 5, v7")
    a("v_mov_b32 v20, 0")
    a("v_mov_b32 v21, 0")
    a("v_cndmask_b32 v10, 0, v10, vcc")
    a("s_waitcnt lgkmcnt(0)")
    a("v_cndmask_b32 v12, 0, v12, vcc")
    a("v_cndmask_b32 v13, 0, v13, vcc")
    a(f"v_cmp_lt_u32 s[{S_S0}:{S_S0+1}], 64, v12")
    a(f"v_cmp_lt_u32 s[{S_S1}:{S_S1+1}], 64, v13")
    a("v_and_b32 v12, 0x7f, v12")
    a("v_and_b32 v13, 0x7f, v13")
    a("v_lshl_add_u32 v12, v12, 2, v16")
    a("v_lshl_add_u32 v13, v13, 2, v16")
    a(f"s_bcnt1_i32_b64 s4, s[{S_S0}:{S_S0+1}]")
    a(f"s_bcnt1_i32_b64 s{S_LEFT}, s[{S_S1}:{S_S1+1}]")
    a(f"s_add_u32 s{S_LEFT}, s{S_LEFT}, s4")
    a(f"s_lshl_b32 s5, s{S_WAVE}, 7")
    a("s_add_u32 s4, s4, s5")
    a(f"v_mbcnt_lo_u32_b32 v17, s{S_S0}, 0")
    a(f"v_mbcnt_hi_u32_b32 v17, s{S_S0+1}, v17")
    a(f"v_mbcnt_lo_u32_b32 v18, s{S_S1}, 0")
    a(f"v_mbcnt_hi_u32_b32 v18, s{S_S1+1}, v18")
    a("v_add_lshl_u32 v17, s5, v17, 2")
    a("v_add_lshl_u32 v18, s4, v18, 2")
    a(f"s_mov_b64 exec, s[{S_S0}:{S_S0+1}]")
    a(f"ds_write_b32 v17, v12 offset:{L_LST}")
    a(f"s_mov_b64 exec, s[{S_S1}:{S_S1+1}]")
    a(f"ds_write_b32 v18, v13 offset:{L_LST}")
    a("s_mov_b64 exec, -1")
    a("s_mov_b32 s3, s5")
    a(f"v_lshrrev_b32 v14, 3, v{LANE}")
    a("v_add_u32 v15, 3, v10")
    a("v_and_b32 v15, 0xfc, v15")
    a("v_add_u32 v14, v10, v14")
    a("v_cmp_lt_u32 vcc, v14, v15")
    a("v_add_u32 v14, v16, v14")
    a(f"v_add_u32 v15, {DUMMY}, v7")
    a(f"v_subrev_u32 v19, 24, v{LANE}")
    a(f"v_cmp_gt_u32 s[{S_SAVE}:{S_SAVE+1}], 4, v19")
    a(f"v_cmp_gt_u32 s[4:5], s{S_LEFT}, v{LANE}")
    a(f"v_add_u32 v19, 64, v{LANE}")
    a(f"v_cmp_gt_u32 s[6:7], s{S_LEFT}, v19")
    a(f"v_add_lshl_u32 v17, s3, v{LANE}, 2")
    a("v_mov_b32 v22, 0")
    a("v_mov_b32 v23, 0")
    a(f"v_cndmask_b32 v14, v14, v15, s[{S_SAVE}:{S_SAVE+1}]")
    a(f"ds_read_b32 v{V_LIST}, v17 offset:{L_LST}")
    a(f"ds_read_b32 v{V_LIST1}, v17 offset:{L_LST+256}")
    a(f"s_or_b64 exec, vcc, s[{S_SAVE}:{S_SAVE+1}]")
    a("v_lshlrev_b32 v15, 4, v14")
    a("v_lshlrev_b32 v14, 2, v14")
    a(f"v_mov_b32 v19, {OOB}")
    a(f"ds_write_b128 v15, v[20:23] offset:{L_REC}")
    a(f"ds_write_b32 v14, v19 offset:{L_SOFF}")
    a("s_mov_b64 exec, -1")
    a(f"v_mov_b32 v19, {DUMMY}")
    a("s_waitcnt lgkmcnt(0)")
    a(f"v_cndmask_b32 v{V_LIST}, v19, v{V_LIST}, s[4:5]")
    a(f"v_cndmask_b32 v{V_LIST1}, v19, v{V_LIST1}, s[6:7]")
    a("s_barrier")
    stamp(4)
    a(f"s_cmp_lg_u32 s{S_PASS}, 0")
    a("s_cbranch_scc1 K2_nobg")
    bgop(100)
    a("K2_nobg:")
    def rd_soff(se):
        return [f"v_add_lshl_u32 v{V_T}, s{se}, v{V_G}, 2", f"ds_read_b32 v{V_SOFF}, v{V_T} offset:{L_SOFF}"]
    def rd_rec(se):
        return [f"v_add_lshl_u32 v{V_T2}, s{se}, v{V_G}, 4", f"ds_read_b128 v[{RECV}:{RECV+3}], v{V_T2} offset:{L_REC}"]
    for q in range(NXB):
        a(f"v_readlane_b32 s{4+q}, v{V_LIST}, {q}")
    a(f"s_waitcnt vmcnt({NBG})")
    a(f"s_mov_b32 s{S_IDX}, {NXB}")
    a(f"s_mov_b32 s{S_IDX2}, 1")
    a(f"s_mov_b32 s{S_RC}, 0")
    if PRIO == 2:
        a(f"s_cmp_lt_u32 s{S_WAVE}, 4")
        a("s_cbranch_scc1 K2_pr_done")
        a("s_setprio 1")
        a("K2_pr_done:")
    for x in rd_soff(4): a(x)
    for x in rd_rec(4): a(x)
    for q in range(NXB - 1):
        a(f"s_cmp_gt_u32 s{S_LEFT}, {q}")
        a("s_cbranch_scc0 K2_pre_done")
        a("s_waitcnt lgkmcnt(1)" if q == 0 else "s_waitcnt lgkmcnt(0)")
        addr_fix()
        for x in ld_x(q): a(x)
        for x in rd_soff(5 + q): a(x)
    a("K2_pre_done:")
    a(f"s_cmp_lg_u32 s{S_LEFT}, 0")
    a("s_cbranch_scc1 K2_t0")
    a("s_waitcnt vmcnt(0)")
    a("s_branch K2_t0")
    NS = 5 * NXB
    for s_ in range(NS):
        i = s_ % 5; b = s_ % NXB
        if i == 0:
            a(f"K2_re{s_}:")
            a(f"s_add_u32 s{S_RC}, s{S_RC}, 1")
            if PRIO == 1:
                a(f"s_lshr_b32 s{S_T}, s{S_WAVE}, 2")
                a(f"s_add_u32 s{S_T}, s{S_T}, s{S_RC}")
                a("s_setprio 0")
                a(f"s_bitcmp1_b32 s{S_T}, 0")
                a(f"s_cbranch_scc0 K2_pr{s_}")
                a("s_setprio 1")
                a(f"K2_pr{s_}:")
            a(f"s_lshr_b64 s[{S_S0}:{S_S0+1}], s[{S_S0}:{S_S0+1}], 8")
            a(f"s_and_b32 s{S_T}, s{S_RC}, {BARK-1}")
            a(f"s_cbranch_scc0 K2_rx{s_}")
            t = [f"K2_rx{s_}:",
                 f"s_cmp_eq_u32 s{S_RC}, 16", "s_cbranch_scc1 K2_loop_done",
                 f"s_cmp_lg_u32 s{S_RC}, 8", f"s_cbranch_scc1 K2_ry{s_}",
                 f"s_mov_b64 s[{S_S0}:{S_S0+1}], s[{S_S1}:{S_S1+1}]",
                 f"s_cmp_lg_u32 s{S_IDX2}, 1", f"s_cbranch_scc1 K2_ry{s_}",
                 "s_waitcnt vmcnt(0)",
                 f"K2_ry{s_}:",
                 f"s_cmp_lt_u32 s{S_IDX2}, 20", f"s_cbranch_scc1 K2_rz{s_}",
                 "s_mov_b64 exec, 0xfffff", f"v_mov_b32 v{V_LIST}, v{V_LIST1}", "s_mov_b64 exec, -1",
                 f"K2_rz{s_}:",
                 f"s_cmp_lg_u32 s{S_PASS}, 0", f"s_cbranch_scc1 K2_t{s_}",
                 "s_barrier", f"s_branch K2_t{s_}"]
            tail_code.extend(t)
        a(f"K2_t{s_}:")
        a(f"s_bitcmp1_b32 s{S_S0}, {i}")
        nxt = (s_ + 16) % NS
        a(f"s_cbranch_scc0 K2_{'re' if nxt % 5 == 0 else 't'}{nxt}")
        a(f"v_readlane_b32 s{S_EB}, v{V_LIST}, s{S_IDX}")
        a(f"v_readlane_b32 s{S_EA}, v{V_LIST}, s{S_IDX2}")
        a(f"s_sub_u32 s{S_LEFT}, s{S_LEFT}, 1")
        a("s_waitcnt lgkmcnt(0)")
        a(f"s_cmp_lt_u32 s{S_LEFT}, {NXB-1}")
        lds_ = ld_x((b + NXB - 1) % NXB)
        cnt_ = [0]
        def gl(n=1):
            cnt_[0] += 1
            a(f"s_cbranch_scc1 K2_nl{s_}_{cnt_[0]}")
            for _ in range(n): a(lds_.pop(0).replace(f"v{V_SOFF},", f"v{V_T},"))
            a(f"K2_nl{s_}_{cnt_[0]}:")
        a(f"v_add_u32 v{V_T}, v{V_SOFF}, v{V_COL16}")
        if NOMEM == 1: a(f"v_mov_b32 v{V_T}, {OOB}")
        pre = {0: 4, 1: 2, 2: 1, 3: 0}[ILV]
        if ILV == 0: gl(4)
        if ILV in (1, 2): gl(1)
        for u in range(4 if XP != 3 else 0):
            a(f"v_dot2_f32_bf16 v{AT+u}, v{CG+2*u}, v{RECV}, 0")
        a(f"v_perm_b32 v{AOP}, v{RECV+3}, v{RECV+2}, v{V_EASEL}")
        for u in range(4 if XP != 3 else 0):
            a(f"v_dot2_f32_bf16 v{AT+u}, v{CG+2*u+1}, v{RECV+1}, v{AT+u}")
        a(f"v_add_lshl_u32 v{V_T2}, s{S_EB}, v{V_G}, 2")
        a(f"ds_read_b32 v{V_SOFF}, v{V_T2} offset:{L_SOFF}")
        for x in rd_rec(S_EA): a(x)
        if ILV == 1: gl(1)
        for u in range(4):
            a(f"v_mul_f32 v{AT+u}, v{AT+u}, v{AOP}")
        a(f"v_cvt_pk_bf16_f32 v{AOP}, v{AT}, v{AT+1}")
        a(f"v_cvt_pk_bf16_f32 v{AOP+1}, v{AT+2}, v{AT+3}")
        a(f"s_cbranch_scc1 K2_wx{s_}")
        a(f"s_waitcnt vmcnt({4*(NXB-2)+pre})")
        a(f"K2_wr{s_}:")
        t = [f"K2_wx{s_}:", "s_waitcnt vmcnt(8)", f"s_cmp_eq_u32 s{S_LEFT}, 2", f"s_cbranch_scc1 K2_wr{s_}",
             "s_waitcnt vmcnt(4)", f"s_cmp_eq_u32 s{S_LEFT}, 1", f"s_cbranch_scc1 K2_wr{s_}",
             "s_waitcnt vmcnt(0)", f"s_cmp_eq_u32 s{S_LEFT}, 0", f"s_branch K2_wr{s_}"]
        tail_code.extend(t)
        def mf(j):
            if XP == 1: return
            o = OPS + 2 * (j % 3); c = ACC + 32 * i + 4 * j
            a(f"v_mfma_f32_16x16x16_bf16 v[{c}:{c+3}], v[{AOP}:{AOP+1}], v[{o}:{o+1}], v[{c}:{c+3}]")
        after = {0: [], 1: [2, 5], 2: [1, 3, 6], 3: [0, 2, 4, 6]}[ILV]
        for j in range(8):
            m = j >> 1; sel = S_SELHI if j & 1 else S_SELLO
            o = OPS + 2 * (j % 3)
            x = lambda u: XB + 16 * b + 4 * u + m
            if not NOCOMP:
                if XP != 2:
                    a(f"v_perm_b32 v{o}, v{x(1)}, v{x(0)}, s{sel}")
                    a(f"v_perm_b32 v{o+1}, v{x(3)}, v{x(2)}, s{sel}")
                if j > 0: mf(j - 1)
            if j in after: gl(1)
        a(f"s_add_u32 s{S_IDX}, s{S_IDX}, 1")
        a(f"s_add_u32 s{S_IDX2}, s{S_IDX2}, 1")
        if not NOCOMP: mf(7)
    a("s_branch K2_re0")
    for x in tail_code: a(x)
    a("K2_loop_done:")
    a(f"s_cmp_lg_u32 s{S_MODE}, 0")
    a("s_cbranch_scc1 K2_slow_next")
    a("K2_epi:")
    stamp(5)
    a("s_waitcnt vmcnt(0) lgkmcnt(0)")
    lane_id(LANE)
    a(f"s_lshl_b32 s3, s{S_WAVE}, 6")
    a(f"v_and_b32 v6, 15, v{LANE}")
    a("v_and_b32 v5, 12, v6")
    a("v_add_u32 v5, s3, v5")
    a(f"ds_read_b32 v16, v5 offset:{L_NODE}")
    a("v_mov_b32 v5, s3")
    a(f"ds_read_b32 v17, v5 offset:{L_NODE+16}")
    a(f"v_lshlrev_b32 v1, 3, v{V_COL16}")
    a(f"v_add_u32 v1, {L_WR}, v1")
    for j in range(8):
        a(f"ds_read_b128 v[{XB+4*j}:{XB+4*j+3}], v1 offset:{16*j}")
    a(f"v_lshlrev_b32 v1, 4, v{LANE}")
    a(f"v_add_u32 v1, {L_WT}, v1")
    a(f"s_mul_i32 s4, s{S_WAVE}, {20*AGG_RS}")
    a(f"s_add_u32 s4, s4, {L_AGG}")
    a(f"v_mul_u32_u24 v2, {AGG_RS}, v{V_G}")
    a(f"v_add3_u32 v2, v2, v{V_COL16}, s4")
    a(f"v_mul_u32_u24 v7, {AGG_RS}, v6")
    a(f"v_lshl_add_u32 v7, v{V_G}, 4, v7")
    a("v_add_u32 v7, s4, v7")
    AW = [XB + 32, ACC, ACC + 32, ACC + 64]
    def rd_a(m):
        for x in range(8):
            a(f"ds_read_b128 v[{AW[m]+4*x}:{AW[m]+4*x+3}], v1 offset:{8192*m + 1024*x}")
    a("s_waitcnt lgkmcnt(0)")
    rd_a(0)
    for i in range(5):
        for j in range(8):
            c = ACC + 32 * i + 4 * j; w = XB + 4 * j
            a(f"v_mul_f32 v{c}, v{c}, v{w}")
        for kk in range(1, 4):
            for j in range(8):
                c = ACC + 32 * i + 4 * j; w = XB + 4 * j
                a(f"v_fmac_f32 v{c}, v{c+kk}, v{w+kk}")
        o = 8 + 4 * (i % 2)
        for jj in range(4):
            c = ACC + 32 * i + 8 * jj
            a(f"v_cvt_pk_bf16_f32 v{o+jj}, v{c}, v{c+4}")
        a(f"ds_write_b128 v2, v[{o}:{o+3}] offset:{i*4*AGG_RS}")
        if i < 3: rd_a(i + 1)
    stamp(6)
    BB = XB
    for ct in range(2):
        for t in range(4):
            r = BB + 16 * ct + 4 * t
            a(f"ds_read_b128 v[{r}:{r+3}], v7 offset:{ct*16*AGG_RS + t*64}")
    a("v_and_b32 v5, 3, v6")
    a("v_lshlrev_b32 v5, 8, v5")
    a(f"v_lshl_add_u32 v5, v{V_G}, 4, v5")
    a("v_and_b32 v16, 0xff, v16")
    a("v_and_b32 v17, 0xff, v17")
    a("v_lshl_add_u32 v16, v16, 10, v5")
    a("v_lshl_add_u32 v17, v17, 10, v5")
    a(f"v_mov_b32 v18, {OOB}")
    a("v_cmp_gt_u32 vcc, 4, v6")
    a(f"s_mul_i32 s6, s{S_B}, {NPB*1024}")
    a("s_nop 0")
    a("v_cndmask_b32 v17, v18, v17, vcc")
    DD = ACC + 96
    units = [(ct, m) for ct in range(2) for m in range(4)]
    def fin(u):
        ct, m = units[u]
        d = DD + 8 * u
        for x in range(4):
            a(f"v_cvt_pk_bf16_f32 v{d+x}, v{d+2*x}, v{d+2*x+1}")
        a(f"buffer_store_dwordx4 v[{d}:{d+3}], v{16+ct}, s[{S_OUT}:{S_OUT+3}], s6 offen offset:{64*m}")
    for u, (ct, m) in enumerate(units):
        if u == 0: a("s_waitcnt lgkmcnt(4)")
        if u == 4: a("s_waitcnt lgkmcnt(0)")
        for t in range(4):
            r = BB + 16 * ct + 4 * t
            for hh in range(2):
                d = DD + 8 * u + 4 * hh; w = AW[m] + 16 * hh + 4 * t
                c = "0" if t == 0 else f"v[{d}:{d+3}]"
                a(f"v_mfma_f32_16x16x32_bf16 v[{d}:{d+3}], v[{w}:{w+3}], v[{r}:{r+3}], {c}")
        if u > 0: fin(u - 1)
    a("s_nop 7")
    fin(7)
    stamp(7)
    if STAMP: a("s_waitcnt vmcnt(0)")
    stamp(8)
    stamp_flush(1, 8, 9, S_WAVE, 1)
    a("K2_end:")
    a("s_endpgm")
    a("K2_slow:")
    for grp in bg_slow:
        if "lds" in grp[-1]:
            for x in grp: a(x)
    a(f"s_mov_b32 s{S_MODE}, 1")
    a(f"s_mov_b32 s{S_WIN}, 0")
    a(f"v_lshlrev_b32 v8, 3, v{LANE}")
    a(f"s_lshl_b32 s3, s{S_B}, 11")
    a(f"s_add_u32 s3, s3, {OFFS_OFF}")
    for h in range(4):
        a(f"buffer_load_dword v{10+2*h}, v8, s[{S_WS}:{S_WS+3}], s3 offen offset:{512*h} {SC}")
    a("s_waitcnt vmcnt(0)")
    for h in range(4):
        a(f"v_bfe_u32 v{10+2*h}, v{10+2*h}, 11, 11")
    a("v_max_u32 v10, v10, v12")
    a("v_max3_u32 v10, v10, v14, v16")
    wave_scan(10, "v_max_u32_dpp")
    a("s_nop 1")
    a(f"v_readlane_b32 s{S_MAXC}, v10, 63")
    a("K2_slow_win:")
    a(f"s_cmp_ge_u32 s{S_WIN}, s{S_MAXC}")
    a("s_cbranch_scc1 K2_slow_fin")
    def seg_setup():
        lane_id(LANE)
        a(f"s_lshl_b32 s3, s{S_WAVE}, 6")
        a(f"v_add_u32 v{TID}, s3, v{LANE}")
        a(f"v_lshrrev_b32 v8, 1, v{TID}")
        a(f"v_and_b32 v9, 1, v{TID}")
        a("v_lshlrev_b32 v10, 3, v8")
        a(f"s_lshl_b32 s3, s{S_B}, 11")
        a(f"s_add_u32 s3, s3, {OFFS_OFF}")
        a(f"buffer_load_dword v12, v10, s[{S_WS}:{S_WS+3}], s3 offen {SC}")
        a(f"v_mul_u32_u24 v10, {EPC}, v8")
        a(f"v_add3_u32 v10, v10, v9, s{S_WIN}")
        a("s_waitcnt vmcnt(0)")
        a("v_bfe_u32 v11, v12, 11, 11")
        a("v_and_b32 v12, 0x7ff, v12")
        a("v_add_u32 v10, v10, v12")
        a("v_sub_u32 v13, v11, v9")
        a(f"v_subrev_u32 v13, s{S_WIN}, v13")
        a("v_lshlrev_b32 v14, 4, v10")
        a("v_lshlrev_b32 v10, 2, v10")
    seg_setup()
    for r in range(NR):
        a(f"v_cmp_lt_i32 {M(r)}, {2*r}, v13")
    a("K2_slow_batch:")
    a("s_waitcnt vmcnt(0) lgkmcnt(0)")
    a("s_barrier")
    seg_setup()
    a(f"v_lshlrev_b32 v8, 2, v{TID}")
    a("v_mov_b32 v9, 0")
    a(f"v_cmp_gt_u32 vcc, {NPB*4+4}, v{TID}")
    a(f"s_and_saveexec_b64 s[{S_SAVE}:{S_SAVE+1}], vcc")
    a(f"ds_write_b32 v8, v9 offset:{L_HIST}")
    a("s_mov_b64 exec, -1")
    a("s_waitcnt lgkmcnt(0)")
    a("s_barrier")
    a("v_mov_b32 v17, 1")
    a(f"s_mov_b32 s3, {TAG_OFF}")
    a(f"s_mov_b64 s[{S_SAVE}:{S_SAVE+1}], 0")
    for r in range(NR):
        a(f"s_mov_b64 exec, {M(r)}")
        a(f"s_cbranch_execz K2_slow_skip{r}")
        a(f"buffer_load_dword v16, v10, s[{S_WS}:{S_WS+3}], s3 offen offset:{8*r} {SC}")
        a(f"buffer_load_dwordx4 v[{XB}:{XB+3}], v14, s[{S_WS}:{S_WS+3}], 0 offen offset:{32*r} {SC}")
        a("s_waitcnt vmcnt(0)")
        a("v_lshrrev_b32 v8, 18, v16")
        a("v_lshlrev_b32 v9, 4, v8")
        a(f"ds_add_rtn_u32 v15, v9, v17 offset:{L_HIST}")
        a("v_and_b32 v16, 0x3fff, v16")
        a("v_lshlrev_b32 v16, 10, v16")
        a("s_waitcnt lgkmcnt(0)")
        a(f"v_cmp_gt_u32 vcc, {CAPN}, v15")
        a(f"s_andn2_b64 {M(r)}, {M(r)}, vcc")
        a(f"s_or_b64 s[{S_SAVE}:{S_SAVE+1}], s[{S_SAVE}:{S_SAVE+1}], {M(r)}")
        a("s_mov_b64 exec, vcc")
        a("v_lshl_add_u32 v8, v8, 6, v15")
        a("v_lshlrev_b32 v9, 4, v8")
        a("v_lshlrev_b32 v8, 2, v8")
        a(f"ds_write_b128 v9, v[{XB}:{XB+3}] offset:{L_REC}")
        a(f"ds_write_b32 v8, v16 offset:{L_SOFF}")
        a("s_waitcnt lgkmcnt(0)")
        a(f"K2_slow_skip{r}:")
    a("s_mov_b64 exec, -1")
    a(f"v_mov_b32 v9, {L_FLAG}")
    a(f"s_cmp_eq_u64 s[{S_SAVE}:{S_SAVE+1}], 0")
    a("s_cbranch_scc1 K2_slow_nof")
    a("ds_write_b32 v9, v17")
    a("K2_slow_nof:")
    a("s_waitcnt lgkmcnt(0)")
    a("s_barrier")
    a(f"v_and_b32 v7, 7, v{LANE}")
    a(f"s_mul_i32 s3, s{S_WAVE}, 5")
    a("v_add_u32 v11, s3, v7")
    a(f"v_add_u32 v6, s3, v{V_G}")
    a("s_add_u32 s3, s3, 4")
    a("v_mov_b32 v1, s3")
    for (vn, vt) in ((11, 12), (6, 13), (1, 14)):
        a(f"v_lshlrev_b32 v{vt}, 4, v{vn}")
        a(f"ds_read_b32 v{vt}, v{vt} offset:{L_HIST}")
    a("ds_read_b32 v9, v9")
    a("s_waitcnt lgkmcnt(0)")
    for (vn, vt) in ((11, 12), (6, 13), (1, 14)):
        a(f"v_min_u32 v{vt}, {CAPN}, v{vt}")
        a(f"v_lshl_add_u32 v{vn}, v{vt}, 8, v{vn}")
    a(f"v_readfirstlane_b32 s{S_MODE}, v9")
    a("v_mov_b32 v12, 0")
    a("v_mov_b32 v13, 0")
    a(f"s_add_u32 s{S_MODE}, s{S_MODE}, 1")
    a(f"s_mov_b32 s{S_PASS}, 1")
    a("s_branch K2_sched")
    a("K2_slow_next:")
    a(f"s_cmp_eq_u32 s{S_MODE}, 2")
    a("s_cbranch_scc1 K2_slow_batch")
    a(f"s_add_u32 s{S_WIN}, s{S_WIN}, {2*NR}")
    a("s_waitcnt vmcnt(0) lgkmcnt(0)")
    a("s_branch K2_slow_win")
    a("K2_slow_fin:")
    a("s_branch K2_epi")
    a("F_spare:")
    a("s_load_dwordx4 s[52:55], s[0:1], 40")
    a("s_load_dwordx2 s[56:57], s[0:1], 56")
    a("s_cmp_gt_u32 s4, 3")
    a("s_cselect_b32 s3, 1, 0")
    a("s_sub_u32 s4, s4, s3")
    a("s_waitcnt lgkmcnt(0)")
    srd(24, 52, 128)
    srd(28, 54, 1024)
    srd(48, 56, 32768)
    srd(S_WS, 6, WS_USED)
    srd(S_DBG, 62, 256)
    a("s_mov_b32 s58, s4")
    a("v_lshrrev_b32 v1, 6, v0")
    a("s_nop 0")
    a(f"v_readfirstlane_b32 s{S_WAVE}, v1")
    a("s_nop 0")
    a(f"s_cmp_lg_u32 s{S_WAVE}, 0")
    a("s_cbranch_scc1 F_sp_nn")
    nonce_fetch()
    a("s_waitcnt vmcnt(0)")
    nonce_finish()
    a("s_mov_b32 s59, s4")
    a("F_sp_nn:")
    a("s_mov_b32 s4, s58")
    a("s_cmp_gt_u32 s4, 3")
    a("s_cbranch_scc1 F_sp_small")
    a("v_bfe_u32 v1, v0, 8, 1")
    a("v_bfe_u32 v2, v0, 6, 2")
    a("v_bfe_u32 v3, v0, 4, 2")
    a("v_bfe_u32 v4, v0, 2, 2")
    a("v_and_b32 v5, 3, v0")
    a("v_lshlrev_b32 v6, 13, v2")
    a("v_lshl_add_u32 v6, v3, 11, v6")
    a("v_lshl_add_u32 v6, v4, 4, v6")
    a("v_lshl_add_u32 v6, v1, 3, v6")
    a("v_lshl_add_u32 v6, v5, 1, v6")
    a("s_lshl_b32 s3, s4, 6")
    for q in range(8):
        a(f"buffer_load_ushort v{16+q}, v6, s[48:51], s3 offen offset:{q*256}")
    a("v_lshlrev_b32 v7, 4, v0")
    a("s_lshl_b32 s3, s4, 13")
    a(f"s_add_u32 s3, s3, {WT_OFF}")
    a("s_waitcnt vmcnt(0)")
    for q in range(4):
        a(f"v_lshl_or_b32 v{8+q}, v{17+2*q}, 16, v{16+2*q}")
    a(f"buffer_store_dwordx4 v[8:11], v7, s[{S_WS}:{S_WS+3}], s3 offen {SC}")
    a("s_branch F_sp_pub")
    a("F_sp_small:")
    a("s_cmp_eq_u32 s4, 4")
    a("s_cbranch_scc0 F_sp_cg")
    a("v_cmp_gt_u32 vcc, 128, v0")
    a("s_and_saveexec_b64 s[40:41], vcc")
    a("s_cbranch_execz F_sp_pub")
    a("v_lshlrev_b32 v2, 1, v0")
    for kk in range(4):
        a(f"buffer_load_ushort v{8+kk}, v2, s[28:31], 0 offen offset:{kk*256}")
    a("v_lshlrev_b32 v3, 4, v0")
    a(f"s_mov_b32 s3, {WR_OFF}")
    a("s_waitcnt vmcnt(0)")
    for kk in range(4):
        a(f"v_lshlrev_b32 v{8+kk}, 16, v{8+kk}")
    a(f"buffer_store_dwordx4 v[8:11], v3, s[{S_WS}:{S_WS+3}], s3 offen {SC}")
    a("s_branch F_sp_pub")
    a("F_sp_cg:")
    a("v_cmp_gt_u32 vcc, 32, v0")
    a("s_and_saveexec_b64 s[40:41], vcc")
    a("s_cbranch_execz F_sp_pub")
    a("v_lshrrev_b32 v2, 3, v0")
    a("v_bfe_u32 v3, v0, 1, 2")
    a("v_and_b32 v4, 1, v0")
    a("v_lshlrev_b32 v5, 5, v3")
    a("v_lshl_add_u32 v5, v4, 4, v5")
    a("v_lshl_add_u32 v5, v2, 1, v5")
    a("buffer_load_ushort v8, v5, s[24:27], 0 offen")
    a("buffer_load_ushort v9, v5, s[24:27], 0 offen offset:8")
    a("v_lshlrev_b32 v6, 2, v0")
    a(f"s_mov_b32 s3, {CG_OFF}")
    a("s_waitcnt vmcnt(0)")
    a("v_lshl_or_b32 v8, v9, 16, v8")
    a(f"buffer_store_dword v8, v6, s[{S_WS}:{S_WS+3}], s3 offen {SC}")
    a("F_sp_pub:")
    a("s_mov_b64 exec, -1")
    a(f"s_add_u32 s4, s4, {P}")
    a("s_lshl_b32 s4, s4, 3")
    a(f"s_add_u32 s4, s4, {OFFS_OFF}")
    a("s_waitcnt vmcnt(0)")
    a("s_barrier")
    a(f"s_cmp_lg_u32 s{S_WAVE}, 0")
    a("s_cbranch_scc1 F_sp_end")
    a("s_lshl_b32 s3, s59, 22")
    a("v_mov_b32 v8, s3")
    a("v_mov_b32 v9, s59")
    a("v_lshlrev_b32 v2, 13, v0")
    for e in range(4):
        a(f"buffer_store_dwordx2 v[8:9], v2, s[{S_WS}:{S_WS+3}], s4 offen {SC}")
        a("s_add_u32 s4, s4, 2048")
    a("F_sp_end:")
    a("s_endpgm")
    a("K2_code_end:")
    a("s_endpgm")

def gen_report():
    k = "rep_kernel"
    a(f".globl {k}\n.p2align 8\n.type {k},@function\n{k}:")
    a("s_cmp_lg_u32 s2, 0")
    a("s_cbranch_scc1 R_end")
    a("s_load_dwordx4 s[4:7], s[0:1], 72")
    a("s_waitcnt lgkmcnt(0)")
    def red(reg, op):
        wave_scan(reg, op)
    a("v_mov_b32 v10, -1")
    for r in range(11, 30): a(f"v_mov_b32 v{r}, 0")
    a("v_mov_b32 v14, -1")
    a("v_mov_b32 v20, -1")
    a(f"v_lshlrev_b32 v1, 6, v0")
    a(f"v_add_u32 v1, {DBG_OFF}, v1")
    for kx in range(19):
        a("global_load_dwordx4 v[2:5], v1, s[6:7]")
        a("global_load_dwordx4 v[6:9], v1, s[6:7] offset:16")
        a("s_waitcnt vmcnt(0)")
        a("v_min_u32 v10, v10, v2")
        a("v_max_u32 v11, v11, v3")
        a("v_max_u32 v12, v12, v5")
        a("v_max_u32 v13, v13, v8")
        a("v_add_u32 v1, 4096, v1")
    a(f"v_lshlrev_b32 v1, 6, v0")
    a(f"v_add_u32 v1, {DBG_OFF + (1<<20)}, v1")
    for kx in range(31):
        a("global_load_dwordx4 v[2:5], v1, s[6:7]")
        a("global_load_dwordx4 v[6:9], v1, s[6:7] offset:16")
        a("global_load_dword v30, v1, s[6:7] offset:32")
        a("s_waitcnt vmcnt(0)")
        a("v_min_u32 v14, v14, v2")
        a("v_max_u32 v15, v15, v2")
        a("v_max_u32 v16, v16, v3")
        a("v_max_u32 v17, v17, v4")
        a("v_max_u32 v18, v18, v5")
        a("v_max_u32 v19, v19, v6")
        a("v_min_u32 v20, v20, v7")
        a("v_max_u32 v21, v21, v7")
        a("v_max_u32 v22, v22, v8")
        a("v_max_u32 v23, v23, v9")
        a("v_max_u32 v24, v24, v30")
        a("v_add_u32 v1, 4096, v1")
    for r in range(10, 25):
        red(r, "v_min_u32_dpp" if r in (10, 14, 20) else "v_max_u32_dpp")
    a("s_memrealtime s[8:9]")
    a("s_waitcnt lgkmcnt(0)")
    a("v_mov_b32 v25, s8")
    a("s_mov_b32 exec_lo, 0")
    a("s_mov_b32 exec_hi, 0x80000000")
    a("v_mov_b32 v1, 0")
    for r in range(11, 26):
        a(f"v_sub_u32 v2, v{r}, v10")
        a(f"global_store_dword v1, v2, s[4:5] offset:{4*(r-11)}")
    a("R_end:")
    a("s_endpgm")

def kd(name, nv, ns):
    return f""".p2align 6
.amdhsa_kernel {name}
  .amdhsa_next_free_vgpr {nv}
  .amdhsa_next_free_sgpr {ns}
  .amdhsa_accum_offset {(nv+3)//4*4}
  .amdhsa_group_segment_fixed_size 0
  .amdhsa_kernarg_size 88
  .amdhsa_user_sgpr_count 2
  .amdhsa_user_sgpr_kernarg_segment_ptr 1
  .amdhsa_system_sgpr_workgroup_id_x 1
.end_amdhsa_kernel"""

def main():
    hdr = open("cdna_kernels/" + NAME + ".s.ref").read().split("\n")
    hdr = [l for l in hdr[:12] if l.startswith(";")]
    print("\n".join(hdr))
    if env("ASLIST", 0):
        print(f"; @launch kernel={NAME}_kernel grid=(256,1,1) block=({K2_T},1,1) lds={K2_LDS}")
    else:
        print(f"; @launch grid=(256,1,1) block=({K2_T},1,1) lds={K2_LDS}")
    print('.amdgcn_target "amdgcn-amd-amdhsa--gfx950"')
    print(".text")
    gen_k2()
    print("\n".join(("" if (l.endswith(":") or l.startswith(".")) else "    ") + l for l in out))
    print('.section .rodata,"a"')
    print(kd(NAME + "_kernel", 256, 102))

main()
```

```python
import sys, os

NAME = "gather_scatter__tensor_product_equiv_mace__graph"
N = 10000; E = 320000
P = 250; EPC = E // P
NB = 250; NPB = 40
NR = 10
CAPN = 64
env = lambda k, d: type(d)(os.environ.get(k, d))
STAMP = env("STAMP", 0)
STMOD = env("STMOD", "")
K2TOUCH = env("K2TOUCH", 1)
K1TOUCH = env("K1TOUCH", 0)
CODEPF = env("CODEPF", 1)
BAL = env("BAL", 1)
SC = "sc1"
OMOD = env("OMOD", "")
PSL = env("PSL", 2)
L_NONCE = 30720
TCH0 = env("TCH0", 0)
TCH1 = env("TCH1", 0)
XP = env("XP", 0)
ILV = env("ILV", 1)
PRIO = env("PRIO", 0)
ROT = env("ROT", 0)
NOCOMP = env("NOCOMP", 0)
NOMEM = env("NOMEM", 0)

REC_OFF = 0
TAG_OFF = REC_OFF + E * 16
OFFS_OFF = TAG_OFF + E * 4
WT_OFF = OFFS_OFF + 256 * 2048
WR_OFF = WT_OFF + 32768
CG_OFF = WR_OFF + 2048
WS_USED = WT_OFF + 40960 + 4096
DBG_OFF = 8 << 20

out = []
def a(s): out.append(s)
def stamp(i):
    if STAMP: a(f"s_memrealtime s[{64+2*i}:{65+2*i}]")
def stamp_flush(kidx, wavesper, n, swave, vt=1):
    if not STAMP: return
    if STAMP == 3:
        a("s_mov_b64 exec, -1")
        a("s_waitcnt lgkmcnt(0)")
        a("v_mov_b32 v2, 0")
        for i in range(n):
            a(f"s_sub_u32 s92, s{64+2*i}, s93")
            a(f"s_add_u32 s92, s92, 1000")
            a(f"v_writelane_b32 v2, s92, {i}")
        a("v_mbcnt_lo_u32_b32 v1, -1, 0")
        a("v_lshlrev_b32 v1, 2, v1")
        a("v_sub_u32 v3, 0x100000, v2")
        a(f"s_mov_b64 exec, {(1<<n)-1}")
        a(f"buffer_atomic_umax v2, v1, s[88:91], 0 offen offset:4")
        a(f"s_mov_b64 exec, 0x3f")
        a(f"buffer_atomic_umax v3, v1, s[88:91], 0 offen offset:40")
        return
    a("s_mov_b64 exec, -1")
    a("s_load_dwordx2 s[94:95], s[0:1], 80")
    a(f"s_mul_i32 s92, s2, {wavesper}")
    a(f"s_add_u32 s92, s92, s{swave}")
    a(f"s_lshl_b32 s92, s92, 6")
    a(f"s_add_u32 s92, s92, {DBG_OFF + kidx*(1<<20)}")
    a(f"v_mov_b32 v{vt}, s92")
    a("s_waitcnt lgkmcnt(0)")
    a("s_mov_b64 exec, 1")
    for i in range(n):
        a(f"v_mov_b32 v{vt+1}, s{64+2*i}")
        a(f"global_store_dword v{vt}, v{vt+1}, s[94:95] offset:{4*i}")

def srd(d, base, nbytes):
    a(f"s_mov_b32 s{d}, s{base}")
    a(f"s_and_b32 s{d+1}, s{base+1}, 0xffff")
    a(f"s_mov_b32 s{d+2}, {nbytes}")
    a(f"s_mov_b32 s{d+3}, 0x20000")

def wave_scan(v, op="v_add_u32_dpp"):
    for sh in (1, 2, 4, 8):
        a("s_nop 1")
        a(f"{op} v{v}, v{v}, v{v} row_shr:{sh} row_mask:0xf bank_mask:0xf")
    a("s_nop 1")
    a(f"{op} v{v}, v{v}, v{v} row_bcast:15 row_mask:0xa bank_mask:0xf")
    a("s_nop 1")
    a(f"{op} v{v}, v{v}, v{v} row_bcast:31 row_mask:0xc bank_mask:0xf")

K1_T = 320
K1_HIST = 0; K1_OFFS = 1024; K1_TAG = 2048; K1_REC = K1_TAG + EPC * 4
K1_LDS = K1_REC + EPC * 16
NWPREP = 8
K1_GRID = P + NWPREP

def gen_k1():
    k = "part_kernel"
    a(f".globl {k}\n.p2align 8\n.type {k},@function\n{k}:")
    a(f"s_cmp_ge_u32 s2, {K1_GRID}")
    a("s_cbranch_scc1 K1_end")
    a(f"s_cmp_ge_u32 s2, {P}")
    a("s_cbranch_scc1 K1_wprep")
    stamp(0)
    a("s_load_dwordx4 s[4:7], s[0:1], 8")
    a("s_load_dwordx4 s[8:11], s[0:1], 24")
    a("s_load_dwordx2 s[12:13], s[0:1], 80")
    if K1TOUCH: a("s_load_dwordx2 s[44:45], s[0:1], 0")
    a("v_lshlrev_b32 v1, 4, v0")
    a("v_lshlrev_b32 v2, 5, v0")
    a("v_lshlrev_b32 v3, 2, v0")
    a("v_mov_b32 v4, 0")
    a(f"ds_write_b32 v3, v4 offset:{K1_HIST}")
    a(f"s_mul_i32 s14, s2, {EPC*4}")
    a(f"s_mul_i32 s15, s2, {EPC*8}")
    a("v_lshrrev_b32 v5, 6, v0")
    a("s_waitcnt lgkmcnt(0)")
    srd(20, 6, E * 4)
    a("buffer_load_dwordx4 v[8:11], v1, s[20:23], s14 offen")
    srd(16, 4, E * 4)
    a("buffer_load_dwordx4 v[12:15], v1, s[16:19], s14 offen")
    srd(24, 8, E * 8)
    srd(28, 10, E * 8)
    srd(32, 12, WS_USED)
    a("v_readfirstlane_b32 s47, v5")
    a("s_barrier")
    a("buffer_load_dwordx4 v[16:19], v2, s[24:27], s15 offen")
    a("buffer_load_dwordx4 v[20:23], v2, s[24:27], s15 offen offset:16")
    a("buffer_load_dwordx4 v[24:27], v2, s[28:31], s15 offen")
    a("buffer_load_dwordx4 v[28:31], v2, s[28:31], s15 offen offset:16")
    a("s_mov_b32 s40, 52429")
    a("s_mov_b32 s41, -40")
    a("s_mov_b32 s42, 6711")
    a("v_mov_b32 v5, 1")
    a("v_and_b32 v6, 63, v0")
    a("v_lshlrev_b32 v6, 4, v6")
    a("s_waitcnt vmcnt(5)")
    stamp(1)
    for e in range(4):
        a(f"v_mul_u32_u24 v{32+e}, s40, v{8+e}")
        a(f"v_lshrrev_b32 v{32+e}, 21, v{32+e}")
        a(f"v_lshlrev_b32 v{36+e}, 2, v{32+e}")
        a(f"ds_add_rtn_u32 v{40+e}, v{36+e}, v5 offset:{K1_HIST}")
    a("s_waitcnt vmcnt(4)")
    for e in range(4):
        a(f"v_mad_i32_i24 v{8+e}, v{32+e}, s41, v{8+e}")
        if ROT:
            a(f"v_lshl_add_u32 v{44+e}, v{32+e}, 3, 7")
            a(f"v_mul_u32_u24 v{44+e}, 4195, v{44+e}")
            a(f"v_lshrrev_b32 v{44+e}, 20, v{44+e}")
            a(f"v_mul_u32_u24 v{44+e}, {ROT}, v{44+e}")
        a(f"v_mul_u32_u24 v{32+e}, s42, v{12+e}")
        a(f"v_lshrrev_b32 v{32+e}, 22, v{32+e}")
        if ROT:
            a(f"v_add_u32 v{32+e}, v{32+e}, v{44+e}")
            a(f"v_and_b32 v{32+e}, 15, v{32+e}")
        a(f"v_lshl_add_u32 v{8+e}, v{8+e}, 4, v{32+e}")
        a(f"v_lshl_add_u32 v{12+e}, v{8+e}, 14, v{12+e}")
    a("s_waitcnt lgkmcnt(0)")
    a("s_barrier")
    stamp(2)
    if K1TOUCH:
        srd(36, 44, N * 1024)
        a(f"s_mul_i32 s46, s2, {K1_T*16}")
        for r in range(K1TOUCH):
            a("buffer_load_dwordx4 v[56:59], v1, s[36:39], s46 offen")
            a(f"s_add_u32 s46, s46, {P*K1_T*16}")
    a(f"ds_read_b128 v[44:47], v6 offset:{K1_HIST}")
    a("s_waitcnt lgkmcnt(0)")
    a("v_add_u32 v48, v44, v45")
    a("v_add3_u32 v48, v48, v46, v47")
    a("v_mov_b32 v49, v48")
    wave_scan(49)
    a("v_sub_u32 v52, v49, v48")
    a("v_add_u32 v53, v52, v44")
    a("v_add_u32 v54, v53, v45")
    a("v_add_u32 v55, v54, v46")
    a(f"ds_write_b128 v6, v[52:55] offset:{K1_OFFS}")
    for e in range(4):
        a(f"ds_read_b32 v{32+e}, v{36+e} offset:{K1_OFFS}")
    a("s_cmp_lg_u32 s47, 0")
    a("s_cbranch_scc1 K1_noffs")
    a("s_lshl_b32 s43, s2, 10")
    a(f"s_add_u32 s43, s43, {OFFS_OFF}")
    a(f"buffer_store_dwordx4 v[52:55], v6, s[32:35], s43 offen {STMOD}")
    a(f"s_waitcnt vmcnt({K1TOUCH+1}) lgkmcnt(0)")
    a("s_branch K1_go")
    a("K1_noffs:")
    a(f"s_waitcnt vmcnt({K1TOUCH}) lgkmcnt(0)")
    a("K1_go:")
    stamp(3)
    for e in range(4):
        a(f"v_add_u32 v{32+e}, v{32+e}, v{40+e}")
        a(f"v_lshlrev_b32 v{36+e}, 4, v{32+e}")
        a(f"v_add_u32 v{36+e}, {K1_REC}, v{36+e}")
        a(f"v_lshlrev_b32 v{32+e}, 2, v{32+e}")
        a(f"ds_write2_b64 v{36+e}, v[{16+2*e}:{17+2*e}], v[{24+2*e}:{25+2*e}] offset0:0 offset1:1")
        a(f"ds_write_b32 v{32+e}, v{12+e} offset:{K1_TAG}")
    a(f"s_mul_i32 s43, s2, {EPC*16}")
    a(f"s_add_u32 s46, s14, {TAG_OFF}")
    a("s_waitcnt lgkmcnt(0)")
    a("s_barrier")
    stamp(4)
    a(f"ds_read_b128 v[24:27], v1 offset:{K1_TAG}")
    for r in range(4):
        a(f"ds_read_b128 v[{8+4*r}:{11+4*r}], v1 offset:{K1_REC + r*K1_T*16}")
    a("s_waitcnt lgkmcnt(4)")
    a(f"buffer_store_dwordx4 v[24:27], v1, s[32:35], s46 offen {STMOD}")
    for r in range(4):
        a(f"s_waitcnt lgkmcnt({3-r})")
        a(f"buffer_store_dwordx4 v[{8+4*r}:{11+4*r}], v1, s[32:35], s43 offen {STMOD}")
        a(f"s_add_u32 s43, s43, {K1_T*16}")
    stamp(5)
    if STAMP: a("s_waitcnt vmcnt(0)")
    stamp(6)
    stamp_flush(0, 5, 7, 47, 40)
    a("s_endpgm")
    a("K1_wprep:")
    a("s_load_dwordx4 s[4:7], s[0:1], 40")
    a("s_load_dwordx2 s[8:9], s[0:1], 56")
    a("s_load_dwordx2 s[12:13], s[0:1], 80")
    a(f"s_sub_u32 s14, s2, {P}")
    a("s_waitcnt lgkmcnt(0)")
    srd(16, 4, 128)
    srd(20, 6, 1024)
    srd(24, 8, 32768)
    srd(32, 12, WS_USED)
    a("v_cmp_gt_u32 vcc, 256, v0")
    a("s_and_saveexec_b64 s[36:37], vcc")
    a("s_cbranch_execz K1_wsmall")
    a("v_bfe_u32 v2, v0, 6, 2")
    a("v_bfe_u32 v3, v0, 4, 2")
    a("v_bfe_u32 v4, v0, 2, 2")
    a("v_and_b32 v5, 3, v0")
    a("v_lshlrev_b32 v6, 13, v2")
    a("v_lshl_add_u32 v6, v3, 11, v6")
    a("v_lshl_add_u32 v6, v4, 4, v6")
    a("v_lshl_add_u32 v6, v5, 1, v6")
    a("s_lshr_b32 s15, s14, 1")
    a("s_lshl_b32 s15, s15, 6")
    a("s_and_b32 s38, s14, 1")
    a("s_lshl_b32 s38, s38, 3")
    a("s_add_u32 s15, s15, s38")
    for q in range(8):
        a(f"buffer_load_ushort v{16+q}, v6, s[24:27], s15 offen offset:{q*256}")
    a("v_lshlrev_b32 v7, 4, v0")
    a("s_lshl_b32 s15, s14, 12")
    a(f"s_add_u32 s15, s15, {WT_OFF}")
    a("s_waitcnt vmcnt(0)")
    for q in range(4):
        a(f"v_lshl_or_b32 v{8+q}, v{17+2*q}, 16, v{16+2*q}")
    a("buffer_store_dwordx4 v[8:11], v7, s[32:35], s15 offen")
    a("s_endpgm")
    a("K1_wsmall:")
    a("s_mov_b64 exec, s[36:37]")
    a("v_subrev_u32 v1, 256, v0")
    a("s_cmp_lt_u32 s14, 2")
    a("s_cbranch_scc0 K1_wcg")
    a("s_lshl_b32 s15, s14, 6")
    a("v_add_u32 v1, s15, v1")
    a("v_lshlrev_b32 v2, 1, v1")
    for kk in range(4):
        a(f"buffer_load_ushort v{8+kk}, v2, s[20:23], 0 offen offset:{kk*256}")
    a("v_lshlrev_b32 v3, 4, v1")
    a(f"s_mov_b32 s15, {WR_OFF}")
    a("s_waitcnt vmcnt(0)")
    for kk in range(4):
        a(f"v_lshlrev_b32 v{8+kk}, 16, v{8+kk}")
    a("buffer_store_dwordx4 v[8:11], v3, s[32:35], s15 offen")
    a("s_endpgm")
    a("K1_wcg:")
    a("s_cmp_eq_u32 s14, 2")
    a("s_cbranch_scc0 K1_wcode")
    a("v_cmp_gt_u32 vcc, 32, v1")
    a("s_and_saveexec_b64 s[36:37], vcc")
    a("v_lshrrev_b32 v2, 3, v1")
    a("v_bfe_u32 v3, v1, 1, 2")
    a("v_and_b32 v4, 1, v1")
    a("v_lshlrev_b32 v5, 5, v3")
    a("v_lshl_add_u32 v5, v4, 4, v5")
    a("v_lshl_add_u32 v5, v2, 1, v5")
    a("buffer_load_ushort v8, v5, s[16:19], 0 offen")
    a("buffer_load_ushort v9, v5, s[16:19], 0 offen offset:8")
    a("v_lshlrev_b32 v6, 2, v1")
    a(f"s_mov_b32 s15, {CG_OFF}")
    a("s_waitcnt vmcnt(0)")
    a("v_lshl_or_b32 v8, v9, 16, v8")
    a("buffer_store_dword v8, v6, s[32:35], s15 offen")
    a("s_endpgm")
    a("K1_wcode:")
    if CODEPF:
        a("s_cmp_eq_u32 s14, 3")
        a("s_cbranch_scc0 K1_end")
        a("s_getpc_b64 s[40:41]")
        a("K1_pc:")
        a("s_add_u32 s40, s40, main_kernel-K1_pc")
        a("s_addc_u32 s41, s41, 0")
        a("v_lshlrev_b32 v2, 6, v1")
        for r in range(4):
            a("v_cmp_gt_u32 vcc, K2_code_end-main_kernel, v2")
            a("s_and_b64 exec, exec, vcc")
            a("s_cbranch_execz K1_wcode_done")
            a(f"global_load_dword v{8+r}, v2, s[40:41]")
            a("v_add_u32 v2, 4096, v2")
        a("K1_wcode_done:")
        a("s_waitcnt vmcnt(0)")
    a("K1_end:")
    a("s_endpgm")

K2_T = 512
SLOTS = NPB * CAPN + 8
DUMMY = NPB * CAPN
L_REC = 0
L_SOFF = L_REC + SLOTS * 16
L_HIST = L_SOFF + SLOTS * 4
L_FLAG = L_HIST + NPB * 16
L_PRE = L_FLAG + 16
L_NODE = L_PRE + NPB * 16 + 512
L_TAB = L_NODE + 512
L_LST = L_TAB + 1024
L_WT = (L_LST + 4096 + 255) // 256 * 256
L_WR = L_WT + 32768
L_AGG = L_WT + 32768 + 2048
AGG_RS = 272
K2_LDS = L_AGG + (NPB * 4 + 12) * AGG_RS
OOB = 0x7f000000
BARK = env("BARK", 2)
NXB = 4

ACC = 96; XB = 32; CG = 24; OPS = 18; AOP = 16; AT = 12; RECV = 8
V_LIST1 = 7; V_SOFF = 6; V_T = 5; V_COL16 = 4; V_G = 3; V_LIST = 2; V_T2 = 1; V_EASEL = 0
S_X = 8; S_WS = 12; S_OUT = 16
S_WAVE = 20; S_SELLO = 21; S_SELHI = 22; S_IDX = 23
S_S0 = 24; S_S1 = 26
S_EA = 28; S_EB = 29; S_IDX2 = 30; S_LEFT = 31; S_RC = 32; S_MORE = 33
S_T = 34; S_PASS = 35; S_MODE = 36; S_WIN = 37; S_MAXC = 38; S_B = 39
S_MASK = 40
S_SAVE = 60

def lane_id(v):
    a(f"v_mbcnt_lo_u32_b32 v{v}, -1, 0")
    a(f"v_mbcnt_hi_u32_b32 v{v}, -1, v{v}")

tail_code = []
uid = [0]
def ld_x(b):
    r = []
    for u in range(4):
        x = XB + 16 * b + 4 * u
        r.append(f"buffer_load_dwordx4 v[{x}:{x+3}], v{V_SOFF}, s[{S_X}:{S_X+3}], 0 offen offset:{u*256}")
    return r
def addr_fix():
    a(f"v_add_u32 v{V_SOFF}, v{V_SOFF}, v{V_COL16}")
    if NOMEM == 1: a(f"v_mov_b32 v{V_SOFF}, {OOB}")
    if NOMEM == 3: a(f"v_and_b32 v{V_SOFF}, 0xfffff, v{V_SOFF}")

S_DBG = 88
def nonce_fetch():
    a("s_memrealtime s[4:5]")
    a("v_mov_b32 v21, 0")
    a("v_mov_b32 v19, 0")
    a("s_waitcnt lgkmcnt(0)")
    a("s_or_b32 s4, s4, 1")
    a("v_mov_b32 v20, s4")
    a("v_mov_b32 v18, s4")
    a("s_mov_b64 exec, 1")
    a(f"buffer_atomic_cmpswap v[20:21], v19, s[{S_DBG}:{S_DBG+3}], 0 offen sc0 sc1")
    a("s_mov_b64 exec, -1")
def nonce_finish():
    a("v_readfirstlane_b32 s5, v20")
    a("v_readfirstlane_b32 s4, v18")
    a("s_nop 0")
    a("s_cmp_eq_u32 s5, 0")
    a("s_cselect_b32 s4, s4, s5")
def gen_k2():
    k = NAME + "_kernel"
    a(f".globl {k}\n.p2align 8\n.type {k},@function\n{k}:")
    a("s_cmp_ge_u32 s2, 256")
    a("s_cbranch_scc1 K2_end")
    stamp(0)
    a("s_load_dwordx8 s[40:47], s[0:1], 0")
    a("s_load_dwordx2 s[48:49], s[0:1], 32")
    a("s_load_dwordx4 s[60:63], s[0:1], 64")
    a("s_load_dwordx2 s[6:7], s[0:1], 80")
    a("s_and_b32 s4, s2, 7")
    a(f"s_mul_i32 s3, s4, {NB}")
    a(f"s_add_u32 s{S_T}, s3, {NB}")
    a("s_lshr_b32 s3, s3, 3")
    a(f"s_lshr_b32 s{S_T}, s{S_T}, 3")
    a(f"s_lshr_b32 s{S_B}, s2, 3")
    a(f"s_add_u32 s{S_B}, s{S_B}, s3")
    a(f"s_cmp_ge_u32 s{S_B}, s{S_T}")
    a("s_cbranch_scc1 F_spare")
    TID = 23; LANE = 22
    a("v_lshrrev_b32 v5, 6, v0")
    a("v_lshlrev_b32 v1, 4, v0")
    a("v_lshlrev_b32 v2, 5, v0")
    a("v_lshlrev_b32 v3, 2, v0")
    a("v_mov_b32 v4, 0")
    a(f"v_readfirstlane_b32 s{S_WAVE}, v5")
    a(f"ds_write_b32 v3, v4 offset:{K1_HIST}")
    a(f"v_cmp_gt_u32 vcc, {NPB*4+4}, v0")
    a(f"s_and_saveexec_b64 s[4:5], vcc")
    a(f"ds_write_b32 v3, v4 offset:{L_HIST}")
    a(f"s_mov_b64 exec, s[4:5]")
    a(f"s_mul_i32 s58, s{S_B}, {EPC*4}")
    a(f"s_mul_i32 s59, s{S_B}, {EPC*8}")
    a("s_waitcnt lgkmcnt(0)")
    srd(S_X, 40, N * 1024)
    srd(24, 44, E * 4)
    srd(28, 42, E * 4)
    a(f"s_cmp_gt_u32 s{S_WAVE}, 4")
    a("s_cbranch_scc1 F_i0")
    a("buffer_load_dwordx4 v[8:11], v1, s[24:27], s58 offen")
    a("buffer_load_dwordx4 v[12:15], v1, s[28:31], s58 offen")
    a("F_i0:")
    srd(52, 48, E * 8)
    srd(48, 46, E * 8)
    srd(S_WS, 6, WS_USED)
    srd(S_OUT, 60, N * 1024)
    srd(S_DBG, 62, 256)
    a("s_barrier")
    a(f"s_cmp_gt_u32 s{S_WAVE}, 4")
    a("s_cbranch_scc1 F_idle")
    a("buffer_load_dwordx4 v[16:19], v2, s[48:51], s59 offen")
    a("buffer_load_dwordx4 v[20:23], v2, s[48:51], s59 offen offset:16")
    a("buffer_load_dwordx4 v[24:27], v2, s[52:55], s59 offen")
    a("buffer_load_dwordx4 v[28:31], v2, s[52:55], s59 offen offset:16")
    for r in range(160):
        a(f"v_mov_b32 v{ACC+r}, 0")
    a("s_mov_b32 s40, 52429")
    a("s_mov_b32 s41, -40")
    a("s_mov_b32 s42, 6711")
    a("v_mov_b32 v5, 1")
    a("v_and_b32 v6, 63, v0")
    a("v_lshlrev_b32 v6, 4, v6")
    a("s_waitcnt vmcnt(5)")
    for e in range(4):
        a(f"v_mul_u32_u24 v{32+e}, s40, v{8+e}")
        a(f"v_lshrrev_b32 v{32+e}, 21, v{32+e}")
        a(f"v_lshlrev_b32 v{36+e}, 2, v{32+e}")
        a(f"ds_add_rtn_u32 v{40+e}, v{36+e}, v5 offset:{K1_HIST}")
    a("s_waitcnt vmcnt(4)")
    for e in range(4):
        a(f"v_mad_i32_i24 v{8+e}, v{32+e}, s41, v{8+e}")
        a(f"v_mul_u32_u24 v{32+e}, s42, v{12+e}")
        a(f"v_lshrrev_b32 v{32+e}, 22, v{32+e}")
        a(f"v_lshl_add_u32 v{8+e}, v{8+e}, 4, v{32+e}")
        a(f"v_lshl_add_u32 v{12+e}, v{8+e}, 14, v{12+e}")
    a("s_waitcnt lgkmcnt(0)")
    a("s_barrier")
    a(f"ds_read_b128 v[44:47], v6 offset:{K1_HIST}")
    a("s_waitcnt lgkmcnt(0)")
    a("v_add_u32 v48, v44, v45")
    a("v_add3_u32 v48, v48, v46, v47")
    a("v_mov_b32 v49, v48")
    wave_scan(49)
    a("v_sub_u32 v52, v49, v48")
    a("v_add_u32 v53, v52, v44")
    a("v_add_u32 v54, v53, v45")
    a("v_add_u32 v55, v54, v46")
    a(f"ds_write_b128 v6, v[52:55] offset:{K1_OFFS}")
    for e in range(4):
        a(f"ds_read_b32 v{32+e}, v{36+e} offset:{K1_OFFS}")
    a("s_waitcnt vmcnt(0) lgkmcnt(0)")
    for e in range(4):
        a(f"v_add_u32 v{32+e}, v{32+e}, v{40+e}")
        a(f"v_lshlrev_b32 v{36+e}, 4, v{32+e}")
        a(f"v_add_u32 v{36+e}, {K1_REC}, v{36+e}")
        a(f"v_lshlrev_b32 v{32+e}, 2, v{32+e}")
        a(f"ds_write2_b64 v{36+e}, v[{16+2*e}:{17+2*e}], v[{24+2*e}:{25+2*e}] offset0:0 offset1:1")
        a(f"ds_write_b32 v{32+e}, v{12+e} offset:{K1_TAG}")
    a(f"s_mul_i32 s43, s{S_B}, {EPC*16}")
    a(f"s_add_u32 s46, s58, {TAG_OFF}")
    a("s_waitcnt lgkmcnt(0)")
    a("s_barrier")
    a(f"ds_read_b128 v[24:27], v1 offset:{K1_TAG}")
    for r in range(4):
        a(f"ds_read_b128 v[{8+4*r}:{11+4*r}], v1 offset:{K1_REC + r*K1_T*16}")
    a("s_waitcnt lgkmcnt(4)")
    a(f"buffer_store_dwordx4 v[24:27], v1, s[{S_WS}:{S_WS+3}], s46 offen {SC}")
    for r in range(4):
        a(f"s_waitcnt lgkmcnt({3-r})")
        a(f"buffer_store_dwordx4 v[{8+4*r}:{11+4*r}], v1, s[{S_WS}:{S_WS+3}], s43 offen {SC}")
        a(f"s_add_u32 s43, s43, {K1_T*16}")
    a("s_branch F_join")
    a("F_idle:")
    a(f"s_cmp_lg_u32 s{S_WAVE}, 5")
    a("s_cbranch_scc1 F_nononce")
    nonce_fetch()
    a("F_nononce:")
    if CODEPF:
        a("s_getpc_b64 s[4:5]")
        a("K2_pc:")
        a("v_subrev_u32 v14, 320, v0")
        a("v_lshlrev_b32 v14, 7, v14")
        a("v_cmp_gt_u32 vcc, K2_code_end-K2_pc, v14")
        a(f"s_and_saveexec_b64 s[40:41], vcc")
        a("s_cbranch_execz K2_nocpf")
        a("global_load_dword v15, v14, s[4:5]")
        a("K2_nocpf:")
        a(f"s_mov_b64 exec, s[40:41]")
    for r in range(160):
        a(f"v_mov_b32 v{ACC+r}, 0")
    a("s_barrier")
    tdone = [0]
    def idle_touch(n):
        a("v_subrev_u32 v14, 320, v0")
        a("v_lshlrev_b32 v14, 4, v14")
        for _ in range(n):
            a(f"s_mul_i32 s43, s{S_B}, 3072")
            a(f"s_add_u32 s43, s43, {tdone[0]*NB*3072}")
            a(f"buffer_load_dwordx4 v[16:19], v14, s[{S_X}:{S_X+3}], s43 offen")
            tdone[0] += 1
    a("s_barrier")
    a(f"s_cmp_lg_u32 s{S_WAVE}, 5")
    a("s_cbranch_scc1 F_nononce2")
    a("s_waitcnt vmcnt(0)")
    nonce_finish()
    a(f"v_mov_b32 v19, {L_NONCE}")
    a("v_mov_b32 v20, s4")
    a("ds_write_b32 v19, v20")
    a("s_waitcnt lgkmcnt(0)")
    a("F_nononce2:")
    idle_touch(TCH0)
    a("F_join:")
    a(f"v_mov_b32 v{TID}, v0")
    a(f"v_and_b32 v{LANE}, 63, v0")
    a(f"v_and_b32 v{V_COL16}, 15, v{TID}")
    a(f"v_lshlrev_b32 v{V_COL16}, 4, v{V_COL16}")
    a(f"v_lshrrev_b32 v{V_G}, 4, v{LANE}")
    a(f"v_and_b32 v{V_EASEL}, 3, v{TID}")
    a(f"v_mul_u32_u24 v{V_EASEL}, 0x0202, v{V_EASEL}")
    a(f"v_add_u32 v{V_EASEL}, 0x0100, v{V_EASEL}")
    a(f"v_lshlrev_b32 v{V_EASEL}, 16, v{V_EASEL}")
    a(f"v_or_b32 v{V_EASEL}, 0x0c0c, v{V_EASEL}")
    a(f"s_mov_b32 s{S_SELLO}, 0x05040100")
    a(f"s_mov_b32 s{S_SELHI}, 0x07060302")
    a(f"s_mov_b32 s{S_MODE}, 0")
    a(f"v_lshrrev_b32 v28, 1, v{TID}")
    a(f"v_and_b32 v29, 1, v{TID}")
    a("v_lshlrev_b32 v30, 3, v28")
    a(f"v_mov_b32 v31, {L_NONCE}")
    a(f"s_cmp_gt_u32 s{S_WAVE}, 4")
    a("s_cbranch_scc1 F_nw")
    for e in range(1, 4):
        a(f"s_cmp_eq_u32 s{S_WAVE}, {e}")
        a("s_cselect_b64 vcc, -1, 0")
        a(f"v_cndmask_b32 v44, v44, v{44+e}, vcc")
        a(f"v_cndmask_b32 v52, v52, v{52+e}, vcc")
    a("v_lshl_or_b32 v56, v44, 11, v52")
    a(f"v_lshlrev_b32 v2, 13, v{LANE}")
    a("s_waitcnt vmcnt(0)")
    a("F_nw:")
    a("s_barrier")
    stamp(1)
    a("ds_read_b32 v31, v31")
    a(f"s_lshl_b32 s3, s{S_B}, 11")
    a(f"s_add_u32 s3, s3, {OFFS_OFF}")
    a(f"s_lshl_b32 s4, s{S_WAVE}, 11")
    a(f"s_lshl_b32 s5, s{S_B}, 3")
    a("s_add_u32 s4, s4, s5")
    a(f"s_add_u32 s4, s4, {OFFS_OFF}")
    a("s_waitcnt lgkmcnt(0)")
    a("v_lshlrev_b32 v1, 22, v31")
    if STAMP == 3: a("v_readfirstlane_b32 s93, v31")
    a(f"s_cmp_gt_u32 s{S_WAVE}, 3")
    a("s_cbranch_scc1 F_nopub")
    a("v_or_b32 v56, v56, v1")
    a("v_mov_b32 v57, v31")
    a(f"buffer_store_dwordx2 v[56:57], v2, s[{S_WS}:{S_WS+3}], s4 offen {SC}")
    a("F_nopub:")
    a("s_mov_b32 s4, 0")
    a("F_poll:")
    a(f"buffer_load_dwordx2 v[12:13], v30, s[{S_WS}:{S_WS+3}], s3 offen {SC}")
    a("s_add_u32 s4, s4, 1")
    a("s_waitcnt vmcnt(0)")
    a("v_xor_b32 v14, v12, v1")
    a("v_lshrrev_b32 v14, 22, v14")
    a("v_xor_b32 v15, v13, v31")
    a("v_or_b32 v14, v14, v15")
    a("v_cmp_ne_u32 vcc, 0, v14")
    a("s_and_b64 exec, exec, vcc")
    a("s_cbranch_execz F_go")
    a("s_cmp_gt_u32 s4, 0x40000")
    a("s_cbranch_scc1 K2_end")
    a(f"s_sleep {PSL}")
    a("s_branch F_poll")
    a("F_go:")
    a("s_mov_b64 exec, -1")
    stamp(2)
    a("v_mov_b32 v8, v28")
    a("v_mov_b32 v9, v29")
    a(f"v_mul_u32_u24 v10, {EPC}, v8")
    a("v_add_u32 v10, v10, v9")
    a("v_bfe_u32 v11, v12, 11, 11")
    a("v_and_b32 v12, 0x7ff, v12")
    a("v_add_u32 v10, v10, v12")
    a("v_sub_u32 v13, v11, v9")
    a("v_lshlrev_b32 v14, 4, v10")
    a("v_lshlrev_b32 v10, 2, v10")
    a(f"s_mov_b32 s3, {TAG_OFF}")
    RB = XB; TG = XB + 40; RK = XB + 50
    M = lambda r: f"s[{S_MASK+2*r}:{S_MASK+2*r+1}]"
    for r in range(NR):
        a(f"v_cmp_lt_i32 {M(r)}, {2*r}, v13")
    for r in range(NR):
        a(f"s_mov_b64 exec, {M(r)}")
        a("s_cbranch_execz K2_ld_done")
        a(f"buffer_load_dword v{TG+r}, v10, s[{S_WS}:{S_WS+3}], s3 offen offset:{8*r} {SC}")
        a(f"buffer_load_dwordx4 v[{RB+4*r}:{RB+4*r+3}], v14, s[{S_WS}:{S_WS+3}], 0 offen offset:{32*r} {SC}")
    a("K2_ld_done:")
    a("s_mov_b64 exec, -1")
    a(f"v_cmp_lt_u32 s[{S_SAVE}:{S_SAVE+1}], {2*NR}, v11")
    a("v_mov_b32 v17, 1")
    a("s_waitcnt vmcnt(0)")
    for r in range(NR):
        a(f"s_mov_b64 exec, {M(r)}")
        a("s_cbranch_execz K2_h_done")
        a(f"v_lshrrev_b32 v8, 14, v{TG+r}")
        a(f"v_and_b32 v9, 0xffc, v8")
        a(f"v_lshlrev_b32 v8, 3, v8")
        a(f"v_lshlrev_b32 v8, v8, v17")
        a(f"ds_add_rtn_u32 v{RK+r}, v9, v8 offset:{L_HIST}")
    a("K2_h_done:")
    a("s_mov_b64 exec, -1")
    a("s_waitcnt lgkmcnt(0)")
    for r in range(NR):
        a(f"s_mov_b64 exec, {M(r)}")
        a("s_cbranch_execz K2_r_done")
        a(f"v_lshrrev_b32 v8, 11, v{TG+r}")
        a(f"v_and_b32 v8, 24, v8")
        a(f"v_bfe_u32 v{RK+r}, v{RK+r}, v8, 8")
        a(f"v_cmp_lt_u32 vcc, {CAPN-1}, v{RK+r}")
        a(f"s_or_b64 s[{S_SAVE}:{S_SAVE+1}], s[{S_SAVE}:{S_SAVE+1}], vcc")
    a("K2_r_done:")
    a("s_mov_b64 exec, -1")
    a(f"v_mov_b32 v9, {L_FLAG}")
    a(f"s_cmp_eq_u64 s[{S_SAVE}:{S_SAVE+1}], 0")
    a("s_cbranch_scc1 K2_noflag")
    a("ds_write_b32 v9, v17")
    a("K2_noflag:")
    a(f"v_lshlrev_b32 v8, 4, v{LANE}")
    a("s_waitcnt lgkmcnt(0)")
    a("s_barrier")
    stamp(3)
    a(f"ds_read_b128 v[12:15], v8 offset:{L_HIST}")
    a("ds_read_b32 v9, v9")
    a(f"v_lshlrev_b32 v{V_T}, 4, v{TID}")
    a(f"v_bfe_u32 v16, v{TID}, 2, 2")
    a("v_lshlrev_b32 v16, 5, v16")
    a(f"s_mov_b32 s3, {CG_OFF}")
    a(f"buffer_load_dwordx4 v[{CG}:{CG+3}], v16, s[{S_WS}:{S_WS+3}], s3 offen {SC}")
    a(f"buffer_load_dwordx4 v[{CG+4}:{CG+7}], v16, s[{S_WS}:{S_WS+3}], s3 offen offset:16 {SC}")
    a(f"v_lshlrev_b32 v16, 2, v{TID}")
    a(f"s_lshl_b32 s3, s{S_WAVE}, 8")
    a(f"s_add_u32 s3, s3, {L_WR}")
    a("s_mov_b32 m0, s3")
    a(f"s_mov_b32 s3, {WR_OFF}")
    a(f"buffer_load_dword v16, s[{S_WS}:{S_WS+3}], s3 offen {SC} lds")
    bg = []
    for r in range(4):
        bg.append([f"s_lshl_b32 s5, s{S_WAVE}, 10", f"s_add_u32 s5, s5, {L_WT + r*K2_T*16}", "s_mov_b32 m0, s5",
                   f"s_mov_b32 s5, {WT_OFF + r*K2_T*16}",
                   f"buffer_load_dwordx4 v{V_T}, s[{S_WS}:{S_WS+3}], s5 offen {SC} lds"])
    tch = []
    if K2TOUCH:
        per = K2_T * 16
        k1bytes = tdone[0] * NB * 3072
        for r in range(N * 1024 // (NB * per)):
            if (r + 1) * NB * per <= k1bytes: continue
            tch.append([f"s_lshl_b32 s5, s{S_B}, 13", f"s_add_u32 s5, s5, {r*NB*per}",
                        f"buffer_load_dwordx4 v[{XB+60}:{XB+63}], v{V_T}, s[{S_X}:{S_X+3}], s5 offen"])
    bg = tch + bg
    NBG = len(bg) + 1
    def bgop(n=1):
        for _ in range(n):
            if bg:
                for x in bg.pop(0): a(x)
    bgop(2)
    a("s_waitcnt lgkmcnt(0)")
    a("s_mov_b32 s3, 0x01010101")
    a("v_mov_b32 v10, 0")
    PW = 18
    for q in range(4):
        H = 12 + q
        a(f"v_lshlrev_b32 v{PW+q}, 8, v{H}")
        a(f"v_lshl_add_u32 v{PW+q}, v{H}, 16, v{PW+q}")
        a(f"v_lshl_add_u32 v{PW+q}, v{H}, 24, v{PW+q}")
        if q > 0:
            a(f"v_mul_lo_u32 v11, v10, s3")
            a(f"v_add_u32 v{PW+q}, v{PW+q}, v11")
        a(f"v_sad_u8 v10, v{H}, 0, v10")
    a(f"v_cmp_gt_u32 vcc, {NPB}, v{LANE}")
    a(f"s_and_saveexec_b64 s[{S_SAVE}:{S_SAVE+1}], vcc")
    a(f"ds_write_b128 v8, v[{PW}:{PW+3}] offset:{L_PRE}")
    a(f"v_cmp_lt_u32 vcc, {CAPN}, v10")
    a(f"s_mov_b64 exec, s[{S_SAVE}:{S_SAVE+1}]")
    a("v_readfirstlane_b32 s3, v9")
    a("s_cmp_lg_u64 vcc, 0")
    a("s_cbranch_scc1 K2_slow")
    a("s_cmp_lg_u32 s3, 0")
    a("s_cbranch_scc1 K2_slow")
    bg_slow = [list(x) for x in bg]
    PR = [12, 13, 14, 15, 16, 17, 18, 19, 20, 21]
    for r in range(NR):
        a(f"s_mov_b64 exec, {M(r)}")
        a("s_cbranch_execz K2_p_done")
        a(f"v_lshrrev_b32 v8, 14, v{TG+r}")
        a(f"ds_read_u8 v{PR[r]}, v8 offset:{L_PRE}")
    a("K2_p_done:")
    a("s_mov_b64 exec, -1")
    bgop(1)
    a(f"v_and_b32 v7, 7, v{LANE}")
    a("v_add_u32 v8, 3, v10")
    a("v_lshrrev_b32 v8, 2, v8")
    a("v_subrev_u32 v8, 5, v8")
    a("v_med3_i32 v8, v8, 0, 7")
    a(f"v_cmp_gt_u32 vcc, {NPB}, v{LANE}")
    a("v_mov_b32 v9, 63")
    a("s_nop 0")
    a("v_cndmask_b32 v8, 64, v8, vcc")
    KM = [24, 26, 28, 30, 32, 82, 84, 86]
    for q in range(8):
        a(f"v_cmp_eq_u32 s[{KM[q]}:{KM[q]+1}], {q}, v8")
    a("s_mov_b32 s3, 0")
    for q in range(7, -1, -1):
        a(f"s_mov_b64 exec, s[{KM[q]}:{KM[q]+1}]")
        a(f"v_mbcnt_lo_u32_b32 v9, s{KM[q]}, 0")
        a(f"v_mbcnt_hi_u32_b32 v9, s{KM[q]+1}, v9")
        a("v_add_u32 v9, s3, v9")
        a(f"s_bcnt1_i32_b64 s4, s[{KM[q]}:{KM[q]+1}]")
        a("s_add_u32 s3, s3, s4")
    a("s_mov_b64 exec, -1")
    a("v_lshlrev_b32 v9, 2, v9")
    a(f"v_lshl_add_u32 v8, v10, 8, v{LANE}")
    a("ds_permute_b32 v8, v9, v8")
    a("v_and_b32 v9, 1, v7")
    a("v_mul_u32_u24 v9, 7, v9")
    a(f"v_xor_b32 v9, s{S_WAVE}, v9")
    a("v_lshl_add_u32 v9, v7, 3, v9")
    a("v_lshlrev_b32 v9, 2, v9")
    a(f"v_and_b32 v6, 1, v{V_G}")
    a("v_mul_u32_u24 v6, 7, v6")
    a(f"v_xor_b32 v6, s{S_WAVE}, v6")
    a(f"v_lshl_add_u32 v6, v{V_G}, 3, v6")
    a("v_lshlrev_b32 v6, 2, v6")
    a(f"s_lshl_b32 s3, s{S_WAVE}, 2")
    a("s_add_u32 s3, s3, 128")
    a("v_mov_b32 v1, s3")
    bgop(1)
    a("s_waitcnt lgkmcnt(0)")
    a("ds_bpermute_b32 v11, v9, v8")
    a("ds_bpermute_b32 v6, v6, v8")
    a("ds_bpermute_b32 v1, v1, v8")
    for r in range(NR):
        a(f"s_mov_b64 exec, {M(r)}")
        a("s_cbranch_execz K2_s_done")
        a(f"v_lshrrev_b32 v8, 18, v{TG+r}")
        a(f"v_lshl_add_u32 v8, v8, 6, v{PR[r]}")
        a(f"v_add_u32 v8, v8, v{RK+r}")
        a(f"v_lshlrev_b32 v9, 4, v8")
        a(f"v_lshlrev_b32 v8, 2, v8")
        a(f"v_and_b32 v{TG+r}, 0x3fff, v{TG+r}")
        a(f"v_lshlrev_b32 v{TG+r}, 10, v{TG+r}")
        a(f"ds_write_b128 v9, v[{RB+4*r}:{RB+4*r+3}] offset:{L_REC}")
        a(f"ds_write_b32 v8, v{TG+r} offset:{L_SOFF}")
    a("K2_s_done:")
    a("s_mov_b64 exec, -1")
    bgop(1)
    a("v_mov_b32 v12, 0")
    a("v_mov_b32 v13, 0")
    a(f"s_mov_b32 s{S_PASS}, 0")
    a("K2_sched:")
    a(f"v_and_b32 v14, 15, v{LANE}")
    a(f"s_lshl_b32 s3, s{S_WAVE}, 6")
    a("v_lshl_add_u32 v15, v7, 2, s3")
    a("s_waitcnt lgkmcnt(0)")
    a(f"ds_write_b32 v15, v11 offset:{L_NODE}")
    BS = [(6, 12, 16, 17, 18), (1, 13, 19, 20, 21)]
    for (vi, vd, vq, vt, ve) in BS:
        a(f"v_and_b32 v{vt}, 0xff, v{vi}")
        a(f"v_lshl_add_u32 v{vt}, v{vt}, 4, v14")
        a(f"ds_read_u8 v{vt}, v{vt} offset:{L_PRE+1}")
        a(f"v_lshrrev_b32 v{vq}, 8, v{vi}")
        a(f"v_add_u32 v{vq}, 3, v{vq}")
        a(f"v_lshrrev_b32 v{vq}, 2, v{vq}")
    a(f"s_cmp_eq_u32 s{S_PASS}, 0")
    a("s_cselect_b32 s4, 15, 0")
    a("v_cmp_le_u32 vcc, s4, v14")
    a("s_waitcnt lgkmcnt(0)")
    for (vi, vd, vq, vt, ve) in BS:
        a(f"v_add_u32 v{vt}, 1, v{vt}")
        a(f"v_lshrrev_b32 v{vt}, 2, v{vt}")
        a(f"v_cndmask_b32 v{vt}, v{vt}, v{vq}, vcc")
        a(f"v_sub_u32 v{vt}, v{vt}, v14")
        a(f"v_add_u32 v{ve}, 1, v{vd}")
        a(f"v_min_i32 v{vt}, v{vt}, v{ve}")
    for sh in (1, 2, 4, 8):
        a("s_nop 0")
        for (vi, vd, vq, vt, ve) in BS:
            a(f"v_min_i32_dpp v{vt}, v{vt}, v{vt} row_shr:{sh} row_mask:0xf bank_mask:0xf")
    for (vi, vd, vq, vt, ve) in BS:
        a(f"v_subrev_u32 v{ve}, 15, v{vq}")
        a(f"v_max_i32 v{vt}, v{vt}, v{ve}")
    for (vi, vd, vq, vt, ve) in BS:
        a(f"v_add_u32 v{ve}, v{vt}, v14")
    a("s_nop 0")
    for (vi, vd, vq, vt, ve) in BS:
        a(f"v_mov_b32_dpp v{vd}, v{ve} row_shr:1 row_mask:0xf bank_mask:0xf")
    a(f"s_lshl_b32 s4, s{S_WAVE}, 7")
    a("v_lshl_add_u32 v15, v14, 3, s4")
    for k_, (vi, vd, vq, vt, ve) in enumerate(BS):
        a(f"v_sub_u32 v{vt}, v{ve}, v{vd}")
        a(f"v_lshl_or_b32 v{vt}, v{vt}, 7, v{vd}")
        if k_ == 0:
            a(f"v_add_u32 v{vi}, v15, v{V_G}")
            a(f"ds_write_b8 v{vi}, v{vt} offset:{L_TAB}")
        else:
            a(f"ds_write_b8 v15, v{vt} offset:{L_TAB+4}")
    a(f"v_add_u32 v15, s4, v{LANE}")
    a(f"ds_read_u8 v12, v15 offset:{L_TAB}")
    a(f"ds_read_u8 v13, v15 offset:{L_TAB+64}")
    a("v_and_b32 v16, 0xff, v11")
    a("v_lshlrev_b32 v16, 6, v16")
    a("v_lshrrev_b32 v10, 8, v11")
    a("v_cmp_gt_u32 vcc, 5, v7")
    a("v_mov_b32 v20, 0")
    a("v_mov_b32 v21, 0")
    a("v_cndmask_b32 v10, 0, v10, vcc")
    a("s_waitcnt lgkmcnt(0)")
    a("v_cndmask_b32 v12, 0, v12, vcc")
    a("v_cndmask_b32 v13, 0, v13, vcc")
    a(f"v_cmp_lt_u32 s[{S_S0}:{S_S0+1}], 64, v12")
    a(f"v_cmp_lt_u32 s[{S_S1}:{S_S1+1}], 64, v13")
    a("v_and_b32 v12, 0x7f, v12")
    a("v_and_b32 v13, 0x7f, v13")
    a("v_lshl_add_u32 v12, v12, 2, v16")
    a("v_lshl_add_u32 v13, v13, 2, v16")
    a(f"s_bcnt1_i32_b64 s4, s[{S_S0}:{S_S0+1}]")
    a(f"s_bcnt1_i32_b64 s{S_LEFT}, s[{S_S1}:{S_S1+1}]")
    a(f"s_add_u32 s{S_LEFT}, s{S_LEFT}, s4")
    a(f"s_lshl_b32 s5, s{S_WAVE}, 7")
    a("s_add_u32 s4, s4, s5")
    a(f"v_mbcnt_lo_u32_b32 v17, s{S_S0}, 0")
    a(f"v_mbcnt_hi_u32_b32 v17, s{S_S0+1}, v17")
    a(f"v_mbcnt_lo_u32_b32 v18, s{S_S1}, 0")
    a(f"v_mbcnt_hi_u32_b32 v18, s{S_S1+1}, v18")
    a("v_add_lshl_u32 v17, s5, v17, 2")
    a("v_add_lshl_u32 v18, s4, v18, 2")
    a(f"s_mov_b64 exec, s[{S_S0}:{S_S0+1}]")
    a(f"ds_write_b32 v17, v12 offset:{L_LST}")
    a(f"s_mov_b64 exec, s[{S_S1}:{S_S1+1}]")
    a(f"ds_write_b32 v18, v13 offset:{L_LST}")
    a("s_mov_b64 exec, -1")
    a("s_mov_b32 s3, s5")
    a(f"v_lshrrev_b32 v14, 3, v{LANE}")
    a("v_add_u32 v15, 3, v10")
    a("v_and_b32 v15, 0xfc, v15")
    a("v_add_u32 v14, v10, v14")
    a("v_cmp_lt_u32 vcc, v14, v15")
    a("v_add_u32 v14, v16, v14")
    a(f"v_add_u32 v15, {DUMMY}, v7")
    a(f"v_subrev_u32 v19, 24, v{LANE}")
    a(f"v_cmp_gt_u32 s[{S_SAVE}:{S_SAVE+1}], 4, v19")
    a(f"v_cmp_gt_u32 s[4:5], s{S_LEFT}, v{LANE}")
    a(f"v_add_u32 v19, 64, v{LANE}")
    a(f"v_cmp_gt_u32 s[6:7], s{S_LEFT}, v19")
    a(f"v_add_lshl_u32 v17, s3, v{LANE}, 2")
    a("v_mov_b32 v22, 0")
    a("v_mov_b32 v23, 0")
    a(f"v_cndmask_b32 v14, v14, v15, s[{S_SAVE}:{S_SAVE+1}]")
    a(f"ds_read_b32 v{V_LIST}, v17 offset:{L_LST}")
    a(f"ds_read_b32 v{V_LIST1}, v17 offset:{L_LST+256}")
    a(f"s_or_b64 exec, vcc, s[{S_SAVE}:{S_SAVE+1}]")
    a("v_lshlrev_b32 v15, 4, v14")
    a("v_lshlrev_b32 v14, 2, v14")
    a(f"v_mov_b32 v19, {OOB}")
    a(f"ds_write_b128 v15, v[20:23] offset:{L_REC}")
    a(f"ds_write_b32 v14, v19 offset:{L_SOFF}")
    a("s_mov_b64 exec, -1")
    a(f"v_mov_b32 v19, {DUMMY}")
    a("s_waitcnt lgkmcnt(0)")
    a(f"v_cndmask_b32 v{V_LIST}, v19, v{V_LIST}, s[4:5]")
    a(f"v_cndmask_b32 v{V_LIST1}, v19, v{V_LIST1}, s[6:7]")
    a("s_barrier")
    stamp(4)
    a(f"s_cmp_lg_u32 s{S_PASS}, 0")
    a("s_cbranch_scc1 K2_nobg")
    bgop(100)
    a("K2_nobg:")
    def rd_soff(se):
        return [f"v_add_lshl_u32 v{V_T}, s{se}, v{V_G}, 2", f"ds_read_b32 v{V_SOFF}, v{V_T} offset:{L_SOFF}"]
    def rd_rec(se):
        return [f"v_add_lshl_u32 v{V_T2}, s{se}, v{V_G}, 4", f"ds_read_b128 v[{RECV}:{RECV+3}], v{V_T2} offset:{L_REC}"]
    for q in range(NXB):
        a(f"v_readlane_b32 s{4+q}, v{V_LIST}, {q}")
    a(f"s_waitcnt vmcnt({NBG})")
    a(f"s_mov_b32 s{S_IDX}, {NXB}")
    a(f"s_mov_b32 s{S_IDX2}, 1")
    a(f"s_mov_b32 s{S_RC}, 0")
    if PRIO == 2:
        a(f"s_cmp_lt_u32 s{S_WAVE}, 4")
        a("s_cbranch_scc1 K2_pr_done")
        a("s_setprio 1")
        a("K2_pr_done:")
    for x in rd_soff(4): a(x)
    for x in rd_rec(4): a(x)
    for q in range(NXB - 1):
        a(f"s_cmp_gt_u32 s{S_LEFT}, {q}")
        a("s_cbranch_scc0 K2_pre_done")
        a("s_waitcnt lgkmcnt(1)" if q == 0 else "s_waitcnt lgkmcnt(0)")
        addr_fix()
        for x in ld_x(q): a(x)
        for x in rd_soff(5 + q): a(x)
    a("K2_pre_done:")
    a(f"s_cmp_lg_u32 s{S_LEFT}, 0")
    a("s_cbranch_scc1 K2_t0")
    a("s_waitcnt vmcnt(0)")
    a("s_branch K2_t0")
    NS = 5 * NXB
    for s_ in range(NS):
        i = s_ % 5; b = s_ % NXB
        if i == 0:
            a(f"K2_re{s_}:")
            a(f"s_add_u32 s{S_RC}, s{S_RC}, 1")
            if PRIO == 1:
                a(f"s_lshr_b32 s{S_T}, s{S_WAVE}, 2")
                a(f"s_add_u32 s{S_T}, s{S_T}, s{S_RC}")
                a("s_setprio 0")
                a(f"s_bitcmp1_b32 s{S_T}, 0")
                a(f"s_cbranch_scc0 K2_pr{s_}")
                a("s_setprio 1")
                a(f"K2_pr{s_}:")
            a(f"s_lshr_b64 s[{S_S0}:{S_S0+1}], s[{S_S0}:{S_S0+1}], 8")
            a(f"s_and_b32 s{S_T}, s{S_RC}, {BARK-1}")
            a(f"s_cbranch_scc0 K2_rx{s_}")
            t = [f"K2_rx{s_}:",
                 f"s_cmp_eq_u32 s{S_RC}, 16", "s_cbranch_scc1 K2_loop_done",
                 f"s_cmp_lg_u32 s{S_RC}, 8", f"s_cbranch_scc1 K2_ry{s_}",
                 f"s_mov_b64 s[{S_S0}:{S_S0+1}], s[{S_S1}:{S_S1+1}]",
                 f"s_cmp_lg_u32 s{S_IDX2}, 1", f"s_cbranch_scc1 K2_ry{s_}",
                 "s_waitcnt vmcnt(0)",
                 f"K2_ry{s_}:",
                 f"s_cmp_lt_u32 s{S_IDX2}, 20", f"s_cbranch_scc1 K2_rz{s_}",
                 "s_mov_b64 exec, 0xfffff", f"v_mov_b32 v{V_LIST}, v{V_LIST1}", "s_mov_b64 exec, -1",
                 f"K2_rz{s_}:",
                 f"s_cmp_lg_u32 s{S_PASS}, 0", f"s_cbranch_scc1 K2_t{s_}",
                 "s_barrier", f"s_branch K2_t{s_}"]
            tail_code.extend(t)
        a(f"K2_t{s_}:")
        a(f"s_bitcmp1_b32 s{S_S0}, {i}")
        nxt = (s_ + 16) % NS
        a(f"s_cbranch_scc0 K2_{'re' if nxt % 5 == 0 else 't'}{nxt}")
        a(f"v_readlane_b32 s{S_EB}, v{V_LIST}, s{S_IDX}")
        a(f"v_readlane_b32 s{S_EA}, v{V_LIST}, s{S_IDX2}")
        a(f"s_sub_u32 s{S_LEFT}, s{S_LEFT}, 1")
        a("s_waitcnt lgkmcnt(0)")
        a(f"s_cmp_lt_u32 s{S_LEFT}, {NXB-1}")
        lds_ = ld_x((b + NXB - 1) % NXB)
        cnt_ = [0]
        def gl(n=1):
            cnt_[0] += 1
            a(f"s_cbranch_scc1 K2_nl{s_}_{cnt_[0]}")
            for _ in range(n): a(lds_.pop(0).replace(f"v{V_SOFF},", f"v{V_T},"))
            a(f"K2_nl{s_}_{cnt_[0]}:")
        a(f"v_add_u32 v{V_T}, v{V_SOFF}, v{V_COL16}")
        if NOMEM == 1: a(f"v_mov_b32 v{V_T}, {OOB}")
        pre = {0: 4, 1: 2, 2: 1, 3: 0}[ILV]
        if ILV == 0: gl(4)
        if ILV in (1, 2): gl(1)
        for u in range(4 if XP != 3 else 0):
            a(f"v_dot2_f32_bf16 v{AT+u}, v{CG+2*u}, v{RECV}, 0")
        a(f"v_perm_b32 v{AOP}, v{RECV+3}, v{RECV+2}, v{V_EASEL}")
        for u in range(4 if XP != 3 else 0):
            a(f"v_dot2_f32_bf16 v{AT+u}, v{CG+2*u+1}, v{RECV+1}, v{AT+u}")
        a(f"v_add_lshl_u32 v{V_T2}, s{S_EB}, v{V_G}, 2")
        a(f"ds_read_b32 v{V_SOFF}, v{V_T2} offset:{L_SOFF}")
        for x in rd_rec(S_EA): a(x)
        if ILV == 1: gl(1)
        for u in range(4):
            a(f"v_mul_f32 v{AT+u}, v{AT+u}, v{AOP}")
        a(f"v_cvt_pk_bf16_f32 v{AOP}, v{AT}, v{AT+1}")
        a(f"v_cvt_pk_bf16_f32 v{AOP+1}, v{AT+2}, v{AT+3}")
        a(f"s_cbranch_scc1 K2_wx{s_}")
        a(f"s_waitcnt vmcnt({4*(NXB-2)+pre})")
        a(f"K2_wr{s_}:")
        t = [f"K2_wx{s_}:", "s_waitcnt vmcnt(8)", f"s_cmp_eq_u32 s{S_LEFT}, 2", f"s_cbranch_scc1 K2_wr{s_}",
             "s_waitcnt vmcnt(4)", f"s_cmp_eq_u32 s{S_LEFT}, 1", f"s_cbranch_scc1 K2_wr{s_}",
             "s_waitcnt vmcnt(0)", f"s_cmp_eq_u32 s{S_LEFT}, 0", f"s_branch K2_wr{s_}"]
        tail_code.extend(t)
        def mf(j):
            if XP == 1: return
            o = OPS + 2 * (j % 3); c = ACC + 32 * i + 4 * j
            a(f"v_mfma_f32_16x16x16_bf16 v[{c}:{c+3}], v[{AOP}:{AOP+1}], v[{o}:{o+1}], v[{c}:{c+3}]")
        after = {0: [], 1: [2, 5], 2: [1, 3, 6], 3: [0, 2, 4, 6]}[ILV]
        for j in range(8):
            m = j >> 1; sel = S_SELHI if j & 1 else S_SELLO
            o = OPS + 2 * (j % 3)
            x = lambda u: XB + 16 * b + 4 * u + m
            if not NOCOMP:
                if XP != 2:
                    a(f"v_perm_b32 v{o}, v{x(1)}, v{x(0)}, s{sel}")
                    a(f"v_perm_b32 v{o+1}, v{x(3)}, v{x(2)}, s{sel}")
                if j > 0: mf(j - 1)
            if j in after: gl(1)
        a(f"s_add_u32 s{S_IDX}, s{S_IDX}, 1")
        a(f"s_add_u32 s{S_IDX2}, s{S_IDX2}, 1")
        if not NOCOMP: mf(7)
    a("s_branch K2_re0")
    for x in tail_code: a(x)
    a("K2_loop_done:")
    a(f"s_cmp_lg_u32 s{S_MODE}, 0")
    a("s_cbranch_scc1 K2_slow_next")
    a("K2_epi:")
    stamp(5)
    a("s_waitcnt vmcnt(0) lgkmcnt(0)")
    lane_id(LANE)
    a(f"s_lshl_b32 s3, s{S_WAVE}, 6")
    a(f"v_and_b32 v6, 15, v{LANE}")
    a("v_and_b32 v5, 12, v6")
    a("v_add_u32 v5, s3, v5")
    a(f"ds_read_b32 v16, v5 offset:{L_NODE}")
    a("v_mov_b32 v5, s3")
    a(f"ds_read_b32 v17, v5 offset:{L_NODE+16}")
    a(f"v_lshlrev_b32 v1, 3, v{V_COL16}")
    a(f"v_add_u32 v1, {L_WR}, v1")
    for j in range(8):
        a(f"ds_read_b128 v[{XB+4*j}:{XB+4*j+3}], v1 offset:{16*j}")
    a(f"v_lshlrev_b32 v1, 4, v{LANE}")
    a(f"v_add_u32 v1, {L_WT}, v1")
    a(f"s_mul_i32 s4, s{S_WAVE}, {20*AGG_RS}")
    a(f"s_add_u32 s4, s4, {L_AGG}")
    a(f"v_mul_u32_u24 v2, {AGG_RS}, v{V_G}")
    a(f"v_add3_u32 v2, v2, v{V_COL16}, s4")
    a(f"v_mul_u32_u24 v7, {AGG_RS}, v6")
    a(f"v_lshl_add_u32 v7, v{V_G}, 4, v7")
    a("v_add_u32 v7, s4, v7")
    AW = [XB + 32, ACC, ACC + 32, ACC + 64]
    def rd_a(m):
        for x in range(8):
            a(f"ds_read_b128 v[{AW[m]+4*x}:{AW[m]+4*x+3}], v1 offset:{8192*m + 1024*x}")
    a("s_waitcnt lgkmcnt(0)")
    rd_a(0)
    for i in range(5):
        for j in range(8):
            c = ACC + 32 * i + 4 * j; w = XB + 4 * j
            a(f"v_mul_f32 v{c}, v{c}, v{w}")
        for kk in range(1, 4):
            for j in range(8):
                c = ACC + 32 * i + 4 * j; w = XB + 4 * j
                a(f"v_fmac_f32 v{c}, v{c+kk}, v{w+kk}")
        o = 8 + 4 * (i % 2)
        for jj in range(4):
            c = ACC + 32 * i + 8 * jj
            a(f"v_cvt_pk_bf16_f32 v{o+jj}, v{c}, v{c+4}")
        a(f"ds_write_b128 v2, v[{o}:{o+3}] offset:{i*4*AGG_RS}")
        if i < 3: rd_a(i + 1)
    stamp(6)
    BB = XB
    for ct in range(2):
        for t in range(4):
            r = BB + 16 * ct + 4 * t
            a(f"ds_read_b128 v[{r}:{r+3}], v7 offset:{ct*16*AGG_RS + t*64}")
    a("v_and_b32 v5, 3, v6")
    a("v_lshlrev_b32 v5, 8, v5")
    a(f"v_lshl_add_u32 v5, v{V_G}, 4, v5")
    a("v_and_b32 v16, 0xff, v16")
    a("v_and_b32 v17, 0xff, v17")
    a("v_lshl_add_u32 v16, v16, 10, v5")
    a("v_lshl_add_u32 v17, v17, 10, v5")
    a(f"v_mov_b32 v18, {OOB}")
    a("v_cmp_gt_u32 vcc, 4, v6")
    a(f"s_mul_i32 s6, s{S_B}, {NPB*1024}")
    a("s_nop 0")
    a("v_cndmask_b32 v17, v18, v17, vcc")
    DD = ACC + 96
    units = [(ct, m) for ct in range(2) for m in range(4)]
    def fin(u):
        ct, m = units[u]
        d = DD + 8 * u
        for x in range(4):
            a(f"v_cvt_pk_bf16_f32 v{d+x}, v{d+2*x}, v{d+2*x+1}")
        a(f"buffer_store_dwordx4 v[{d}:{d+3}], v{16+ct}, s[{S_OUT}:{S_OUT+3}], s6 offen offset:{64*m} {OMOD}")
    for u, (ct, m) in enumerate(units):
        if u == 0: a("s_waitcnt lgkmcnt(4)")
        if u == 4: a("s_waitcnt lgkmcnt(0)")
        for t in range(4):
            r = BB + 16 * ct + 4 * t
            for hh in range(2):
                d = DD + 8 * u + 4 * hh; w = AW[m] + 16 * hh + 4 * t
                c = "0" if t == 0 else f"v[{d}:{d+3}]"
                a(f"v_mfma_f32_16x16x32_bf16 v[{d}:{d+3}], v[{w}:{w+3}], v[{r}:{r+3}], {c}")
        if u > 0: fin(u - 1)
    a("s_nop 7")
    fin(7)
    stamp(7)
    if STAMP: a("s_waitcnt vmcnt(0)")
    stamp(8)
    stamp_flush(1, 8, 9, S_WAVE, 1)
    a("K2_end:")
    a("s_endpgm")
    a("K2_slow:")
    for grp in bg_slow:
        if "lds" in grp[-1]:
            for x in grp: a(x)
    a(f"s_mov_b32 s{S_MODE}, 1")
    a(f"s_mov_b32 s{S_WIN}, 0")
    a(f"v_lshlrev_b32 v8, 3, v{LANE}")
    a(f"s_lshl_b32 s3, s{S_B}, 11")
    a(f"s_add_u32 s3, s3, {OFFS_OFF}")
    for h in range(4):
        a(f"buffer_load_dword v{10+2*h}, v8, s[{S_WS}:{S_WS+3}], s3 offen offset:{512*h} {SC}")
    a("s_waitcnt vmcnt(0)")
    for h in range(4):
        a(f"v_bfe_u32 v{10+2*h}, v{10+2*h}, 11, 11")
    a("v_max_u32 v10, v10, v12")
    a("v_max3_u32 v10, v10, v14, v16")
    wave_scan(10, "v_max_u32_dpp")
    a("s_nop 1")
    a(f"v_readlane_b32 s{S_MAXC}, v10, 63")
    a("K2_slow_win:")
    a(f"s_cmp_ge_u32 s{S_WIN}, s{S_MAXC}")
    a("s_cbranch_scc1 K2_slow_fin")
    def seg_setup():
        lane_id(LANE)
        a(f"s_lshl_b32 s3, s{S_WAVE}, 6")
        a(f"v_add_u32 v{TID}, s3, v{LANE}")
        a(f"v_lshrrev_b32 v8, 1, v{TID}")
        a(f"v_and_b32 v9, 1, v{TID}")
        a("v_lshlrev_b32 v10, 3, v8")
        a(f"s_lshl_b32 s3, s{S_B}, 11")
        a(f"s_add_u32 s3, s3, {OFFS_OFF}")
        a(f"buffer_load_dword v12, v10, s[{S_WS}:{S_WS+3}], s3 offen {SC}")
        a(f"v_mul_u32_u24 v10, {EPC}, v8")
        a(f"v_add3_u32 v10, v10, v9, s{S_WIN}")
        a("s_waitcnt vmcnt(0)")
        a("v_bfe_u32 v11, v12, 11, 11")
        a("v_and_b32 v12, 0x7ff, v12")
        a("v_add_u32 v10, v10, v12")
        a("v_sub_u32 v13, v11, v9")
        a(f"v_subrev_u32 v13, s{S_WIN}, v13")
        a("v_lshlrev_b32 v14, 4, v10")
        a("v_lshlrev_b32 v10, 2, v10")
    seg_setup()
    for r in range(NR):
        a(f"v_cmp_lt_i32 {M(r)}, {2*r}, v13")
    a("K2_slow_batch:")
    a("s_waitcnt vmcnt(0) lgkmcnt(0)")
    a("s_barrier")
    seg_setup()
    a(f"v_lshlrev_b32 v8, 2, v{TID}")
    a("v_mov_b32 v9, 0")
    a(f"v_cmp_gt_u32 vcc, {NPB*4+4}, v{TID}")
    a(f"s_and_saveexec_b64 s[{S_SAVE}:{S_SAVE+1}], vcc")
    a(f"ds_write_b32 v8, v9 offset:{L_HIST}")
    a("s_mov_b64 exec, -1")
    a("s_waitcnt lgkmcnt(0)")
    a("s_barrier")
    a("v_mov_b32 v17, 1")
    a(f"s_mov_b32 s3, {TAG_OFF}")
    a(f"s_mov_b64 s[{S_SAVE}:{S_SAVE+1}], 0")
    for r in range(NR):
        a(f"s_mov_b64 exec, {M(r)}")
        a(f"s_cbranch_execz K2_slow_skip{r}")
        a(f"buffer_load_dword v16, v10, s[{S_WS}:{S_WS+3}], s3 offen offset:{8*r} {SC}")
        a(f"buffer_load_dwordx4 v[{XB}:{XB+3}], v14, s[{S_WS}:{S_WS+3}], 0 offen offset:{32*r} {SC}")
        a("s_waitcnt vmcnt(0)")
        a("v_lshrrev_b32 v8, 18, v16")
        a("v_lshlrev_b32 v9, 4, v8")
        a(f"ds_add_rtn_u32 v15, v9, v17 offset:{L_HIST}")
        a("v_and_b32 v16, 0x3fff, v16")
        a("v_lshlrev_b32 v16, 10, v16")
        a("s_waitcnt lgkmcnt(0)")
        a(f"v_cmp_gt_u32 vcc, {CAPN}, v15")
        a(f"s_andn2_b64 {M(r)}, {M(r)}, vcc")
        a(f"s_or_b64 s[{S_SAVE}:{S_SAVE+1}], s[{S_SAVE}:{S_SAVE+1}], {M(r)}")
        a("s_mov_b64 exec, vcc")
        a("v_lshl_add_u32 v8, v8, 6, v15")
        a("v_lshlrev_b32 v9, 4, v8")
        a("v_lshlrev_b32 v8, 2, v8")
        a(f"ds_write_b128 v9, v[{XB}:{XB+3}] offset:{L_REC}")
        a(f"ds_write_b32 v8, v16 offset:{L_SOFF}")
        a("s_waitcnt lgkmcnt(0)")
        a(f"K2_slow_skip{r}:")
    a("s_mov_b64 exec, -1")
    a(f"v_mov_b32 v9, {L_FLAG}")
    a(f"s_cmp_eq_u64 s[{S_SAVE}:{S_SAVE+1}], 0")
    a("s_cbranch_scc1 K2_slow_nof")
    a("ds_write_b32 v9, v17")
    a("K2_slow_nof:")
    a("s_waitcnt lgkmcnt(0)")
    a("s_barrier")
    a(f"v_and_b32 v7, 7, v{LANE}")
    a(f"s_mul_i32 s3, s{S_WAVE}, 5")
    a("v_add_u32 v11, s3, v7")
    a(f"v_add_u32 v6, s3, v{V_G}")
    a("s_add_u32 s3, s3, 4")
    a("v_mov_b32 v1, s3")
    for (vn, vt) in ((11, 12), (6, 13), (1, 14)):
        a(f"v_lshlrev_b32 v{vt}, 4, v{vn}")
        a(f"ds_read_b32 v{vt}, v{vt} offset:{L_HIST}")
    a("ds_read_b32 v9, v9")
    a("s_waitcnt lgkmcnt(0)")
    for (vn, vt) in ((11, 12), (6, 13), (1, 14)):
        a(f"v_min_u32 v{vt}, {CAPN}, v{vt}")
        a(f"v_lshl_add_u32 v{vn}, v{vt}, 8, v{vn}")
    a(f"v_readfirstlane_b32 s{S_MODE}, v9")
    a("v_mov_b32 v12, 0")
    a("v_mov_b32 v13, 0")
    a(f"s_add_u32 s{S_MODE}, s{S_MODE}, 1")
    a(f"s_mov_b32 s{S_PASS}, 1")
    a("s_branch K2_sched")
    a("K2_slow_next:")
    a(f"s_cmp_eq_u32 s{S_MODE}, 2")
    a("s_cbranch_scc1 K2_slow_batch")
    a(f"s_add_u32 s{S_WIN}, s{S_WIN}, {2*NR}")
    a("s_waitcnt vmcnt(0) lgkmcnt(0)")
    a("s_branch K2_slow_win")
    a("K2_slow_fin:")
    a("s_branch K2_epi")
    a("F_spare:")
    a("s_load_dwordx4 s[52:55], s[0:1], 40")
    a("s_load_dwordx2 s[56:57], s[0:1], 56")
    a("s_cmp_gt_u32 s4, 3")
    a("s_cselect_b32 s3, 1, 0")
    a("s_sub_u32 s4, s4, s3")
    a("s_waitcnt lgkmcnt(0)")
    srd(24, 52, 128)
    srd(28, 54, 1024)
    srd(48, 56, 32768)
    srd(S_WS, 6, WS_USED)
    srd(S_DBG, 62, 256)
    a("s_mov_b32 s58, s4")
    a("v_lshrrev_b32 v1, 6, v0")
    a("s_nop 0")
    a(f"v_readfirstlane_b32 s{S_WAVE}, v1")
    a("s_nop 0")
    a(f"s_cmp_lg_u32 s{S_WAVE}, 0")
    a("s_cbranch_scc1 F_sp_nn")
    nonce_fetch()
    a("s_waitcnt vmcnt(0)")
    nonce_finish()
    a("s_mov_b32 s59, s4")
    a("F_sp_nn:")
    a("s_mov_b32 s4, s58")
    a("s_cmp_gt_u32 s4, 3")
    a("s_cbranch_scc1 F_sp_small")
    a("v_bfe_u32 v1, v0, 8, 1")
    a("v_bfe_u32 v2, v0, 6, 2")
    a("v_bfe_u32 v3, v0, 4, 2")
    a("v_bfe_u32 v4, v0, 2, 2")
    a("v_and_b32 v5, 3, v0")
    a("v_lshlrev_b32 v6, 13, v2")
    a("v_lshl_add_u32 v6, v3, 11, v6")
    a("v_lshl_add_u32 v6, v4, 4, v6")
    a("v_lshl_add_u32 v6, v1, 3, v6")
    a("v_lshl_add_u32 v6, v5, 1, v6")
    a("s_lshl_b32 s3, s4, 6")
    for q in range(8):
        a(f"buffer_load_ushort v{16+q}, v6, s[48:51], s3 offen offset:{q*256}")
    a("v_lshlrev_b32 v7, 4, v0")
    a("s_lshl_b32 s3, s4, 13")
    a(f"s_add_u32 s3, s3, {WT_OFF}")
    a("s_waitcnt vmcnt(0)")
    for q in range(4):
        a(f"v_lshl_or_b32 v{8+q}, v{17+2*q}, 16, v{16+2*q}")
    a(f"buffer_store_dwordx4 v[8:11], v7, s[{S_WS}:{S_WS+3}], s3 offen {SC}")
    a("s_branch F_sp_pub")
    a("F_sp_small:")
    a("s_cmp_eq_u32 s4, 4")
    a("s_cbranch_scc0 F_sp_cg")
    a("v_cmp_gt_u32 vcc, 128, v0")
    a("s_and_saveexec_b64 s[40:41], vcc")
    a("s_cbranch_execz F_sp_pub")
    a("v_lshlrev_b32 v2, 1, v0")
    for kk in range(4):
        a(f"buffer_load_ushort v{8+kk}, v2, s[28:31], 0 offen offset:{kk*256}")
    a("v_lshlrev_b32 v3, 4, v0")
    a(f"s_mov_b32 s3, {WR_OFF}")
    a("s_waitcnt vmcnt(0)")
    for kk in range(4):
        a(f"v_lshlrev_b32 v{8+kk}, 16, v{8+kk}")
    a(f"buffer_store_dwordx4 v[8:11], v3, s[{S_WS}:{S_WS+3}], s3 offen {SC}")
    a("s_branch F_sp_pub")
    a("F_sp_cg:")
    a("v_cmp_gt_u32 vcc, 32, v0")
    a("s_and_saveexec_b64 s[40:41], vcc")
    a("s_cbranch_execz F_sp_pub")
    a("v_lshrrev_b32 v2, 3, v0")
    a("v_bfe_u32 v3, v0, 1, 2")
    a("v_and_b32 v4, 1, v0")
    a("v_lshlrev_b32 v5, 5, v3")
    a("v_lshl_add_u32 v5, v4, 4, v5")
    a("v_lshl_add_u32 v5, v2, 1, v5")
    a("buffer_load_ushort v8, v5, s[24:27], 0 offen")
    a("buffer_load_ushort v9, v5, s[24:27], 0 offen offset:8")
    a("v_lshlrev_b32 v6, 2, v0")
    a(f"s_mov_b32 s3, {CG_OFF}")
    a("s_waitcnt vmcnt(0)")
    a("v_lshl_or_b32 v8, v9, 16, v8")
    a(f"buffer_store_dword v8, v6, s[{S_WS}:{S_WS+3}], s3 offen {SC}")
    a("F_sp_pub:")
    a("s_mov_b64 exec, -1")
    a(f"s_add_u32 s4, s4, {P}")
    a("s_lshl_b32 s4, s4, 3")
    a(f"s_add_u32 s4, s4, {OFFS_OFF}")
    a("s_waitcnt vmcnt(0)")
    a("s_barrier")
    a(f"s_cmp_lg_u32 s{S_WAVE}, 0")
    a("s_cbranch_scc1 F_sp_end")
    a("s_lshl_b32 s3, s59, 22")
    a("v_mov_b32 v8, s3")
    a("v_mov_b32 v9, s59")
    a("v_lshlrev_b32 v2, 13, v0")
    for e in range(4):
        a(f"buffer_store_dwordx2 v[8:9], v2, s[{S_WS}:{S_WS+3}], s4 offen {SC}")
        a("s_add_u32 s4, s4, 2048")
    a("F_sp_end:")
    a("s_endpgm")
    a("K2_code_end:")
    a("s_endpgm")

def gen_report():
    k = "rep_kernel"
    a(f".globl {k}\n.p2align 8\n.type {k},@function\n{k}:")
    a("s_cmp_lg_u32 s2, 0")
    a("s_cbranch_scc1 R_end")
    a("s_load_dwordx4 s[4:7], s[0:1], 72")
    a("s_waitcnt lgkmcnt(0)")
    def red(reg, op):
        wave_scan(reg, op)
    a("v_mov_b32 v10, -1")
    for r in range(11, 30): a(f"v_mov_b32 v{r}, 0")
    a("v_mov_b32 v14, -1")
    a("v_mov_b32 v20, -1")
    a(f"v_lshlrev_b32 v1, 6, v0")
    a(f"v_add_u32 v1, {DBG_OFF}, v1")
    for kx in range(19):
        a("global_load_dwordx4 v[2:5], v1, s[6:7]")
        a("global_load_dwordx4 v[6:9], v1, s[6:7] offset:16")
        a("s_waitcnt vmcnt(0)")
        a("v_min_u32 v10, v10, v2")
        a("v_max_u32 v11, v11, v3")
        a("v_max_u32 v12, v12, v5")
        a("v_max_u32 v13, v13, v8")
        a("v_add_u32 v1, 4096, v1")
    a(f"v_lshlrev_b32 v1, 6, v0")
    a(f"v_add_u32 v1, {DBG_OFF + (1<<20)}, v1")
    for kx in range(31):
        a("global_load_dwordx4 v[2:5], v1, s[6:7]")
        a("global_load_dwordx4 v[6:9], v1, s[6:7] offset:16")
        a("global_load_dword v30, v1, s[6:7] offset:32")
        a("s_waitcnt vmcnt(0)")
        a("v_min_u32 v14, v14, v2")
        a("v_max_u32 v15, v15, v2")
        a("v_max_u32 v16, v16, v3")
        a("v_max_u32 v17, v17, v4")
        a("v_max_u32 v18, v18, v5")
        a("v_max_u32 v19, v19, v6")
        a("v_min_u32 v20, v20, v7")
        a("v_max_u32 v21, v21, v7")
        a("v_max_u32 v22, v22, v8")
        a("v_max_u32 v23, v23, v9")
        a("v_max_u32 v24, v24, v30")
        a("v_add_u32 v1, 4096, v1")
    for r in range(10, 25):
        red(r, "v_min_u32_dpp" if r in (10, 14, 20) else "v_max_u32_dpp")
    a("s_memrealtime s[8:9]")
    a("s_waitcnt lgkmcnt(0)")
    a("v_mov_b32 v25, s8")
    a("s_mov_b32 exec_lo, 0")
    a("s_mov_b32 exec_hi, 0x80000000")
    a("v_mov_b32 v1, 0")
    for r in range(11, 26):
        a(f"v_sub_u32 v2, v{r}, v10")
        a(f"global_store_dword v1, v2, s[4:5] offset:{4*(r-11)}")
    a("R_end:")
    a("s_endpgm")

def kd(name, nv, ns):
    return f""".p2align 6
.amdhsa_kernel {name}
  .amdhsa_next_free_vgpr {nv}
  .amdhsa_next_free_sgpr {ns}
  .amdhsa_accum_offset {(nv+3)//4*4}
  .amdhsa_group_segment_fixed_size 0
  .amdhsa_kernarg_size 88
  .amdhsa_user_sgpr_count 2
  .amdhsa_user_sgpr_kernarg_segment_ptr 1
  .amdhsa_system_sgpr_workgroup_id_x 1
.end_amdhsa_kernel"""

def main():
    hdr = open("cdna_kernels/" + NAME + ".s.ref").read().split("\n")
    hdr = [l for l in hdr[:12] if l.startswith(";")]
    print("\n".join(hdr))
    if env("ASLIST", 0):
        print(f"; @launch kernel={NAME}_kernel grid=(256,1,1) block=({K2_T},1,1) lds={K2_LDS}")
    else:
        print(f"; @launch grid=(256,1,1) block=({K2_T},1,1) lds={K2_LDS}")
    print('.amdgcn_target "amdgcn-amd-amdhsa--gfx950"')
    print(".text")
    gen_k2()
    print("\n".join(("" if (l.endswith(":") or l.startswith(".")) else "    ") + l for l in out))
    print('.section .rodata,"a"')
    print(kd(NAME + "_kernel", 256, 102))

main()
```

```python
import sys, os

NAME = "gather_scatter__tensor_product_equiv_mace__graph"
N = 10000; E = 320000
P = 250; EPC = E // P
NB = 250; NPB = 40
NR = 10
CAPN = 64
env = lambda k, d: type(d)(os.environ.get(k, d))
STAMP = env("STAMP", 0)
STMOD = env("STMOD", "")
K2TOUCH = env("K2TOUCH", 1)
K1TOUCH = env("K1TOUCH", 0)
CODEPF = env("CODEPF", 1)
BAL = env("BAL", 1)
SC = "sc1"
OMOD = env("OMOD", "")
PSL = env("PSL", 2)
L_NONCE = 30720
TCH0 = env("TCH0", 0)
TCH1 = env("TCH1", 0)
XP = env("XP", 0)
ILV = env("ILV", 1)
PRIO = env("PRIO", 0)
ROT = env("ROT", 0)
NOCOMP = env("NOCOMP", 0)
NOMEM = env("NOMEM", 0)

REC_OFF = 0
TAG_OFF = REC_OFF + E * 16
OFFS_OFF = TAG_OFF + E * 4
WT_OFF = OFFS_OFF + 256 * 2048
WR_OFF = WT_OFF + 32768
CG_OFF = WR_OFF + 2048
WS_USED = WT_OFF + 40960 + 4096
DBG_OFF = 8 << 20

out = []
def a(s): out.append(s)
def stamp(i):
    if STAMP: a(f"s_memrealtime s[{64+2*i}:{65+2*i}]")
def stamp_flush(kidx, wavesper, n, swave, vt=1):
    if not STAMP: return
    if STAMP == 4:
        k = env("LEAK", 8)
        a("s_waitcnt lgkmcnt(0)")
        a("s_cmp_lg_u32 s2, 8")
        a("s_cbranch_scc1 K2_end")
        a(f"s_cmp_lg_u32 s{swave}, 0")
        a("s_cbranch_scc1 K2_end")
        a(f"s_sub_u32 s92, s{64+2*k}, s64")
        a("s_mul_i32 s92, s92, 10")
        a("LK_loop:")
        a("s_memrealtime s[94:95]")
        a("s_waitcnt lgkmcnt(0)")
        a("s_sub_u32 s93, s94, s80")
        a("s_cmp_lt_u32 s93, s92")
        a("s_cbranch_scc1 LK_loop")
        return
    if STAMP == 3:
        a("s_mov_b64 exec, -1")
        a("s_waitcnt lgkmcnt(0)")
        a("v_mov_b32 v2, 0")
        for i in range(n):
            a(f"s_sub_u32 s92, s{64+2*i}, s93")
            a(f"s_add_u32 s92, s92, 1000")
            a(f"v_writelane_b32 v2, s92, {i}")
        a("v_mbcnt_lo_u32_b32 v1, -1, 0")
        a("v_lshlrev_b32 v1, 2, v1")
        a("v_sub_u32 v3, 0x100000, v2")
        a(f"s_mov_b64 exec, {(1<<n)-1}")
        a(f"buffer_atomic_umax v2, v1, s[88:91], 0 offen offset:4")
        a(f"s_mov_b64 exec, 0x3f")
        a(f"buffer_atomic_umax v3, v1, s[88:91], 0 offen offset:40")
        return
    a("s_mov_b64 exec, -1")
    a("s_load_dwordx2 s[94:95], s[0:1], 80")
    a(f"s_mul_i32 s92, s2, {wavesper}")
    a(f"s_add_u32 s92, s92, s{swave}")
    a(f"s_lshl_b32 s92, s92, 6")
    a(f"s_add_u32 s92, s92, {DBG_OFF + kidx*(1<<20)}")
    a(f"v_mov_b32 v{vt}, s92")
    a("s_waitcnt lgkmcnt(0)")
    a("s_mov_b64 exec, 1")
    for i in range(n):
        a(f"v_mov_b32 v{vt+1}, s{64+2*i}")
        a(f"global_store_dword v{vt}, v{vt+1}, s[94:95] offset:{4*i}")

def srd(d, base, nbytes):
    a(f"s_mov_b32 s{d}, s{base}")
    a(f"s_and_b32 s{d+1}, s{base+1}, 0xffff")
    a(f"s_mov_b32 s{d+2}, {nbytes}")
    a(f"s_mov_b32 s{d+3}, 0x20000")

def wave_scan(v, op="v_add_u32_dpp"):
    for sh in (1, 2, 4, 8):
        a("s_nop 1")
        a(f"{op} v{v}, v{v}, v{v} row_shr:{sh} row_mask:0xf bank_mask:0xf")
    a("s_nop 1")
    a(f"{op} v{v}, v{v}, v{v} row_bcast:15 row_mask:0xa bank_mask:0xf")
    a("s_nop 1")
    a(f"{op} v{v}, v{v}, v{v} row_bcast:31 row_mask:0xc bank_mask:0xf")

K1_T = 320
K1_HIST = 0; K1_OFFS = 1024; K1_TAG = 2048; K1_REC = K1_TAG + EPC * 4
K1_LDS = K1_REC + EPC * 16
NWPREP = 8
K1_GRID = P + NWPREP

def gen_k1():
    k = "part_kernel"
    a(f".globl {k}\n.p2align 8\n.type {k},@function\n{k}:")
    a(f"s_cmp_ge_u32 s2, {K1_GRID}")
    a("s_cbranch_scc1 K1_end")
    a(f"s_cmp_ge_u32 s2, {P}")
    a("s_cbranch_scc1 K1_wprep")
    stamp(0)
    a("s_load_dwordx4 s[4:7], s[0:1], 8")
    a("s_load_dwordx4 s[8:11], s[0:1], 24")
    a("s_load_dwordx2 s[12:13], s[0:1], 80")
    if K1TOUCH: a("s_load_dwordx2 s[44:45], s[0:1], 0")
    a("v_lshlrev_b32 v1, 4, v0")
    a("v_lshlrev_b32 v2, 5, v0")
    a("v_lshlrev_b32 v3, 2, v0")
    a("v_mov_b32 v4, 0")
    a(f"ds_write_b32 v3, v4 offset:{K1_HIST}")
    a(f"s_mul_i32 s14, s2, {EPC*4}")
    a(f"s_mul_i32 s15, s2, {EPC*8}")
    a("v_lshrrev_b32 v5, 6, v0")
    a("s_waitcnt lgkmcnt(0)")
    srd(20, 6, E * 4)
    a("buffer_load_dwordx4 v[8:11], v1, s[20:23], s14 offen")
    srd(16, 4, E * 4)
    a("buffer_load_dwordx4 v[12:15], v1, s[16:19], s14 offen")
    srd(24, 8, E * 8)
    srd(28, 10, E * 8)
    srd(32, 12, WS_USED)
    a("v_readfirstlane_b32 s47, v5")
    a("s_barrier")
    a("buffer_load_dwordx4 v[16:19], v2, s[24:27], s15 offen")
    a("buffer_load_dwordx4 v[20:23], v2, s[24:27], s15 offen offset:16")
    a("buffer_load_dwordx4 v[24:27], v2, s[28:31], s15 offen")
    a("buffer_load_dwordx4 v[28:31], v2, s[28:31], s15 offen offset:16")
    a("s_mov_b32 s40, 52429")
    a("s_mov_b32 s41, -40")
    a("s_mov_b32 s42, 6711")
    a("v_mov_b32 v5, 1")
    a("v_and_b32 v6, 63, v0")
    a("v_lshlrev_b32 v6, 4, v6")
    a("s_waitcnt vmcnt(5)")
    stamp(1)
    for e in range(4):
        a(f"v_mul_u32_u24 v{32+e}, s40, v{8+e}")
        a(f"v_lshrrev_b32 v{32+e}, 21, v{32+e}")
        a(f"v_lshlrev_b32 v{36+e}, 2, v{32+e}")
        a(f"ds_add_rtn_u32 v{40+e}, v{36+e}, v5 offset:{K1_HIST}")
    a("s_waitcnt vmcnt(4)")
    for e in range(4):
        a(f"v_mad_i32_i24 v{8+e}, v{32+e}, s41, v{8+e}")
        if ROT:
            a(f"v_lshl_add_u32 v{44+e}, v{32+e}, 3, 7")
            a(f"v_mul_u32_u24 v{44+e}, 4195, v{44+e}")
            a(f"v_lshrrev_b32 v{44+e}, 20, v{44+e}")
            a(f"v_mul_u32_u24 v{44+e}, {ROT}, v{44+e}")
        a(f"v_mul_u32_u24 v{32+e}, s42, v{12+e}")
        a(f"v_lshrrev_b32 v{32+e}, 22, v{32+e}")
        if ROT:
            a(f"v_add_u32 v{32+e}, v{32+e}, v{44+e}")
            a(f"v_and_b32 v{32+e}, 15, v{32+e}")
        a(f"v_lshl_add_u32 v{8+e}, v{8+e}, 4, v{32+e}")
        a(f"v_lshl_add_u32 v{12+e}, v{8+e}, 14, v{12+e}")
    a("s_waitcnt lgkmcnt(0)")
    a("s_barrier")
    stamp(2)
    if K1TOUCH:
        srd(36, 44, N * 1024)
        a(f"s_mul_i32 s46, s2, {K1_T*16}")
        for r in range(K1TOUCH):
            a("buffer_load_dwordx4 v[56:59], v1, s[36:39], s46 offen")
            a(f"s_add_u32 s46, s46, {P*K1_T*16}")
    a(f"ds_read_b128 v[44:47], v6 offset:{K1_HIST}")
    a("s_waitcnt lgkmcnt(0)")
    a("v_add_u32 v48, v44, v45")
    a("v_add3_u32 v48, v48, v46, v47")
    a("v_mov_b32 v49, v48")
    wave_scan(49)
    a("v_sub_u32 v52, v49, v48")
    a("v_add_u32 v53, v52, v44")
    a("v_add_u32 v54, v53, v45")
    a("v_add_u32 v55, v54, v46")
    a(f"ds_write_b128 v6, v[52:55] offset:{K1_OFFS}")
    for e in range(4):
        a(f"ds_read_b32 v{32+e}, v{36+e} offset:{K1_OFFS}")
    a("s_cmp_lg_u32 s47, 0")
    a("s_cbranch_scc1 K1_noffs")
    a("s_lshl_b32 s43, s2, 10")
    a(f"s_add_u32 s43, s43, {OFFS_OFF}")
    a(f"buffer_store_dwordx4 v[52:55], v6, s[32:35], s43 offen {STMOD}")
    a(f"s_waitcnt vmcnt({K1TOUCH+1}) lgkmcnt(0)")
    a("s_branch K1_go")
    a("K1_noffs:")
    a(f"s_waitcnt vmcnt({K1TOUCH}) lgkmcnt(0)")
    a("K1_go:")
    stamp(3)
    for e in range(4):
        a(f"v_add_u32 v{32+e}, v{32+e}, v{40+e}")
        a(f"v_lshlrev_b32 v{36+e}, 4, v{32+e}")
        a(f"v_add_u32 v{36+e}, {K1_REC}, v{36+e}")
        a(f"v_lshlrev_b32 v{32+e}, 2, v{32+e}")
        a(f"ds_write2_b64 v{36+e}, v[{16+2*e}:{17+2*e}], v[{24+2*e}:{25+2*e}] offset0:0 offset1:1")
        a(f"ds_write_b32 v{32+e}, v{12+e} offset:{K1_TAG}")
    a(f"s_mul_i32 s43, s2, {EPC*16}")
    a(f"s_add_u32 s46, s14, {TAG_OFF}")
    a("s_waitcnt lgkmcnt(0)")
    a("s_barrier")
    stamp(4)
    a(f"ds_read_b128 v[24:27], v1 offset:{K1_TAG}")
    for r in range(4):
        a(f"ds_read_b128 v[{8+4*r}:{11+4*r}], v1 offset:{K1_REC + r*K1_T*16}")
    a("s_waitcnt lgkmcnt(4)")
    a(f"buffer_store_dwordx4 v[24:27], v1, s[32:35], s46 offen {STMOD}")
    for r in range(4):
        a(f"s_waitcnt lgkmcnt({3-r})")
        a(f"buffer_store_dwordx4 v[{8+4*r}:{11+4*r}], v1, s[32:35], s43 offen {STMOD}")
        a(f"s_add_u32 s43, s43, {K1_T*16}")
    stamp(5)
    if STAMP: a("s_waitcnt vmcnt(0)")
    stamp(6)
    stamp_flush(0, 5, 7, 47, 40)
    a("s_endpgm")
    a("K1_wprep:")
    a("s_load_dwordx4 s[4:7], s[0:1], 40")
    a("s_load_dwordx2 s[8:9], s[0:1], 56")
    a("s_load_dwordx2 s[12:13], s[0:1], 80")
    a(f"s_sub_u32 s14, s2, {P}")
    a("s_waitcnt lgkmcnt(0)")
    srd(16, 4, 128)
    srd(20, 6, 1024)
    srd(24, 8, 32768)
    srd(32, 12, WS_USED)
    a("v_cmp_gt_u32 vcc, 256, v0")
    a("s_and_saveexec_b64 s[36:37], vcc")
    a("s_cbranch_execz K1_wsmall")
    a("v_bfe_u32 v2, v0, 6, 2")
    a("v_bfe_u32 v3, v0, 4, 2")
    a("v_bfe_u32 v4, v0, 2, 2")
    a("v_and_b32 v5, 3, v0")
    a("v_lshlrev_b32 v6, 13, v2")
    a("v_lshl_add_u32 v6, v3, 11, v6")
    a("v_lshl_add_u32 v6, v4, 4, v6")
    a("v_lshl_add_u32 v6, v5, 1, v6")
    a("s_lshr_b32 s15, s14, 1")
    a("s_lshl_b32 s15, s15, 6")
    a("s_and_b32 s38, s14, 1")
    a("s_lshl_b32 s38, s38, 3")
    a("s_add_u32 s15, s15, s38")
    for q in range(8):
        a(f"buffer_load_ushort v{16+q}, v6, s[24:27], s15 offen offset:{q*256}")
    a("v_lshlrev_b32 v7, 4, v0")
    a("s_lshl_b32 s15, s14, 12")
    a(f"s_add_u32 s15, s15, {WT_OFF}")
    a("s_waitcnt vmcnt(0)")
    for q in range(4):
        a(f"v_lshl_or_b32 v{8+q}, v{17+2*q}, 16, v{16+2*q}")
    a("buffer_store_dwordx4 v[8:11], v7, s[32:35], s15 offen")
    a("s_endpgm")
    a("K1_wsmall:")
    a("s_mov_b64 exec, s[36:37]")
    a("v_subrev_u32 v1, 256, v0")
    a("s_cmp_lt_u32 s14, 2")
    a("s_cbranch_scc0 K1_wcg")
    a("s_lshl_b32 s15, s14, 6")
    a("v_add_u32 v1, s15, v1")
    a("v_lshlrev_b32 v2, 1, v1")
    for kk in range(4):
        a(f"buffer_load_ushort v{8+kk}, v2, s[20:23], 0 offen offset:{kk*256}")
    a("v_lshlrev_b32 v3, 4, v1")
    a(f"s_mov_b32 s15, {WR_OFF}")
    a("s_waitcnt vmcnt(0)")
    for kk in range(4):
        a(f"v_lshlrev_b32 v{8+kk}, 16, v{8+kk}")
    a("buffer_store_dwordx4 v[8:11], v3, s[32:35], s15 offen")
    a("s_endpgm")
    a("K1_wcg:")
    a("s_cmp_eq_u32 s14, 2")
    a("s_cbranch_scc0 K1_wcode")
    a("v_cmp_gt_u32 vcc, 32, v1")
    a("s_and_saveexec_b64 s[36:37], vcc")
    a("v_lshrrev_b32 v2, 3, v1")
    a("v_bfe_u32 v3, v1, 1, 2")
    a("v_and_b32 v4, 1, v1")
    a("v_lshlrev_b32 v5, 5, v3")
    a("v_lshl_add_u32 v5, v4, 4, v5")
    a("v_lshl_add_u32 v5, v2, 1, v5")
    a("buffer_load_ushort v8, v5, s[16:19], 0 offen")
    a("buffer_load_ushort v9, v5, s[16:19], 0 offen offset:8")
    a("v_lshlrev_b32 v6, 2, v1")
    a(f"s_mov_b32 s15, {CG_OFF}")
    a("s_waitcnt vmcnt(0)")
    a("v_lshl_or_b32 v8, v9, 16, v8")
    a("buffer_store_dword v8, v6, s[32:35], s15 offen")
    a("s_endpgm")
    a("K1_wcode:")
    if CODEPF:
        a("s_cmp_eq_u32 s14, 3")
        a("s_cbranch_scc0 K1_end")
        a("s_getpc_b64 s[40:41]")
        a("K1_pc:")
        a("s_add_u32 s40, s40, main_kernel-K1_pc")
        a("s_addc_u32 s41, s41, 0")
        a("v_lshlrev_b32 v2, 6, v1")
        for r in range(4):
            a("v_cmp_gt_u32 vcc, K2_code_end-main_kernel, v2")
            a("s_and_b64 exec, exec, vcc")
            a("s_cbranch_execz K1_wcode_done")
            a(f"global_load_dword v{8+r}, v2, s[40:41]")
            a("v_add_u32 v2, 4096, v2")
        a("K1_wcode_done:")
        a("s_waitcnt vmcnt(0)")
    a("K1_end:")
    a("s_endpgm")

K2_T = 512
SLOTS = NPB * CAPN + 8
DUMMY = NPB * CAPN
L_REC = 0
L_SOFF = L_REC + SLOTS * 16
L_HIST = L_SOFF + SLOTS * 4
L_FLAG = L_HIST + NPB * 16
L_PRE = L_FLAG + 16
L_NODE = L_PRE + NPB * 16 + 512
L_TAB = L_NODE + 512
L_LST = L_TAB + 1024
L_WT = (L_LST + 4096 + 255) // 256 * 256
L_WR = L_WT + 32768
L_AGG = L_WT + 32768 + 2048
AGG_RS = 272
K2_LDS = L_AGG + (NPB * 4 + 12) * AGG_RS
OOB = 0x7f000000
BARK = env("BARK", 2)
NXB = 4

ACC = 96; XB = 32; CG = 24; OPS = 18; AOP = 16; AT = 12; RECV = 8
V_LIST1 = 7; V_SOFF = 6; V_T = 5; V_COL16 = 4; V_G = 3; V_LIST = 2; V_T2 = 1; V_EASEL = 0
S_X = 8; S_WS = 12; S_OUT = 16
S_WAVE = 20; S_SELLO = 21; S_SELHI = 22; S_IDX = 23
S_S0 = 24; S_S1 = 26
S_EA = 28; S_EB = 29; S_IDX2 = 30; S_LEFT = 31; S_RC = 32; S_MORE = 33
S_T = 34; S_PASS = 35; S_MODE = 36; S_WIN = 37; S_MAXC = 38; S_B = 39
S_MASK = 40
S_SAVE = 60

def lane_id(v):
    a(f"v_mbcnt_lo_u32_b32 v{v}, -1, 0")
    a(f"v_mbcnt_hi_u32_b32 v{v}, -1, v{v}")

tail_code = []
uid = [0]
def ld_x(b):
    r = []
    for u in range(4):
        x = XB + 16 * b + 4 * u
        r.append(f"buffer_load_dwordx4 v[{x}:{x+3}], v{V_SOFF}, s[{S_X}:{S_X+3}], 0 offen offset:{u*256}")
    return r
def addr_fix():
    a(f"v_add_u32 v{V_SOFF}, v{V_SOFF}, v{V_COL16}")
    if NOMEM == 1: a(f"v_mov_b32 v{V_SOFF}, {OOB}")
    if NOMEM == 3: a(f"v_and_b32 v{V_SOFF}, 0xfffff, v{V_SOFF}")

S_DBG = 88
def nonce_fetch():
    a("s_memrealtime s[4:5]")
    a("v_mov_b32 v21, 0")
    a("v_mov_b32 v19, 0")
    a("s_waitcnt lgkmcnt(0)")
    a("s_or_b32 s4, s4, 1")
    a("v_mov_b32 v20, s4")
    a("v_mov_b32 v18, s4")
    a("s_mov_b64 exec, 1")
    a(f"buffer_atomic_cmpswap v[20:21], v19, s[{S_DBG}:{S_DBG+3}], 0 offen sc0 sc1")
    a("s_mov_b64 exec, -1")
def nonce_finish():
    a("v_readfirstlane_b32 s5, v20")
    a("v_readfirstlane_b32 s4, v18")
    a("s_nop 0")
    a("s_cmp_eq_u32 s5, 0")
    a("s_cselect_b32 s4, s4, s5")
def gen_k2():
    k = NAME + "_kernel"
    a(f".globl {k}\n.p2align 8\n.type {k},@function\n{k}:")
    a("s_cmp_ge_u32 s2, 256")
    a("s_cbranch_scc1 K2_end")
    stamp(0)
    a("s_load_dwordx8 s[40:47], s[0:1], 0")
    a("s_load_dwordx2 s[48:49], s[0:1], 32")
    a("s_load_dwordx4 s[60:63], s[0:1], 64")
    a("s_load_dwordx2 s[6:7], s[0:1], 80")
    a("s_and_b32 s4, s2, 7")
    a(f"s_mul_i32 s3, s4, {NB}")
    a(f"s_add_u32 s{S_T}, s3, {NB}")
    a("s_lshr_b32 s3, s3, 3")
    a(f"s_lshr_b32 s{S_T}, s{S_T}, 3")
    a(f"s_lshr_b32 s{S_B}, s2, 3")
    a(f"s_add_u32 s{S_B}, s{S_B}, s3")
    a(f"s_cmp_ge_u32 s{S_B}, s{S_T}")
    a("s_cbranch_scc1 F_spare")
    TID = 23; LANE = 22
    a("v_lshrrev_b32 v5, 6, v0")
    a("v_lshlrev_b32 v1, 4, v0")
    a("v_lshlrev_b32 v2, 5, v0")
    a("v_lshlrev_b32 v3, 2, v0")
    a("v_mov_b32 v4, 0")
    a(f"v_readfirstlane_b32 s{S_WAVE}, v5")
    a(f"ds_write_b32 v3, v4 offset:{K1_HIST}")
    a(f"v_cmp_gt_u32 vcc, {NPB*4+4}, v0")
    a(f"s_and_saveexec_b64 s[4:5], vcc")
    a(f"ds_write_b32 v3, v4 offset:{L_HIST}")
    a(f"s_mov_b64 exec, s[4:5]")
    a(f"s_mul_i32 s58, s{S_B}, {EPC*4}")
    a(f"s_mul_i32 s59, s{S_B}, {EPC*8}")
    a("s_waitcnt lgkmcnt(0)")
    srd(S_X, 40, N * 1024)
    srd(24, 44, E * 4)
    srd(28, 42, E * 4)
    a(f"s_cmp_gt_u32 s{S_WAVE}, 4")
    a("s_cbranch_scc1 F_i0")
    a("buffer_load_dwordx4 v[8:11], v1, s[24:27], s58 offen")
    a("buffer_load_dwordx4 v[12:15], v1, s[28:31], s58 offen")
    a("F_i0:")
    srd(52, 48, E * 8)
    srd(48, 46, E * 8)
    srd(S_WS, 6, WS_USED)
    srd(S_OUT, 60, N * 1024)
    srd(S_DBG, 62, 256)
    a("s_barrier")
    a(f"s_cmp_gt_u32 s{S_WAVE}, 4")
    a("s_cbranch_scc1 F_idle")
    a("buffer_load_dwordx4 v[16:19], v2, s[48:51], s59 offen")
    a("buffer_load_dwordx4 v[20:23], v2, s[48:51], s59 offen offset:16")
    a("buffer_load_dwordx4 v[24:27], v2, s[52:55], s59 offen")
    a("buffer_load_dwordx4 v[28:31], v2, s[52:55], s59 offen offset:16")
    for r in range(160):
        a(f"v_mov_b32 v{ACC+r}, 0")
    a("s_mov_b32 s40, 52429")
    a("s_mov_b32 s41, -40")
    a("s_mov_b32 s42, 6711")
    a("v_mov_b32 v5, 1")
    a("v_and_b32 v6, 63, v0")
    a("v_lshlrev_b32 v6, 4, v6")
    a("s_waitcnt vmcnt(5)")
    for e in range(4):
        a(f"v_mul_u32_u24 v{32+e}, s40, v{8+e}")
        a(f"v_lshrrev_b32 v{32+e}, 21, v{32+e}")
        a(f"v_lshlrev_b32 v{36+e}, 2, v{32+e}")
        a(f"ds_add_rtn_u32 v{40+e}, v{36+e}, v5 offset:{K1_HIST}")
    a("s_waitcnt vmcnt(4)")
    for e in range(4):
        a(f"v_mad_i32_i24 v{8+e}, v{32+e}, s41, v{8+e}")
        a(f"v_mul_u32_u24 v{32+e}, s42, v{12+e}")
        a(f"v_lshrrev_b32 v{32+e}, 22, v{32+e}")
        a(f"v_lshl_add_u32 v{8+e}, v{8+e}, 4, v{32+e}")
        a(f"v_lshl_add_u32 v{12+e}, v{8+e}, 14, v{12+e}")
    a("s_waitcnt lgkmcnt(0)")
    a("s_barrier")
    a(f"ds_read_b128 v[44:47], v6 offset:{K1_HIST}")
    a("s_waitcnt lgkmcnt(0)")
    a("v_add_u32 v48, v44, v45")
    a("v_add3_u32 v48, v48, v46, v47")
    a("v_mov_b32 v49, v48")
    wave_scan(49)
    a("v_sub_u32 v52, v49, v48")
    a("v_add_u32 v53, v52, v44")
    a("v_add_u32 v54, v53, v45")
    a("v_add_u32 v55, v54, v46")
    a(f"ds_write_b128 v6, v[52:55] offset:{K1_OFFS}")
    for e in range(4):
        a(f"ds_read_b32 v{32+e}, v{36+e} offset:{K1_OFFS}")
    a("s_waitcnt vmcnt(0) lgkmcnt(0)")
    for e in range(4):
        a(f"v_add_u32 v{32+e}, v{32+e}, v{40+e}")
        a(f"v_lshlrev_b32 v{36+e}, 4, v{32+e}")
        a(f"v_add_u32 v{36+e}, {K1_REC}, v{36+e}")
        a(f"v_lshlrev_b32 v{32+e}, 2, v{32+e}")
        a(f"ds_write2_b64 v{36+e}, v[{16+2*e}:{17+2*e}], v[{24+2*e}:{25+2*e}] offset0:0 offset1:1")
        a(f"ds_write_b32 v{32+e}, v{12+e} offset:{K1_TAG}")
    a(f"s_mul_i32 s43, s{S_B}, {EPC*16}")
    a(f"s_add_u32 s46, s58, {TAG_OFF}")
    a("s_waitcnt lgkmcnt(0)")
    a("s_barrier")
    a(f"ds_read_b128 v[24:27], v1 offset:{K1_TAG}")
    for r in range(4):
        a(f"ds_read_b128 v[{8+4*r}:{11+4*r}], v1 offset:{K1_REC + r*K1_T*16}")
    a("s_waitcnt lgkmcnt(4)")
    a(f"buffer_store_dwordx4 v[24:27], v1, s[{S_WS}:{S_WS+3}], s46 offen {SC}")
    for r in range(4):
        a(f"s_waitcnt lgkmcnt({3-r})")
        a(f"buffer_store_dwordx4 v[{8+4*r}:{11+4*r}], v1, s[{S_WS}:{S_WS+3}], s43 offen {SC}")
        a(f"s_add_u32 s43, s43, {K1_T*16}")
    a("s_branch F_join")
    a("F_idle:")
    a(f"s_cmp_lg_u32 s{S_WAVE}, 5")
    a("s_cbranch_scc1 F_nononce")
    nonce_fetch()
    a("F_nononce:")
    if CODEPF:
        a("s_getpc_b64 s[4:5]")
        a("K2_pc:")
        a("v_subrev_u32 v14, 320, v0")
        a("v_lshlrev_b32 v14, 7, v14")
        a("v_cmp_gt_u32 vcc, K2_code_end-K2_pc, v14")
        a(f"s_and_saveexec_b64 s[40:41], vcc")
        a("s_cbranch_execz K2_nocpf")
        a("global_load_dword v15, v14, s[4:5]")
        a("K2_nocpf:")
        a(f"s_mov_b64 exec, s[40:41]")
    for r in range(160):
        a(f"v_mov_b32 v{ACC+r}, 0")
    a("s_barrier")
    tdone = [0]
    def idle_touch(n):
        a("v_subrev_u32 v14, 320, v0")
        a("v_lshlrev_b32 v14, 4, v14")
        for _ in range(n):
            a(f"s_mul_i32 s43, s{S_B}, 3072")
            a(f"s_add_u32 s43, s43, {tdone[0]*NB*3072}")
            a(f"buffer_load_dwordx4 v[16:19], v14, s[{S_X}:{S_X+3}], s43 offen")
            tdone[0] += 1
    a("s_barrier")
    a(f"s_cmp_lg_u32 s{S_WAVE}, 5")
    a("s_cbranch_scc1 F_nononce2")
    a("s_waitcnt vmcnt(0)")
    nonce_finish()
    a(f"v_mov_b32 v19, {L_NONCE}")
    a("v_mov_b32 v20, s4")
    a("ds_write_b32 v19, v20")
    a("s_waitcnt lgkmcnt(0)")
    a("F_nononce2:")
    idle_touch(TCH0)
    a("F_join:")
    a(f"v_mov_b32 v{TID}, v0")
    a(f"v_and_b32 v{LANE}, 63, v0")
    a(f"v_and_b32 v{V_COL16}, 15, v{TID}")
    a(f"v_lshlrev_b32 v{V_COL16}, 4, v{V_COL16}")
    a(f"v_lshrrev_b32 v{V_G}, 4, v{LANE}")
    a(f"v_and_b32 v{V_EASEL}, 3, v{TID}")
    a(f"v_mul_u32_u24 v{V_EASEL}, 0x0202, v{V_EASEL}")
    a(f"v_add_u32 v{V_EASEL}, 0x0100, v{V_EASEL}")
    a(f"v_lshlrev_b32 v{V_EASEL}, 16, v{V_EASEL}")
    a(f"v_or_b32 v{V_EASEL}, 0x0c0c, v{V_EASEL}")
    a(f"s_mov_b32 s{S_SELLO}, 0x05040100")
    a(f"s_mov_b32 s{S_SELHI}, 0x07060302")
    a(f"s_mov_b32 s{S_MODE}, 0")
    a(f"v_lshrrev_b32 v28, 1, v{TID}")
    a(f"v_and_b32 v29, 1, v{TID}")
    a("v_lshlrev_b32 v30, 3, v28")
    a(f"v_mov_b32 v31, {L_NONCE}")
    a(f"s_cmp_gt_u32 s{S_WAVE}, 4")
    a("s_cbranch_scc1 F_nw")
    for e in range(1, 4):
        a(f"s_cmp_eq_u32 s{S_WAVE}, {e}")
        a("s_cselect_b64 vcc, -1, 0")
        a(f"v_cndmask_b32 v44, v44, v{44+e}, vcc")
        a(f"v_cndmask_b32 v52, v52, v{52+e}, vcc")
    a("v_lshl_or_b32 v56, v44, 11, v52")
    a(f"v_lshlrev_b32 v2, 13, v{LANE}")
    a("s_waitcnt vmcnt(0)")
    a("F_nw:")
    a("s_barrier")
    stamp(1)
    a("ds_read_b32 v31, v31")
    a(f"s_lshl_b32 s3, s{S_B}, 11")
    a(f"s_add_u32 s3, s3, {OFFS_OFF}")
    a(f"s_lshl_b32 s4, s{S_WAVE}, 11")
    a(f"s_lshl_b32 s5, s{S_B}, 3")
    a("s_add_u32 s4, s4, s5")
    a(f"s_add_u32 s4, s4, {OFFS_OFF}")
    a("s_waitcnt lgkmcnt(0)")
    a("v_lshlrev_b32 v1, 22, v31")
    if STAMP == 3: a("v_readfirstlane_b32 s93, v31")
    a(f"s_cmp_gt_u32 s{S_WAVE}, 3")
    a("s_cbranch_scc1 F_nopub")
    a("v_or_b32 v56, v56, v1")
    a("v_mov_b32 v57, v31")
    a(f"buffer_store_dwordx2 v[56:57], v2, s[{S_WS}:{S_WS+3}], s4 offen {SC}")
    a("F_nopub:")
    a("s_mov_b32 s4, 0")
    a("F_poll:")
    a(f"buffer_load_dwordx2 v[12:13], v30, s[{S_WS}:{S_WS+3}], s3 offen {SC}")
    a("s_add_u32 s4, s4, 1")
    a("s_waitcnt vmcnt(0)")
    a("v_xor_b32 v14, v12, v1")
    a("v_lshrrev_b32 v14, 22, v14")
    a("v_xor_b32 v15, v13, v31")
    a("v_or_b32 v14, v14, v15")
    a("v_cmp_ne_u32 vcc, 0, v14")
    a("s_and_b64 exec, exec, vcc")
    a("s_cbranch_execz F_go")
    a("s_cmp_gt_u32 s4, 0x40000")
    a("s_cbranch_scc1 K2_end")
    a(f"s_sleep {PSL}")
    a("s_branch F_poll")
    a("F_go:")
    a("s_mov_b64 exec, -1")
    stamp(2)
    a("v_mov_b32 v8, v28")
    a("v_mov_b32 v9, v29")
    a(f"v_mul_u32_u24 v10, {EPC}, v8")
    a("v_add_u32 v10, v10, v9")
    a("v_bfe_u32 v11, v12, 11, 11")
    a("v_and_b32 v12, 0x7ff, v12")
    a("v_add_u32 v10, v10, v12")
    a("v_sub_u32 v13, v11, v9")
    a("v_lshlrev_b32 v14, 4, v10")
    a("v_lshlrev_b32 v10, 2, v10")
    a(f"s_mov_b32 s3, {TAG_OFF}")
    RB = XB; TG = XB + 40; RK = XB + 50
    M = lambda r: f"s[{S_MASK+2*r}:{S_MASK+2*r+1}]"
    for r in range(NR):
        a(f"v_cmp_lt_i32 {M(r)}, {2*r}, v13")
    for r in range(NR):
        a(f"s_mov_b64 exec, {M(r)}")
        a("s_cbranch_execz K2_ld_done")
        a(f"buffer_load_dword v{TG+r}, v10, s[{S_WS}:{S_WS+3}], s3 offen offset:{8*r} {SC}")
        a(f"buffer_load_dwordx4 v[{RB+4*r}:{RB+4*r+3}], v14, s[{S_WS}:{S_WS+3}], 0 offen offset:{32*r} {SC}")
    a("K2_ld_done:")
    a("s_mov_b64 exec, -1")
    a(f"v_cmp_lt_u32 s[{S_SAVE}:{S_SAVE+1}], {2*NR}, v11")
    a("v_mov_b32 v17, 1")
    a("s_waitcnt vmcnt(0)")
    for r in range(NR):
        a(f"s_mov_b64 exec, {M(r)}")
        a("s_cbranch_execz K2_h_done")
        a(f"v_lshrrev_b32 v8, 14, v{TG+r}")
        a(f"v_and_b32 v9, 0xffc, v8")
        a(f"v_lshlrev_b32 v8, 3, v8")
        a(f"v_lshlrev_b32 v8, v8, v17")
        a(f"ds_add_rtn_u32 v{RK+r}, v9, v8 offset:{L_HIST}")
    a("K2_h_done:")
    a("s_mov_b64 exec, -1")
    a("s_waitcnt lgkmcnt(0)")
    for r in range(NR):
        a(f"s_mov_b64 exec, {M(r)}")
        a("s_cbranch_execz K2_r_done")
        a(f"v_lshrrev_b32 v8, 11, v{TG+r}")
        a(f"v_and_b32 v8, 24, v8")
        a(f"v_bfe_u32 v{RK+r}, v{RK+r}, v8, 8")
        a(f"v_cmp_lt_u32 vcc, {CAPN-1}, v{RK+r}")
        a(f"s_or_b64 s[{S_SAVE}:{S_SAVE+1}], s[{S_SAVE}:{S_SAVE+1}], vcc")
    a("K2_r_done:")
    a("s_mov_b64 exec, -1")
    a(f"v_mov_b32 v9, {L_FLAG}")
    a(f"s_cmp_eq_u64 s[{S_SAVE}:{S_SAVE+1}], 0")
    a("s_cbranch_scc1 K2_noflag")
    a("ds_write_b32 v9, v17")
    a("K2_noflag:")
    a(f"v_lshlrev_b32 v8, 4, v{LANE}")
    a("s_waitcnt lgkmcnt(0)")
    a("s_barrier")
    stamp(3)
    a(f"ds_read_b128 v[12:15], v8 offset:{L_HIST}")
    a("ds_read_b32 v9, v9")
    a(f"v_lshlrev_b32 v{V_T}, 4, v{TID}")
    a(f"v_bfe_u32 v16, v{TID}, 2, 2")
    a("v_lshlrev_b32 v16, 5, v16")
    a(f"s_mov_b32 s3, {CG_OFF}")
    a(f"buffer_load_dwordx4 v[{CG}:{CG+3}], v16, s[{S_WS}:{S_WS+3}], s3 offen {SC}")
    a(f"buffer_load_dwordx4 v[{CG+4}:{CG+7}], v16, s[{S_WS}:{S_WS+3}], s3 offen offset:16 {SC}")
    a(f"v_lshlrev_b32 v16, 2, v{TID}")
    a(f"s_lshl_b32 s3, s{S_WAVE}, 8")
    a(f"s_add_u32 s3, s3, {L_WR}")
    a("s_mov_b32 m0, s3")
    a(f"s_mov_b32 s3, {WR_OFF}")
    a(f"buffer_load_dword v16, s[{S_WS}:{S_WS+3}], s3 offen {SC} lds")
    bg = []
    for r in range(4):
        bg.append([f"s_lshl_b32 s5, s{S_WAVE}, 10", f"s_add_u32 s5, s5, {L_WT + r*K2_T*16}", "s_mov_b32 m0, s5",
                   f"s_mov_b32 s5, {WT_OFF + r*K2_T*16}",
                   f"buffer_load_dwordx4 v{V_T}, s[{S_WS}:{S_WS+3}], s5 offen {SC} lds"])
    tch = []
    if K2TOUCH:
        per = K2_T * 16
        k1bytes = tdone[0] * NB * 3072
        for r in range(N * 1024 // (NB * per)):
            if (r + 1) * NB * per <= k1bytes: continue
            tch.append([f"s_lshl_b32 s5, s{S_B}, 13", f"s_add_u32 s5, s5, {r*NB*per}",
                        f"buffer_load_dwordx4 v[{XB+60}:{XB+63}], v{V_T}, s[{S_X}:{S_X+3}], s5 offen"])
    bg = tch + bg
    NBG = len(bg) + 1
    def bgop(n=1):
        for _ in range(n):
            if bg:
                for x in bg.pop(0): a(x)
    bgop(2)
    a("s_waitcnt lgkmcnt(0)")
    a("s_mov_b32 s3, 0x01010101")
    a("v_mov_b32 v10, 0")
    PW = 18
    for q in range(4):
        H = 12 + q
        a(f"v_lshlrev_b32 v{PW+q}, 8, v{H}")
        a(f"v_lshl_add_u32 v{PW+q}, v{H}, 16, v{PW+q}")
        a(f"v_lshl_add_u32 v{PW+q}, v{H}, 24, v{PW+q}")
        if q > 0:
            a(f"v_mul_lo_u32 v11, v10, s3")
            a(f"v_add_u32 v{PW+q}, v{PW+q}, v11")
        a(f"v_sad_u8 v10, v{H}, 0, v10")
    a(f"v_cmp_gt_u32 vcc, {NPB}, v{LANE}")
    a(f"s_and_saveexec_b64 s[{S_SAVE}:{S_SAVE+1}], vcc")
    a(f"ds_write_b128 v8, v[{PW}:{PW+3}] offset:{L_PRE}")
    a(f"v_cmp_lt_u32 vcc, {CAPN}, v10")
    a(f"s_mov_b64 exec, s[{S_SAVE}:{S_SAVE+1}]")
    a("v_readfirstlane_b32 s3, v9")
    a("s_cmp_lg_u64 vcc, 0")
    a("s_cbranch_scc1 K2_slow")
    a("s_cmp_lg_u32 s3, 0")
    a("s_cbranch_scc1 K2_slow")
    bg_slow = [list(x) for x in bg]
    PR = [12, 13, 14, 15, 16, 17, 18, 19, 20, 21]
    for r in range(NR):
        a(f"s_mov_b64 exec, {M(r)}")
        a("s_cbranch_execz K2_p_done")
        a(f"v_lshrrev_b32 v8, 14, v{TG+r}")
        a(f"ds_read_u8 v{PR[r]}, v8 offset:{L_PRE}")
    a("K2_p_done:")
    a("s_mov_b64 exec, -1")
    bgop(1)
    a(f"v_and_b32 v7, 7, v{LANE}")
    a("v_add_u32 v8, 3, v10")
    a("v_lshrrev_b32 v8, 2, v8")
    a("v_subrev_u32 v8, 5, v8")
    a("v_med3_i32 v8, v8, 0, 7")
    a(f"v_cmp_gt_u32 vcc, {NPB}, v{LANE}")
    a("v_mov_b32 v9, 63")
    a("s_nop 0")
    a("v_cndmask_b32 v8, 64, v8, vcc")
    KM = [24, 26, 28, 30, 32, 82, 84, 86]
    for q in range(8):
        a(f"v_cmp_eq_u32 s[{KM[q]}:{KM[q]+1}], {q}, v8")
    a("s_mov_b32 s3, 0")
    for q in range(7, -1, -1):
        a(f"s_mov_b64 exec, s[{KM[q]}:{KM[q]+1}]")
        a(f"v_mbcnt_lo_u32_b32 v9, s{KM[q]}, 0")
        a(f"v_mbcnt_hi_u32_b32 v9, s{KM[q]+1}, v9")
        a("v_add_u32 v9, s3, v9")
        a(f"s_bcnt1_i32_b64 s4, s[{KM[q]}:{KM[q]+1}]")
        a("s_add_u32 s3, s3, s4")
    a("s_mov_b64 exec, -1")
    a("v_lshlrev_b32 v9, 2, v9")
    a(f"v_lshl_add_u32 v8, v10, 8, v{LANE}")
    a("ds_permute_b32 v8, v9, v8")
    a("v_and_b32 v9, 1, v7")
    a("v_mul_u32_u24 v9, 7, v9")
    a(f"v_xor_b32 v9, s{S_WAVE}, v9")
    a("v_lshl_add_u32 v9, v7, 3, v9")
    a("v_lshlrev_b32 v9, 2, v9")
    a(f"v_and_b32 v6, 1, v{V_G}")
    a("v_mul_u32_u24 v6, 7, v6")
    a(f"v_xor_b32 v6, s{S_WAVE}, v6")
    a(f"v_lshl_add_u32 v6, v{V_G}, 3, v6")
    a("v_lshlrev_b32 v6, 2, v6")
    a(f"s_lshl_b32 s3, s{S_WAVE}, 2")
    a("s_add_u32 s3, s3, 128")
    a("v_mov_b32 v1, s3")
    bgop(1)
    a("s_waitcnt lgkmcnt(0)")
    a("ds_bpermute_b32 v11, v9, v8")
    a("ds_bpermute_b32 v6, v6, v8")
    a("ds_bpermute_b32 v1, v1, v8")
    for r in range(NR):
        a(f"s_mov_b64 exec, {M(r)}")
        a("s_cbranch_execz K2_s_done")
        a(f"v_lshrrev_b32 v8, 18, v{TG+r}")
        a(f"v_lshl_add_u32 v8, v8, 6, v{PR[r]}")
        a(f"v_add_u32 v8, v8, v{RK+r}")
        a(f"v_lshlrev_b32 v9, 4, v8")
        a(f"v_lshlrev_b32 v8, 2, v8")
        a(f"v_and_b32 v{TG+r}, 0x3fff, v{TG+r}")
        a(f"v_lshlrev_b32 v{TG+r}, 10, v{TG+r}")
        a(f"ds_write_b128 v9, v[{RB+4*r}:{RB+4*r+3}] offset:{L_REC}")
        a(f"ds_write_b32 v8, v{TG+r} offset:{L_SOFF}")
    a("K2_s_done:")
    a("s_mov_b64 exec, -1")
    bgop(1)
    a("v_mov_b32 v12, 0")
    a("v_mov_b32 v13, 0")
    a(f"s_mov_b32 s{S_PASS}, 0")
    a("K2_sched:")
    a(f"v_and_b32 v14, 15, v{LANE}")
    a(f"s_lshl_b32 s3, s{S_WAVE}, 6")
    a("v_lshl_add_u32 v15, v7, 2, s3")
    a("s_waitcnt lgkmcnt(0)")
    a(f"ds_write_b32 v15, v11 offset:{L_NODE}")
    BS = [(6, 12, 16, 17, 18), (1, 13, 19, 20, 21)]
    for (vi, vd, vq, vt, ve) in BS:
        a(f"v_and_b32 v{vt}, 0xff, v{vi}")
        a(f"v_lshl_add_u32 v{vt}, v{vt}, 4, v14")
        a(f"ds_read_u8 v{vt}, v{vt} offset:{L_PRE+1}")
        a(f"v_lshrrev_b32 v{vq}, 8, v{vi}")
        a(f"v_add_u32 v{vq}, 3, v{vq}")
        a(f"v_lshrrev_b32 v{vq}, 2, v{vq}")
    a(f"s_cmp_eq_u32 s{S_PASS}, 0")
    a("s_cselect_b32 s4, 15, 0")
    a("v_cmp_le_u32 vcc, s4, v14")
    a("s_waitcnt lgkmcnt(0)")
    for (vi, vd, vq, vt, ve) in BS:
        a(f"v_add_u32 v{vt}, 1, v{vt}")
        a(f"v_lshrrev_b32 v{vt}, 2, v{vt}")
        a(f"v_cndmask_b32 v{vt}, v{vt}, v{vq}, vcc")
        a(f"v_sub_u32 v{vt}, v{vt}, v14")
        a(f"v_add_u32 v{ve}, 1, v{vd}")
        a(f"v_min_i32 v{vt}, v{vt}, v{ve}")
    for sh in (1, 2, 4, 8):
        a("s_nop 0")
        for (vi, vd, vq, vt, ve) in BS:
            a(f"v_min_i32_dpp v{vt}, v{vt}, v{vt} row_shr:{sh} row_mask:0xf bank_mask:0xf")
    for (vi, vd, vq, vt, ve) in BS:
        a(f"v_subrev_u32 v{ve}, 15, v{vq}")
        a(f"v_max_i32 v{vt}, v{vt}, v{ve}")
    for (vi, vd, vq, vt, ve) in BS:
        a(f"v_add_u32 v{ve}, v{vt}, v14")
    a("s_nop 0")
    for (vi, vd, vq, vt, ve) in BS:
        a(f"v_mov_b32_dpp v{vd}, v{ve} row_shr:1 row_mask:0xf bank_mask:0xf")
    a(f"s_lshl_b32 s4, s{S_WAVE}, 7")
    a("v_lshl_add_u32 v15, v14, 3, s4")
    for k_, (vi, vd, vq, vt, ve) in enumerate(BS):
        a(f"v_sub_u32 v{vt}, v{ve}, v{vd}")
        a(f"v_lshl_or_b32 v{vt}, v{vt}, 7, v{vd}")
        if k_ == 0:
            a(f"v_add_u32 v{vi}, v15, v{V_G}")
            a(f"ds_write_b8 v{vi}, v{vt} offset:{L_TAB}")
        else:
            a(f"ds_write_b8 v15, v{vt} offset:{L_TAB+4}")
    a(f"v_add_u32 v15, s4, v{LANE}")
    a(f"ds_read_u8 v12, v15 offset:{L_TAB}")
    a(f"ds_read_u8 v13, v15 offset:{L_TAB+64}")
    a("v_and_b32 v16, 0xff, v11")
    a("v_lshlrev_b32 v16, 6, v16")
    a("v_lshrrev_b32 v10, 8, v11")
    a("v_cmp_gt_u32 vcc, 5, v7")
    a("v_mov_b32 v20, 0")
    a("v_mov_b32 v21, 0")
    a("v_cndmask_b32 v10, 0, v10, vcc")
    a("s_waitcnt lgkmcnt(0)")
    a("v_cndmask_b32 v12, 0, v12, vcc")
    a("v_cndmask_b32 v13, 0, v13, vcc")
    a(f"v_cmp_lt_u32 s[{S_S0}:{S_S0+1}], 64, v12")
    a(f"v_cmp_lt_u32 s[{S_S1}:{S_S1+1}], 64, v13")
    a("v_and_b32 v12, 0x7f, v12")
    a("v_and_b32 v13, 0x7f, v13")
    a("v_lshl_add_u32 v12, v12, 2, v16")
    a("v_lshl_add_u32 v13, v13, 2, v16")
    a(f"s_bcnt1_i32_b64 s4, s[{S_S0}:{S_S0+1}]")
    a(f"s_bcnt1_i32_b64 s{S_LEFT}, s[{S_S1}:{S_S1+1}]")
    a(f"s_add_u32 s{S_LEFT}, s{S_LEFT}, s4")
    a(f"s_lshl_b32 s5, s{S_WAVE}, 7")
    a("s_add_u32 s4, s4, s5")
    a(f"v_mbcnt_lo_u32_b32 v17, s{S_S0}, 0")
    a(f"v_mbcnt_hi_u32_b32 v17, s{S_S0+1}, v17")
    a(f"v_mbcnt_lo_u32_b32 v18, s{S_S1}, 0")
    a(f"v_mbcnt_hi_u32_b32 v18, s{S_S1+1}, v18")
    a("v_add_lshl_u32 v17, s5, v17, 2")
    a("v_add_lshl_u32 v18, s4, v18, 2")
    a(f"s_mov_b64 exec, s[{S_S0}:{S_S0+1}]")
    a(f"ds_write_b32 v17, v12 offset:{L_LST}")
    a(f"s_mov_b64 exec, s[{S_S1}:{S_S1+1}]")
    a(f"ds_write_b32 v18, v13 offset:{L_LST}")
    a("s_mov_b64 exec, -1")
    a("s_mov_b32 s3, s5")
    a(f"v_lshrrev_b32 v14, 3, v{LANE}")
    a("v_add_u32 v15, 3, v10")
    a("v_and_b32 v15, 0xfc, v15")
    a("v_add_u32 v14, v10, v14")
    a("v_cmp_lt_u32 vcc, v14, v15")
    a("v_add_u32 v14, v16, v14")
    a(f"v_add_u32 v15, {DUMMY}, v7")
    a(f"v_subrev_u32 v19, 24, v{LANE}")
    a(f"v_cmp_gt_u32 s[{S_SAVE}:{S_SAVE+1}], 4, v19")
    a(f"v_cmp_gt_u32 s[4:5], s{S_LEFT}, v{LANE}")
    a(f"v_add_u32 v19, 64, v{LANE}")
    a(f"v_cmp_gt_u32 s[6:7], s{S_LEFT}, v19")
    a(f"v_add_lshl_u32 v17, s3, v{LANE}, 2")
    a("v_mov_b32 v22, 0")
    a("v_mov_b32 v23, 0")
    a(f"v_cndmask_b32 v14, v14, v15, s[{S_SAVE}:{S_SAVE+1}]")
    a(f"ds_read_b32 v{V_LIST}, v17 offset:{L_LST}")
    a(f"ds_read_b32 v{V_LIST1}, v17 offset:{L_LST+256}")
    a(f"s_or_b64 exec, vcc, s[{S_SAVE}:{S_SAVE+1}]")
    a("v_lshlrev_b32 v15, 4, v14")
    a("v_lshlrev_b32 v14, 2, v14")
    a(f"v_mov_b32 v19, {OOB}")
    a(f"ds_write_b128 v15, v[20:23] offset:{L_REC}")
    a(f"ds_write_b32 v14, v19 offset:{L_SOFF}")
    a("s_mov_b64 exec, -1")
    a(f"v_mov_b32 v19, {DUMMY}")
    a("s_waitcnt lgkmcnt(0)")
    a(f"v_cndmask_b32 v{V_LIST}, v19, v{V_LIST}, s[4:5]")
    a(f"v_cndmask_b32 v{V_LIST1}, v19, v{V_LIST1}, s[6:7]")
    a("s_barrier")
    stamp(4)
    a(f"s_cmp_lg_u32 s{S_PASS}, 0")
    a("s_cbranch_scc1 K2_nobg")
    bgop(100)
    a("K2_nobg:")
    def rd_soff(se):
        return [f"v_add_lshl_u32 v{V_T}, s{se}, v{V_G}, 2", f"ds_read_b32 v{V_SOFF}, v{V_T} offset:{L_SOFF}"]
    def rd_rec(se):
        return [f"v_add_lshl_u32 v{V_T2}, s{se}, v{V_G}, 4", f"ds_read_b128 v[{RECV}:{RECV+3}], v{V_T2} offset:{L_REC}"]
    for q in range(NXB):
        a(f"v_readlane_b32 s{4+q}, v{V_LIST}, {q}")
    a(f"s_waitcnt vmcnt({NBG})")
    a(f"s_mov_b32 s{S_IDX}, {NXB}")
    a(f"s_mov_b32 s{S_IDX2}, 1")
    a(f"s_mov_b32 s{S_RC}, 0")
    if PRIO == 2:
        a(f"s_cmp_lt_u32 s{S_WAVE}, 4")
        a("s_cbranch_scc1 K2_pr_done")
        a("s_setprio 1")
        a("K2_pr_done:")
    for x in rd_soff(4): a(x)
    for x in rd_rec(4): a(x)
    for q in range(NXB - 1):
        a(f"s_cmp_gt_u32 s{S_LEFT}, {q}")
        a("s_cbranch_scc0 K2_pre_done")
        a("s_waitcnt lgkmcnt(1)" if q == 0 else "s_waitcnt lgkmcnt(0)")
        addr_fix()
        for x in ld_x(q): a(x)
        for x in rd_soff(5 + q): a(x)
    a("K2_pre_done:")
    a(f"s_cmp_lg_u32 s{S_LEFT}, 0")
    a("s_cbranch_scc1 K2_t0")
    a("s_waitcnt vmcnt(0)")
    a("s_branch K2_t0")
    NS = 5 * NXB
    for s_ in range(NS):
        i = s_ % 5; b = s_ % NXB
        if i == 0:
            a(f"K2_re{s_}:")
            a(f"s_add_u32 s{S_RC}, s{S_RC}, 1")
            if PRIO == 1:
                a(f"s_lshr_b32 s{S_T}, s{S_WAVE}, 2")
                a(f"s_add_u32 s{S_T}, s{S_T}, s{S_RC}")
                a("s_setprio 0")
                a(f"s_bitcmp1_b32 s{S_T}, 0")
                a(f"s_cbranch_scc0 K2_pr{s_}")
                a("s_setprio 1")
                a(f"K2_pr{s_}:")
            a(f"s_lshr_b64 s[{S_S0}:{S_S0+1}], s[{S_S0}:{S_S0+1}], 8")
            a(f"s_and_b32 s{S_T}, s{S_RC}, {BARK-1}")
            a(f"s_cbranch_scc0 K2_rx{s_}")
            t = [f"K2_rx{s_}:",
                 f"s_cmp_eq_u32 s{S_RC}, 16", "s_cbranch_scc1 K2_loop_done",
                 f"s_cmp_lg_u32 s{S_RC}, 8", f"s_cbranch_scc1 K2_ry{s_}",
                 f"s_mov_b64 s[{S_S0}:{S_S0+1}], s[{S_S1}:{S_S1+1}]",
                 f"s_cmp_lg_u32 s{S_IDX2}, 1", f"s_cbranch_scc1 K2_ry{s_}",
                 "s_waitcnt vmcnt(0)",
                 f"K2_ry{s_}:",
                 f"s_cmp_lt_u32 s{S_IDX2}, 20", f"s_cbranch_scc1 K2_rz{s_}",
                 "s_mov_b64 exec, 0xfffff", f"v_mov_b32 v{V_LIST}, v{V_LIST1}", "s_mov_b64 exec, -1",
                 f"K2_rz{s_}:",
                 f"s_cmp_lg_u32 s{S_PASS}, 0", f"s_cbranch_scc1 K2_t{s_}",
                 "s_barrier", f"s_branch K2_t{s_}"]
            tail_code.extend(t)
        a(f"K2_t{s_}:")
        a(f"s_bitcmp1_b32 s{S_S0}, {i}")
        nxt = (s_ + 16) % NS
        a(f"s_cbranch_scc0 K2_{'re' if nxt % 5 == 0 else 't'}{nxt}")
        a(f"v_readlane_b32 s{S_EB}, v{V_LIST}, s{S_IDX}")
        a(f"v_readlane_b32 s{S_EA}, v{V_LIST}, s{S_IDX2}")
        a(f"s_sub_u32 s{S_LEFT}, s{S_LEFT}, 1")
        a("s_waitcnt lgkmcnt(0)")
        a(f"s_cmp_lt_u32 s{S_LEFT}, {NXB-1}")
        lds_ = ld_x((b + NXB - 1) % NXB)
        cnt_ = [0]
        def gl(n=1):
            cnt_[0] += 1
            a(f"s_cbranch_scc1 K2_nl{s_}_{cnt_[0]}")
            for _ in range(n): a(lds_.pop(0).replace(f"v{V_SOFF},", f"v{V_T},"))
            a(f"K2_nl{s_}_{cnt_[0]}:")
        a(f"v_add_u32 v{V_T}, v{V_SOFF}, v{V_COL16}")
        if NOMEM == 1: a(f"v_mov_b32 v{V_T}, {OOB}")
        pre = {0: 4, 1: 2, 2: 1, 3: 0}[ILV]
        if ILV == 0: gl(4)
        if ILV in (1, 2): gl(1)
        for u in range(4 if XP != 3 else 0):
            a(f"v_dot2_f32_bf16 v{AT+u}, v{CG+2*u}, v{RECV}, 0")
        a(f"v_perm_b32 v{AOP}, v{RECV+3}, v{RECV+2}, v{V_EASEL}")
        for u in range(4 if XP != 3 else 0):
            a(f"v_dot2_f32_bf16 v{AT+u}, v{CG+2*u+1}, v{RECV+1}, v{AT+u}")
        a(f"v_add_lshl_u32 v{V_T2}, s{S_EB}, v{V_G}, 2")
        a(f"ds_read_b32 v{V_SOFF}, v{V_T2} offset:{L_SOFF}")
        for x in rd_rec(S_EA): a(x)
        if ILV == 1: gl(1)
        for u in range(4):
            a(f"v_mul_f32 v{AT+u}, v{AT+u}, v{AOP}")
        a(f"v_cvt_pk_bf16_f32 v{AOP}, v{AT}, v{AT+1}")
        a(f"v_cvt_pk_bf16_f32 v{AOP+1}, v{AT+2}, v{AT+3}")
        a(f"s_cbranch_scc1 K2_wx{s_}")
        a(f"s_waitcnt vmcnt({4*(NXB-2)+pre})")
        a(f"K2_wr{s_}:")
        t = [f"K2_wx{s_}:", "s_waitcnt vmcnt(8)", f"s_cmp_eq_u32 s{S_LEFT}, 2", f"s_cbranch_scc1 K2_wr{s_}",
             "s_waitcnt vmcnt(4)", f"s_cmp_eq_u32 s{S_LEFT}, 1", f"s_cbranch_scc1 K2_wr{s_}",
             "s_waitcnt vmcnt(0)", f"s_cmp_eq_u32 s{S_LEFT}, 0", f"s_branch K2_wr{s_}"]
        tail_code.extend(t)
        def mf(j):
            if XP == 1: return
            o = OPS + 2 * (j % 3); c = ACC + 32 * i + 4 * j
            a(f"v_mfma_f32_16x16x16_bf16 v[{c}:{c+3}], v[{AOP}:{AOP+1}], v[{o}:{o+1}], v[{c}:{c+3}]")
        after = {0: [], 1: [2, 5], 2: [1, 3, 6], 3: [0, 2, 4, 6]}[ILV]
        for j in range(8):
            m = j >> 1; sel = S_SELHI if j & 1 else S_SELLO
            o = OPS + 2 * (j % 3)
            x = lambda u: XB + 16 * b + 4 * u + m
            if not NOCOMP:
                if XP != 2:
                    a(f"v_perm_b32 v{o}, v{x(1)}, v{x(0)}, s{sel}")
                    a(f"v_perm_b32 v{o+1}, v{x(3)}, v{x(2)}, s{sel}")
                if j > 0: mf(j - 1)
            if j in after: gl(1)
        a(f"s_add_u32 s{S_IDX}, s{S_IDX}, 1")
        a(f"s_add_u32 s{S_IDX2}, s{S_IDX2}, 1")
        if not NOCOMP: mf(7)
    a("s_branch K2_re0")
    for x in tail_code: a(x)
    a("K2_loop_done:")
    a(f"s_cmp_lg_u32 s{S_MODE}, 0")
    a("s_cbranch_scc1 K2_slow_next")
    a("K2_epi:")
    stamp(5)
    a("s_waitcnt vmcnt(0) lgkmcnt(0)")
    lane_id(LANE)
    a(f"s_lshl_b32 s3, s{S_WAVE}, 6")
    a(f"v_and_b32 v6, 15, v{LANE}")
    a("v_and_b32 v5, 12, v6")
    a("v_add_u32 v5, s3, v5")
    a(f"ds_read_b32 v16, v5 offset:{L_NODE}")
    a("v_mov_b32 v5, s3")
    a(f"ds_read_b32 v17, v5 offset:{L_NODE+16}")
    a(f"v_lshlrev_b32 v1, 3, v{V_COL16}")
    a(f"v_add_u32 v1, {L_WR}, v1")
    for j in range(8):
        a(f"ds_read_b128 v[{XB+4*j}:{XB+4*j+3}], v1 offset:{16*j}")
    a(f"v_lshlrev_b32 v1, 4, v{LANE}")
    a(f"v_add_u32 v1, {L_WT}, v1")
    a(f"s_mul_i32 s4, s{S_WAVE}, {20*AGG_RS}")
    a(f"s_add_u32 s4, s4, {L_AGG}")
    a(f"v_mul_u32_u24 v2, {AGG_RS}, v{V_G}")
    a(f"v_add3_u32 v2, v2, v{V_COL16}, s4")
    a(f"v_mul_u32_u24 v7, {AGG_RS}, v6")
    a(f"v_lshl_add_u32 v7, v{V_G}, 4, v7")
    a("v_add_u32 v7, s4, v7")
    AW = [XB + 32, ACC, ACC + 32, ACC + 64]
    def rd_a(m):
        for x in range(8):
            a(f"ds_read_b128 v[{AW[m]+4*x}:{AW[m]+4*x+3}], v1 offset:{8192*m + 1024*x}")
    a("s_waitcnt lgkmcnt(0)")
    rd_a(0)
    for i in range(5):
        for j in range(8):
            c = ACC + 32 * i + 4 * j; w = XB + 4 * j
            a(f"v_mul_f32 v{c}, v{c}, v{w}")
        for kk in range(1, 4):
            for j in range(8):
                c = ACC + 32 * i + 4 * j; w = XB + 4 * j
                a(f"v_fmac_f32 v{c}, v{c+kk}, v{w+kk}")
        o = 8 + 4 * (i % 2)
        for jj in range(4):
            c = ACC + 32 * i + 8 * jj
            a(f"v_cvt_pk_bf16_f32 v{o+jj}, v{c}, v{c+4}")
        a(f"ds_write_b128 v2, v[{o}:{o+3}] offset:{i*4*AGG_RS}")
        if i < 3: rd_a(i + 1)
    stamp(6)
    BB = XB
    for ct in range(2):
        for t in range(4):
            r = BB + 16 * ct + 4 * t
            a(f"ds_read_b128 v[{r}:{r+3}], v7 offset:{ct*16*AGG_RS + t*64}")
    a("v_and_b32 v5, 3, v6")
    a("v_lshlrev_b32 v5, 8, v5")
    a(f"v_lshl_add_u32 v5, v{V_G}, 4, v5")
    a("v_and_b32 v16, 0xff, v16")
    a("v_and_b32 v17, 0xff, v17")
    a("v_lshl_add_u32 v16, v16, 10, v5")
    a("v_lshl_add_u32 v17, v17, 10, v5")
    a(f"v_mov_b32 v18, {OOB}")
    a("v_cmp_gt_u32 vcc, 4, v6")
    a(f"s_mul_i32 s6, s{S_B}, {NPB*1024}")
    a("s_nop 0")
    a("v_cndmask_b32 v17, v18, v17, vcc")
    DD = ACC + 96
    units = [(ct, m) for ct in range(2) for m in range(4)]
    def fin(u):
        ct, m = units[u]
        d = DD + 8 * u
        for x in range(4):
            a(f"v_cvt_pk_bf16_f32 v{d+x}, v{d+2*x}, v{d+2*x+1}")
        a(f"buffer_store_dwordx4 v[{d}:{d+3}], v{16+ct}, s[{S_OUT}:{S_OUT+3}], s6 offen offset:{64*m} {OMOD}")
    for u, (ct, m) in enumerate(units):
        if u == 0: a("s_waitcnt lgkmcnt(4)")
        if u == 4: a("s_waitcnt lgkmcnt(0)")
        for t in range(4):
            r = BB + 16 * ct + 4 * t
            for hh in range(2):
                d = DD + 8 * u + 4 * hh; w = AW[m] + 16 * hh + 4 * t
                c = "0" if t == 0 else f"v[{d}:{d+3}]"
                a(f"v_mfma_f32_16x16x32_bf16 v[{d}:{d+3}], v[{w}:{w+3}], v[{r}:{r+3}], {c}")
        if u > 0: fin(u - 1)
    a("s_nop 7")
    fin(7)
    stamp(7)
    if STAMP: a("s_waitcnt vmcnt(0)")
    stamp(8)
    stamp_flush(1, 8, 9, S_WAVE, 1)
    a("K2_end:")
    a("s_endpgm")
    a("K2_slow:")
    for grp in bg_slow:
        if "lds" in grp[-1]:
            for x in grp: a(x)
    a(f"s_mov_b32 s{S_MODE}, 1")
    a(f"s_mov_b32 s{S_WIN}, 0")
    a(f"v_lshlrev_b32 v8, 3, v{LANE}")
    a(f"s_lshl_b32 s3, s{S_B}, 11")
    a(f"s_add_u32 s3, s3, {OFFS_OFF}")
    for h in range(4):
        a(f"buffer_load_dword v{10+2*h}, v8, s[{S_WS}:{S_WS+3}], s3 offen offset:{512*h} {SC}")
    a("s_waitcnt vmcnt(0)")
    for h in range(4):
        a(f"v_bfe_u32 v{10+2*h}, v{10+2*h}, 11, 11")
    a("v_max_u32 v10, v10, v12")
    a("v_max3_u32 v10, v10, v14, v16")
    wave_scan(10, "v_max_u32_dpp")
    a("s_nop 1")
    a(f"v_readlane_b32 s{S_MAXC}, v10, 63")
    a("K2_slow_win:")
    a(f"s_cmp_ge_u32 s{S_WIN}, s{S_MAXC}")
    a("s_cbranch_scc1 K2_slow_fin")
    def seg_setup():
        lane_id(LANE)
        a(f"s_lshl_b32 s3, s{S_WAVE}, 6")
        a(f"v_add_u32 v{TID}, s3, v{LANE}")
        a(f"v_lshrrev_b32 v8, 1, v{TID}")
        a(f"v_and_b32 v9, 1, v{TID}")
        a("v_lshlrev_b32 v10, 3, v8")
        a(f"s_lshl_b32 s3, s{S_B}, 11")
        a(f"s_add_u32 s3, s3, {OFFS_OFF}")
        a(f"buffer_load_dword v12, v10, s[{S_WS}:{S_WS+3}], s3 offen {SC}")
        a(f"v_mul_u32_u24 v10, {EPC}, v8")
        a(f"v_add3_u32 v10, v10, v9, s{S_WIN}")
        a("s_waitcnt vmcnt(0)")
        a("v_bfe_u32 v11, v12, 11, 11")
        a("v_and_b32 v12, 0x7ff, v12")
        a("v_add_u32 v10, v10, v12")
        a("v_sub_u32 v13, v11, v9")
        a(f"v_subrev_u32 v13, s{S_WIN}, v13")
        a("v_lshlrev_b32 v14, 4, v10")
        a("v_lshlrev_b32 v10, 2, v10")
    seg_setup()
    for r in range(NR):
        a(f"v_cmp_lt_i32 {M(r)}, {2*r}, v13")
    a("K2_slow_batch:")
    a("s_waitcnt vmcnt(0) lgkmcnt(0)")
    a("s_barrier")
    seg_setup()
    a(f"v_lshlrev_b32 v8, 2, v{TID}")
    a("v_mov_b32 v9, 0")
    a(f"v_cmp_gt_u32 vcc, {NPB*4+4}, v{TID}")
    a(f"s_and_saveexec_b64 s[{S_SAVE}:{S_SAVE+1}], vcc")
    a(f"ds_write_b32 v8, v9 offset:{L_HIST}")
    a("s_mov_b64 exec, -1")
    a("s_waitcnt lgkmcnt(0)")
    a("s_barrier")
    a("v_mov_b32 v17, 1")
    a(f"s_mov_b32 s3, {TAG_OFF}")
    a(f"s_mov_b64 s[{S_SAVE}:{S_SAVE+1}], 0")
    for r in range(NR):
        a(f"s_mov_b64 exec, {M(r)}")
        a(f"s_cbranch_execz K2_slow_skip{r}")
        a(f"buffer_load_dword v16, v10, s[{S_WS}:{S_WS+3}], s3 offen offset:{8*r} {SC}")
        a(f"buffer_load_dwordx4 v[{XB}:{XB+3}], v14, s[{S_WS}:{S_WS+3}], 0 offen offset:{32*r} {SC}")
        a("s_waitcnt vmcnt(0)")
        a("v_lshrrev_b32 v8, 18, v16")
        a("v_lshlrev_b32 v9, 4, v8")
        a(f"ds_add_rtn_u32 v15, v9, v17 offset:{L_HIST}")
        a("v_and_b32 v16, 0x3fff, v16")
        a("v_lshlrev_b32 v16, 10, v16")
        a("s_waitcnt lgkmcnt(0)")
        a(f"v_cmp_gt_u32 vcc, {CAPN}, v15")
        a(f"s_andn2_b64 {M(r)}, {M(r)}, vcc")
        a(f"s_or_b64 s[{S_SAVE}:{S_SAVE+1}], s[{S_SAVE}:{S_SAVE+1}], {M(r)}")
        a("s_mov_b64 exec, vcc")
        a("v_lshl_add_u32 v8, v8, 6, v15")
        a("v_lshlrev_b32 v9, 4, v8")
        a("v_lshlrev_b32 v8, 2, v8")
        a(f"ds_write_b128 v9, v[{XB}:{XB+3}] offset:{L_REC}")
        a(f"ds_write_b32 v8, v16 offset:{L_SOFF}")
        a("s_waitcnt lgkmcnt(0)")
        a(f"K2_slow_skip{r}:")
    a("s_mov_b64 exec, -1")
    a(f"v_mov_b32 v9, {L_FLAG}")
    a(f"s_cmp_eq_u64 s[{S_SAVE}:{S_SAVE+1}], 0")
    a("s_cbranch_scc1 K2_slow_nof")
    a("ds_write_b32 v9, v17")
    a("K2_slow_nof:")
    a("s_waitcnt lgkmcnt(0)")
    a("s_barrier")
    a(f"v_and_b32 v7, 7, v{LANE}")
    a(f"s_mul_i32 s3, s{S_WAVE}, 5")
    a("v_add_u32 v11, s3, v7")
    a(f"v_add_u32 v6, s3, v{V_G}")
    a("s_add_u32 s3, s3, 4")
    a("v_mov_b32 v1, s3")
    for (vn, vt) in ((11, 12), (6, 13), (1, 14)):
        a(f"v_lshlrev_b32 v{vt}, 4, v{vn}")
        a(f"ds_read_b32 v{vt}, v{vt} offset:{L_HIST}")
    a("ds_read_b32 v9, v9")
    a("s_waitcnt lgkmcnt(0)")
    for (vn, vt) in ((11, 12), (6, 13), (1, 14)):
        a(f"v_min_u32 v{vt}, {CAPN}, v{vt}")
        a(f"v_lshl_add_u32 v{vn}, v{vt}, 8, v{vn}")
    a(f"v_readfirstlane_b32 s{S_MODE}, v9")
    a("v_mov_b32 v12, 0")
    a("v_mov_b32 v13, 0")
    a(f"s_add_u32 s{S_MODE}, s{S_MODE}, 1")
    a(f"s_mov_b32 s{S_PASS}, 1")
    a("s_branch K2_sched")
    a("K2_slow_next:")
    a(f"s_cmp_eq_u32 s{S_MODE}, 2")
    a("s_cbranch_scc1 K2_slow_batch")
    a(f"s_add_u32 s{S_WIN}, s{S_WIN}, {2*NR}")
    a("s_waitcnt vmcnt(0) lgkmcnt(0)")
    a("s_branch K2_slow_win")
    a("K2_slow_fin:")
    a("s_branch K2_epi")
    a("F_spare:")
    a("s_load_dwordx4 s[52:55], s[0:1], 40")
    a("s_load_dwordx2 s[56:57], s[0:1], 56")
    a("s_cmp_gt_u32 s4, 3")
    a("s_cselect_b32 s3, 1, 0")
    a("s_sub_u32 s4, s4, s3")
    a("s_waitcnt lgkmcnt(0)")
    srd(24, 52, 128)
    srd(28, 54, 1024)
    srd(48, 56, 32768)
    srd(S_WS, 6, WS_USED)
    srd(S_DBG, 62, 256)
    a("s_mov_b32 s58, s4")
    a("v_lshrrev_b32 v1, 6, v0")
    a("s_nop 0")
    a(f"v_readfirstlane_b32 s{S_WAVE}, v1")
    a("s_nop 0")
    a(f"s_cmp_lg_u32 s{S_WAVE}, 0")
    a("s_cbranch_scc1 F_sp_nn")
    nonce_fetch()
    a("s_waitcnt vmcnt(0)")
    nonce_finish()
    a("s_mov_b32 s59, s4")
    a("F_sp_nn:")
    a("s_mov_b32 s4, s58")
    a("s_cmp_gt_u32 s4, 3")
    a("s_cbranch_scc1 F_sp_small")
    a("v_bfe_u32 v1, v0, 8, 1")
    a("v_bfe_u32 v2, v0, 6, 2")
    a("v_bfe_u32 v3, v0, 4, 2")
    a("v_bfe_u32 v4, v0, 2, 2")
    a("v_and_b32 v5, 3, v0")
    a("v_lshlrev_b32 v6, 13, v2")
    a("v_lshl_add_u32 v6, v3, 11, v6")
    a("v_lshl_add_u32 v6, v4, 4, v6")
    a("v_lshl_add_u32 v6, v1, 3, v6")
    a("v_lshl_add_u32 v6, v5, 1, v6")
    a("s_lshl_b32 s3, s4, 6")
    for q in range(8):
        a(f"buffer_load_ushort v{16+q}, v6, s[48:51], s3 offen offset:{q*256}")
    a("v_lshlrev_b32 v7, 4, v0")
    a("s_lshl_b32 s3, s4, 13")
    a(f"s_add_u32 s3, s3, {WT_OFF}")
    a("s_waitcnt vmcnt(0)")
    for q in range(4):
        a(f"v_lshl_or_b32 v{8+q}, v{17+2*q}, 16, v{16+2*q}")
    a(f"buffer_store_dwordx4 v[8:11], v7, s[{S_WS}:{S_WS+3}], s3 offen {SC}")
    a("s_branch F_sp_pub")
    a("F_sp_small:")
    a("s_cmp_eq_u32 s4, 4")
    a("s_cbranch_scc0 F_sp_cg")
    a("v_cmp_gt_u32 vcc, 128, v0")
    a("s_and_saveexec_b64 s[40:41], vcc")
    a("s_cbranch_execz F_sp_pub")
    a("v_lshlrev_b32 v2, 1, v0")
    for kk in range(4):
        a(f"buffer_load_ushort v{8+kk}, v2, s[28:31], 0 offen offset:{kk*256}")
    a("v_lshlrev_b32 v3, 4, v0")
    a(f"s_mov_b32 s3, {WR_OFF}")
    a("s_waitcnt vmcnt(0)")
    for kk in range(4):
        a(f"v_lshlrev_b32 v{8+kk}, 16, v{8+kk}")
    a(f"buffer_store_dwordx4 v[8:11], v3, s[{S_WS}:{S_WS+3}], s3 offen {SC}")
    a("s_branch F_sp_pub")
    a("F_sp_cg:")
    a("v_cmp_gt_u32 vcc, 32, v0")
    a("s_and_saveexec_b64 s[40:41], vcc")
    a("s_cbranch_execz F_sp_pub")
    a("v_lshrrev_b32 v2, 3, v0")
    a("v_bfe_u32 v3, v0, 1, 2")
    a("v_and_b32 v4, 1, v0")
    a("v_lshlrev_b32 v5, 5, v3")
    a("v_lshl_add_u32 v5, v4, 4, v5")
    a("v_lshl_add_u32 v5, v2, 1, v5")
    a("buffer_load_ushort v8, v5, s[24:27], 0 offen")
    a("buffer_load_ushort v9, v5, s[24:27], 0 offen offset:8")
    a("v_lshlrev_b32 v6, 2, v0")
    a(f"s_mov_b32 s3, {CG_OFF}")
    a("s_waitcnt vmcnt(0)")
    a("v_lshl_or_b32 v8, v9, 16, v8")
    a(f"buffer_store_dword v8, v6, s[{S_WS}:{S_WS+3}], s3 offen {SC}")
    a("F_sp_pub:")
    a("s_mov_b64 exec, -1")
    a(f"s_add_u32 s4, s4, {P}")
    a("s_lshl_b32 s4, s4, 3")
    a(f"s_add_u32 s4, s4, {OFFS_OFF}")
    a("s_waitcnt vmcnt(0)")
    a("s_barrier")
    a(f"s_cmp_lg_u32 s{S_WAVE}, 0")
    a("s_cbranch_scc1 F_sp_end")
    a("s_lshl_b32 s3, s59, 22")
    a("v_mov_b32 v8, s3")
    a("v_mov_b32 v9, s59")
    a("v_lshlrev_b32 v2, 13, v0")
    for e in range(4):
        a(f"buffer_store_dwordx2 v[8:9], v2, s[{S_WS}:{S_WS+3}], s4 offen {SC}")
        a("s_add_u32 s4, s4, 2048")
    a("F_sp_end:")
    a("s_endpgm")
    a("K2_code_end:")
    a("s_endpgm")

def gen_report():
    k = "rep_kernel"
    a(f".globl {k}\n.p2align 8\n.type {k},@function\n{k}:")
    a("s_cmp_lg_u32 s2, 0")
    a("s_cbranch_scc1 R_end")
    a("s_load_dwordx4 s[4:7], s[0:1], 72")
    a("s_waitcnt lgkmcnt(0)")
    def red(reg, op):
        wave_scan(reg, op)
    a("v_mov_b32 v10, -1")
    for r in range(11, 30): a(f"v_mov_b32 v{r}, 0")
    a("v_mov_b32 v14, -1")
    a("v_mov_b32 v20, -1")
    a(f"v_lshlrev_b32 v1, 6, v0")
    a(f"v_add_u32 v1, {DBG_OFF}, v1")
    for kx in range(19):
        a("global_load_dwordx4 v[2:5], v1, s[6:7]")
        a("global_load_dwordx4 v[6:9], v1, s[6:7] offset:16")
        a("s_waitcnt vmcnt(0)")
        a("v_min_u32 v10, v10, v2")
        a("v_max_u32 v11, v11, v3")
        a("v_max_u32 v12, v12, v5")
        a("v_max_u32 v13, v13, v8")
        a("v_add_u32 v1, 4096, v1")
    a(f"v_lshlrev_b32 v1, 6, v0")
    a(f"v_add_u32 v1, {DBG_OFF + (1<<20)}, v1")
    for kx in range(31):
        a("global_load_dwordx4 v[2:5], v1, s[6:7]")
        a("global_load_dwordx4 v[6:9], v1, s[6:7] offset:16")
        a("global_load_dword v30, v1, s[6:7] offset:32")
        a("s_waitcnt vmcnt(0)")
        a("v_min_u32 v14, v14, v2")
        a("v_max_u32 v15, v15, v2")
        a("v_max_u32 v16, v16, v3")
        a("v_max_u32 v17, v17, v4")
        a("v_max_u32 v18, v18, v5")
        a("v_max_u32 v19, v19, v6")
        a("v_min_u32 v20, v20, v7")
        a("v_max_u32 v21, v21, v7")
        a("v_max_u32 v22, v22, v8")
        a("v_max_u32 v23, v23, v9")
        a("v_max_u32 v24, v24, v30")
        a("v_add_u32 v1, 4096, v1")
    for r in range(10, 25):
        red(r, "v_min_u32_dpp" if r in (10, 14, 20) else "v_max_u32_dpp")
    a("s_memrealtime s[8:9]")
    a("s_waitcnt lgkmcnt(0)")
    a("v_mov_b32 v25, s8")
    a("s_mov_b32 exec_lo, 0")
    a("s_mov_b32 exec_hi, 0x80000000")
    a("v_mov_b32 v1, 0")
    for r in range(11, 26):
        a(f"v_sub_u32 v2, v{r}, v10")
        a(f"global_store_dword v1, v2, s[4:5] offset:{4*(r-11)}")
    a("R_end:")
    a("s_endpgm")

def kd(name, nv, ns):
    return f""".p2align 6
.amdhsa_kernel {name}
  .amdhsa_next_free_vgpr {nv}
  .amdhsa_next_free_sgpr {ns}
  .amdhsa_accum_offset {(nv+3)//4*4}
  .amdhsa_group_segment_fixed_size 0
  .amdhsa_kernarg_size 88
  .amdhsa_user_sgpr_count 2
  .amdhsa_user_sgpr_kernarg_segment_ptr 1
  .amdhsa_system_sgpr_workgroup_id_x 1
.end_amdhsa_kernel"""

def main():
    hdr = open("cdna_kernels/" + NAME + ".s.ref").read().split("\n")
    hdr = [l for l in hdr[:12] if l.startswith(";")]
    print("\n".join(hdr))
    if env("ASLIST", 0):
        print(f"; @launch kernel={NAME}_kernel grid=(256,1,1) block=({K2_T},1,1) lds={K2_LDS}")
    else:
        print(f"; @launch grid=(256,1,1) block=({K2_T},1,1) lds={K2_LDS}")
    print('.amdgcn_target "amdgcn-amd-amdhsa--gfx950"')
    print(".text")
    gen_k2()
    print("\n".join(("" if (l.endswith(":") or l.startswith(".")) else "    ") + l for l in out))
    print('.section .rodata,"a"')
    print(kd(NAME + "_kernel", 256, 102))

main()
```

```python
import sys, os

NAME = "gather_scatter__tensor_product_equiv_mace__graph"
N = 10000; E = 320000
P = 250; EPC = E // P
NB = 250; NPB = 40
NR = 10
CAPN = 64
env = lambda k, d: type(d)(os.environ.get(k, d))
STAMP = env("STAMP", 0)
STMOD = env("STMOD", "")
K2TOUCH = env("K2TOUCH", 1)
K1TOUCH = env("K1TOUCH", 0)
CODEPF = env("CODEPF", 1)
BAL = env("BAL", 1)
OMOD = env("OMOD", "")
XP = env("XP", 0)
ILV = env("ILV", 1)
PRIO = env("PRIO", 0)
ROT = env("ROT", 0)
NOCOMP = env("NOCOMP", 0)
NOMEM = env("NOMEM", 0)

REC_OFF = 0
TAG_OFF = REC_OFF + E * 16
OFFS_OFF = TAG_OFF + E * 4
WT_OFF = OFFS_OFF + 256 * 1024
WR_OFF = WT_OFF + 32768
CG_OFF = WR_OFF + 2048
WS_USED = WT_OFF + 40960 + 4096
DBG_OFF = 8 << 20

out = []
def a(s): out.append(s)
def stamp(i):
    if STAMP: a(f"s_memrealtime s[{64+2*i}:{65+2*i}]")
def stamp_flush(kidx, wavesper, n, swave, vt=1):
    if not STAMP: return
    a("s_mov_b64 exec, -1")
    a("s_load_dwordx2 s[90:91], s[0:1], 80")
    a(f"s_mul_i32 s92, s2, {wavesper}")
    a(f"s_add_u32 s92, s92, s{swave}")
    a(f"s_lshl_b32 s92, s92, 6")
    a(f"s_add_u32 s92, s92, {DBG_OFF + kidx*(1<<20)}")
    a(f"v_mov_b32 v{vt}, s92")
    a("s_waitcnt lgkmcnt(0)")
    a("s_mov_b64 exec, 1")
    for i in range(n):
        a(f"v_mov_b32 v{vt+1}, s{64+2*i}")
        a(f"global_store_dword v{vt}, v{vt+1}, s[90:91] offset:{4*i}")

def srd(d, base, nbytes):
    a(f"s_mov_b32 s{d}, s{base}")
    a(f"s_and_b32 s{d+1}, s{base+1}, 0xffff")
    a(f"s_mov_b32 s{d+2}, {nbytes}")
    a(f"s_mov_b32 s{d+3}, 0x20000")

def wave_scan(v, op="v_add_u32_dpp"):
    for sh in (1, 2, 4, 8):
        a("s_nop 1")
        a(f"{op} v{v}, v{v}, v{v} row_shr:{sh} row_mask:0xf bank_mask:0xf")
    a("s_nop 1")
    a(f"{op} v{v}, v{v}, v{v} row_bcast:15 row_mask:0xa bank_mask:0xf")
    a("s_nop 1")
    a(f"{op} v{v}, v{v}, v{v} row_bcast:31 row_mask:0xc bank_mask:0xf")

K1_T = 320
K1_HIST = 0; K1_OFFS = 1024; K1_TAG = 2048; K1_REC = K1_TAG + EPC * 4
K1_LDS = K1_REC + EPC * 16
NWPREP = 8
K1_GRID = P + NWPREP

def gen_k1():
    k = "part_kernel"
    a(f".globl {k}\n.p2align 8\n.type {k},@function\n{k}:")
    a(f"s_cmp_ge_u32 s2, {K1_GRID}")
    a("s_cbranch_scc1 K1_end")
    a(f"s_cmp_ge_u32 s2, {P}")
    a("s_cbranch_scc1 K1_wprep")
    stamp(0)
    a("s_load_dwordx4 s[4:7], s[0:1], 8")
    a("s_load_dwordx4 s[8:11], s[0:1], 24")
    a("s_load_dwordx2 s[12:13], s[0:1], 80")
    if K1TOUCH: a("s_load_dwordx2 s[44:45], s[0:1], 0")
    a("v_lshlrev_b32 v1, 4, v0")
    a("v_lshlrev_b32 v2, 5, v0")
    a("v_lshlrev_b32 v3, 2, v0")
    a("v_mov_b32 v4, 0")
    a(f"ds_write_b32 v3, v4 offset:{K1_HIST}")
    a(f"s_mul_i32 s14, s2, {EPC*4}")
    a(f"s_mul_i32 s15, s2, {EPC*8}")
    a("v_lshrrev_b32 v5, 6, v0")
    a("s_waitcnt lgkmcnt(0)")
    srd(20, 6, E * 4)
    a("buffer_load_dwordx4 v[8:11], v1, s[20:23], s14 offen")
    srd(16, 4, E * 4)
    a("buffer_load_dwordx4 v[12:15], v1, s[16:19], s14 offen")
    srd(24, 8, E * 8)
    srd(28, 10, E * 8)
    srd(32, 12, WS_USED)
    a("v_readfirstlane_b32 s47, v5")
    a("s_barrier")
    a("buffer_load_dwordx4 v[16:19], v2, s[24:27], s15 offen")
    a("buffer_load_dwordx4 v[20:23], v2, s[24:27], s15 offen offset:16")
    a("buffer_load_dwordx4 v[24:27], v2, s[28:31], s15 offen")
    a("buffer_load_dwordx4 v[28:31], v2, s[28:31], s15 offen offset:16")
    a("s_mov_b32 s40, 52429")
    a("s_mov_b32 s41, -40")
    a("s_mov_b32 s42, 6711")
    a("v_mov_b32 v5, 1")
    a("v_and_b32 v6, 63, v0")
    a("v_lshlrev_b32 v6, 4, v6")
    a("s_waitcnt vmcnt(5)")
    stamp(1)
    for e in range(4):
        a(f"v_mul_u32_u24 v{32+e}, s40, v{8+e}")
        a(f"v_lshrrev_b32 v{32+e}, 21, v{32+e}")
        a(f"v_lshlrev_b32 v{36+e}, 2, v{32+e}")
        a(f"ds_add_rtn_u32 v{40+e}, v{36+e}, v5 offset:{K1_HIST}")
    a("s_waitcnt vmcnt(4)")
    for e in range(4):
        a(f"v_mad_i32_i24 v{8+e}, v{32+e}, s41, v{8+e}")
        if ROT:
            a(f"v_lshl_add_u32 v{44+e}, v{32+e}, 3, 7")
            a(f"v_mul_u32_u24 v{44+e}, 4195, v{44+e}")
            a(f"v_lshrrev_b32 v{44+e}, 20, v{44+e}")
            a(f"v_mul_u32_u24 v{44+e}, {ROT}, v{44+e}")
        a(f"v_mul_u32_u24 v{32+e}, s42, v{12+e}")
        a(f"v_lshrrev_b32 v{32+e}, 22, v{32+e}")
        if ROT:
            a(f"v_add_u32 v{32+e}, v{32+e}, v{44+e}")
            a(f"v_and_b32 v{32+e}, 15, v{32+e}")
        a(f"v_lshl_add_u32 v{8+e}, v{8+e}, 4, v{32+e}")
        a(f"v_lshl_add_u32 v{12+e}, v{8+e}, 14, v{12+e}")
    a("s_waitcnt lgkmcnt(0)")
    a("s_barrier")
    stamp(2)
    if K1TOUCH:
        srd(36, 44, N * 1024)
        a(f"s_mul_i32 s46, s2, {K1_T*16}")
        for r in range(K1TOUCH):
            a("buffer_load_dwordx4 v[56:59], v1, s[36:39], s46 offen")
            a(f"s_add_u32 s46, s46, {P*K1_T*16}")
    a(f"ds_read_b128 v[44:47], v6 offset:{K1_HIST}")
    a("s_waitcnt lgkmcnt(0)")
    a("v_add_u32 v48, v44, v45")
    a("v_add3_u32 v48, v48, v46, v47")
    a("v_mov_b32 v49, v48")
    wave_scan(49)
    a("v_sub_u32 v52, v49, v48")
    a("v_add_u32 v53, v52, v44")
    a("v_add_u32 v54, v53, v45")
    a("v_add_u32 v55, v54, v46")
    a(f"ds_write_b128 v6, v[52:55] offset:{K1_OFFS}")
    for e in range(4):
        a(f"ds_read_b32 v{32+e}, v{36+e} offset:{K1_OFFS}")
    a("s_cmp_lg_u32 s47, 0")
    a("s_cbranch_scc1 K1_noffs")
    a("s_lshl_b32 s43, s2, 10")
    a(f"s_add_u32 s43, s43, {OFFS_OFF}")
    a(f"buffer_store_dwordx4 v[52:55], v6, s[32:35], s43 offen {STMOD}")
    a(f"s_waitcnt vmcnt({K1TOUCH+1}) lgkmcnt(0)")
    a("s_branch K1_go")
    a("K1_noffs:")
    a(f"s_waitcnt vmcnt({K1TOUCH}) lgkmcnt(0)")
    a("K1_go:")
    stamp(3)
    for e in range(4):
        a(f"v_add_u32 v{32+e}, v{32+e}, v{40+e}")
        a(f"v_lshlrev_b32 v{36+e}, 4, v{32+e}")
        a(f"v_add_u32 v{36+e}, {K1_REC}, v{36+e}")
        a(f"v_lshlrev_b32 v{32+e}, 2, v{32+e}")
        a(f"ds_write2_b64 v{36+e}, v[{16+2*e}:{17+2*e}], v[{24+2*e}:{25+2*e}] offset0:0 offset1:1")
        a(f"ds_write_b32 v{32+e}, v{12+e} offset:{K1_TAG}")
    a(f"s_mul_i32 s43, s2, {EPC*16}")
    a(f"s_add_u32 s46, s14, {TAG_OFF}")
    a("s_waitcnt lgkmcnt(0)")
    a("s_barrier")
    stamp(4)
    a(f"ds_read_b128 v[24:27], v1 offset:{K1_TAG}")
    for r in range(4):
        a(f"ds_read_b128 v[{8+4*r}:{11+4*r}], v1 offset:{K1_REC + r*K1_T*16}")
    a("s_waitcnt lgkmcnt(4)")
    a(f"buffer_store_dwordx4 v[24:27], v1, s[32:35], s46 offen {STMOD}")
    for r in range(4):
        a(f"s_waitcnt lgkmcnt({3-r})")
        a(f"buffer_store_dwordx4 v[{8+4*r}:{11+4*r}], v1, s[32:35], s43 offen {STMOD}")
        a(f"s_add_u32 s43, s43, {K1_T*16}")
    stamp(5)
    if STAMP: a("s_waitcnt vmcnt(0)")
    stamp(6)
    stamp_flush(0, 5, 7, 47, 40)
    a("s_endpgm")
    a("K1_wprep:")
    a("s_load_dwordx4 s[4:7], s[0:1], 40")
    a("s_load_dwordx2 s[8:9], s[0:1], 56")
    a("s_load_dwordx2 s[12:13], s[0:1], 80")
    a(f"s_sub_u32 s14, s2, {P}")
    a("s_waitcnt lgkmcnt(0)")
    srd(16, 4, 128)
    srd(20, 6, 1024)
    srd(24, 8, 32768)
    srd(32, 12, WS_USED)
    a("v_cmp_gt_u32 vcc, 256, v0")
    a("s_and_saveexec_b64 s[36:37], vcc")
    a("s_cbranch_execz K1_wsmall")
    a("v_bfe_u32 v2, v0, 6, 2")
    a("v_bfe_u32 v3, v0, 4, 2")
    a("v_bfe_u32 v4, v0, 2, 2")
    a("v_and_b32 v5, 3, v0")
    a("v_lshlrev_b32 v6, 13, v2")
    a("v_lshl_add_u32 v6, v3, 11, v6")
    a("v_lshl_add_u32 v6, v4, 4, v6")
    a("v_lshl_add_u32 v6, v5, 1, v6")
    a("s_lshr_b32 s15, s14, 1")
    a("s_lshl_b32 s15, s15, 6")
    a("s_and_b32 s38, s14, 1")
    a("s_lshl_b32 s38, s38, 3")
    a("s_add_u32 s15, s15, s38")
    for q in range(8):
        a(f"buffer_load_ushort v{16+q}, v6, s[24:27], s15 offen offset:{q*256}")
    a("v_lshlrev_b32 v7, 4, v0")
    a("s_lshl_b32 s15, s14, 12")
    a(f"s_add_u32 s15, s15, {WT_OFF}")
    a("s_waitcnt vmcnt(0)")
    for q in range(4):
        a(f"v_lshl_or_b32 v{8+q}, v{17+2*q}, 16, v{16+2*q}")
    a("buffer_store_dwordx4 v[8:11], v7, s[32:35], s15 offen")
    a("s_endpgm")
    a("K1_wsmall:")
    a("s_mov_b64 exec, s[36:37]")
    a("v_subrev_u32 v1, 256, v0")
    a("s_cmp_lt_u32 s14, 2")
    a("s_cbranch_scc0 K1_wcg")
    a("s_lshl_b32 s15, s14, 6")
    a("v_add_u32 v1, s15, v1")
    a("v_lshlrev_b32 v2, 1, v1")
    for kk in range(4):
        a(f"buffer_load_ushort v{8+kk}, v2, s[20:23], 0 offen offset:{kk*256}")
    a("v_lshlrev_b32 v3, 4, v1")
    a(f"s_mov_b32 s15, {WR_OFF}")
    a("s_waitcnt vmcnt(0)")
    for kk in range(4):
        a(f"v_lshlrev_b32 v{8+kk}, 16, v{8+kk}")
    a("buffer_store_dwordx4 v[8:11], v3, s[32:35], s15 offen")
    a("s_endpgm")
    a("K1_wcg:")
    a("s_cmp_eq_u32 s14, 2")
    a("s_cbranch_scc0 K1_wcode")
    a("v_cmp_gt_u32 vcc, 32, v1")
    a("s_and_saveexec_b64 s[36:37], vcc")
    a("v_lshrrev_b32 v2, 3, v1")
    a("v_bfe_u32 v3, v1, 1, 2")
    a("v_and_b32 v4, 1, v1")
    a("v_lshlrev_b32 v5, 5, v3")
    a("v_lshl_add_u32 v5, v4, 4, v5")
    a("v_lshl_add_u32 v5, v2, 1, v5")
    a("buffer_load_ushort v8, v5, s[16:19], 0 offen")
    a("buffer_load_ushort v9, v5, s[16:19], 0 offen offset:8")
    a("v_lshlrev_b32 v6, 2, v1")
    a(f"s_mov_b32 s15, {CG_OFF}")
    a("s_waitcnt vmcnt(0)")
    a("v_lshl_or_b32 v8, v9, 16, v8")
    a("buffer_store_dword v8, v6, s[32:35], s15 offen")
    a("s_endpgm")
    a("K1_wcode:")
    if CODEPF:
        a("s_cmp_eq_u32 s14, 3")
        a("s_cbranch_scc0 K1_end")
        a("s_getpc_b64 s[40:41]")
        a("K1_pc:")
        a("s_add_u32 s40, s40, main_kernel-K1_pc")
        a("s_addc_u32 s41, s41, 0")
        a("v_lshlrev_b32 v2, 6, v1")
        for r in range(4):
            a("v_cmp_gt_u32 vcc, K2_code_end-main_kernel, v2")
            a("s_and_b64 exec, exec, vcc")
            a("s_cbranch_execz K1_wcode_done")
            a(f"global_load_dword v{8+r}, v2, s[40:41]")
            a("v_add_u32 v2, 4096, v2")
        a("K1_wcode_done:")
        a("s_waitcnt vmcnt(0)")
    a("K1_end:")
    a("s_endpgm")

K2_T = 512
SLOTS = NPB * CAPN + 8
DUMMY = NPB * CAPN
L_REC = 0
L_SOFF = L_REC + SLOTS * 16
L_HIST = L_SOFF + SLOTS * 4
L_FLAG = L_HIST + NPB * 16
L_PRE = L_FLAG + 16
L_NODE = L_PRE + NPB * 16 + 512
L_TAB = L_NODE + 512
L_LST = L_TAB + 1024
L_WT = (L_LST + 4096 + 255) // 256 * 256
L_WR = L_WT + 32768
L_AGG = L_WT + 32768 + 2048
AGG_RS = 272
K2_LDS = L_AGG + (NPB * 4 + 12) * AGG_RS
OOB = 0x7f000000
BARK = env("BARK", 2)
NXB = 4

ACC = 96; XB = 32; CG = 24; OPS = 18; AOP = 16; AT = 12; RECV = 8
V_LIST1 = 7; V_SOFF = 6; V_T = 5; V_COL16 = 4; V_G = 3; V_LIST = 2; V_T2 = 1; V_EASEL = 0
S_X = 8; S_WS = 12; S_OUT = 16
S_WAVE = 20; S_SELLO = 21; S_SELHI = 22; S_IDX = 23
S_S0 = 24; S_S1 = 26
S_EA = 28; S_EB = 29; S_IDX2 = 30; S_LEFT = 31; S_RC = 32; S_MORE = 33
S_T = 34; S_PASS = 35; S_MODE = 36; S_WIN = 37; S_MAXC = 38; S_B = 39
S_MASK = 40
S_SAVE = 60

def lane_id(v):
    a(f"v_mbcnt_lo_u32_b32 v{v}, -1, 0")
    a(f"v_mbcnt_hi_u32_b32 v{v}, -1, v{v}")

tail_code = []
uid = [0]
def ld_x(b):
    r = []
    for u in range(4):
        x = XB + 16 * b + 4 * u
        r.append(f"buffer_load_dwordx4 v[{x}:{x+3}], v{V_SOFF}, s[{S_X}:{S_X+3}], 0 offen offset:{u*256}")
    return r
def addr_fix():
    a(f"v_add_u32 v{V_SOFF}, v{V_SOFF}, v{V_COL16}")
    if NOMEM == 1: a(f"v_mov_b32 v{V_SOFF}, {OOB}")
    if NOMEM == 3: a(f"v_and_b32 v{V_SOFF}, 0xfffff, v{V_SOFF}")

def gen_k2():
    k = "main_kernel"
    a(f".globl {k}\n.p2align 8\n.type {k},@function\n{k}:")
    a("s_cmp_ge_u32 s2, 256")
    a("s_cbranch_scc1 K2_end")
    stamp(0)
    a("s_load_dwordx2 s[4:5], s[0:1], 0")
    a("s_load_dwordx2 s[6:7], s[0:1], 80")
    a("s_load_dwordx2 s[62:63], s[0:1], 64")
    a("s_and_b32 s3, s2, 7")
    a(f"s_mul_i32 s3, s3, {NB}")
    a(f"s_add_u32 s{S_T}, s3, {NB}")
    a("s_lshr_b32 s3, s3, 3")
    a(f"s_lshr_b32 s{S_T}, s{S_T}, 3")
    a(f"s_lshr_b32 s{S_B}, s2, 3")
    a(f"s_add_u32 s{S_B}, s{S_B}, s3")
    a(f"s_cmp_ge_u32 s{S_B}, s{S_T}")
    a("s_cbranch_scc1 K2_end")
    TID = 23; LANE = 22
    a(f"v_mov_b32 v{TID}, v0")
    a(f"v_and_b32 v{LANE}, 63, v0")
    a("v_lshrrev_b32 v1, 6, v0")
    a("v_lshlrev_b32 v2, 2, v0")
    a("v_mov_b32 v3, 0")
    a(f"v_readfirstlane_b32 s{S_WAVE}, v1")
    a(f"v_cmp_gt_u32 vcc, {NPB*4+4}, v0")
    a(f"s_and_saveexec_b64 s[{S_SAVE}:{S_SAVE+1}], vcc")
    a(f"ds_write_b32 v2, v3 offset:{L_HIST}")
    a(f"s_mov_b64 exec, s[{S_SAVE}:{S_SAVE+1}]")
    a("v_lshrrev_b32 v8, 1, v0")
    a("v_and_b32 v9, 1, v0")
    a("v_lshlrev_b32 v10, 10, v8")
    a(f"s_lshl_b32 s3, s{S_B}, 2")
    a(f"s_add_u32 s3, s3, {OFFS_OFF}")
    a("s_waitcnt lgkmcnt(0)")
    srd(S_WS, 6, WS_USED)
    a(f"buffer_load_dwordx2 v[12:13], v10, s[{S_WS}:{S_WS+3}], s3 offen")
    a(f"s_lshl_b32 s3, s{S_WAVE}, 8")
    a(f"s_add_u32 s3, s3, {L_WR}")
    a("s_mov_b32 m0, s3")
    a(f"s_mov_b32 s3, {WR_OFF}")
    a(f"buffer_load_dword v2, s[{S_WS}:{S_WS+3}], s3 offen lds")
    srd(S_X, 4, N * 1024)
    srd(S_OUT, 62, N * 1024)
    if CODEPF:
        a("s_getpc_b64 s[4:5]")
        a("K2_pc:")
        a(f"v_lshlrev_b32 v14, 7, v{TID}")
        a("v_cmp_gt_u32 vcc, K2_code_end-K2_pc, v14")
        a(f"s_and_saveexec_b64 s[{S_SAVE}:{S_SAVE+1}], vcc")
        a("s_cbranch_execz K2_nocpf")
        a("global_load_dword v15, v14, s[4:5]")
        a("K2_nocpf:")
        a(f"s_mov_b64 exec, s[{S_SAVE}:{S_SAVE+1}]")
    a("s_barrier")
    for r in range(160):
        a(f"v_mov_b32 v{ACC+r}, 0")
    a(f"v_and_b32 v{V_COL16}, 15, v{TID}")
    a(f"v_lshlrev_b32 v{V_COL16}, 4, v{V_COL16}")
    a(f"v_lshrrev_b32 v{V_G}, 4, v{LANE}")
    a(f"v_and_b32 v{V_EASEL}, 3, v{TID}")
    a(f"v_mul_u32_u24 v{V_EASEL}, 0x0202, v{V_EASEL}")
    a(f"v_add_u32 v{V_EASEL}, 0x0100, v{V_EASEL}")
    a(f"v_lshlrev_b32 v{V_EASEL}, 16, v{V_EASEL}")
    a(f"v_or_b32 v{V_EASEL}, 0x0c0c, v{V_EASEL}")
    a(f"s_mov_b32 s{S_SELLO}, 0x05040100")
    a(f"s_mov_b32 s{S_SELHI}, 0x07060302")
    a(f"s_mov_b32 s{S_MODE}, 0")
    a(f"v_mul_u32_u24 v10, {EPC}, v8")
    a("v_add_u32 v10, v10, v9")
    a(f"v_bfe_u32 v16, v{TID}, 2, 2")
    a("v_lshlrev_b32 v16, 5, v16")
    a(f"v_cmp_gt_u32 vcc, {P}, v8")
    a("s_waitcnt vmcnt(0)")
    stamp(1)
    a("v_sub_u32 v11, v13, v12")
    a("v_cndmask_b32 v11, 0, v11, vcc")
    a("v_add_u32 v10, v10, v12")
    a("v_sub_u32 v13, v11, v9")
    a("v_lshlrev_b32 v14, 4, v10")
    a("v_lshlrev_b32 v10, 2, v10")
    a(f"s_mov_b32 s3, {TAG_OFF}")
    RB = XB; TG = XB + 40; RK = XB + 50
    M = lambda r: f"s[{S_MASK+2*r}:{S_MASK+2*r+1}]"
    for r in range(NR):
        a(f"v_cmp_lt_i32 {M(r)}, {2*r}, v13")
    for r in range(NR):
        a(f"s_mov_b64 exec, {M(r)}")
        a("s_cbranch_execz K2_ld_done")
        a(f"buffer_load_dword v{TG+r}, v10, s[{S_WS}:{S_WS+3}], s3 offen offset:{8*r}")
        a(f"buffer_load_dwordx4 v[{RB+4*r}:{RB+4*r+3}], v14, s[{S_WS}:{S_WS+3}], 0 offen offset:{32*r}")
    a("K2_ld_done:")
    a("s_mov_b64 exec, -1")
    a(f"s_mov_b32 s3, {CG_OFF}")
    a(f"buffer_load_dwordx4 v[{CG}:{CG+3}], v16, s[{S_WS}:{S_WS+3}], s3 offen")
    a(f"buffer_load_dwordx4 v[{CG+4}:{CG+7}], v16, s[{S_WS}:{S_WS+3}], s3 offen offset:16")
    a(f"v_cmp_lt_u32 s[{S_SAVE}:{S_SAVE+1}], {2*NR}, v11")
    a("v_mov_b32 v17, 1")
    a("s_waitcnt vmcnt(2)")
    stamp(2)
    for r in range(NR):
        a(f"s_mov_b64 exec, {M(r)}")
        a("s_cbranch_execz K2_h_done")
        a(f"v_lshrrev_b32 v8, 14, v{TG+r}")
        a(f"v_and_b32 v9, 0xffc, v8")
        a(f"v_lshlrev_b32 v8, 3, v8")
        a(f"v_lshlrev_b32 v8, v8, v17")
        a(f"ds_add_rtn_u32 v{RK+r}, v9, v8 offset:{L_HIST}")
    a("K2_h_done:")
    a("s_mov_b64 exec, -1")
    a("s_waitcnt lgkmcnt(0)")
    for r in range(NR):
        a(f"s_mov_b64 exec, {M(r)}")
        a("s_cbranch_execz K2_r_done")
        a(f"v_lshrrev_b32 v8, 11, v{TG+r}")
        a(f"v_and_b32 v8, 24, v8")
        a(f"v_bfe_u32 v{RK+r}, v{RK+r}, v8, 8")
        a(f"v_cmp_lt_u32 vcc, {CAPN-1}, v{RK+r}")
        a(f"s_or_b64 s[{S_SAVE}:{S_SAVE+1}], s[{S_SAVE}:{S_SAVE+1}], vcc")
    a("K2_r_done:")
    a("s_mov_b64 exec, -1")
    a(f"v_mov_b32 v9, {L_FLAG}")
    a(f"s_cmp_eq_u64 s[{S_SAVE}:{S_SAVE+1}], 0")
    a("s_cbranch_scc1 K2_noflag")
    a("ds_write_b32 v9, v17")
    a("K2_noflag:")
    a(f"v_lshlrev_b32 v8, 4, v{LANE}")
    a("s_waitcnt lgkmcnt(0)")
    a("s_barrier")
    stamp(3)
    a(f"ds_read_b128 v[12:15], v8 offset:{L_HIST}")
    a("ds_read_b32 v9, v9")
    a(f"v_lshlrev_b32 v{V_T}, 4, v{TID}")
    bg = []
    for r in range(4):
        bg.append([f"s_lshl_b32 s5, s{S_WAVE}, 10", f"s_add_u32 s5, s5, {L_WT + r*K2_T*16}", "s_mov_b32 m0, s5",
                   f"s_mov_b32 s5, {WT_OFF + r*K2_T*16}",
                   f"buffer_load_dwordx4 v{V_T}, s[{S_WS}:{S_WS+3}], s5 offen lds"])
    tch = []
    if K2TOUCH:
        per = K2_T * 16
        k1bytes = K1TOUCH * P * K1_T * 16
        for r in range(N * 1024 // (NB * per)):
            if (r + 1) * NB * per <= k1bytes: continue
            tch.append([f"s_lshl_b32 s5, s{S_B}, 13", f"s_add_u32 s5, s5, {r*NB*per}",
                        f"buffer_load_dwordx4 v[{XB+60}:{XB+63}], v{V_T}, s[{S_X}:{S_X+3}], s5 offen"])
    bg = tch + bg
    def bgop(n=1):
        for _ in range(n):
            if bg:
                for x in bg.pop(0): a(x)
    bgop(2)
    a("s_waitcnt lgkmcnt(0)")
    a("s_mov_b32 s3, 0x01010101")
    a("v_mov_b32 v10, 0")
    PW = 18
    for q in range(4):
        H = 12 + q
        a(f"v_lshlrev_b32 v{PW+q}, 8, v{H}")
        a(f"v_lshl_add_u32 v{PW+q}, v{H}, 16, v{PW+q}")
        a(f"v_lshl_add_u32 v{PW+q}, v{H}, 24, v{PW+q}")
        if q > 0:
            a(f"v_mul_lo_u32 v11, v10, s3")
            a(f"v_add_u32 v{PW+q}, v{PW+q}, v11")
        a(f"v_sad_u8 v10, v{H}, 0, v10")
    a(f"v_cmp_gt_u32 vcc, {NPB}, v{LANE}")
    a(f"s_and_saveexec_b64 s[{S_SAVE}:{S_SAVE+1}], vcc")
    a(f"ds_write_b128 v8, v[{PW}:{PW+3}] offset:{L_PRE}")
    a(f"v_cmp_lt_u32 vcc, {CAPN}, v10")
    a(f"s_mov_b64 exec, s[{S_SAVE}:{S_SAVE+1}]")
    a("v_readfirstlane_b32 s3, v9")
    a("s_cmp_lg_u64 vcc, 0")
    a("s_cbranch_scc1 K2_slow")
    a("s_cmp_lg_u32 s3, 0")
    a("s_cbranch_scc1 K2_slow")
    bg_slow = [list(x) for x in bg]
    PR = [12, 13, 14, 15, 16, 17, 18, 19, 20, 21]
    for r in range(NR):
        a(f"s_mov_b64 exec, {M(r)}")
        a("s_cbranch_execz K2_p_done")
        a(f"v_lshrrev_b32 v8, 14, v{TG+r}")
        a(f"ds_read_u8 v{PR[r]}, v8 offset:{L_PRE}")
    a("K2_p_done:")
    a("s_mov_b64 exec, -1")
    bgop(1)
    a(f"v_and_b32 v7, 7, v{LANE}")
    a("v_add_u32 v8, 3, v10")
    a("v_lshrrev_b32 v8, 2, v8")
    a("v_subrev_u32 v8, 5, v8")
    a("v_med3_i32 v8, v8, 0, 7")
    a(f"v_cmp_gt_u32 vcc, {NPB}, v{LANE}")
    a("v_mov_b32 v9, 63")
    a("s_nop 0")
    a("v_cndmask_b32 v8, 64, v8, vcc")
    KM = [24, 26, 28, 30, 32, 82, 84, 86]
    for q in range(8):
        a(f"v_cmp_eq_u32 s[{KM[q]}:{KM[q]+1}], {q}, v8")
    a("s_mov_b32 s3, 0")
    for q in range(7, -1, -1):
        a(f"s_mov_b64 exec, s[{KM[q]}:{KM[q]+1}]")
        a(f"v_mbcnt_lo_u32_b32 v9, s{KM[q]}, 0")
        a(f"v_mbcnt_hi_u32_b32 v9, s{KM[q]+1}, v9")
        a("v_add_u32 v9, s3, v9")
        a(f"s_bcnt1_i32_b64 s4, s[{KM[q]}:{KM[q]+1}]")
        a("s_add_u32 s3, s3, s4")
    a("s_mov_b64 exec, -1")
    a("v_lshlrev_b32 v9, 2, v9")
    a(f"v_lshl_add_u32 v8, v10, 8, v{LANE}")
    a("ds_permute_b32 v8, v9, v8")
    a("v_and_b32 v9, 1, v7")
    a("v_mul_u32_u24 v9, 7, v9")
    a(f"v_xor_b32 v9, s{S_WAVE}, v9")
    a("v_lshl_add_u32 v9, v7, 3, v9")
    a("v_lshlrev_b32 v9, 2, v9")
    a(f"v_and_b32 v6, 1, v{V_G}")
    a("v_mul_u32_u24 v6, 7, v6")
    a(f"v_xor_b32 v6, s{S_WAVE}, v6")
    a(f"v_lshl_add_u32 v6, v{V_G}, 3, v6")
    a("v_lshlrev_b32 v6, 2, v6")
    a(f"s_lshl_b32 s3, s{S_WAVE}, 2")
    a("s_add_u32 s3, s3, 128")
    a("v_mov_b32 v1, s3")
    bgop(1)
    a("s_waitcnt lgkmcnt(0)")
    a("ds_bpermute_b32 v11, v9, v8")
    a("ds_bpermute_b32 v6, v6, v8")
    a("ds_bpermute_b32 v1, v1, v8")
    for r in range(NR):
        a(f"s_mov_b64 exec, {M(r)}")
        a("s_cbranch_execz K2_s_done")
        a(f"v_lshrrev_b32 v8, 18, v{TG+r}")
        a(f"v_lshl_add_u32 v8, v8, 6, v{PR[r]}")
        a(f"v_add_u32 v8, v8, v{RK+r}")
        a(f"v_lshlrev_b32 v9, 4, v8")
        a(f"v_lshlrev_b32 v8, 2, v8")
        a(f"v_and_b32 v{TG+r}, 0x3fff, v{TG+r}")
        a(f"v_lshlrev_b32 v{TG+r}, 10, v{TG+r}")
        a(f"ds_write_b128 v9, v[{RB+4*r}:{RB+4*r+3}] offset:{L_REC}")
        a(f"ds_write_b32 v8, v{TG+r} offset:{L_SOFF}")
    a("K2_s_done:")
    a("s_mov_b64 exec, -1")
    bgop(1)
    a("v_mov_b32 v12, 0")
    a("v_mov_b32 v13, 0")
    a(f"s_mov_b32 s{S_PASS}, 0")
    a("K2_sched:")
    a(f"v_and_b32 v14, 15, v{LANE}")
    a(f"s_lshl_b32 s3, s{S_WAVE}, 6")
    a("v_lshl_add_u32 v15, v7, 2, s3")
    a("s_waitcnt lgkmcnt(0)")
    a(f"ds_write_b32 v15, v11 offset:{L_NODE}")
    BS = [(6, 12, 16, 17, 18), (1, 13, 19, 20, 21)]
    for (vi, vd, vq, vt, ve) in BS:
        a(f"v_and_b32 v{vt}, 0xff, v{vi}")
        a(f"v_lshl_add_u32 v{vt}, v{vt}, 4, v14")
        a(f"ds_read_u8 v{vt}, v{vt} offset:{L_PRE+1}")
        a(f"v_lshrrev_b32 v{vq}, 8, v{vi}")
        a(f"v_add_u32 v{vq}, 3, v{vq}")
        a(f"v_lshrrev_b32 v{vq}, 2, v{vq}")
    a(f"s_cmp_eq_u32 s{S_PASS}, 0")
    a("s_cselect_b32 s4, 15, 0")
    a("v_cmp_le_u32 vcc, s4, v14")
    a("s_waitcnt lgkmcnt(0)")
    for (vi, vd, vq, vt, ve) in BS:
        a(f"v_add_u32 v{vt}, 1, v{vt}")
        a(f"v_lshrrev_b32 v{vt}, 2, v{vt}")
        a(f"v_cndmask_b32 v{vt}, v{vt}, v{vq}, vcc")
        a(f"v_sub_u32 v{vt}, v{vt}, v14")
        a(f"v_add_u32 v{ve}, 1, v{vd}")
        a(f"v_min_i32 v{vt}, v{vt}, v{ve}")
    for sh in (1, 2, 4, 8):
        a("s_nop 0")
        for (vi, vd, vq, vt, ve) in BS:
            a(f"v_min_i32_dpp v{vt}, v{vt}, v{vt} row_shr:{sh} row_mask:0xf bank_mask:0xf")
    for (vi, vd, vq, vt, ve) in BS:
        a(f"v_subrev_u32 v{ve}, 15, v{vq}")
        a(f"v_max_i32 v{vt}, v{vt}, v{ve}")
    for (vi, vd, vq, vt, ve) in BS:
        a(f"v_add_u32 v{ve}, v{vt}, v14")
    a("s_nop 0")
    for (vi, vd, vq, vt, ve) in BS:
        a(f"v_mov_b32_dpp v{vd}, v{ve} row_shr:1 row_mask:0xf bank_mask:0xf")
    a(f"s_lshl_b32 s4, s{S_WAVE}, 7")
    a("v_lshl_add_u32 v15, v14, 3, s4")
    for k_, (vi, vd, vq, vt, ve) in enumerate(BS):
        a(f"v_sub_u32 v{vt}, v{ve}, v{vd}")
        a(f"v_lshl_or_b32 v{vt}, v{vt}, 7, v{vd}")
        if k_ == 0:
            a(f"v_add_u32 v{vi}, v15, v{V_G}")
            a(f"ds_write_b8 v{vi}, v{vt} offset:{L_TAB}")
        else:
            a(f"ds_write_b8 v15, v{vt} offset:{L_TAB+4}")
    a(f"v_add_u32 v15, s4, v{LANE}")
    a(f"ds_read_u8 v12, v15 offset:{L_TAB}")
    a(f"ds_read_u8 v13, v15 offset:{L_TAB+64}")
    a("v_and_b32 v16, 0xff, v11")
    a("v_lshlrev_b32 v16, 6, v16")
    a("v_lshrrev_b32 v10, 8, v11")
    a("v_cmp_gt_u32 vcc, 5, v7")
    a("v_mov_b32 v20, 0")
    a("v_mov_b32 v21, 0")
    a("v_cndmask_b32 v10, 0, v10, vcc")
    a("s_waitcnt lgkmcnt(0)")
    a("v_cndmask_b32 v12, 0, v12, vcc")
    a("v_cndmask_b32 v13, 0, v13, vcc")
    a(f"v_cmp_lt_u32 s[{S_S0}:{S_S0+1}], 64, v12")
    a(f"v_cmp_lt_u32 s[{S_S1}:{S_S1+1}], 64, v13")
    a("v_and_b32 v12, 0x7f, v12")
    a("v_and_b32 v13, 0x7f, v13")
    a("v_lshl_add_u32 v12, v12, 2, v16")
    a("v_lshl_add_u32 v13, v13, 2, v16")
    a(f"s_bcnt1_i32_b64 s4, s[{S_S0}:{S_S0+1}]")
    a(f"s_bcnt1_i32_b64 s{S_LEFT}, s[{S_S1}:{S_S1+1}]")
    a(f"s_add_u32 s{S_LEFT}, s{S_LEFT}, s4")
    a(f"s_lshl_b32 s5, s{S_WAVE}, 7")
    a("s_add_u32 s4, s4, s5")
    a(f"v_mbcnt_lo_u32_b32 v17, s{S_S0}, 0")
    a(f"v_mbcnt_hi_u32_b32 v17, s{S_S0+1}, v17")
    a(f"v_mbcnt_lo_u32_b32 v18, s{S_S1}, 0")
    a(f"v_mbcnt_hi_u32_b32 v18, s{S_S1+1}, v18")
    a("v_add_lshl_u32 v17, s5, v17, 2")
    a("v_add_lshl_u32 v18, s4, v18, 2")
    a(f"s_mov_b64 exec, s[{S_S0}:{S_S0+1}]")
    a(f"ds_write_b32 v17, v12 offset:{L_LST}")
    a(f"s_mov_b64 exec, s[{S_S1}:{S_S1+1}]")
    a(f"ds_write_b32 v18, v13 offset:{L_LST}")
    a("s_mov_b64 exec, -1")
    a("s_mov_b32 s3, s5")
    a(f"v_lshrrev_b32 v14, 3, v{LANE}")
    a("v_add_u32 v15, 3, v10")
    a("v_and_b32 v15, 0xfc, v15")
    a("v_add_u32 v14, v10, v14")
    a("v_cmp_lt_u32 vcc, v14, v15")
    a("v_add_u32 v14, v16, v14")
    a(f"v_add_u32 v15, {DUMMY}, v7")
    a(f"v_subrev_u32 v19, 24, v{LANE}")
    a(f"v_cmp_gt_u32 s[{S_SAVE}:{S_SAVE+1}], 4, v19")
    a(f"v_cmp_gt_u32 s[4:5], s{S_LEFT}, v{LANE}")
    a(f"v_add_u32 v19, 64, v{LANE}")
    a(f"v_cmp_gt_u32 s[6:7], s{S_LEFT}, v19")
    a(f"v_add_lshl_u32 v17, s3, v{LANE}, 2")
    a("v_mov_b32 v22, 0")
    a("v_mov_b32 v23, 0")
    a(f"v_cndmask_b32 v14, v14, v15, s[{S_SAVE}:{S_SAVE+1}]")
    a(f"ds_read_b32 v{V_LIST}, v17 offset:{L_LST}")
    a(f"ds_read_b32 v{V_LIST1}, v17 offset:{L_LST+256}")
    a(f"s_or_b64 exec, vcc, s[{S_SAVE}:{S_SAVE+1}]")
    a("v_lshlrev_b32 v15, 4, v14")
    a("v_lshlrev_b32 v14, 2, v14")
    a(f"v_mov_b32 v19, {OOB}")
    a(f"ds_write_b128 v15, v[20:23] offset:{L_REC}")
    a(f"ds_write_b32 v14, v19 offset:{L_SOFF}")
    a("s_mov_b64 exec, -1")
    a(f"v_mov_b32 v19, {DUMMY}")
    a("s_waitcnt lgkmcnt(0)")
    a(f"v_cndmask_b32 v{V_LIST}, v19, v{V_LIST}, s[4:5]")
    a(f"v_cndmask_b32 v{V_LIST1}, v19, v{V_LIST1}, s[6:7]")
    a("s_barrier")
    stamp(4)
    a(f"s_cmp_lg_u32 s{S_PASS}, 0")
    a("s_cbranch_scc1 K2_nobg")
    bgop(100)
    a("K2_nobg:")
    def rd_soff(se):
        return [f"v_add_lshl_u32 v{V_T}, s{se}, v{V_G}, 2", f"ds_read_b32 v{V_SOFF}, v{V_T} offset:{L_SOFF}"]
    def rd_rec(se):
        return [f"v_add_lshl_u32 v{V_T2}, s{se}, v{V_G}, 4", f"ds_read_b128 v[{RECV}:{RECV+3}], v{V_T2} offset:{L_REC}"]
    for q in range(NXB):
        a(f"v_readlane_b32 s{4+q}, v{V_LIST}, {q}")
    a(f"s_mov_b32 s{S_IDX}, {NXB}")
    a(f"s_mov_b32 s{S_IDX2}, 1")
    a(f"s_mov_b32 s{S_RC}, 0")
    if PRIO == 2:
        a(f"s_cmp_lt_u32 s{S_WAVE}, 4")
        a("s_cbranch_scc1 K2_pr_done")
        a("s_setprio 1")
        a("K2_pr_done:")
    for x in rd_soff(4): a(x)
    for x in rd_rec(4): a(x)
    for q in range(NXB - 1):
        a(f"s_cmp_gt_u32 s{S_LEFT}, {q}")
        a("s_cbranch_scc0 K2_pre_done")
        a("s_waitcnt lgkmcnt(1)" if q == 0 else "s_waitcnt lgkmcnt(0)")
        addr_fix()
        for x in ld_x(q): a(x)
        for x in rd_soff(5 + q): a(x)
    a("K2_pre_done:")
    a(f"s_cmp_lg_u32 s{S_LEFT}, 0")
    a("s_cbranch_scc1 K2_t0")
    a("s_waitcnt vmcnt(0)")
    a("s_branch K2_t0")
    NS = 5 * NXB
    for s_ in range(NS):
        i = s_ % 5; b = s_ % NXB
        if i == 0:
            a(f"K2_re{s_}:")
            a(f"s_add_u32 s{S_RC}, s{S_RC}, 1")
            if PRIO == 1:
                a(f"s_lshr_b32 s{S_T}, s{S_WAVE}, 2")
                a(f"s_add_u32 s{S_T}, s{S_T}, s{S_RC}")
                a("s_setprio 0")
                a(f"s_bitcmp1_b32 s{S_T}, 0")
                a(f"s_cbranch_scc0 K2_pr{s_}")
                a("s_setprio 1")
                a(f"K2_pr{s_}:")
            a(f"s_lshr_b64 s[{S_S0}:{S_S0+1}], s[{S_S0}:{S_S0+1}], 8")
            a(f"s_and_b32 s{S_T}, s{S_RC}, {BARK-1}")
            a(f"s_cbranch_scc0 K2_rx{s_}")
            t = [f"K2_rx{s_}:",
                 f"s_cmp_eq_u32 s{S_RC}, 16", "s_cbranch_scc1 K2_loop_done",
                 f"s_cmp_lg_u32 s{S_RC}, 8", f"s_cbranch_scc1 K2_ry{s_}",
                 f"s_mov_b64 s[{S_S0}:{S_S0+1}], s[{S_S1}:{S_S1+1}]",
                 f"s_cmp_lg_u32 s{S_IDX2}, 1", f"s_cbranch_scc1 K2_ry{s_}",
                 "s_waitcnt vmcnt(0)",
                 f"K2_ry{s_}:",
                 f"s_cmp_lt_u32 s{S_IDX2}, 20", f"s_cbranch_scc1 K2_rz{s_}",
                 "s_mov_b64 exec, 0xfffff", f"v_mov_b32 v{V_LIST}, v{V_LIST1}", "s_mov_b64 exec, -1",
                 f"K2_rz{s_}:",
                 f"s_cmp_lg_u32 s{S_PASS}, 0", f"s_cbranch_scc1 K2_t{s_}",
                 "s_barrier", f"s_branch K2_t{s_}"]
            tail_code.extend(t)
        a(f"K2_t{s_}:")
        a(f"s_bitcmp1_b32 s{S_S0}, {i}")
        nxt = (s_ + 16) % NS
        a(f"s_cbranch_scc0 K2_{'re' if nxt % 5 == 0 else 't'}{nxt}")
        a(f"v_readlane_b32 s{S_EB}, v{V_LIST}, s{S_IDX}")
        a(f"v_readlane_b32 s{S_EA}, v{V_LIST}, s{S_IDX2}")
        a(f"s_sub_u32 s{S_LEFT}, s{S_LEFT}, 1")
        a("s_waitcnt lgkmcnt(0)")
        a(f"s_cmp_lt_u32 s{S_LEFT}, {NXB-1}")
        lds_ = ld_x((b + NXB - 1) % NXB)
        cnt_ = [0]
        def gl(n=1):
            cnt_[0] += 1
            a(f"s_cbranch_scc1 K2_nl{s_}_{cnt_[0]}")
            for _ in range(n): a(lds_.pop(0).replace(f"v{V_SOFF},", f"v{V_T},"))
            a(f"K2_nl{s_}_{cnt_[0]}:")
        a(f"v_add_u32 v{V_T}, v{V_SOFF}, v{V_COL16}")
        if NOMEM == 1: a(f"v_mov_b32 v{V_T}, {OOB}")
        pre = {0: 4, 1: 2, 2: 1, 3: 0}[ILV]
        if ILV == 0: gl(4)
        if ILV in (1, 2): gl(1)
        for u in range(4 if XP != 3 else 0):
            a(f"v_dot2_f32_bf16 v{AT+u}, v{CG+2*u}, v{RECV}, 0")
        a(f"v_perm_b32 v{AOP}, v{RECV+3}, v{RECV+2}, v{V_EASEL}")
        for u in range(4 if XP != 3 else 0):
            a(f"v_dot2_f32_bf16 v{AT+u}, v{CG+2*u+1}, v{RECV+1}, v{AT+u}")
        a(f"v_add_lshl_u32 v{V_T2}, s{S_EB}, v{V_G}, 2")
        a(f"ds_read_b32 v{V_SOFF}, v{V_T2} offset:{L_SOFF}")
        for x in rd_rec(S_EA): a(x)
        if ILV == 1: gl(1)
        for u in range(4):
            a(f"v_mul_f32 v{AT+u}, v{AT+u}, v{AOP}")
        a(f"v_cvt_pk_bf16_f32 v{AOP}, v{AT}, v{AT+1}")
        a(f"v_cvt_pk_bf16_f32 v{AOP+1}, v{AT+2}, v{AT+3}")
        a(f"s_cbranch_scc1 K2_wx{s_}")
        a(f"s_waitcnt vmcnt({4*(NXB-2)+pre})")
        a(f"K2_wr{s_}:")
        t = [f"K2_wx{s_}:", "s_waitcnt vmcnt(8)", f"s_cmp_eq_u32 s{S_LEFT}, 2", f"s_cbranch_scc1 K2_wr{s_}",
             "s_waitcnt vmcnt(4)", f"s_cmp_eq_u32 s{S_LEFT}, 1", f"s_cbranch_scc1 K2_wr{s_}",
             "s_waitcnt vmcnt(0)", f"s_cmp_eq_u32 s{S_LEFT}, 0", f"s_branch K2_wr{s_}"]
        tail_code.extend(t)
        def mf(j):
            if XP == 1: return
            o = OPS + 2 * (j % 3); c = ACC + 32 * i + 4 * j
            a(f"v_mfma_f32_16x16x16_bf16 v[{c}:{c+3}], v[{AOP}:{AOP+1}], v[{o}:{o+1}], v[{c}:{c+3}]")
        after = {0: [], 1: [2, 5], 2: [1, 3, 6], 3: [0, 2, 4, 6]}[ILV]
        for j in range(8):
            m = j >> 1; sel = S_SELHI if j & 1 else S_SELLO
            o = OPS + 2 * (j % 3)
            x = lambda u: XB + 16 * b + 4 * u + m
            if not NOCOMP:
                if XP != 2:
                    a(f"v_perm_b32 v{o}, v{x(1)}, v{x(0)}, s{sel}")
                    a(f"v_perm_b32 v{o+1}, v{x(3)}, v{x(2)}, s{sel}")
                if j > 0: mf(j - 1)
            if j in after: gl(1)
        a(f"s_add_u32 s{S_IDX}, s{S_IDX}, 1")
        a(f"s_add_u32 s{S_IDX2}, s{S_IDX2}, 1")
        if not NOCOMP: mf(7)
    a("s_branch K2_re0")
    for x in tail_code: a(x)
    a("K2_loop_done:")
    a(f"s_cmp_lg_u32 s{S_MODE}, 0")
    a("s_cbranch_scc1 K2_slow_next")
    a("K2_epi:")
    stamp(5)
    a("s_waitcnt vmcnt(0) lgkmcnt(0)")
    lane_id(LANE)
    a(f"s_lshl_b32 s3, s{S_WAVE}, 6")
    a(f"v_and_b32 v6, 15, v{LANE}")
    a("v_and_b32 v5, 12, v6")
    a("v_add_u32 v5, s3, v5")
    a(f"ds_read_b32 v16, v5 offset:{L_NODE}")
    a("v_mov_b32 v5, s3")
    a(f"ds_read_b32 v17, v5 offset:{L_NODE+16}")
    a(f"v_lshlrev_b32 v1, 3, v{V_COL16}")
    a(f"v_add_u32 v1, {L_WR}, v1")
    for j in range(8):
        a(f"ds_read_b128 v[{XB+4*j}:{XB+4*j+3}], v1 offset:{16*j}")
    a(f"v_lshlrev_b32 v1, 4, v{LANE}")
    a(f"v_add_u32 v1, {L_WT}, v1")
    a(f"s_mul_i32 s4, s{S_WAVE}, {20*AGG_RS}")
    a(f"s_add_u32 s4, s4, {L_AGG}")
    a(f"v_mul_u32_u24 v2, {AGG_RS}, v{V_G}")
    a(f"v_add3_u32 v2, v2, v{V_COL16}, s4")
    a(f"v_mul_u32_u24 v7, {AGG_RS}, v6")
    a(f"v_lshl_add_u32 v7, v{V_G}, 4, v7")
    a("v_add_u32 v7, s4, v7")
    AW = [XB + 32, ACC, ACC + 32, ACC + 64]
    def rd_a(m):
        for x in range(8):
            a(f"ds_read_b128 v[{AW[m]+4*x}:{AW[m]+4*x+3}], v1 offset:{8192*m + 1024*x}")
    a("s_waitcnt lgkmcnt(0)")
    rd_a(0)
    for i in range(5):
        for j in range(8):
            c = ACC + 32 * i + 4 * j; w = XB + 4 * j
            a(f"v_mul_f32 v{c}, v{c}, v{w}")
        for kk in range(1, 4):
            for j in range(8):
                c = ACC + 32 * i + 4 * j; w = XB + 4 * j
                a(f"v_fmac_f32 v{c}, v{c+kk}, v{w+kk}")
        o = 8 + 4 * (i % 2)
        for jj in range(4):
            c = ACC + 32 * i + 8 * jj
            a(f"v_cvt_pk_bf16_f32 v{o+jj}, v{c}, v{c+4}")
        a(f"ds_write_b128 v2, v[{o}:{o+3}] offset:{i*4*AGG_RS}")
        if i < 3: rd_a(i + 1)
    stamp(6)
    BB = XB
    for ct in range(2):
        for t in range(4):
            r = BB + 16 * ct + 4 * t
            a(f"ds_read_b128 v[{r}:{r+3}], v7 offset:{ct*16*AGG_RS + t*64}")
    a("v_and_b32 v5, 3, v6")
    a("v_lshlrev_b32 v5, 8, v5")
    a(f"v_lshl_add_u32 v5, v{V_G}, 4, v5")
    a("v_and_b32 v16, 0xff, v16")
    a("v_and_b32 v17, 0xff, v17")
    a("v_lshl_add_u32 v16, v16, 10, v5")
    a("v_lshl_add_u32 v17, v17, 10, v5")
    a(f"v_mov_b32 v18, {OOB}")
    a("v_cmp_gt_u32 vcc, 4, v6")
    a(f"s_mul_i32 s6, s{S_B}, {NPB*1024}")
    a("s_nop 0")
    a("v_cndmask_b32 v17, v18, v17, vcc")
    DD = ACC + 96
    units = [(ct, m) for ct in range(2) for m in range(4)]
    def fin(u):
        ct, m = units[u]
        d = DD + 8 * u
        for x in range(4):
            a(f"v_cvt_pk_bf16_f32 v{d+x}, v{d+2*x}, v{d+2*x+1}")
        a(f"buffer_store_dwordx4 v[{d}:{d+3}], v{16+ct}, s[{S_OUT}:{S_OUT+3}], s6 offen offset:{64*m} {OMOD}")
    for u, (ct, m) in enumerate(units):
        if u == 0: a("s_waitcnt lgkmcnt(4)")
        if u == 4: a("s_waitcnt lgkmcnt(0)")
        for t in range(4):
            r = BB + 16 * ct + 4 * t
            for hh in range(2):
                d = DD + 8 * u + 4 * hh; w = AW[m] + 16 * hh + 4 * t
                c = "0" if t == 0 else f"v[{d}:{d+3}]"
                a(f"v_mfma_f32_16x16x32_bf16 v[{d}:{d+3}], v[{w}:{w+3}], v[{r}:{r+3}], {c}")
        if u > 0: fin(u - 1)
    a("s_nop 7")
    fin(7)
    stamp(7)
    if STAMP: a("s_waitcnt vmcnt(0)")
    stamp(8)
    stamp_flush(1, 8, 9, S_WAVE, 1)
    a("K2_end:")
    a("s_endpgm")
    a("K2_slow:")
    for grp in bg_slow:
        if "lds" in grp[-1]:
            for x in grp: a(x)
    a(f"s_mov_b32 s{S_MODE}, 1")
    a(f"s_mov_b32 s{S_WIN}, 0")
    a(f"v_lshlrev_b32 v8, 10, v{LANE}")
    a(f"s_lshl_b32 s3, s{S_B}, 2")
    a(f"s_add_u32 s3, s3, {OFFS_OFF}")
    for h in range(4):
        a(f"buffer_load_dwordx2 v[{10+2*h}:{11+2*h}], v8, s[{S_WS}:{S_WS+3}], s3 offen")
        a("s_add_u32 s3, s3, 65536")
    a(f"v_cmp_gt_u32 vcc, {P-192}, v{LANE}")
    a("s_waitcnt vmcnt(0)")
    for h in range(4):
        a(f"v_sub_u32 v{10+2*h}, v{11+2*h}, v{10+2*h}")
    a("v_cndmask_b32 v16, 0, v16, vcc")
    a("v_max_u32 v10, v10, v12")
    a("v_max3_u32 v10, v10, v14, v16")
    wave_scan(10, "v_max_u32_dpp")
    a("s_nop 1")
    a(f"v_readlane_b32 s{S_MAXC}, v10, 63")
    a("K2_slow_win:")
    a(f"s_cmp_ge_u32 s{S_WIN}, s{S_MAXC}")
    a("s_cbranch_scc1 K2_slow_fin")
    def seg_setup():
        lane_id(LANE)
        a(f"s_lshl_b32 s3, s{S_WAVE}, 6")
        a(f"v_add_u32 v{TID}, s3, v{LANE}")
        a(f"v_lshrrev_b32 v8, 1, v{TID}")
        a(f"v_and_b32 v9, 1, v{TID}")
        a("v_lshlrev_b32 v10, 10, v8")
        a(f"s_lshl_b32 s3, s{S_B}, 2")
        a(f"s_add_u32 s3, s3, {OFFS_OFF}")
        a(f"buffer_load_dwordx2 v[12:13], v10, s[{S_WS}:{S_WS+3}], s3 offen")
        a(f"v_mul_u32_u24 v10, {EPC}, v8")
        a(f"v_add3_u32 v10, v10, v9, s{S_WIN}")
        a(f"v_cmp_gt_u32 vcc, {P}, v8")
        a("s_waitcnt vmcnt(0)")
        a("v_sub_u32 v11, v13, v12")
        a("v_cndmask_b32 v11, 0, v11, vcc")
        a("v_add_u32 v10, v10, v12")
        a("v_sub_u32 v13, v11, v9")
        a(f"v_subrev_u32 v13, s{S_WIN}, v13")
        a("v_lshlrev_b32 v14, 4, v10")
        a("v_lshlrev_b32 v10, 2, v10")
    seg_setup()
    for r in range(NR):
        a(f"v_cmp_lt_i32 {M(r)}, {2*r}, v13")
    a("K2_slow_batch:")
    a("s_waitcnt vmcnt(0) lgkmcnt(0)")
    a("s_barrier")
    seg_setup()
    a(f"v_lshlrev_b32 v8, 2, v{TID}")
    a("v_mov_b32 v9, 0")
    a(f"v_cmp_gt_u32 vcc, {NPB*4+4}, v{TID}")
    a(f"s_and_saveexec_b64 s[{S_SAVE}:{S_SAVE+1}], vcc")
    a(f"ds_write_b32 v8, v9 offset:{L_HIST}")
    a("s_mov_b64 exec, -1")
    a("s_waitcnt lgkmcnt(0)")
    a("s_barrier")
    a("v_mov_b32 v17, 1")
    a(f"s_mov_b32 s3, {TAG_OFF}")
    a(f"s_mov_b64 s[{S_SAVE}:{S_SAVE+1}], 0")
    for r in range(NR):
        a(f"s_mov_b64 exec, {M(r)}")
        a(f"s_cbranch_execz K2_slow_skip{r}")
        a(f"buffer_load_dword v16, v10, s[{S_WS}:{S_WS+3}], s3 offen offset:{8*r}")
        a(f"buffer_load_dwordx4 v[{XB}:{XB+3}], v14, s[{S_WS}:{S_WS+3}], 0 offen offset:{32*r}")
        a("s_waitcnt vmcnt(0)")
        a("v_lshrrev_b32 v8, 18, v16")
        a("v_lshlrev_b32 v9, 4, v8")
        a(f"ds_add_rtn_u32 v15, v9, v17 offset:{L_HIST}")
        a("v_and_b32 v16, 0x3fff, v16")
        a("v_lshlrev_b32 v16, 10, v16")
        a("s_waitcnt lgkmcnt(0)")
        a(f"v_cmp_gt_u32 vcc, {CAPN}, v15")
        a(f"s_andn2_b64 {M(r)}, {M(r)}, vcc")
        a(f"s_or_b64 s[{S_SAVE}:{S_SAVE+1}], s[{S_SAVE}:{S_SAVE+1}], {M(r)}")
        a("s_mov_b64 exec, vcc")
        a("v_lshl_add_u32 v8, v8, 6, v15")
        a("v_lshlrev_b32 v9, 4, v8")
        a("v_lshlrev_b32 v8, 2, v8")
        a(f"ds_write_b128 v9, v[{XB}:{XB+3}] offset:{L_REC}")
        a(f"ds_write_b32 v8, v16 offset:{L_SOFF}")
        a("s_waitcnt lgkmcnt(0)")
        a(f"K2_slow_skip{r}:")
    a("s_mov_b64 exec, -1")
    a(f"v_mov_b32 v9, {L_FLAG}")
    a(f"s_cmp_eq_u64 s[{S_SAVE}:{S_SAVE+1}], 0")
    a("s_cbranch_scc1 K2_slow_nof")
    a("ds_write_b32 v9, v17")
    a("K2_slow_nof:")
    a("s_waitcnt lgkmcnt(0)")
    a("s_barrier")
    a(f"v_and_b32 v7, 7, v{LANE}")
    a(f"s_mul_i32 s3, s{S_WAVE}, 5")
    a("v_add_u32 v11, s3, v7")
    a(f"v_add_u32 v6, s3, v{V_G}")
    a("s_add_u32 s3, s3, 4")
    a("v_mov_b32 v1, s3")
    for (vn, vt) in ((11, 12), (6, 13), (1, 14)):
        a(f"v_lshlrev_b32 v{vt}, 4, v{vn}")
        a(f"ds_read_b32 v{vt}, v{vt} offset:{L_HIST}")
    a("ds_read_b32 v9, v9")
    a("s_waitcnt lgkmcnt(0)")
    for (vn, vt) in ((11, 12), (6, 13), (1, 14)):
        a(f"v_min_u32 v{vt}, {CAPN}, v{vt}")
        a(f"v_lshl_add_u32 v{vn}, v{vt}, 8, v{vn}")
    a(f"v_readfirstlane_b32 s{S_MODE}, v9")
    a("v_mov_b32 v12, 0")
    a("v_mov_b32 v13, 0")
    a(f"s_add_u32 s{S_MODE}, s{S_MODE}, 1")
    a(f"s_mov_b32 s{S_PASS}, 1")
    a("s_branch K2_sched")
    a("K2_slow_next:")
    a(f"s_cmp_eq_u32 s{S_MODE}, 2")
    a("s_cbranch_scc1 K2_slow_batch")
    a(f"s_add_u32 s{S_WIN}, s{S_WIN}, {2*NR}")
    a("s_waitcnt vmcnt(0) lgkmcnt(0)")
    a("s_branch K2_slow_win")
    a("K2_slow_fin:")
    a("s_branch K2_epi")
    a("K2_code_end:")
    a("s_endpgm")

def gen_report():
    k = "rep_kernel"
    a(f".globl {k}\n.p2align 8\n.type {k},@function\n{k}:")
    a("s_cmp_lg_u32 s2, 0")
    a("s_cbranch_scc1 R_end")
    a("s_load_dwordx4 s[4:7], s[0:1], 72")
    a("s_waitcnt lgkmcnt(0)")
    def red(reg, op):
        wave_scan(reg, op)
    a("v_mov_b32 v10, -1")
    for r in range(11, 30): a(f"v_mov_b32 v{r}, 0")
    a("v_mov_b32 v14, -1")
    a("v_mov_b32 v20, -1")
    a(f"v_lshlrev_b32 v1, 6, v0")
    a(f"v_add_u32 v1, {DBG_OFF}, v1")
    for kx in range(19):
        a("global_load_dwordx4 v[2:5], v1, s[6:7]")
        a("global_load_dwordx4 v[6:9], v1, s[6:7] offset:16")
        a("s_waitcnt vmcnt(0)")
        a("v_min_u32 v10, v10, v2")
        a("v_max_u32 v11, v11, v3")
        a("v_max_u32 v12, v12, v5")
        a("v_max_u32 v13, v13, v8")
        a("v_add_u32 v1, 4096, v1")
    a(f"v_lshlrev_b32 v1, 6, v0")
    a(f"v_add_u32 v1, {DBG_OFF + (1<<20)}, v1")
    for kx in range(31):
        a("global_load_dwordx4 v[2:5], v1, s[6:7]")
        a("global_load_dwordx4 v[6:9], v1, s[6:7] offset:16")
        a("global_load_dword v30, v1, s[6:7] offset:32")
        a("s_waitcnt vmcnt(0)")
        a("v_min_u32 v14, v14, v2")
        a("v_max_u32 v15, v15, v2")
        a("v_max_u32 v16, v16, v3")
        a("v_max_u32 v17, v17, v4")
        a("v_max_u32 v18, v18, v5")
        a("v_max_u32 v19, v19, v6")
        a("v_min_u32 v20, v20, v7")
        a("v_max_u32 v21, v21, v7")
        a("v_max_u32 v22, v22, v8")
        a("v_max_u32 v23, v23, v9")
        a("v_max_u32 v24, v24, v30")
        a("v_add_u32 v1, 4096, v1")
    for r in range(10, 25):
        red(r, "v_min_u32_dpp" if r in (10, 14, 20) else "v_max_u32_dpp")
    a("s_memrealtime s[8:9]")
    a("s_waitcnt lgkmcnt(0)")
    a("v_mov_b32 v25, s8")
    a("s_mov_b32 exec_lo, 0")
    a("s_mov_b32 exec_hi, 0x80000000")
    a("v_mov_b32 v1, 0")
    for r in range(11, 26):
        a(f"v_sub_u32 v2, v{r}, v10")
        a(f"global_store_dword v1, v2, s[4:5] offset:{4*(r-11)}")
    a("R_end:")
    a("s_endpgm")

def kd(name, nv, ns):
    return f""".p2align 6
.amdhsa_kernel {name}
  .amdhsa_next_free_vgpr {nv}
  .amdhsa_next_free_sgpr {ns}
  .amdhsa_accum_offset {(nv+3)//4*4}
  .amdhsa_group_segment_fixed_size 0
  .amdhsa_kernarg_size 88
  .amdhsa_user_sgpr_count 2
  .amdhsa_user_sgpr_kernarg_segment_ptr 1
  .amdhsa_system_sgpr_workgroup_id_x 1
.end_amdhsa_kernel"""

def main():
    hdr = open("cdna_kernels/" + NAME + ".s.ref").read().split("\n")
    hdr = [l for l in hdr[:12] if l.startswith(";")]
    print("\n".join(hdr))
    print(f"; @launch kernel=part_kernel grid=({K1_GRID},1,1) block=({K1_T},1,1) lds={K1_LDS}")
    print(f"; @launch kernel=main_kernel grid=(256,1,1) block=({K2_T},1,1) lds={K2_LDS}")
    if STAMP == 2: print("; @launch kernel=rep_kernel grid=(1,1,1) block=(64,1,1) lds=0")
    print('.amdgcn_target "amdgcn-amd-amdhsa--gfx950"')
    print(".text")
    gen_k1()
    gen_k2()
    if STAMP == 2: gen_report()
    print("\n".join(("" if (l.endswith(":") or l.startswith(".")) else "    ") + l for l in out))
    print('.section .rodata,"a"')
    print(kd("part_kernel", 64, 96 if STAMP else 48))
    print(kd("main_kernel", 256, 102))
    if STAMP == 2: print(kd("rep_kernel", 32, 16))

main()
```

```python
import sys, os

NAME = "gather_scatter__tensor_product_equiv_mace__graph"
N = 10000; E = 320000
P = 250; EPC = E // P
NB = 250; NPB = 40
NR = 10
CAPN = 64
env = lambda k, d: type(d)(os.environ.get(k, d))
STAMP = env("STAMP", 0)
STMOD = env("STMOD", "")
K2TOUCH = env("K2TOUCH", 1)
K1TOUCH = env("K1TOUCH", 0)
CODEPF = env("CODEPF", 1)
BAL = env("BAL", 1)
OMOD = env("OMOD", "")
XP = env("XP", 0)
ILV = env("ILV", 1)
PRIO = env("PRIO", 0)
ROT = env("ROT", 0)
NOCOMP = env("NOCOMP", 0)
NOMEM = env("NOMEM", 0)

REC_OFF = 0
TAG_OFF = REC_OFF + E * 16
OFFS_OFF = TAG_OFF + E * 4
WT_OFF = OFFS_OFF + 256 * 1024
WR_OFF = WT_OFF + 32768
CG_OFF = WR_OFF + 2048
WS_USED = WT_OFF + 40960 + 4096
DBG_OFF = 8 << 20

out = []
def a(s): out.append(s)
def stamp(i):
    if STAMP: a(f"s_memrealtime s[{64+2*i}:{65+2*i}]")
def stamp_flush(kidx, wavesper, n, swave, vt=1):
    if not STAMP: return
    a("s_mov_b64 exec, -1")
    a("s_load_dwordx2 s[90:91], s[0:1], 80")
    a(f"s_mul_i32 s92, s2, {wavesper}")
    a(f"s_add_u32 s92, s92, s{swave}")
    a(f"s_lshl_b32 s92, s92, 6")
    a(f"s_add_u32 s92, s92, {DBG_OFF + kidx*(1<<20)}")
    a(f"v_mov_b32 v{vt}, s92")
    a("s_waitcnt lgkmcnt(0)")
    a("s_mov_b64 exec, 1")
    for i in range(n):
        a(f"v_mov_b32 v{vt+1}, s{64+2*i}")
        a(f"global_store_dword v{vt}, v{vt+1}, s[90:91] offset:{4*i}")

def srd(d, base, nbytes):
    a(f"s_mov_b32 s{d}, s{base}")
    a(f"s_and_b32 s{d+1}, s{base+1}, 0xffff")
    a(f"s_mov_b32 s{d+2}, {nbytes}")
    a(f"s_mov_b32 s{d+3}, 0x20000")

def wave_scan(v, op="v_add_u32_dpp"):
    for sh in (1, 2, 4, 8):
        a("s_nop 1")
        a(f"{op} v{v}, v{v}, v{v} row_shr:{sh} row_mask:0xf bank_mask:0xf")
    a("s_nop 1")
    a(f"{op} v{v}, v{v}, v{v} row_bcast:15 row_mask:0xa bank_mask:0xf")
    a("s_nop 1")
    a(f"{op} v{v}, v{v}, v{v} row_bcast:31 row_mask:0xc bank_mask:0xf")

K1_T = 320
K1_HIST = 0; K1_OFFS = 1024; K1_TAG = 2048; K1_REC = K1_TAG + EPC * 4
K1_LDS = K1_REC + EPC * 16
NWPREP = 8
K1_GRID = P + NWPREP

def gen_k1():
    k = "part_kernel"
    a(f".globl {k}\n.p2align 8\n.type {k},@function\n{k}:")
    a(f"s_cmp_ge_u32 s2, {K1_GRID}")
    a("s_cbranch_scc1 K1_end")
    a(f"s_cmp_ge_u32 s2, {P}")
    a("s_cbranch_scc1 K1_wprep")
    stamp(0)
    a("s_load_dwordx4 s[4:7], s[0:1], 8")
    a("s_load_dwordx4 s[8:11], s[0:1], 24")
    a("s_load_dwordx2 s[12:13], s[0:1], 80")
    if K1TOUCH: a("s_load_dwordx2 s[44:45], s[0:1], 0")
    a("v_lshlrev_b32 v1, 4, v0")
    a("v_lshlrev_b32 v2, 5, v0")
    a("v_lshlrev_b32 v3, 2, v0")
    a("v_mov_b32 v4, 0")
    a(f"ds_write_b32 v3, v4 offset:{K1_HIST}")
    a(f"s_mul_i32 s14, s2, {EPC*4}")
    a(f"s_mul_i32 s15, s2, {EPC*8}")
    a("v_lshrrev_b32 v5, 6, v0")
    a("s_waitcnt lgkmcnt(0)")
    srd(20, 6, E * 4)
    a("buffer_load_dwordx4 v[8:11], v1, s[20:23], s14 offen")
    srd(16, 4, E * 4)
    a("buffer_load_dwordx4 v[12:15], v1, s[16:19], s14 offen")
    srd(24, 8, E * 8)
    srd(28, 10, E * 8)
    srd(32, 12, WS_USED)
    a("v_readfirstlane_b32 s47, v5")
    a("s_barrier")
    a("buffer_load_dwordx4 v[16:19], v2, s[24:27], s15 offen")
    a("buffer_load_dwordx4 v[20:23], v2, s[24:27], s15 offen offset:16")
    a("buffer_load_dwordx4 v[24:27], v2, s[28:31], s15 offen")
    a("buffer_load_dwordx4 v[28:31], v2, s[28:31], s15 offen offset:16")
    a("s_mov_b32 s40, 52429")
    a("s_mov_b32 s41, -40")
    a("s_mov_b32 s42, 6711")
    a("v_mov_b32 v5, 1")
    a("v_and_b32 v6, 63, v0")
    a("v_lshlrev_b32 v6, 4, v6")
    a("s_waitcnt vmcnt(5)")
    stamp(1)
    for e in range(4):
        a(f"v_mul_u32_u24 v{32+e}, s40, v{8+e}")
        a(f"v_lshrrev_b32 v{32+e}, 21, v{32+e}")
        a(f"v_lshlrev_b32 v{36+e}, 2, v{32+e}")
        a(f"ds_add_rtn_u32 v{40+e}, v{36+e}, v5 offset:{K1_HIST}")
    a("s_waitcnt vmcnt(4)")
    for e in range(4):
        a(f"v_mad_i32_i24 v{8+e}, v{32+e}, s41, v{8+e}")
        if ROT:
            a(f"v_lshl_add_u32 v{44+e}, v{32+e}, 3, 7")
            a(f"v_mul_u32_u24 v{44+e}, 4195, v{44+e}")
            a(f"v_lshrrev_b32 v{44+e}, 20, v{44+e}")
            a(f"v_mul_u32_u24 v{44+e}, {ROT}, v{44+e}")
        a(f"v_mul_u32_u24 v{32+e}, s42, v{12+e}")
        a(f"v_lshrrev_b32 v{32+e}, 22, v{32+e}")
        if ROT:
            a(f"v_add_u32 v{32+e}, v{32+e}, v{44+e}")
            a(f"v_and_b32 v{32+e}, 15, v{32+e}")
        a(f"v_lshl_add_u32 v{8+e}, v{8+e}, 4, v{32+e}")
        a(f"v_lshl_add_u32 v{12+e}, v{8+e}, 14, v{12+e}")
    a("s_waitcnt lgkmcnt(0)")
    a("s_barrier")
    stamp(2)
    if K1TOUCH:
        srd(36, 44, N * 1024)
        a(f"s_mul_i32 s46, s2, {K1_T*16}")
        for r in range(K1TOUCH):
            a("buffer_load_dwordx4 v[56:59], v1, s[36:39], s46 offen")
            a(f"s_add_u32 s46, s46, {P*K1_T*16}")
    a(f"ds_read_b128 v[44:47], v6 offset:{K1_HIST}")
    a("s_waitcnt lgkmcnt(0)")
    a("v_add_u32 v48, v44, v45")
    a("v_add3_u32 v48, v48, v46, v47")
    a("v_mov_b32 v49, v48")
    wave_scan(49)
    a("v_sub_u32 v52, v49, v48")
    a("v_add_u32 v53, v52, v44")
    a("v_add_u32 v54, v53, v45")
    a("v_add_u32 v55, v54, v46")
    a(f"ds_write_b128 v6, v[52:55] offset:{K1_OFFS}")
    for e in range(4):
        a(f"ds_read_b32 v{32+e}, v{36+e} offset:{K1_OFFS}")
    a("s_cmp_lg_u32 s47, 0")
    a("s_cbranch_scc1 K1_noffs")
    a("s_lshl_b32 s43, s2, 10")
    a(f"s_add_u32 s43, s43, {OFFS_OFF}")
    a(f"buffer_store_dwordx4 v[52:55], v6, s[32:35], s43 offen {STMOD}")
    a(f"s_waitcnt vmcnt({K1TOUCH+1}) lgkmcnt(0)")
    a("s_branch K1_go")
    a("K1_noffs:")
    a(f"s_waitcnt vmcnt({K1TOUCH}) lgkmcnt(0)")
    a("K1_go:")
    stamp(3)
    for e in range(4):
        a(f"v_add_u32 v{32+e}, v{32+e}, v{40+e}")
        a(f"v_lshlrev_b32 v{36+e}, 4, v{32+e}")
        a(f"v_add_u32 v{36+e}, {K1_REC}, v{36+e}")
        a(f"v_lshlrev_b32 v{32+e}, 2, v{32+e}")
        a(f"ds_write2_b64 v{36+e}, v[{16+2*e}:{17+2*e}], v[{24+2*e}:{25+2*e}] offset0:0 offset1:1")
        a(f"ds_write_b32 v{32+e}, v{12+e} offset:{K1_TAG}")
    a(f"s_mul_i32 s43, s2, {EPC*16}")
    a(f"s_add_u32 s46, s14, {TAG_OFF}")
    a("s_waitcnt lgkmcnt(0)")
    a("s_barrier")
    stamp(4)
    a(f"ds_read_b128 v[24:27], v1 offset:{K1_TAG}")
    for r in range(4):
        a(f"ds_read_b128 v[{8+4*r}:{11+4*r}], v1 offset:{K1_REC + r*K1_T*16}")
    a("s_waitcnt lgkmcnt(4)")
    a(f"buffer_store_dwordx4 v[24:27], v1, s[32:35], s46 offen {STMOD}")
    for r in range(4):
        a(f"s_waitcnt lgkmcnt({3-r})")
        a(f"buffer_store_dwordx4 v[{8+4*r}:{11+4*r}], v1, s[32:35], s43 offen {STMOD}")
        a(f"s_add_u32 s43, s43, {K1_T*16}")
    stamp(5)
    if STAMP: a("s_waitcnt vmcnt(0)")
    stamp(6)
    stamp_flush(0, 5, 7, 47, 40)
    a("s_endpgm")
    a("K1_wprep:")
    a("s_load_dwordx4 s[4:7], s[0:1], 40")
    a("s_load_dwordx2 s[8:9], s[0:1], 56")
    a("s_load_dwordx2 s[12:13], s[0:1], 80")
    a(f"s_sub_u32 s14, s2, {P}")
    a("s_waitcnt lgkmcnt(0)")
    srd(16, 4, 128)
    srd(20, 6, 1024)
    srd(24, 8, 32768)
    srd(32, 12, WS_USED)
    a("v_cmp_gt_u32 vcc, 256, v0")
    a("s_and_saveexec_b64 s[36:37], vcc")
    a("s_cbranch_execz K1_wsmall")
    a("v_bfe_u32 v2, v0, 6, 2")
    a("v_bfe_u32 v3, v0, 4, 2")
    a("v_bfe_u32 v4, v0, 2, 2")
    a("v_and_b32 v5, 3, v0")
    a("v_lshlrev_b32 v6, 13, v2")
    a("v_lshl_add_u32 v6, v3, 11, v6")
    a("v_lshl_add_u32 v6, v4, 4, v6")
    a("v_lshl_add_u32 v6, v5, 1, v6")
    a("s_lshr_b32 s15, s14, 1")
    a("s_lshl_b32 s15, s15, 6")
    a("s_and_b32 s38, s14, 1")
    a("s_lshl_b32 s38, s38, 3")
    a("s_add_u32 s15, s15, s38")
    for q in range(8):
        a(f"buffer_load_ushort v{16+q}, v6, s[24:27], s15 offen offset:{q*256}")
    a("v_lshlrev_b32 v7, 4, v0")
    a("s_lshl_b32 s15, s14, 12")
    a(f"s_add_u32 s15, s15, {WT_OFF}")
    a("s_waitcnt vmcnt(0)")
    for q in range(4):
        a(f"v_lshl_or_b32 v{8+q}, v{17+2*q}, 16, v{16+2*q}")
    a("buffer_store_dwordx4 v[8:11], v7, s[32:35], s15 offen")
    a("s_endpgm")
    a("K1_wsmall:")
    a("s_mov_b64 exec, s[36:37]")
    a("v_subrev_u32 v1, 256, v0")
    a("s_cmp_lt_u32 s14, 2")
    a("s_cbranch_scc0 K1_wcg")
    a("s_lshl_b32 s15, s14, 6")
    a("v_add_u32 v1, s15, v1")
    a("v_lshlrev_b32 v2, 1, v1")
    for kk in range(4):
        a(f"buffer_load_ushort v{8+kk}, v2, s[20:23], 0 offen offset:{kk*256}")
    a("v_and_b32 v3, 7, v1")
    a("v_lshlrev_b32 v3, 4, v3")
    a("v_lshrrev_b32 v4, 3, v1")
    a("v_add_lshl_u32 v3, v3, v4, 4")
    a(f"s_mov_b32 s15, {WR_OFF}")
    a("s_waitcnt vmcnt(0)")
    for kk in range(4):
        a(f"v_lshlrev_b32 v{8+kk}, 16, v{8+kk}")
    a("buffer_store_dwordx4 v[8:11], v3, s[32:35], s15 offen")
    a("s_endpgm")
    a("K1_wcg:")
    a("s_cmp_eq_u32 s14, 2")
    a("s_cbranch_scc0 K1_wcode")
    a("v_lshrrev_b32 v2, 2, v1")
    a("v_lshlrev_b32 v2, 1, v2")
    for u in range(4):
        a(f"buffer_load_ushort v{16+u}, v2, s[16:19], 0 offen offset:{32*u}")
    a("v_and_b32 v3, 1, v1")
    a("v_lshlrev_b32 v3, 4, v3")
    a("v_and_b32 v4, 2, v1")
    a("v_cmp_eq_u32 vcc, 0, v4")
    a("v_lshlrev_b32 v6, 5, v1")
    a(f"s_mov_b32 s15, {CG_OFF}")
    a("s_waitcnt vmcnt(0)")
    for u in range(4):
        a(f"v_lshlrev_b32 v{16+u}, v3, v{16+u}")
        a(f"v_cndmask_b32 v{8+2*u}, 0, v{16+u}, vcc")
        a(f"v_cndmask_b32 v{9+2*u}, v{16+u}, 0, vcc")
    a("buffer_store_dwordx4 v[8:11], v6, s[32:35], s15 offen")
    a("buffer_store_dwordx4 v[12:15], v6, s[32:35], s15 offen offset:16")
    a("s_endpgm")
    a("K1_wcode:")
    if CODEPF:
        a("s_cmp_eq_u32 s14, 3")
        a("s_cbranch_scc0 K1_end")
        a("s_getpc_b64 s[40:41]")
        a("K1_pc:")
        a("s_add_u32 s40, s40, main_kernel-K1_pc")
        a("s_addc_u32 s41, s41, 0")
        a("v_lshlrev_b32 v2, 6, v1")
        for r in range(4):
            a("v_cmp_gt_u32 vcc, K2_code_end-main_kernel, v2")
            a("s_and_b64 exec, exec, vcc")
            a("s_cbranch_execz K1_wcode_done")
            a(f"global_load_dword v{8+r}, v2, s[40:41]")
            a("v_add_u32 v2, 4096, v2")
        a("K1_wcode_done:")
        a("s_waitcnt vmcnt(0)")
    a("K1_end:")
    a("s_endpgm")

K2_T = 512
SLOTS = NPB * CAPN + 8
DUMMY = NPB * CAPN
L_REC = 0
L_SOFF = L_REC + SLOTS * 16
L_HIST = L_SOFF + SLOTS * 4
L_FLAG = L_HIST + NPB * 16
L_PRE = L_FLAG + 16
L_NODE = L_PRE + NPB * 16 + 512
L_TAB = L_NODE + 512
L_LST = L_TAB + 1024
L_WT = (L_LST + 4096 + 255) // 256 * 256
L_WR = L_WT + 32768
L_AGG = L_WT + 32768 + 2048
AGG_RS = 272
K2_LDS = L_AGG + (NPB * 4 + 12) * AGG_RS
OOB = 0x7f000000
BARK = env("BARK", 2)
NXB = 4

ACC = 96; XB = 32; CG = 24; OPS = 20; AOP = 12; RECV = 8
V_GP = 7; V_SOFF = 6; V_T = 5; V_COL16 = 4; V_G = 3; V_ENT = 2; V_LADDR = 1; V_EASEL = 0
S_X = 8; S_WS = 12; S_OUT = 16
S_WAVE = 20; S_SELLO = 21; S_SELHI = 22; S_IDX = 23
S_S0 = 24; S_S1 = 26
S_EA = 28; S_EB = 29; S_IDX2 = 30; S_LEFT = 31; S_RC = 32; S_MORE = 33
S_T = 34; S_PASS = 35; S_MODE = 36; S_WIN = 37; S_MAXC = 38; S_B = 39
S_MASK = 40
S_SAVE = 60

def lane_id(v):
    a(f"v_mbcnt_lo_u32_b32 v{v}, -1, 0")
    a(f"v_mbcnt_hi_u32_b32 v{v}, -1, v{v}")

tail_code = []
uid = [0]
def ld_x(b):
    r = []
    for u in range(4):
        x = XB + 16 * b + 4 * u
        r.append(f"buffer_load_dwordx4 v[{x}:{x+3}], v{V_SOFF}, s[{S_X}:{S_X+3}], 0 offen offset:{u*256}")
    return r
def addr_fix():
    a(f"v_add_u32 v{V_SOFF}, v{V_SOFF}, v{V_COL16}")
    if NOMEM == 1: a(f"v_mov_b32 v{V_SOFF}, {OOB}")
    if NOMEM == 3: a(f"v_and_b32 v{V_SOFF}, 0xfffff, v{V_SOFF}")

def gen_k2():
    k = "main_kernel"
    a(f".globl {k}\n.p2align 8\n.type {k},@function\n{k}:")
    a("s_cmp_ge_u32 s2, 256")
    a("s_cbranch_scc1 K2_end")
    stamp(0)
    a("s_load_dwordx2 s[4:5], s[0:1], 0")
    a("s_load_dwordx2 s[6:7], s[0:1], 80")
    a("s_load_dwordx2 s[62:63], s[0:1], 64")
    a("s_and_b32 s3, s2, 7")
    a(f"s_mul_i32 s3, s3, {NB}")
    a(f"s_add_u32 s{S_T}, s3, {NB}")
    a("s_lshr_b32 s3, s3, 3")
    a(f"s_lshr_b32 s{S_T}, s{S_T}, 3")
    a(f"s_lshr_b32 s{S_B}, s2, 3")
    a(f"s_add_u32 s{S_B}, s{S_B}, s3")
    a(f"s_cmp_ge_u32 s{S_B}, s{S_T}")
    a("s_cbranch_scc1 K2_end")
    TID = 23; LANE = 22
    a(f"v_mov_b32 v{TID}, v0")
    a(f"v_and_b32 v{LANE}, 63, v0")
    a("v_lshrrev_b32 v1, 6, v0")
    a("v_lshlrev_b32 v2, 2, v0")
    a("v_mov_b32 v3, 0")
    a(f"v_readfirstlane_b32 s{S_WAVE}, v1")
    a(f"v_cmp_gt_u32 vcc, {NPB*4+4}, v0")
    a(f"s_and_saveexec_b64 s[{S_SAVE}:{S_SAVE+1}], vcc")
    a(f"ds_write_b32 v2, v3 offset:{L_HIST}")
    a(f"s_mov_b64 exec, s[{S_SAVE}:{S_SAVE+1}]")
    a("v_lshrrev_b32 v8, 1, v0")
    a("v_and_b32 v9, 1, v0")
    a("v_lshlrev_b32 v10, 10, v8")
    a(f"s_lshl_b32 s3, s{S_B}, 2")
    a(f"s_add_u32 s3, s3, {OFFS_OFF}")
    a("s_waitcnt lgkmcnt(0)")
    srd(S_WS, 6, WS_USED)
    a(f"buffer_load_dwordx2 v[12:13], v10, s[{S_WS}:{S_WS+3}], s3 offen")
    a(f"s_lshl_b32 s3, s{S_WAVE}, 8")
    a(f"s_add_u32 s3, s3, {L_WR}")
    a("s_mov_b32 m0, s3")
    a(f"s_mov_b32 s3, {WR_OFF}")
    a(f"buffer_load_dword v2, s[{S_WS}:{S_WS+3}], s3 offen lds")
    srd(S_X, 4, N * 1024)
    srd(S_OUT, 62, N * 1024)
    if CODEPF:
        a("s_getpc_b64 s[4:5]")
        a("K2_pc:")
        a(f"v_lshlrev_b32 v14, 7, v{TID}")
        a("v_cmp_gt_u32 vcc, K2_code_end-K2_pc, v14")
        a(f"s_and_saveexec_b64 s[{S_SAVE}:{S_SAVE+1}], vcc")
        a("s_cbranch_execz K2_nocpf")
        a("global_load_dword v15, v14, s[4:5]")
        a("K2_nocpf:")
        a(f"s_mov_b64 exec, s[{S_SAVE}:{S_SAVE+1}]")
    a("s_barrier")
    for r in range(160):
        a(f"v_mov_b32 v{ACC+r}, 0")
    a(f"v_and_b32 v{V_COL16}, 15, v{TID}")
    a(f"v_lshlrev_b32 v{V_COL16}, 4, v{V_COL16}")
    a(f"v_lshrrev_b32 v{V_G}, 4, v{LANE}")
    a(f"v_mul_u32_u24 v{V_EASEL}, 0x0202, v{V_G}")
    a(f"v_add_u32 v{V_EASEL}, 0x0100, v{V_EASEL}")
    a(f"v_lshlrev_b32 v{V_EASEL}, 16, v{V_EASEL}")
    a(f"v_or_b32 v{V_EASEL}, 0x0c0c, v{V_EASEL}")
    a(f"s_mov_b32 s{S_SELLO}, 0x05040100")
    a(f"s_mov_b32 s{S_SELHI}, 0x07060302")
    a(f"s_mov_b32 s{S_MODE}, 0")
    a(f"v_mul_u32_u24 v10, {EPC}, v8")
    a("v_add_u32 v10, v10, v9")
    a(f"v_lshlrev_b32 v16, 5, v{LANE}")
    a(f"v_cmp_gt_u32 vcc, {P}, v8")
    a("s_waitcnt vmcnt(0)")
    stamp(1)
    a("v_sub_u32 v11, v13, v12")
    a("v_cndmask_b32 v11, 0, v11, vcc")
    a("v_add_u32 v10, v10, v12")
    a("v_sub_u32 v13, v11, v9")
    a("v_lshlrev_b32 v14, 4, v10")
    a("v_lshlrev_b32 v10, 2, v10")
    a(f"s_mov_b32 s3, {TAG_OFF}")
    RB = XB; TG = XB + 40; RK = XB + 50
    M = lambda r: f"s[{S_MASK+2*r}:{S_MASK+2*r+1}]"
    for r in range(NR):
        a(f"v_cmp_lt_i32 {M(r)}, {2*r}, v13")
    for r in range(NR):
        a(f"s_mov_b64 exec, {M(r)}")
        a("s_cbranch_execz K2_ld_done")
        a(f"buffer_load_dword v{TG+r}, v10, s[{S_WS}:{S_WS+3}], s3 offen offset:{8*r}")
        a(f"buffer_load_dwordx4 v[{RB+4*r}:{RB+4*r+3}], v14, s[{S_WS}:{S_WS+3}], 0 offen offset:{32*r}")
    a("K2_ld_done:")
    a("s_mov_b64 exec, -1")
    a(f"s_mov_b32 s3, {CG_OFF}")
    a(f"buffer_load_dwordx4 v[{CG}:{CG+3}], v16, s[{S_WS}:{S_WS+3}], s3 offen")
    a(f"buffer_load_dwordx4 v[{CG+4}:{CG+7}], v16, s[{S_WS}:{S_WS+3}], s3 offen offset:16")
    a(f"v_cmp_lt_u32 s[{S_SAVE}:{S_SAVE+1}], {2*NR}, v11")
    a("v_mov_b32 v17, 1")
    a("s_waitcnt vmcnt(2)")
    stamp(2)
    for r in range(NR):
        a(f"s_mov_b64 exec, {M(r)}")
        a("s_cbranch_execz K2_h_done")
        a(f"v_lshrrev_b32 v8, 14, v{TG+r}")
        a(f"v_and_b32 v9, 0xffc, v8")
        a(f"v_lshlrev_b32 v8, 3, v8")
        a(f"v_lshlrev_b32 v8, v8, v17")
        a(f"ds_add_rtn_u32 v{RK+r}, v9, v8 offset:{L_HIST}")
    a("K2_h_done:")
    a("s_mov_b64 exec, -1")
    a("s_waitcnt lgkmcnt(0)")
    for r in range(NR):
        a(f"s_mov_b64 exec, {M(r)}")
        a("s_cbranch_execz K2_r_done")
        a(f"v_lshrrev_b32 v8, 11, v{TG+r}")
        a(f"v_and_b32 v8, 24, v8")
        a(f"v_bfe_u32 v{RK+r}, v{RK+r}, v8, 8")
        a(f"v_cmp_lt_u32 vcc, {CAPN-1}, v{RK+r}")
        a(f"s_or_b64 s[{S_SAVE}:{S_SAVE+1}], s[{S_SAVE}:{S_SAVE+1}], vcc")
    a("K2_r_done:")
    a("s_mov_b64 exec, -1")
    a(f"v_mov_b32 v9, {L_FLAG}")
    a(f"s_cmp_eq_u64 s[{S_SAVE}:{S_SAVE+1}], 0")
    a("s_cbranch_scc1 K2_noflag")
    a("ds_write_b32 v9, v17")
    a("K2_noflag:")
    a(f"v_lshlrev_b32 v8, 4, v{LANE}")
    a("s_waitcnt vmcnt(0) lgkmcnt(0)")
    a("s_barrier")
    stamp(3)
    a(f"ds_read_b128 v[12:15], v8 offset:{L_HIST}")
    a("ds_read_b32 v9, v9")
    a(f"v_lshlrev_b32 v{V_T}, 4, v{TID}")
    bg = []
    for r in range(4):
        bg.append([f"s_lshl_b32 s5, s{S_WAVE}, 10", f"s_add_u32 s5, s5, {L_WT + r*K2_T*16}", "s_mov_b32 m0, s5",
                   f"s_mov_b32 s5, {WT_OFF + r*K2_T*16}",
                   f"buffer_load_dwordx4 v{V_T}, s[{S_WS}:{S_WS+3}], s5 offen lds"])
    tch = []
    if K2TOUCH:
        per = K2_T * 16
        k1bytes = K1TOUCH * P * K1_T * 16
        for r in range(N * 1024 // (NB * per)):
            if (r + 1) * NB * per <= k1bytes: continue
            tch.append([f"s_mul_i32 s5, s{S_WAVE}, {20*AGG_RS}", f"s_add_u32 s5, s5, {L_AGG}", "s_mov_b32 m0, s5",
                        f"s_lshl_b32 s5, s{S_B}, 13", f"s_add_u32 s5, s5, {r*NB*per}",
                        f"buffer_load_dwordx4 v{V_T}, s[{S_X}:{S_X+3}], s5 offen lds ; touch"])
    bg = tch + bg
    def bgop(n=1):
        for _ in range(n):
            if bg:
                for x in bg.pop(0): a(x)
    bgop(2)
    a("s_waitcnt lgkmcnt(0)")
    a("s_mov_b32 s3, 0x01010101")
    a("v_mov_b32 v10, 0")
    PW = 18
    for q in range(4):
        H = 12 + q
        a(f"v_lshlrev_b32 v{PW+q}, 8, v{H}")
        a(f"v_lshl_add_u32 v{PW+q}, v{H}, 16, v{PW+q}")
        a(f"v_lshl_add_u32 v{PW+q}, v{H}, 24, v{PW+q}")
        if q > 0:
            a(f"v_mul_lo_u32 v11, v10, s3")
            a(f"v_add_u32 v{PW+q}, v{PW+q}, v11")
        a(f"v_sad_u8 v10, v{H}, 0, v10")
    a(f"v_cmp_gt_u32 vcc, {NPB}, v{LANE}")
    a(f"s_and_saveexec_b64 s[{S_SAVE}:{S_SAVE+1}], vcc")
    a(f"ds_write_b128 v8, v[{PW}:{PW+3}] offset:{L_PRE}")
    a(f"v_cmp_lt_u32 vcc, {CAPN}, v10")
    a(f"s_mov_b64 exec, s[{S_SAVE}:{S_SAVE+1}]")
    a("v_readfirstlane_b32 s3, v9")
    a("s_cmp_lg_u64 vcc, 0")
    a("s_cbranch_scc1 K2_slow")
    a("s_cmp_lg_u32 s3, 0")
    a("s_cbranch_scc1 K2_slow")
    bg_slow = [list(x) for x in bg]
    PR = [12, 13, 14, 15, 16, 17, 18, 19, 20, 21]
    for r in range(NR):
        a(f"s_mov_b64 exec, {M(r)}")
        a("s_cbranch_execz K2_p_done")
        a(f"v_lshrrev_b32 v8, 14, v{TG+r}")
        a(f"ds_read_u8 v{PR[r]}, v8 offset:{L_PRE}")
    a("K2_p_done:")
    a("s_mov_b64 exec, -1")
    bgop(1)
    a(f"v_and_b32 v7, 7, v{LANE}")
    a("v_add_u32 v8, 3, v10")
    a("v_lshrrev_b32 v8, 2, v8")
    a("v_subrev_u32 v8, 5, v8")
    a("v_med3_i32 v8, v8, 0, 7")
    a(f"v_cmp_gt_u32 vcc, {NPB}, v{LANE}")
    a("v_mov_b32 v9, 63")
    a("s_nop 0")
    a("v_cndmask_b32 v8, 64, v8, vcc")
    KM = [24, 26, 28, 30, 32, 82, 84, 86]
    for q in range(8):
        a(f"v_cmp_eq_u32 s[{KM[q]}:{KM[q]+1}], {q}, v8")
    a("s_mov_b32 s3, 0")
    for q in range(7, -1, -1):
        a(f"s_mov_b64 exec, s[{KM[q]}:{KM[q]+1}]")
        a(f"v_mbcnt_lo_u32_b32 v9, s{KM[q]}, 0")
        a(f"v_mbcnt_hi_u32_b32 v9, s{KM[q]+1}, v9")
        a("v_add_u32 v9, s3, v9")
        a(f"s_bcnt1_i32_b64 s4, s[{KM[q]}:{KM[q]+1}]")
        a("s_add_u32 s3, s3, s4")
    a("s_mov_b64 exec, -1")
    a("v_lshlrev_b32 v9, 2, v9")
    a(f"v_lshl_add_u32 v8, v10, 8, v{LANE}")
    a("ds_permute_b32 v8, v9, v8")
    a("v_and_b32 v9, 1, v7")
    a("v_mul_u32_u24 v9, 7, v9")
    a(f"v_xor_b32 v9, s{S_WAVE}, v9")
    a("v_lshl_add_u32 v9, v7, 3, v9")
    a("v_lshlrev_b32 v9, 2, v9")
    a(f"v_and_b32 v6, 1, v{V_G}")
    a("v_mul_u32_u24 v6, 7, v6")
    a(f"v_xor_b32 v6, s{S_WAVE}, v6")
    a(f"v_lshl_add_u32 v6, v{V_G}, 3, v6")
    a("v_lshlrev_b32 v6, 2, v6")
    a(f"s_lshl_b32 s3, s{S_WAVE}, 2")
    a("s_add_u32 s3, s3, 128")
    a("v_mov_b32 v1, s3")
    bgop(1)
    a("s_waitcnt lgkmcnt(0)")
    a("ds_bpermute_b32 v11, v9, v8")
    a("ds_bpermute_b32 v6, v6, v8")
    a("ds_bpermute_b32 v1, v1, v8")
    for r in range(NR):
        a(f"s_mov_b64 exec, {M(r)}")
        a("s_cbranch_execz K2_s_done")
        a(f"v_lshrrev_b32 v8, 18, v{TG+r}")
        a(f"v_lshl_add_u32 v8, v8, 6, v{PR[r]}")
        a(f"v_add_u32 v8, v8, v{RK+r}")
        a(f"v_lshlrev_b32 v9, 4, v8")
        a(f"v_lshlrev_b32 v8, 2, v8")
        a(f"v_and_b32 v{TG+r}, 0x3fff, v{TG+r}")
        a(f"v_lshlrev_b32 v{TG+r}, 10, v{TG+r}")
        a(f"ds_write_b128 v9, v[{RB+4*r}:{RB+4*r+3}] offset:{L_REC}")
        a(f"ds_write_b32 v8, v{TG+r} offset:{L_SOFF}")
    a("K2_s_done:")
    a("s_mov_b64 exec, -1")
    bgop(1)
    a("v_mov_b32 v12, 0")
    a("v_mov_b32 v13, 0")
    a(f"s_mov_b32 s{S_PASS}, 0")
    a("K2_sched:")
    a(f"v_and_b32 v14, 15, v{LANE}")
    a(f"s_lshl_b32 s3, s{S_WAVE}, 6")
    a("v_lshl_add_u32 v15, v7, 2, s3")
    a("s_waitcnt lgkmcnt(0)")
    a(f"ds_write_b32 v15, v11 offset:{L_NODE}")
    BS = [(6, 12, 16, 17, 18), (1, 13, 19, 20, 21)]
    for (vi, vd, vq, vt, ve) in BS:
        a(f"v_and_b32 v{vt}, 0xff, v{vi}")
        a(f"v_lshl_add_u32 v{vt}, v{vt}, 4, v14")
        a(f"ds_read_u8 v{vt}, v{vt} offset:{L_PRE+1}")
        a(f"v_lshrrev_b32 v{vq}, 8, v{vi}")
        a(f"v_add_u32 v{vq}, 3, v{vq}")
        a(f"v_lshrrev_b32 v{vq}, 2, v{vq}")
    a(f"s_cmp_eq_u32 s{S_PASS}, 0")
    a("s_cselect_b32 s4, 15, 0")
    a("v_cmp_le_u32 vcc, s4, v14")
    a("s_waitcnt lgkmcnt(0)")
    for (vi, vd, vq, vt, ve) in BS:
        a(f"v_add_u32 v{vt}, 1, v{vt}")
        a(f"v_lshrrev_b32 v{vt}, 2, v{vt}")
        a(f"v_cndmask_b32 v{vt}, v{vt}, v{vq}, vcc")
        a(f"v_sub_u32 v{vt}, v{vt}, v14")
        a(f"v_add_u32 v{ve}, 1, v{vd}")
        a(f"v_min_i32 v{vt}, v{vt}, v{ve}")
    for sh in (1, 2, 4, 8):
        a("s_nop 0")
        for (vi, vd, vq, vt, ve) in BS:
            a(f"v_min_i32_dpp v{vt}, v{vt}, v{vt} row_shr:{sh} row_mask:0xf bank_mask:0xf")
    for (vi, vd, vq, vt, ve) in BS:
        a(f"v_subrev_u32 v{ve}, 15, v{vq}")
        a(f"v_max_i32 v{vt}, v{vt}, v{ve}")
    for (vi, vd, vq, vt, ve) in BS:
        a(f"v_add_u32 v{ve}, v{vt}, v14")
    a("s_nop 0")
    for (vi, vd, vq, vt, ve) in BS:
        a(f"v_mov_b32_dpp v{vd}, v{ve} row_shr:1 row_mask:0xf bank_mask:0xf")
    a(f"s_lshl_b32 s4, s{S_WAVE}, 7")
    a("v_lshl_add_u32 v15, v14, 3, s4")
    for k_, (vi, vd, vq, vt, ve) in enumerate(BS):
        a(f"v_sub_u32 v{vt}, v{ve}, v{vd}")
        a(f"v_lshl_or_b32 v{vt}, v{vt}, 7, v{vd}")
        if k_ == 0:
            a(f"v_add_u32 v{vi}, v15, v{V_G}")
            a(f"ds_write_b8 v{vi}, v{vt} offset:{L_TAB}")
        else:
            a(f"ds_write_b8 v15, v{vt} offset:{L_TAB+4}")
    a(f"v_add_u32 v15, s4, v{LANE}")
    a(f"ds_read_u8 v12, v15 offset:{L_TAB}")
    a(f"ds_read_u8 v13, v15 offset:{L_TAB+64}")
    a("v_and_b32 v16, 0xff, v11")
    a("v_lshlrev_b32 v16, 6, v16")
    a("v_lshrrev_b32 v10, 8, v11")
    a("v_cmp_gt_u32 vcc, 5, v7")
    a("v_mov_b32 v20, 0")
    a("v_mov_b32 v21, 0")
    a("v_cndmask_b32 v10, 0, v10, vcc")
    a("s_waitcnt lgkmcnt(0)")
    a("v_cndmask_b32 v12, 0, v12, vcc")
    a("v_cndmask_b32 v13, 0, v13, vcc")
    a(f"v_cmp_lt_u32 s[{S_S0}:{S_S0+1}], 64, v12")
    a(f"v_cmp_lt_u32 s[{S_S1}:{S_S1+1}], 64, v13")
    a("v_and_b32 v12, 0x7f, v12")
    a("v_and_b32 v13, 0x7f, v13")
    a("v_lshl_add_u32 v12, v12, 2, v16")
    a("v_lshl_add_u32 v13, v13, 2, v16")
    a(f"s_bcnt1_i32_b64 s4, s[{S_S0}:{S_S0+1}]")
    a(f"s_bcnt1_i32_b64 s{S_LEFT}, s[{S_S1}:{S_S1+1}]")
    a(f"s_add_u32 s{S_LEFT}, s{S_LEFT}, s4")
    a(f"s_lshl_b32 s5, s{S_WAVE}, 7")
    a("s_add_u32 s4, s4, s5")
    a(f"v_mbcnt_lo_u32_b32 v17, s{S_S0}, 0")
    a(f"v_mbcnt_hi_u32_b32 v17, s{S_S0+1}, v17")
    a(f"v_mbcnt_lo_u32_b32 v18, s{S_S1}, 0")
    a(f"v_mbcnt_hi_u32_b32 v18, s{S_S1+1}, v18")
    a("v_add_lshl_u32 v17, s5, v17, 2")
    a("v_add_lshl_u32 v18, s4, v18, 2")
    a(f"v_add_lshl_u32 v19, s5, v{LANE}, 2")
    a(f"v_mov_b32 v15, {DUMMY}")
    a(f"ds_write_b32 v19, v15 offset:{L_LST}")
    a(f"ds_write_b32 v19, v15 offset:{L_LST+256}")
    a(f"s_mov_b64 exec, s[{S_S0}:{S_S0+1}]")
    a(f"ds_write_b32 v17, v12 offset:{L_LST}")
    a(f"s_mov_b64 exec, s[{S_S1}:{S_S1+1}]")
    a(f"ds_write_b32 v18, v13 offset:{L_LST}")
    a("s_mov_b64 exec, -1")
    a(f"v_and_b32 v{V_LADDR}, 3, v{LANE}")
    a(f"v_add_lshl_u32 v{V_LADDR}, s5, v{V_LADDR}, 2")
    a(f"ds_read_b32 v12, v{V_LADDR} offset:{L_LST}")
    a(f"ds_read_b32 v{V_ENT}, v{V_LADDR} offset:{L_LST+16}")
    a(f"v_lshrrev_b32 v14, 3, v{LANE}")
    a("v_add_u32 v15, 3, v10")
    a("v_and_b32 v15, 0xfc, v15")
    a("v_add_u32 v14, v10, v14")
    a("v_cmp_lt_u32 vcc, v14, v15")
    a("v_add_u32 v14, v16, v14")
    a(f"v_add_u32 v15, {DUMMY}, v7")
    a(f"v_subrev_u32 v19, 24, v{LANE}")
    a(f"v_cmp_gt_u32 s[{S_SAVE}:{S_SAVE+1}], 4, v19")
    a(f"v_bfe_u32 v{V_GP}, v{LANE}, 2, 2")
    a("v_mov_b32 v22, 0")
    a("v_mov_b32 v23, 0")
    a(f"v_cndmask_b32 v14, v14, v15, s[{S_SAVE}:{S_SAVE+1}]")
    a(f"s_or_b64 exec, vcc, s[{S_SAVE}:{S_SAVE+1}]")
    a("v_lshlrev_b32 v15, 4, v14")
    a("v_lshlrev_b32 v14, 2, v14")
    a(f"v_mov_b32 v19, {OOB}")
    a(f"ds_write_b128 v15, v[20:23] offset:{L_REC}")
    a(f"ds_write_b32 v14, v19 offset:{L_SOFF}")
    a("s_mov_b64 exec, -1")
    a("s_waitcnt lgkmcnt(0)")
    a("s_barrier")
    stamp(4)
    a(f"s_cmp_lg_u32 s{S_PASS}, 0")
    a("s_cbranch_scc1 K2_nobg")
    bgop(100)
    a("K2_nobg:")
    def rd_soff(se):
        return [f"v_add_lshl_u32 v{V_T}, s{se}, v{V_G}, 2", f"ds_read_b32 v{V_SOFF}, v{V_T} offset:{L_SOFF}"]
    def rd_rec(ve):
        return [f"v_add_lshl_u32 v{V_T}, v{ve}, v{V_GP}, 4", f"ds_read_b128 v[{RECV}:{RECV+3}], v{V_T} offset:{L_REC}"]
    for q in range(NXB):
        a(f"v_readlane_b32 s{4+q}, v12, {q}")
    a(f"s_mov_b32 s{S_RC}, 0")
    a(f"s_mov_b32 s{S_IDX2}, s{S_LEFT}")
    for x in rd_rec(12): a(x)
    for x in rd_soff(4): a(x)
    for q in range(NXB - 1):
        a(f"s_cmp_gt_u32 s{S_LEFT}, {q}")
        a("s_cbranch_scc0 K2_t0")
        a("s_waitcnt lgkmcnt(0)")
        addr_fix()
        for x in ld_x(q): a(x)
        for x in rd_soff(5 + q): a(x)
    a("s_branch K2_t0")
    NS = 5 * NXB
    for s_ in range(NS):
        i = s_ % 5; b = s_ % NXB
        if i == 0:
            a(f"K2_re{s_}:")
            a(f"s_add_u32 s{S_RC}, s{S_RC}, 1")
            if PRIO == 1:
                a(f"s_lshr_b32 s{S_T}, s{S_WAVE}, 2")
                a(f"s_add_u32 s{S_T}, s{S_T}, s{S_RC}")
                a("s_setprio 0")
                a(f"s_bitcmp1_b32 s{S_T}, 0")
                a(f"s_cbranch_scc0 K2_pr{s_}")
                a("s_setprio 1")
                a(f"K2_pr{s_}:")
            a(f"s_lshr_b64 s[{S_S0}:{S_S0+1}], s[{S_S0}:{S_S0+1}], 8")
            a(f"s_and_b32 s{S_T}, s{S_RC}, {BARK-1}")
            a(f"s_cbranch_scc0 K2_rx{s_}")
            t = [f"K2_rx{s_}:",
                 f"s_cmp_eq_u32 s{S_RC}, 16", "s_cbranch_scc1 K2_loop_done",
                 f"s_cmp_lg_u32 s{S_RC}, 8", f"s_cbranch_scc1 K2_ry{s_}",
                 f"s_mov_b64 s[{S_S0}:{S_S0+1}], s[{S_S1}:{S_S1+1}]",
                 f"s_cmp_lg_u32 s{S_IDX2}, s{S_LEFT}", f"s_cbranch_scc1 K2_ry{s_}",
                 "s_waitcnt vmcnt(0)",
                 f"K2_ry{s_}:",
                 f"s_cmp_lg_u32 s{S_PASS}, 0", f"s_cbranch_scc1 K2_t{s_}",
                 "s_barrier", f"s_branch K2_t{s_}"]
            tail_code.extend(t)
        a(f"K2_t{s_}:")
        a(f"s_bitcmp1_b32 s{S_S0}, {i}")
        nxt = (s_ + 16) % NS
        a(f"s_cbranch_scc0 K2_{'re' if nxt % 5 == 0 else 't'}{nxt}")
        a(f"s_sub_u32 s{S_LEFT}, s{S_LEFT}, 1")
        a("s_waitcnt lgkmcnt(0)")
        a(f"v_readlane_b32 s{S_EB}, v{V_ENT}, {b}")
        a(f"s_cmp_lt_u32 s{S_LEFT}, {NXB-1}")
        DT = XB + 16 * (NXB - 1)
        if b == 0:
            a(f"v_perm_b32 v{V_T}, v{RECV+1}, v{RECV}, v{V_EASEL}")
            a(f"v_lshlrev_b32 v{OPS}, 16, v{RECV+2}")
            a(f"v_and_b32 v{OPS+1}, 0xffff0000, v{RECV+2}")
            a(f"v_lshlrev_b32 v{OPS+2}, 16, v{RECV+3}")
            a(f"v_and_b32 v{OPS+3}, 0xffff0000, v{RECV+3}")
            for x in range(4):
                a(f"v_mul_f32 v{OPS+x}, v{OPS+x}, v{V_T}")
            a(f"v_cvt_pk_bf16_f32 v{RECV}, v{OPS}, v{OPS+1}")
            a(f"v_cvt_pk_bf16_f32 v{RECV+1}, v{OPS+2}, v{OPS+3}")
            addr_fix()
            a("s_nop 0")
            for u in range(4):
                a(f"v_mfma_f32_16x16x16_bf16 v[{DT+4*u}:{DT+4*u+3}], v[{RECV}:{RECV+1}], v[{CG+2*u}:{CG+2*u+1}], 0")
        else:
            addr_fix()
            a(f"s_cbranch_scc1 K2_nl{s_}")
            for x in ld_x((b + NXB - 1) % NXB): a(x)
            a(f"K2_nl{s_}:")
            for x in rd_soff(S_EB): a(x)
            if b == 2:
                for x in rd_rec(V_ENT): a(x)
            if b == 3:
                a(f"v_add_u32 v{V_LADDR}, 16, v{V_LADDR}")
                a(f"ds_read_b32 v{V_ENT}, v{V_LADDR} offset:{L_LST+16}")
        pre = 0 if b == 0 else 4
        a(f"s_cbranch_scc1 K2_wx{s_}")
        a(f"s_waitcnt vmcnt({4*(NXB-2)+pre})")
        a(f"K2_wr{s_}:")
        t = [f"K2_wx{s_}:", "s_waitcnt vmcnt(8)", f"s_cmp_eq_u32 s{S_LEFT}, 2", f"s_cbranch_scc1 K2_wr{s_}",
             "s_waitcnt vmcnt(4)", f"s_cmp_eq_u32 s{S_LEFT}, 1", f"s_cbranch_scc1 K2_wr{s_}",
             "s_waitcnt vmcnt(0)", f"s_cmp_eq_u32 s{S_LEFT}, 0", f"s_branch K2_wr{s_}"]
        tail_code.extend(t)
        def pm(j):
            m = j >> 1; sel = S_SELHI if j & 1 else S_SELLO
            o = OPS + 2 * (j % 2)
            x = lambda u: XB + 16 * b + 4 * u + m
            a(f"v_perm_b32 v{o}, v{x(1)}, v{x(0)}, s{sel}")
            a(f"v_perm_b32 v{o+1}, v{x(3)}, v{x(2)}, s{sel}")
        def mf(j):
            o = OPS + 2 * (j % 2); c = ACC + 32 * i + 4 * j
            a(f"v_mfma_f32_16x16x16_bf16 v[{c}:{c+3}], v[{AOP+2*b}:{AOP+2*b+1}], v[{o}:{o+1}], v[{c}:{c+3}]")
        pm(0); pm(1)
        if b == 0:
            a("s_nop 1")
            for r in range(4):
                a(f"v_cvt_pk_bf16_f32 v{AOP+2*r}, v{DT+r}, v{DT+4+r}")
            for r in range(4):
                a(f"v_cvt_pk_bf16_f32 v{AOP+2*r+1}, v{DT+8+r}, v{DT+12+r}")
            a(f"s_cbranch_scc1 K2_nl{s_}")
            for x in ld_x(NXB - 1): a(x)
            a(f"K2_nl{s_}:")
            for x in rd_soff(S_EB): a(x)
        mf(0)
        for j in range(2, 8):
            pm(j)
            mf(j - 1)
        a("s_nop 0")
        mf(7)
    a("s_branch K2_re0")
    for x in tail_code: a(x)
    a("K2_loop_done:")
    a(f"s_cmp_lg_u32 s{S_MODE}, 0")
    a("s_cbranch_scc1 K2_slow_next")
    a("K2_epi:")
    stamp(5)
    a("s_waitcnt vmcnt(0) lgkmcnt(0)")
    a(f"v_add_u32 v1, {L_WR}, v{V_COL16}")
    for j in range(8):
        a(f"ds_read_b128 v[{XB+4*j}:{XB+4*j+3}], v1 offset:{256*j}")
    a(f"s_lshl_b32 s3, s{S_WAVE}, 6")
    a("v_mov_b32 v5, s3")
    a(f"ds_read_b128 v[16:19], v5 offset:{L_NODE}")
    a(f"ds_read_b32 v20, v5 offset:{L_NODE+16}")
    lane_id(LANE)
    a(f"s_and_b32 s3, s{S_WAVE}, 3")
    a("s_lshl_b32 s4, s3, 13")
    a(f"s_add_u32 s4, s4, {L_WT}")
    a(f"v_lshl_add_u32 v1, v{LANE}, 4, s4")
    a(f"v_mul_u32_u24 v2, {AGG_RS}, v{V_G}")
    a(f"v_add_u32 v2, v2, v{V_COL16}")
    a(f"v_add_u32 v2, {L_AGG}, v2")
    a(f"s_mov_b32 s4, {4*AGG_RS}")
    a("s_waitcnt lgkmcnt(0)")
    for x in range(8):
        a(f"ds_read_b128 v[{XB+32+4*x}:{XB+32+4*x+3}], v1 offset:{1024*x}")
    for i in range(5):
        a(f"v_and_b32 v{16+i}, 0xff, v{16+i}")
        a(f"v_mad_u32_u24 v{16+i}, v{16+i}, s4, v2")
    for i in range(5):
        for j in range(8):
            c = ACC + 32 * i + 4 * j; w = XB + 4 * j
            a(f"v_mul_f32 v{c}, v{c}, v{w}")
        for kk in range(1, 4):
            for j in range(8):
                c = ACC + 32 * i + 4 * j; w = XB + 4 * j
                a(f"v_fmac_f32 v{c}, v{c+kk}, v{w+kk}")
        o = 8 + 4 * (i % 2)
        for jj in range(4):
            c = ACC + 32 * i + 8 * jj
            a(f"v_cvt_pk_bf16_f32 v{o+jj}, v{c}, v{c+4}")
        a(f"ds_write_b128 v{16+i}, v[{o}:{o+3}]")
    a(f"s_lshr_b32 s5, s{S_WAVE}, 2")
    a(f"s_mul_i32 s6, s5, {16*AGG_RS}")
    a(f"s_add_u32 s6, s6, {L_AGG}")
    a(f"v_and_b32 v6, 15, v{LANE}")
    a(f"v_mul_u32_u24 v7, {AGG_RS}, v6")
    a(f"v_lshl_add_u32 v7, v{V_G}, 4, v7")
    a("v_add_u32 v7, s6, v7")
    a("v_lshlrev_b32 v5, 8, v6")
    a(f"v_lshl_add_u32 v5, v{V_G}, 4, v5")
    a(f"s_mul_i32 s6, s{S_B}, {NPB*4*256}")
    a("s_lshl_b32 s7, s5, 12")
    a("s_add_u32 s6, s6, s7")
    a("s_lshl_b32 s7, s3, 6")
    a("s_add_u32 s6, s6, s7")
    a("s_waitcnt lgkmcnt(0)")
    a("s_barrier")
    stamp(6)
    BB = ACC
    for u in range(5):
        for t in range(4):
            r = BB + 16 * u + 4 * t
            a(f"ds_read_b128 v[{r}:{r+3}], v7 offset:{u*32*AGG_RS + t*64}")
    DD = ACC + 80
    def fin(u):
        d = DD + 8 * u
        o = BB + 4 * u
        for x in range(4):
            a(f"v_cvt_pk_bf16_f32 v{o+x}, v{d+2*x}, v{d+2*x+1}")
        a(f"buffer_store_dwordx4 v[{o}:{o+3}], v5, s[{S_OUT}:{S_OUT+3}], s6 offen {OMOD}")
        a(f"s_add_u32 s6, s6, {32*256}")
    for u in range(5):
        a(f"s_waitcnt lgkmcnt({min(15, 4*(4-u))})")
        for t in range(4):
            r = BB + 16 * u + 4 * t
            for hh in range(2):
                d = DD + 8 * u + 4 * hh; w = XB + 32 + 16 * hh + 4 * t
                c = "0" if t == 0 else f"v[{d}:{d+3}]"
                a(f"v_mfma_f32_16x16x32_bf16 v[{d}:{d+3}], v[{w}:{w+3}], v[{r}:{r+3}], {c}")
        if u > 0: fin(u - 1)
    a("s_nop 7")
    fin(4)
    stamp(7)
    if STAMP: a("s_waitcnt vmcnt(0)")
    stamp(8)
    stamp_flush(1, 8, 9, S_WAVE, 1)
    a("K2_end:")
    a("s_endpgm")
    a("K2_slow:")
    for grp in bg_slow:
        if "touch" not in grp[-1]:
            for x in grp: a(x)
    a(f"s_mov_b32 s{S_MODE}, 1")
    a(f"s_mov_b32 s{S_WIN}, 0")
    a(f"v_lshlrev_b32 v8, 10, v{LANE}")
    a(f"s_lshl_b32 s3, s{S_B}, 2")
    a(f"s_add_u32 s3, s3, {OFFS_OFF}")
    for h in range(4):
        a(f"buffer_load_dwordx2 v[{10+2*h}:{11+2*h}], v8, s[{S_WS}:{S_WS+3}], s3 offen")
        a("s_add_u32 s3, s3, 65536")
    a(f"v_cmp_gt_u32 vcc, {P-192}, v{LANE}")
    a("s_waitcnt vmcnt(0)")
    for h in range(4):
        a(f"v_sub_u32 v{10+2*h}, v{11+2*h}, v{10+2*h}")
    a("v_cndmask_b32 v16, 0, v16, vcc")
    a("v_max_u32 v10, v10, v12")
    a("v_max3_u32 v10, v10, v14, v16")
    wave_scan(10, "v_max_u32_dpp")
    a("s_nop 1")
    a(f"v_readlane_b32 s{S_MAXC}, v10, 63")
    a("K2_slow_win:")
    a(f"s_cmp_ge_u32 s{S_WIN}, s{S_MAXC}")
    a("s_cbranch_scc1 K2_slow_fin")
    def seg_setup():
        lane_id(LANE)
        a(f"s_lshl_b32 s3, s{S_WAVE}, 6")
        a(f"v_add_u32 v{TID}, s3, v{LANE}")
        a(f"v_lshrrev_b32 v8, 1, v{TID}")
        a(f"v_and_b32 v9, 1, v{TID}")
        a("v_lshlrev_b32 v10, 10, v8")
        a(f"s_lshl_b32 s3, s{S_B}, 2")
        a(f"s_add_u32 s3, s3, {OFFS_OFF}")
        a(f"buffer_load_dwordx2 v[12:13], v10, s[{S_WS}:{S_WS+3}], s3 offen")
        a(f"v_mul_u32_u24 v10, {EPC}, v8")
        a(f"v_add3_u32 v10, v10, v9, s{S_WIN}")
        a(f"v_cmp_gt_u32 vcc, {P}, v8")
        a("s_waitcnt vmcnt(0)")
        a("v_sub_u32 v11, v13, v12")
        a("v_cndmask_b32 v11, 0, v11, vcc")
        a("v_add_u32 v10, v10, v12")
        a("v_sub_u32 v13, v11, v9")
        a(f"v_subrev_u32 v13, s{S_WIN}, v13")
        a("v_lshlrev_b32 v14, 4, v10")
        a("v_lshlrev_b32 v10, 2, v10")
    seg_setup()
    for r in range(NR):
        a(f"v_cmp_lt_i32 {M(r)}, {2*r}, v13")
    a("K2_slow_batch:")
    a("s_waitcnt vmcnt(0) lgkmcnt(0)")
    a("s_barrier")
    seg_setup()
    a(f"v_lshlrev_b32 v8, 2, v{TID}")
    a("v_mov_b32 v9, 0")
    a(f"v_cmp_gt_u32 vcc, {NPB*4+4}, v{TID}")
    a(f"s_and_saveexec_b64 s[{S_SAVE}:{S_SAVE+1}], vcc")
    a(f"ds_write_b32 v8, v9 offset:{L_HIST}")
    a("s_mov_b64 exec, -1")
    a("s_waitcnt lgkmcnt(0)")
    a("s_barrier")
    a("v_mov_b32 v17, 1")
    a(f"s_mov_b32 s3, {TAG_OFF}")
    a(f"s_mov_b64 s[{S_SAVE}:{S_SAVE+1}], 0")
    for r in range(NR):
        a(f"s_mov_b64 exec, {M(r)}")
        a(f"s_cbranch_execz K2_slow_skip{r}")
        a(f"buffer_load_dword v16, v10, s[{S_WS}:{S_WS+3}], s3 offen offset:{8*r}")
        a(f"buffer_load_dwordx4 v[{XB}:{XB+3}], v14, s[{S_WS}:{S_WS+3}], 0 offen offset:{32*r}")
        a("s_waitcnt vmcnt(0)")
        a("v_lshrrev_b32 v8, 18, v16")
        a("v_lshlrev_b32 v9, 4, v8")
        a(f"ds_add_rtn_u32 v15, v9, v17 offset:{L_HIST}")
        a("v_and_b32 v16, 0x3fff, v16")
        a("v_lshlrev_b32 v16, 10, v16")
        a("s_waitcnt lgkmcnt(0)")
        a(f"v_cmp_gt_u32 vcc, {CAPN}, v15")
        a(f"s_andn2_b64 {M(r)}, {M(r)}, vcc")
        a(f"s_or_b64 s[{S_SAVE}:{S_SAVE+1}], s[{S_SAVE}:{S_SAVE+1}], {M(r)}")
        a("s_mov_b64 exec, vcc")
        a("v_lshl_add_u32 v8, v8, 6, v15")
        a("v_lshlrev_b32 v9, 4, v8")
        a("v_lshlrev_b32 v8, 2, v8")
        a(f"ds_write_b128 v9, v[{XB}:{XB+3}] offset:{L_REC}")
        a(f"ds_write_b32 v8, v16 offset:{L_SOFF}")
        a("s_waitcnt lgkmcnt(0)")
        a(f"K2_slow_skip{r}:")
    a("s_mov_b64 exec, -1")
    a(f"v_mov_b32 v9, {L_FLAG}")
    a(f"s_cmp_eq_u64 s[{S_SAVE}:{S_SAVE+1}], 0")
    a("s_cbranch_scc1 K2_slow_nof")
    a("ds_write_b32 v9, v17")
    a("K2_slow_nof:")
    a("s_waitcnt lgkmcnt(0)")
    a("s_barrier")
    a(f"v_and_b32 v7, 7, v{LANE}")
    a(f"s_mul_i32 s3, s{S_WAVE}, 5")
    a("v_add_u32 v11, s3, v7")
    a(f"v_add_u32 v6, s3, v{V_G}")
    a("s_add_u32 s3, s3, 4")
    a("v_mov_b32 v1, s3")
    for (vn, vt) in ((11, 12), (6, 13), (1, 14)):
        a(f"v_lshlrev_b32 v{vt}, 4, v{vn}")
        a(f"ds_read_b32 v{vt}, v{vt} offset:{L_HIST}")
    a("ds_read_b32 v9, v9")
    a("s_waitcnt lgkmcnt(0)")
    for (vn, vt) in ((11, 12), (6, 13), (1, 14)):
        a(f"v_min_u32 v{vt}, {CAPN}, v{vt}")
        a(f"v_lshl_add_u32 v{vn}, v{vt}, 8, v{vn}")
    a(f"v_readfirstlane_b32 s{S_MODE}, v9")
    a("v_mov_b32 v12, 0")
    a("v_mov_b32 v13, 0")
    a(f"s_add_u32 s{S_MODE}, s{S_MODE}, 1")
    a(f"s_mov_b32 s{S_PASS}, 1")
    a("s_branch K2_sched")
    a("K2_slow_next:")
    a(f"s_cmp_eq_u32 s{S_MODE}, 2")
    a("s_cbranch_scc1 K2_slow_batch")
    a(f"s_add_u32 s{S_WIN}, s{S_WIN}, {2*NR}")
    a("s_waitcnt vmcnt(0) lgkmcnt(0)")
    a("s_branch K2_slow_win")
    a("K2_slow_fin:")
    a("s_branch K2_epi")
    a("K2_code_end:")
    a("s_endpgm")

def gen_report():
    k = "rep_kernel"
    a(f".globl {k}\n.p2align 8\n.type {k},@function\n{k}:")
    a("s_cmp_lg_u32 s2, 0")
    a("s_cbranch_scc1 R_end")
    a("s_load_dwordx4 s[4:7], s[0:1], 72")
    a("s_waitcnt lgkmcnt(0)")
    def red(reg, op):
        wave_scan(reg, op)
    a("v_mov_b32 v10, -1")
    for r in range(11, 30): a(f"v_mov_b32 v{r}, 0")
    a("v_mov_b32 v14, -1")
    a("v_mov_b32 v20, -1")
    a(f"v_lshlrev_b32 v1, 6, v0")
    a(f"v_add_u32 v1, {DBG_OFF}, v1")
    for kx in range(19):
        a("global_load_dwordx4 v[2:5], v1, s[6:7]")
        a("global_load_dwordx4 v[6:9], v1, s[6:7] offset:16")
        a("s_waitcnt vmcnt(0)")
        a("v_min_u32 v10, v10, v2")
        a("v_max_u32 v11, v11, v3")
        a("v_max_u32 v12, v12, v5")
        a("v_max_u32 v13, v13, v8")
        a("v_add_u32 v1, 4096, v1")
    a(f"v_lshlrev_b32 v1, 6, v0")
    a(f"v_add_u32 v1, {DBG_OFF + (1<<20)}, v1")
    for kx in range(31):
        a("global_load_dwordx4 v[2:5], v1, s[6:7]")
        a("global_load_dwordx4 v[6:9], v1, s[6:7] offset:16")
        a("global_load_dword v30, v1, s[6:7] offset:32")
        a("s_waitcnt vmcnt(0)")
        a("v_min_u32 v14, v14, v2")
        a("v_max_u32 v15, v15, v2")
        a("v_max_u32 v16, v16, v3")
        a("v_max_u32 v17, v17, v4")
        a("v_max_u32 v18, v18, v5")
        a("v_max_u32 v19, v19, v6")
        a("v_min_u32 v20, v20, v7")
        a("v_max_u32 v21, v21, v7")
        a("v_max_u32 v22, v22, v8")
        a("v_max_u32 v23, v23, v9")
        a("v_max_u32 v24, v24, v30")
        a("v_add_u32 v1, 4096, v1")
    for r in range(10, 25):
        red(r, "v_min_u32_dpp" if r in (10, 14, 20) else "v_max_u32_dpp")
    a("s_memrealtime s[8:9]")
    a("s_waitcnt lgkmcnt(0)")
    a("v_mov_b32 v25, s8")
    a("s_mov_b32 exec_lo, 0")
    a("s_mov_b32 exec_hi, 0x80000000")
    a("v_mov_b32 v1, 0")
    for r in range(11, 26):
        a(f"v_sub_u32 v2, v{r}, v10")
        a(f"global_store_dword v1, v2, s[4:5] offset:{4*(r-11)}")
    a("R_end:")
    a("s_endpgm")

def kd(name, nv, ns):
    return f""".p2align 6
.amdhsa_kernel {name}
  .amdhsa_next_free_vgpr {nv}
  .amdhsa_next_free_sgpr {ns}
  .amdhsa_accum_offset {(nv+3)//4*4}
  .amdhsa_group_segment_fixed_size 0
  .amdhsa_kernarg_size 88
  .amdhsa_user_sgpr_count 2
  .amdhsa_user_sgpr_kernarg_segment_ptr 1
  .amdhsa_system_sgpr_workgroup_id_x 1
.end_amdhsa_kernel"""

def main():
    hdr = open("cdna_kernels/" + NAME + ".s.ref").read().split("\n")
    hdr = [l for l in hdr[:12] if l.startswith(";")]
    print("\n".join(hdr))
    print(f"; @launch kernel=part_kernel grid=({K1_GRID},1,1) block=({K1_T},1,1) lds={K1_LDS}")
    print(f"; @launch kernel=main_kernel grid=(256,1,1) block=({K2_T},1,1) lds={K2_LDS}")
    if STAMP == 2: print("; @launch kernel=rep_kernel grid=(1,1,1) block=(64,1,1) lds=0")
    print('.amdgcn_target "amdgcn-amd-amdhsa--gfx950"')
    print(".text")
    gen_k1()
    gen_k2()
    if STAMP == 2: gen_report()
    print("\n".join(("" if (l.endswith(":") or l.startswith(".")) else "    ") + l for l in out))
    print('.section .rodata,"a"')
    print(kd("part_kernel", 64, 96 if STAMP else 48))
    print(kd("main_kernel", 256, 102))
    if STAMP == 2: print(kd("rep_kernel", 32, 16))

main()
```

```python
import sys, os

NAME = "gather_scatter__tensor_product_equiv_mace__graph"
N = 10000; E = 320000
P = 250; EPC = E // P
NB = 256; NPB = 40
NR = 10
CAPN = 64
env = lambda k, d: type(d)(os.environ.get(k, d))
STAMP = env("STAMP", 0)
STMOD = env("STMOD", "")
K2TOUCH = env("K2TOUCH", 1)
K1TOUCH = env("K1TOUCH", 0)
CODEPF = env("CODEPF", 1)
BAL = env("BAL", 1)
OMOD = env("OMOD", "")
XP = env("XP", 0)
ILV = env("ILV", 1)
PRIO = env("PRIO", 0)
ROT = env("ROT", 0)
NOCOMP = env("NOCOMP", 0)
NOMEM = env("NOMEM", 0)

REC_OFF = 0
TAG_OFF = REC_OFF + E * 16
OFFS_OFF = TAG_OFF + E * 4
WT_OFF = OFFS_OFF + 256 * 1024
WR_OFF = WT_OFF + 32768
CG_OFF = WR_OFF + 2048
WS_USED = WT_OFF + 40960 + 4096
DBG_OFF = 8 << 20

out = []
def a(s): out.append(s)
def stamp(i):
    if STAMP: a(f"s_memrealtime s[{64+2*i}:{65+2*i}]")
def stamp_flush(kidx, wavesper, n, swave, vt=1):
    if not STAMP: return
    a("s_mov_b64 exec, -1")
    a("s_load_dwordx2 s[90:91], s[0:1], 80")
    a(f"s_mul_i32 s92, s2, {wavesper}")
    a(f"s_add_u32 s92, s92, s{swave}")
    a(f"s_lshl_b32 s92, s92, 6")
    a(f"s_add_u32 s92, s92, {DBG_OFF + kidx*(1<<20)}")
    a(f"v_mov_b32 v{vt}, s92")
    a("s_waitcnt lgkmcnt(0)")
    a("s_mov_b64 exec, 1")
    for i in range(n):
        a(f"v_mov_b32 v{vt+1}, s{64+2*i}")
        a(f"global_store_dword v{vt}, v{vt+1}, s[90:91] offset:{4*i}")

def srd(d, base, nbytes):
    a(f"s_mov_b32 s{d}, s{base}")
    a(f"s_and_b32 s{d+1}, s{base+1}, 0xffff")
    a(f"s_mov_b32 s{d+2}, {nbytes}")
    a(f"s_mov_b32 s{d+3}, 0x20000")

def wave_scan(v, op="v_add_u32_dpp"):
    for sh in (1, 2, 4, 8):
        a("s_nop 1")
        a(f"{op} v{v}, v{v}, v{v} row_shr:{sh} row_mask:0xf bank_mask:0xf")
    a("s_nop 1")
    a(f"{op} v{v}, v{v}, v{v} row_bcast:15 row_mask:0xa bank_mask:0xf")
    a("s_nop 1")
    a(f"{op} v{v}, v{v}, v{v} row_bcast:31 row_mask:0xc bank_mask:0xf")

K1_T = 320
K1_HIST = 0; K1_OFFS = 1024; K1_TAG = 2048; K1_REC = K1_TAG + EPC * 4
K1_LDS = K1_REC + EPC * 16
NWPREP = 8
K1_GRID = P + NWPREP

def gen_k1():
    k = "part_kernel"
    a(f".globl {k}\n.p2align 8\n.type {k},@function\n{k}:")
    a(f"s_cmp_ge_u32 s2, {K1_GRID}")
    a("s_cbranch_scc1 K1_end")
    a(f"s_cmp_ge_u32 s2, {P}")
    a("s_cbranch_scc1 K1_wprep")
    stamp(0)
    a("s_load_dwordx4 s[4:7], s[0:1], 8")
    a("s_load_dwordx4 s[8:11], s[0:1], 24")
    a("s_load_dwordx2 s[12:13], s[0:1], 80")
    if K1TOUCH: a("s_load_dwordx2 s[44:45], s[0:1], 0")
    a("v_lshlrev_b32 v1, 4, v0")
    a("v_lshlrev_b32 v2, 5, v0")
    a("v_lshlrev_b32 v3, 2, v0")
    a("v_mov_b32 v4, 0")
    a(f"ds_write_b32 v3, v4 offset:{K1_HIST}")
    a(f"s_mul_i32 s14, s2, {EPC*4}")
    a(f"s_mul_i32 s15, s2, {EPC*8}")
    a("v_lshrrev_b32 v5, 6, v0")
    a("s_waitcnt lgkmcnt(0)")
    srd(20, 6, E * 4)
    a("buffer_load_dwordx4 v[8:11], v1, s[20:23], s14 offen")
    srd(16, 4, E * 4)
    a("buffer_load_dwordx4 v[12:15], v1, s[16:19], s14 offen")
    srd(24, 8, E * 8)
    srd(28, 10, E * 8)
    srd(32, 12, WS_USED)
    a("v_readfirstlane_b32 s47, v5")
    a("s_barrier")
    a("buffer_load_dwordx4 v[16:19], v2, s[24:27], s15 offen")
    a("buffer_load_dwordx4 v[20:23], v2, s[24:27], s15 offen offset:16")
    a("buffer_load_dwordx4 v[24:27], v2, s[28:31], s15 offen")
    a("buffer_load_dwordx4 v[28:31], v2, s[28:31], s15 offen offset:16")
    a("s_mov_b32 s40, 429497")
    a("s_mov_b32 s41, 625")
    a("s_mov_b32 s42, 6711")
    a("v_mov_b32 v5, 1")
    a("v_and_b32 v6, 63, v0")
    a("v_lshlrev_b32 v6, 4, v6")
    a("s_waitcnt vmcnt(5)")
    stamp(1)
    for e in range(4):
        a(f"v_mul_u32_u24 v{32+e}, s40, v{8+e}")
        a(f"v_lshrrev_b32 v{32+e}, 24, v{32+e}")
        a(f"v_lshlrev_b32 v{36+e}, 2, v{32+e}")
        a(f"ds_add_rtn_u32 v{40+e}, v{36+e}, v5 offset:{K1_HIST}")
    a("s_waitcnt vmcnt(4)")
    for e in range(4):
        a(f"v_mad_u32_u24 v{32+e}, v{32+e}, s41, 15")
        a(f"v_lshrrev_b32 v{32+e}, 4, v{32+e}")
        a(f"v_sub_u32 v{8+e}, v{8+e}, v{32+e}")
        a(f"v_mul_u32_u24 v{32+e}, s42, v{12+e}")
        a(f"v_lshrrev_b32 v{32+e}, 22, v{32+e}")
        a(f"v_lshl_add_u32 v{8+e}, v{8+e}, 4, v{32+e}")
        a(f"v_lshl_add_u32 v{12+e}, v{12+e}, 10, v{8+e}")
    a("s_waitcnt lgkmcnt(0)")
    a("s_barrier")
    stamp(2)
    if K1TOUCH:
        srd(36, 44, N * 1024)
        a(f"s_mul_i32 s46, s2, {K1_T*16}")
        for r in range(K1TOUCH):
            a("buffer_load_dwordx4 v[60:63], v1, s[36:39], s46 offen")
            a(f"s_add_u32 s46, s46, {P*K1_T*16}")
    a(f"ds_read_b128 v[44:47], v6 offset:{K1_HIST}")
    a("s_waitcnt lgkmcnt(0)")
    a("v_add_u32 v48, v44, v45")
    a("v_add3_u32 v48, v48, v46, v47")
    a("v_mov_b32 v49, v48")
    wave_scan(49)
    a("v_sub_u32 v52, v49, v48")
    a("v_add_u32 v53, v52, v44")
    a("v_add_u32 v54, v53, v45")
    a("v_add_u32 v55, v54, v46")
    a(f"ds_write_b128 v6, v[52:55] offset:{K1_OFFS}")
    for e in range(4):
        a(f"ds_read_b32 v{32+e}, v{36+e} offset:{K1_OFFS}")
    a("s_cmp_lg_u32 s47, 0")
    a("s_cbranch_scc1 K1_noffs")
    a("s_lshl_b32 s43, s2, 10")
    a(f"s_add_u32 s43, s43, {OFFS_OFF}")
    for e in range(4):
        a(f"v_lshl_or_b32 v{56+e}, v{44+e}, 16, v{52+e}")
    a(f"buffer_store_dwordx4 v[56:59], v6, s[32:35], s43 offen {STMOD}")
    a(f"s_waitcnt vmcnt({K1TOUCH+1}) lgkmcnt(0)")
    a("s_branch K1_go")
    a("K1_noffs:")
    a(f"s_waitcnt vmcnt({K1TOUCH}) lgkmcnt(0)")
    a("K1_go:")
    stamp(3)
    for e in range(4):
        a(f"v_add_u32 v{32+e}, v{32+e}, v{40+e}")
        a(f"v_lshlrev_b32 v{36+e}, 4, v{32+e}")
        a(f"v_add_u32 v{36+e}, {K1_REC}, v{36+e}")
        a(f"v_lshlrev_b32 v{32+e}, 2, v{32+e}")
        a(f"ds_write2_b64 v{36+e}, v[{16+2*e}:{17+2*e}], v[{24+2*e}:{25+2*e}] offset0:0 offset1:1")
        a(f"ds_write_b32 v{32+e}, v{12+e} offset:{K1_TAG}")
    a(f"s_mul_i32 s43, s2, {EPC*16}")
    a(f"s_add_u32 s46, s14, {TAG_OFF}")
    a("s_waitcnt lgkmcnt(0)")
    a("s_barrier")
    stamp(4)
    a(f"ds_read_b128 v[24:27], v1 offset:{K1_TAG}")
    for r in range(4):
        a(f"ds_read_b128 v[{8+4*r}:{11+4*r}], v1 offset:{K1_REC + r*K1_T*16}")
    a("s_waitcnt lgkmcnt(4)")
    a(f"buffer_store_dwordx4 v[24:27], v1, s[32:35], s46 offen {STMOD}")
    for r in range(4):
        a(f"s_waitcnt lgkmcnt({3-r})")
        a(f"buffer_store_dwordx4 v[{8+4*r}:{11+4*r}], v1, s[32:35], s43 offen {STMOD}")
        a(f"s_add_u32 s43, s43, {K1_T*16}")
    stamp(5)
    if STAMP: a("s_waitcnt vmcnt(0)")
    stamp(6)
    stamp_flush(0, 5, 7, 47, 40)
    a("s_endpgm")
    a("K1_wprep:")
    a("s_load_dwordx4 s[4:7], s[0:1], 40")
    a("s_load_dwordx2 s[8:9], s[0:1], 56")
    a("s_load_dwordx2 s[12:13], s[0:1], 80")
    a(f"s_sub_u32 s14, s2, {P}")
    a("s_waitcnt lgkmcnt(0)")
    srd(16, 4, 128)
    srd(20, 6, 1024)
    srd(24, 8, 32768)
    srd(32, 12, WS_USED)
    a("v_cmp_gt_u32 vcc, 256, v0")
    a("s_and_saveexec_b64 s[36:37], vcc")
    a("s_cbranch_execz K1_wsmall")
    a("v_bfe_u32 v2, v0, 6, 2")
    a("v_bfe_u32 v3, v0, 4, 2")
    a("v_bfe_u32 v4, v0, 2, 2")
    a("v_and_b32 v5, 3, v0")
    a("v_lshlrev_b32 v6, 13, v2")
    a("v_lshl_add_u32 v6, v3, 11, v6")
    a("v_lshl_add_u32 v6, v4, 4, v6")
    a("v_lshl_add_u32 v6, v5, 1, v6")
    a("s_lshr_b32 s15, s14, 1")
    a("s_lshl_b32 s15, s15, 6")
    a("s_and_b32 s38, s14, 1")
    a("s_lshl_b32 s38, s38, 3")
    a("s_add_u32 s15, s15, s38")
    for q in range(8):
        a(f"buffer_load_ushort v{16+q}, v6, s[24:27], s15 offen offset:{q*256}")
    a("v_lshlrev_b32 v7, 4, v0")
    a("s_lshl_b32 s15, s14, 12")
    a(f"s_add_u32 s15, s15, {WT_OFF}")
    a("s_waitcnt vmcnt(0)")
    for q in range(4):
        a(f"v_lshl_or_b32 v{8+q}, v{17+2*q}, 16, v{16+2*q}")
    a("buffer_store_dwordx4 v[8:11], v7, s[32:35], s15 offen")
    a("s_endpgm")
    a("K1_wsmall:")
    a("s_mov_b64 exec, s[36:37]")
    a("v_subrev_u32 v1, 256, v0")
    a("s_cmp_lt_u32 s14, 2")
    a("s_cbranch_scc0 K1_wcg")
    a("s_lshl_b32 s15, s14, 6")
    a("v_add_u32 v1, s15, v1")
    a("v_lshlrev_b32 v2, 1, v1")
    for kk in range(4):
        a(f"buffer_load_ushort v{8+kk}, v2, s[20:23], 0 offen offset:{kk*256}")
    a("v_and_b32 v3, 7, v1")
    a("v_lshlrev_b32 v3, 4, v3")
    a("v_lshrrev_b32 v4, 3, v1")
    a("v_add_lshl_u32 v3, v3, v4, 4")
    a(f"s_mov_b32 s15, {WR_OFF}")
    a("s_waitcnt vmcnt(0)")
    for kk in range(4):
        a(f"v_lshlrev_b32 v{8+kk}, 16, v{8+kk}")
    a("buffer_store_dwordx4 v[8:11], v3, s[32:35], s15 offen")
    a("s_endpgm")
    a("K1_wcg:")
    a("s_cmp_eq_u32 s14, 2")
    a("s_cbranch_scc0 K1_wcode")
    a("v_lshrrev_b32 v2, 2, v1")
    a("v_lshlrev_b32 v2, 1, v2")
    for u in range(4):
        a(f"buffer_load_ushort v{16+u}, v2, s[16:19], 0 offen offset:{32*u}")
    a("v_and_b32 v3, 1, v1")
    a("v_lshlrev_b32 v3, 4, v3")
    a("v_and_b32 v4, 2, v1")
    a("v_cmp_eq_u32 vcc, 0, v4")
    a("v_lshlrev_b32 v6, 5, v1")
    a(f"s_mov_b32 s15, {CG_OFF}")
    a("s_waitcnt vmcnt(0)")
    for u in range(4):
        a(f"v_lshlrev_b32 v{16+u}, v3, v{16+u}")
        a(f"v_cndmask_b32 v{8+2*u}, 0, v{16+u}, vcc")
        a(f"v_cndmask_b32 v{9+2*u}, v{16+u}, 0, vcc")
    a("buffer_store_dwordx4 v[8:11], v6, s[32:35], s15 offen")
    a("buffer_store_dwordx4 v[12:15], v6, s[32:35], s15 offen offset:16")
    a("s_endpgm")
    a("K1_wcode:")
    if CODEPF:
        a("s_cmp_eq_u32 s14, 3")
        a("s_cbranch_scc0 K1_end")
        a("s_getpc_b64 s[40:41]")
        a("K1_pc:")
        a("s_add_u32 s40, s40, main_kernel-K1_pc")
        a("s_addc_u32 s41, s41, 0")
        a("v_lshlrev_b32 v2, 6, v1")
        for r in range(4):
            a("v_cmp_gt_u32 vcc, K2_code_end-main_kernel, v2")
            a("s_and_b64 exec, exec, vcc")
            a("s_cbranch_execz K1_wcode_done")
            a(f"global_load_dword v{8+r}, v2, s[40:41]")
            a("v_add_u32 v2, 4096, v2")
        a("K1_wcode_done:")
        a("s_waitcnt vmcnt(0)")
    a("K1_end:")
    a("s_endpgm")

K2_T = 512
SLOTS = NPB * CAPN + 8
DUMMY = NPB * CAPN
L_REC = 0
L_SOFF = L_REC + SLOTS * 16
L_HIST = L_SOFF + SLOTS * 4
L_FLAG = L_HIST + NPB * 16
L_PRE = L_FLAG + 16
L_NODE = L_PRE + NPB * 16 + 512
L_TAB = L_NODE + 512
L_LST = L_TAB + 1024
L_WT = (L_LST + 4096 + 255) // 256 * 256
L_WR = L_WT + 32768
L_AGG = L_WT + 32768 + 2048
AGG_RS = 272
K2_LDS = L_AGG + (NPB * 4 + 12) * AGG_RS
OOB = 0x7f000000
BARK = env("BARK", 2)
NXB = 4

ACC = 96; XB = 32; CG = 24; OPS = 20; AOP = 12; RECV = 8
V_GP = 7; V_SOFF = 6; V_T = 5; V_COL16 = 4; V_G = 3; V_ENT = 2; V_LADDR = 1; V_EASEL = 0
S_X = 8; S_WS = 12; S_OUT = 16
S_WAVE = 20; S_SELLO = 21; S_SELHI = 22; S_IDX = 23
S_S0 = 24; S_S1 = 26
S_EA = 28; S_EB = 29; S_IDX2 = 30; S_LEFT = 31; S_RC = 32; S_MORE = 33
S_T = 34; S_PASS = 35; S_MODE = 36; S_WIN = 37; S_MAXC = 38; S_B = 39
S_MASK = 40
S_SAVE = 60

def lane_id(v):
    a(f"v_mbcnt_lo_u32_b32 v{v}, -1, 0")
    a(f"v_mbcnt_hi_u32_b32 v{v}, -1, v{v}")

tail_code = []
uid = [0]
def ld_x(b):
    r = []
    for u in range(4):
        x = XB + 16 * b + 4 * u
        r.append(f"buffer_load_dwordx4 v[{x}:{x+3}], v{V_SOFF}, s[{S_X}:{S_X+3}], 0 offen offset:{u*256}")
    return r
def addr_fix():
    a(f"v_add_u32 v{V_SOFF}, v{V_SOFF}, v{V_COL16}")
    if NOMEM == 1: a(f"v_mov_b32 v{V_SOFF}, {OOB}")
    if NOMEM == 3: a(f"v_and_b32 v{V_SOFF}, 0xfffff, v{V_SOFF}")

def gen_k2():
    k = "main_kernel"
    a(f".globl {k}\n.p2align 8\n.type {k},@function\n{k}:")
    a("s_cmp_ge_u32 s2, 256")
    a("s_cbranch_scc1 K2_end")
    stamp(0)
    a("s_load_dwordx2 s[4:5], s[0:1], 0")
    a("s_load_dwordx2 s[6:7], s[0:1], 80")
    a("s_load_dwordx2 s[62:63], s[0:1], 64")
    a("s_and_b32 s3, s2, 7")
    a("s_lshl_b32 s3, s3, 5")
    a(f"s_lshr_b32 s{S_B}, s2, 3")
    a(f"s_add_u32 s{S_B}, s{S_B}, s3")
    TID = 23; LANE = 22
    a(f"v_mov_b32 v{TID}, v0")
    a(f"v_and_b32 v{LANE}, 63, v0")
    a("v_lshrrev_b32 v1, 6, v0")
    a("v_lshlrev_b32 v2, 2, v0")
    a("v_mov_b32 v3, 0")
    a(f"v_readfirstlane_b32 s{S_WAVE}, v1")
    a(f"v_cmp_gt_u32 vcc, {NPB*4+4}, v0")
    a(f"s_and_saveexec_b64 s[{S_SAVE}:{S_SAVE+1}], vcc")
    a(f"ds_write_b32 v2, v3 offset:{L_HIST}")
    a(f"s_mov_b64 exec, s[{S_SAVE}:{S_SAVE+1}]")
    a("v_lshrrev_b32 v8, 1, v0")
    a("v_and_b32 v9, 1, v0")
    a("v_lshlrev_b32 v10, 10, v8")
    a(f"s_lshl_b32 s3, s{S_B}, 2")
    a(f"s_add_u32 s3, s3, {OFFS_OFF}")
    a("s_waitcnt lgkmcnt(0)")
    srd(S_WS, 6, WS_USED)
    a(f"buffer_load_dword v12, v10, s[{S_WS}:{S_WS+3}], s3 offen")
    a(f"s_lshl_b32 s3, s{S_WAVE}, 8")
    a(f"s_add_u32 s3, s3, {L_WR}")
    a("s_mov_b32 m0, s3")
    a(f"s_mov_b32 s3, {WR_OFF}")
    a(f"buffer_load_dword v2, s[{S_WS}:{S_WS+3}], s3 offen lds")
    srd(S_X, 4, N * 1024)
    srd(S_OUT, 62, N * 1024)
    if CODEPF:
        a("s_getpc_b64 s[4:5]")
        a("K2_pc:")
        a(f"v_lshlrev_b32 v14, 7, v{TID}")
        a("v_cmp_gt_u32 vcc, K2_code_end-K2_pc, v14")
        a(f"s_and_saveexec_b64 s[{S_SAVE}:{S_SAVE+1}], vcc")
        a("s_cbranch_execz K2_nocpf")
        a("global_load_dword v15, v14, s[4:5]")
        a("K2_nocpf:")
        a(f"s_mov_b64 exec, s[{S_SAVE}:{S_SAVE+1}]")
    a("s_barrier")
    for r in range(4):
        a(f"v_mov_b32 v{16+r}, 0")
    a("s_nop 1")
    for r in range(10):
        a(f"v_mfma_f32_32x32x16_bf16 v[{ACC+16*r}:{ACC+16*r+15}], v[16:19], v[16:19], 0")
    a(f"v_and_b32 v{V_COL16}, 15, v{TID}")
    a(f"v_lshlrev_b32 v{V_COL16}, 4, v{V_COL16}")
    a(f"v_lshrrev_b32 v{V_G}, 4, v{LANE}")
    a(f"v_mul_u32_u24 v{V_EASEL}, 0x0202, v{V_G}")
    a(f"v_add_u32 v{V_EASEL}, 0x0100, v{V_EASEL}")
    a(f"v_lshlrev_b32 v{V_EASEL}, 16, v{V_EASEL}")
    a(f"v_or_b32 v{V_EASEL}, 0x0c0c, v{V_EASEL}")
    a(f"s_mov_b32 s{S_SELLO}, 0x05040100")
    a(f"s_mov_b32 s{S_SELHI}, 0x07060302")
    a(f"s_mov_b32 s{S_MODE}, 0")
    a(f"v_mul_u32_u24 v10, {EPC}, v8")
    a("v_add_u32 v10, v10, v9")
    a(f"v_lshlrev_b32 v16, 5, v{LANE}")
    a(f"v_cmp_gt_u32 vcc, {P}, v8")
    a("s_waitcnt vmcnt(0)")
    stamp(1)
    a("v_lshrrev_b32 v11, 16, v12")
    a("v_and_b32 v12, 0xffff, v12")
    a("v_cndmask_b32 v11, 0, v11, vcc")
    a("v_add_u32 v10, v10, v12")
    a("v_sub_u32 v13, v11, v9")
    a("v_lshlrev_b32 v14, 4, v10")
    a("v_lshlrev_b32 v10, 2, v10")
    a(f"s_mov_b32 s3, {TAG_OFF}")
    RB = XB; TG = XB + 40; RK = XB + 50
    M = lambda r: f"s[{S_MASK+2*r}:{S_MASK+2*r+1}]"
    for r in range(NR):
        a(f"v_cmp_lt_i32 {M(r)}, {2*r}, v13")
    for r in range(NR):
        a(f"s_mov_b64 exec, {M(r)}")
        a("s_cbranch_execz K2_lt_done")
        a(f"buffer_load_dword v{TG+r}, v10, s[{S_WS}:{S_WS+3}], s3 offen offset:{8*r}")
    a("K2_lt_done:")
    a("s_mov_b64 exec, -1")
    a(f"v_cmp_lt_u32 s[{S_SAVE}:{S_SAVE+1}], {2*NR}, v11")
    a("v_mov_b32 v17, 1")
    a(f"s_mov_b32 s3, {CG_OFF}")
    for r in range(NR):
        a(f"s_mov_b64 exec, {M(r)}")
        a(f"s_cbranch_execz K2_lp{r}")
        a(f"buffer_load_dwordx4 v[{RB+4*r}:{RB+4*r+3}], v14, s[{S_WS}:{S_WS+3}], 0 offen offset:{32*r}")
    a(f"s_waitcnt vmcnt({NR})")
    a("K2_ld_done:")
    for r in range(NR):
        tail_code.extend([f"K2_lp{r}:", f"s_waitcnt vmcnt({r})", "s_branch K2_ld_done"])
    stamp(2)
    for r in range(NR):
        a(f"s_mov_b64 exec, {M(r)}")
        a("s_cbranch_execz K2_h_done")
        a(f"v_and_b32 v9, 0x3fc, v{TG+r}")
        a(f"v_lshlrev_b32 v8, 3, v{TG+r}")
        a(f"v_lshlrev_b32 v8, v8, v17")
        a(f"ds_add_rtn_u32 v{RK+r}, v9, v8 offset:{L_HIST}")
    a("K2_h_done:")
    a("s_mov_b64 exec, -1")
    a(f"buffer_load_dwordx4 v[{CG}:{CG+3}], v16, s[{S_WS}:{S_WS+3}], s3 offen")
    a(f"buffer_load_dwordx4 v[{CG+4}:{CG+7}], v16, s[{S_WS}:{S_WS+3}], s3 offen offset:16")
    a("s_waitcnt lgkmcnt(0)")
    for r in range(NR):
        a(f"s_mov_b64 exec, {M(r)}")
        a("s_cbranch_execz K2_r_done")
        a(f"v_lshlrev_b32 v8, 3, v{TG+r}")
        a(f"v_bfe_u32 v{RK+r}, v{RK+r}, v8, 8")
        a(f"v_and_b32 v8, 0x3f0, v{TG+r}")
        a(f"v_cmp_lt_u32 vcc, {CAPN-1}, v{RK+r}")
        a(f"v_lshl_add_u32 v{RK+r}, v8, 2, v{RK+r}")
        a(f"s_or_b64 s[{S_SAVE}:{S_SAVE+1}], s[{S_SAVE}:{S_SAVE+1}], vcc")
    a("K2_r_done:")
    a("s_mov_b64 exec, -1")
    a(f"v_mov_b32 v9, {L_FLAG}")
    a(f"s_cmp_eq_u64 s[{S_SAVE}:{S_SAVE+1}], 0")
    a("s_cbranch_scc1 K2_noflag")
    a("ds_write_b32 v9, v17")
    a("K2_noflag:")
    a(f"v_lshlrev_b32 v8, 4, v{LANE}")
    a("s_waitcnt lgkmcnt(0)")
    a("s_barrier")
    stamp(3)
    a(f"ds_read_b128 v[12:15], v8 offset:{L_HIST}")
    a("ds_read_b32 v9, v9")
    a(f"v_lshlrev_b32 v{V_T}, 4, v{TID}")
    bg = []
    for r in range(4):
        bg.append([f"s_lshl_b32 s5, s{S_WAVE}, 10", f"s_add_u32 s5, s5, {L_WT + r*K2_T*16}", "s_mov_b32 m0, s5",
                   f"s_mov_b32 s5, {WT_OFF + r*K2_T*16}",
                   f"buffer_load_dwordx4 v{V_T}, s[{S_WS}:{S_WS+3}], s5 offen lds"])
    tch = []
    if K2TOUCH:
        per = K2_T * 16
        k1bytes = K1TOUCH * P * K1_T * 16
        for r in range((N * 1024 + NB * per - 1) // (NB * per)):
            if (r + 1) * NB * per <= k1bytes: continue
            tch.append([f"s_mul_i32 s5, s{S_WAVE}, {20*AGG_RS}", f"s_add_u32 s5, s5, {L_AGG}", "s_mov_b32 m0, s5",
                        f"s_lshl_b32 s5, s{S_B}, 13", f"s_add_u32 s5, s5, {r*NB*per}",
                        f"buffer_load_dwordx4 v{V_T}, s[{S_X}:{S_X+3}], s5 offen lds ; touch"])
    bg = tch + bg
    nbg0 = len(bg)
    nbg_before_scatter = lambda: nbg0 - len(bg)
    def bgop(n=1):
        for _ in range(n):
            if bg:
                for x in bg.pop(0): a(x)
    bgop(2)
    a("s_waitcnt lgkmcnt(0)")
    a("s_mov_b32 s3, 0x01010101")
    a("v_mov_b32 v10, 0")
    PW = 18
    for q in range(4):
        H = 12 + q
        a(f"v_lshlrev_b32 v{PW+q}, 8, v{H}")
        a(f"v_lshl_add_u32 v{PW+q}, v{H}, 16, v{PW+q}")
        a(f"v_lshl_add_u32 v{PW+q}, v{H}, 24, v{PW+q}")
        if q > 0:
            a(f"v_mul_lo_u32 v11, v10, s3")
            a(f"v_add_u32 v{PW+q}, v{PW+q}, v11")
        a(f"v_sad_u8 v10, v{H}, 0, v10")
    a(f"v_cmp_gt_u32 vcc, {NPB}, v{LANE}")
    a(f"s_and_saveexec_b64 s[{S_SAVE}:{S_SAVE+1}], vcc")
    a(f"ds_write_b128 v8, v[{PW}:{PW+3}] offset:{L_PRE}")
    a(f"v_cmp_lt_u32 vcc, {CAPN}, v10")
    a(f"s_mov_b64 exec, s[{S_SAVE}:{S_SAVE+1}]")
    a("v_readfirstlane_b32 s3, v9")
    a("s_cmp_lg_u64 vcc, 0")
    a("s_cbranch_scc1 K2_slow")
    a("s_cmp_lg_u32 s3, 0")
    a("s_cbranch_scc1 K2_slow")
    bg_slow = [list(x) for x in bg]
    PR = [12, 13, 14, 15, 16, 17, 18, 19, 20, 21]
    for r in range(NR):
        a(f"s_mov_b64 exec, {M(r)}")
        a("s_cbranch_execz K2_p_done")
        a(f"v_and_b32 v8, 0x3ff, v{TG+r}")
        a(f"ds_read_u8 v{PR[r]}, v8 offset:{L_PRE}")
    a("K2_p_done:")
    a("s_mov_b64 exec, -1")
    bgop(1)
    a(f"v_and_b32 v7, 7, v{LANE}")
    a("v_add_u32 v8, 3, v10")
    a("v_lshrrev_b32 v8, 2, v8")
    a("v_subrev_u32 v8, 5, v8")
    a("v_med3_i32 v8, v8, 0, 7")
    a(f"v_cmp_gt_u32 vcc, {NPB}, v{LANE}")
    a("v_mov_b32 v9, 63")
    a("s_nop 0")
    a("v_cndmask_b32 v8, 64, v8, vcc")
    KM = [24, 26, 28, 30, 32, 82, 84, 86]
    for q in range(8):
        a(f"v_cmp_eq_u32 s[{KM[q]}:{KM[q]+1}], {q}, v8")
    a("s_mov_b32 s3, 0")
    for q in range(7, -1, -1):
        a(f"s_mov_b64 exec, s[{KM[q]}:{KM[q]+1}]")
        a(f"v_mbcnt_lo_u32_b32 v9, s{KM[q]}, 0")
        a(f"v_mbcnt_hi_u32_b32 v9, s{KM[q]+1}, v9")
        a("v_add_u32 v9, s3, v9")
        a(f"s_bcnt1_i32_b64 s4, s[{KM[q]}:{KM[q]+1}]")
        a("s_add_u32 s3, s3, s4")
    a("s_mov_b64 exec, -1")
    a("v_lshlrev_b32 v9, 2, v9")
    a(f"v_lshl_add_u32 v8, v10, 8, v{LANE}")
    a("ds_permute_b32 v8, v9, v8")
    a("v_and_b32 v9, 1, v7")
    a("v_mul_u32_u24 v9, 7, v9")
    a(f"v_xor_b32 v9, s{S_WAVE}, v9")
    a("v_lshl_add_u32 v9, v7, 3, v9")
    a("v_lshlrev_b32 v9, 2, v9")
    a(f"v_and_b32 v6, 1, v{V_G}")
    a("v_mul_u32_u24 v6, 7, v6")
    a(f"v_xor_b32 v6, s{S_WAVE}, v6")
    a(f"v_lshl_add_u32 v6, v{V_G}, 3, v6")
    a("v_lshlrev_b32 v6, 2, v6")
    a(f"s_lshl_b32 s3, s{S_WAVE}, 2")
    a("s_add_u32 s3, s3, 128")
    a("v_mov_b32 v1, s3")
    bgop(1)
    a("s_waitcnt lgkmcnt(0)")
    a("ds_bpermute_b32 v11, v9, v8")
    a("ds_bpermute_b32 v6, v6, v8")
    a("ds_bpermute_b32 v1, v1, v8")
    a(f"s_waitcnt vmcnt({nbg_before_scatter()})")
    for r in range(NR):
        a(f"s_mov_b64 exec, {M(r)}")
        a("s_cbranch_execz K2_s_done")
        a(f"v_add_lshl_u32 v8, v{RK+r}, v{PR[r]}, 2")
        a(f"v_lshlrev_b32 v9, 2, v8")
        a(f"v_and_b32 v{TG+r}, 0xfffc00, v{TG+r}")
        a(f"ds_write_b128 v9, v[{RB+4*r}:{RB+4*r+3}] offset:{L_REC}")
        a(f"ds_write_b32 v8, v{TG+r} offset:{L_SOFF}")
    a("K2_s_done:")
    a("s_mov_b64 exec, -1")
    bgop(1)
    a("v_mov_b32 v12, 0")
    a("v_mov_b32 v13, 0")
    a(f"s_mov_b32 s{S_PASS}, 0")
    a("K2_sched:")
    a(f"v_and_b32 v14, 15, v{LANE}")
    a(f"s_lshl_b32 s3, s{S_WAVE}, 6")
    a("v_lshl_add_u32 v15, v7, 2, s3")
    a("s_waitcnt lgkmcnt(0)")
    a(f"ds_write_b32 v15, v11 offset:{L_NODE}")
    BS = [(6, 12, 16, 17, 18), (1, 13, 19, 20, 21)]
    for (vi, vd, vq, vt, ve) in BS:
        a(f"v_and_b32 v{vt}, 0xff, v{vi}")
        a(f"v_lshl_add_u32 v{vt}, v{vt}, 4, v14")
        a(f"ds_read_u8 v{vt}, v{vt} offset:{L_PRE+1}")
        a(f"v_lshrrev_b32 v{vq}, 8, v{vi}")
        a(f"v_add_u32 v{vq}, 3, v{vq}")
        a(f"v_lshrrev_b32 v{vq}, 2, v{vq}")
    a(f"s_cmp_eq_u32 s{S_PASS}, 0")
    a("s_cselect_b32 s4, 15, 0")
    a("v_cmp_le_u32 vcc, s4, v14")
    a("s_waitcnt lgkmcnt(0)")
    for (vi, vd, vq, vt, ve) in BS:
        a(f"v_add_u32 v{vt}, 1, v{vt}")
        a(f"v_lshrrev_b32 v{vt}, 2, v{vt}")
        a(f"v_cndmask_b32 v{vt}, v{vt}, v{vq}, vcc")
        a(f"v_sub_u32 v{vt}, v{vt}, v14")
        a(f"v_add_u32 v{ve}, 1, v{vd}")
        a(f"v_min_i32 v{vt}, v{vt}, v{ve}")
    for sh in (1, 2, 4, 8):
        a("s_nop 0")
        for (vi, vd, vq, vt, ve) in BS:
            a(f"v_min_i32_dpp v{vt}, v{vt}, v{vt} row_shr:{sh} row_mask:0xf bank_mask:0xf")
    for (vi, vd, vq, vt, ve) in BS:
        a(f"v_subrev_u32 v{ve}, 15, v{vq}")
        a(f"v_max_i32 v{vt}, v{vt}, v{ve}")
    for (vi, vd, vq, vt, ve) in BS:
        a(f"v_add_u32 v{ve}, v{vt}, v14")
    a("s_nop 0")
    for (vi, vd, vq, vt, ve) in BS:
        a(f"v_mov_b32_dpp v{vd}, v{ve} row_shr:1 row_mask:0xf bank_mask:0xf")
    a(f"s_lshl_b32 s4, s{S_WAVE}, 7")
    a("v_lshl_add_u32 v15, v14, 3, s4")
    for k_, (vi, vd, vq, vt, ve) in enumerate(BS):
        a(f"v_sub_u32 v{vt}, v{ve}, v{vd}")
        a(f"v_lshl_or_b32 v{vt}, v{vt}, 7, v{vd}")
        if k_ == 0:
            a(f"v_add_u32 v{vi}, v15, v{V_G}")
            a(f"ds_write_b8 v{vi}, v{vt} offset:{L_TAB}")
        else:
            a(f"ds_write_b8 v15, v{vt} offset:{L_TAB+4}")
    a(f"v_add_u32 v15, s4, v{LANE}")
    a(f"ds_read_u8 v12, v15 offset:{L_TAB}")
    a(f"ds_read_u8 v13, v15 offset:{L_TAB+64}")
    a("v_and_b32 v16, 0xff, v11")
    a("v_lshlrev_b32 v16, 6, v16")
    a("v_lshrrev_b32 v10, 8, v11")
    a("v_cmp_gt_u32 vcc, 5, v7")
    a("v_mov_b32 v20, 0")
    a("v_mov_b32 v21, 0")
    a("v_cndmask_b32 v10, 0, v10, vcc")
    a("s_waitcnt lgkmcnt(0)")
    a("v_cndmask_b32 v12, 0, v12, vcc")
    a("v_cndmask_b32 v13, 0, v13, vcc")
    a(f"v_cmp_lt_u32 s[{S_S0}:{S_S0+1}], 64, v12")
    a(f"v_cmp_lt_u32 s[{S_S1}:{S_S1+1}], 64, v13")
    a("v_and_b32 v12, 0x7f, v12")
    a("v_and_b32 v13, 0x7f, v13")
    a("v_lshl_add_u32 v12, v12, 2, v16")
    a("v_lshl_add_u32 v13, v13, 2, v16")
    a(f"s_bcnt1_i32_b64 s4, s[{S_S0}:{S_S0+1}]")
    a(f"s_bcnt1_i32_b64 s{S_LEFT}, s[{S_S1}:{S_S1+1}]")
    a(f"s_add_u32 s{S_LEFT}, s{S_LEFT}, s4")
    a(f"s_lshl_b32 s5, s{S_WAVE}, 7")
    a("s_add_u32 s4, s4, s5")
    a(f"v_mbcnt_lo_u32_b32 v17, s{S_S0}, 0")
    a(f"v_mbcnt_hi_u32_b32 v17, s{S_S0+1}, v17")
    a(f"v_mbcnt_lo_u32_b32 v18, s{S_S1}, 0")
    a(f"v_mbcnt_hi_u32_b32 v18, s{S_S1+1}, v18")
    a("v_add_lshl_u32 v17, s5, v17, 2")
    a("v_add_lshl_u32 v18, s4, v18, 2")
    a(f"v_add_lshl_u32 v19, s5, v{LANE}, 2")
    a(f"v_mov_b32 v15, {DUMMY}")
    a(f"ds_write_b32 v19, v15 offset:{L_LST}")
    a(f"ds_write_b32 v19, v15 offset:{L_LST+256}")
    a(f"s_mov_b64 exec, s[{S_S0}:{S_S0+1}]")
    a(f"ds_write_b32 v17, v12 offset:{L_LST}")
    a(f"s_mov_b64 exec, s[{S_S1}:{S_S1+1}]")
    a(f"ds_write_b32 v18, v13 offset:{L_LST}")
    a("s_mov_b64 exec, -1")
    a(f"v_and_b32 v{V_LADDR}, 3, v{LANE}")
    a(f"v_add_lshl_u32 v{V_LADDR}, s5, v{V_LADDR}, 2")
    a(f"ds_read_b32 v12, v{V_LADDR} offset:{L_LST}")
    a(f"ds_read_b32 v{V_ENT}, v{V_LADDR} offset:{L_LST+16}")
    a(f"v_lshrrev_b32 v14, 3, v{LANE}")
    a("v_add_u32 v15, 3, v10")
    a("v_and_b32 v15, 0xfc, v15")
    a("v_add_u32 v14, v10, v14")
    a("v_cmp_lt_u32 vcc, v14, v15")
    a("v_add_u32 v14, v16, v14")
    a(f"v_add_u32 v15, {DUMMY}, v7")
    a(f"v_subrev_u32 v19, 24, v{LANE}")
    a(f"v_cmp_gt_u32 s[{S_SAVE}:{S_SAVE+1}], 4, v19")
    a(f"v_bfe_u32 v{V_GP}, v{LANE}, 2, 2")
    a("v_mov_b32 v22, 0")
    a("v_mov_b32 v23, 0")
    a(f"v_cndmask_b32 v14, v14, v15, s[{S_SAVE}:{S_SAVE+1}]")
    a(f"s_or_b64 exec, vcc, s[{S_SAVE}:{S_SAVE+1}]")
    a("v_lshlrev_b32 v15, 4, v14")
    a("v_lshlrev_b32 v14, 2, v14")
    a(f"v_mov_b32 v19, {OOB}")
    a(f"ds_write_b128 v15, v[20:23] offset:{L_REC}")
    a(f"ds_write_b32 v14, v19 offset:{L_SOFF}")
    a("s_mov_b64 exec, -1")
    a("s_waitcnt lgkmcnt(0)")
    a("s_barrier")
    stamp(4)
    a(f"s_cmp_lg_u32 s{S_PASS}, 0")
    a("s_cbranch_scc1 K2_nobg")
    bgop(100)
    a("K2_nobg:")
    def rd_soff(se):
        return [f"v_add_lshl_u32 v{V_T}, s{se}, v{V_G}, 2", f"ds_read_b32 v{V_SOFF}, v{V_T} offset:{L_SOFF}"]
    def rd_rec(ve):
        return [f"v_add_lshl_u32 v{V_T}, v{ve}, v{V_GP}, 4", f"ds_read_b128 v[{RECV}:{RECV+3}], v{V_T} offset:{L_REC}"]
    for q in range(NXB):
        a(f"v_readlane_b32 s{4+q}, v12, {q}")
    a(f"s_mov_b32 s{S_RC}, 0")
    a(f"s_mov_b32 s{S_IDX2}, s{S_LEFT}")
    for x in rd_rec(12): a(x)
    for x in rd_soff(4): a(x)
    for q in range(NXB - 1):
        a(f"s_cmp_gt_u32 s{S_LEFT}, {q}")
        a("s_cbranch_scc0 K2_t0")
        a("s_waitcnt lgkmcnt(0)")
        addr_fix()
        for x in ld_x(q): a(x)
        for x in rd_soff(5 + q): a(x)
    a("s_branch K2_t0")
    NS = 5 * NXB
    for s_ in range(NS):
        i = s_ % 5; b = s_ % NXB
        if i == 0:
            a(f"K2_re{s_}:")
            a(f"s_add_u32 s{S_RC}, s{S_RC}, 1")
            if PRIO == 1:
                a(f"s_lshr_b32 s{S_T}, s{S_WAVE}, 2")
                a(f"s_add_u32 s{S_T}, s{S_T}, s{S_RC}")
                a("s_setprio 0")
                a(f"s_bitcmp1_b32 s{S_T}, 0")
                a(f"s_cbranch_scc0 K2_pr{s_}")
                a("s_setprio 1")
                a(f"K2_pr{s_}:")
            a(f"s_lshr_b64 s[{S_S0}:{S_S0+1}], s[{S_S0}:{S_S0+1}], 8")
            a(f"s_and_b32 s{S_T}, s{S_RC}, {BARK-1}")
            a(f"s_cbranch_scc0 K2_rx{s_}")
            t = [f"K2_rx{s_}:",
                 f"s_cmp_eq_u32 s{S_RC}, 16", "s_cbranch_scc1 K2_loop_done",
                 f"s_cmp_lg_u32 s{S_RC}, 8", f"s_cbranch_scc1 K2_ry{s_}",
                 f"s_mov_b64 s[{S_S0}:{S_S0+1}], s[{S_S1}:{S_S1+1}]",
                 f"s_cmp_lg_u32 s{S_IDX2}, s{S_LEFT}", f"s_cbranch_scc1 K2_ry{s_}",
                 "s_waitcnt vmcnt(0)",
                 f"K2_ry{s_}:",
                 f"s_cmp_lg_u32 s{S_PASS}, 0", f"s_cbranch_scc1 K2_t{s_}",
                 "s_barrier", f"s_branch K2_t{s_}"]
            tail_code.extend(t)
        a(f"K2_t{s_}:")
        a(f"s_bitcmp1_b32 s{S_S0}, {i}")
        nxt = (s_ + 16) % NS
        a(f"s_cbranch_scc0 K2_{'re' if nxt % 5 == 0 else 't'}{nxt}")
        a(f"s_sub_u32 s{S_LEFT}, s{S_LEFT}, 1")
        a("s_waitcnt lgkmcnt(0)")
        a(f"v_readlane_b32 s{S_EB}, v{V_ENT}, {b}")
        a(f"s_cmp_lt_u32 s{S_LEFT}, {NXB-1}")
        DT = XB + 16 * (NXB - 1)
        if b == 0:
            a(f"v_perm_b32 v{V_T}, v{RECV+1}, v{RECV}, v{V_EASEL}")
            a(f"v_lshlrev_b32 v{OPS}, 16, v{RECV+2}")
            a(f"v_and_b32 v{OPS+1}, 0xffff0000, v{RECV+2}")
            a(f"v_lshlrev_b32 v{OPS+2}, 16, v{RECV+3}")
            a(f"v_and_b32 v{OPS+3}, 0xffff0000, v{RECV+3}")
            for x in range(4):
                a(f"v_mul_f32 v{OPS+x}, v{OPS+x}, v{V_T}")
            a(f"v_cvt_pk_bf16_f32 v{RECV}, v{OPS}, v{OPS+1}")
            a(f"v_cvt_pk_bf16_f32 v{RECV+1}, v{OPS+2}, v{OPS+3}")
            addr_fix()
            a("s_nop 0")
            for u in range(4):
                a(f"v_mfma_f32_16x16x16_bf16 v[{DT+4*u}:{DT+4*u+3}], v[{RECV}:{RECV+1}], v[{CG+2*u}:{CG+2*u+1}], 0")
        else:
            addr_fix()
            a(f"s_cbranch_scc1 K2_nl{s_}")
            for x in ld_x((b + NXB - 1) % NXB): a(x)
            a(f"K2_nl{s_}:")
            for x in rd_soff(S_EB): a(x)
            if b == 2:
                for x in rd_rec(V_ENT): a(x)
            if b == 3:
                a(f"v_add_u32 v{V_LADDR}, 16, v{V_LADDR}")
                a(f"ds_read_b32 v{V_ENT}, v{V_LADDR} offset:{L_LST+16}")
        pre = 0 if b == 0 else 4
        a(f"s_cbranch_scc1 K2_wx{s_}")
        a(f"s_waitcnt vmcnt({4*(NXB-2)+pre})")
        a(f"K2_wr{s_}:")
        t = [f"K2_wx{s_}:", "s_waitcnt vmcnt(8)", f"s_cmp_eq_u32 s{S_LEFT}, 2", f"s_cbranch_scc1 K2_wr{s_}",
             "s_waitcnt vmcnt(4)", f"s_cmp_eq_u32 s{S_LEFT}, 1", f"s_cbranch_scc1 K2_wr{s_}",
             "s_waitcnt vmcnt(0)", f"s_cmp_eq_u32 s{S_LEFT}, 0", f"s_branch K2_wr{s_}"]
        tail_code.extend(t)
        def pm(j):
            m = j >> 1; sel = S_SELHI if j & 1 else S_SELLO
            o = OPS + 2 * (j % 2)
            x = lambda u: XB + 16 * b + 4 * u + m
            a(f"v_perm_b32 v{o}, v{x(1)}, v{x(0)}, s{sel}")
            a(f"v_perm_b32 v{o+1}, v{x(3)}, v{x(2)}, s{sel}")
        def mf(j):
            o = OPS + 2 * (j % 2); c = ACC + 32 * i + 4 * j
            a(f"v_mfma_f32_16x16x16_bf16 v[{c}:{c+3}], v[{AOP+2*b}:{AOP+2*b+1}], v[{o}:{o+1}], v[{c}:{c+3}]")
        pm(0); pm(1)
        if b == 0:
            a("s_nop 1")
            for r in range(4):
                a(f"v_cvt_pk_bf16_f32 v{AOP+2*r}, v{DT+r}, v{DT+4+r}")
            for r in range(4):
                a(f"v_cvt_pk_bf16_f32 v{AOP+2*r+1}, v{DT+8+r}, v{DT+12+r}")
            a(f"s_cbranch_scc1 K2_nl{s_}")
            for x in ld_x(NXB - 1): a(x)
            a(f"K2_nl{s_}:")
            for x in rd_soff(S_EB): a(x)
        mf(0)
        for j in range(2, 8):
            pm(j)
            mf(j - 1)
        a("s_nop 0")
        mf(7)
    a("s_branch K2_re0")
    for x in tail_code: a(x)
    a("K2_loop_done:")
    a(f"s_cmp_lg_u32 s{S_MODE}, 0")
    a("s_cbranch_scc1 K2_slow_next")
    a("K2_epi:")
    stamp(5)
    a("s_waitcnt vmcnt(0) lgkmcnt(0)")
    a(f"v_add_u32 v1, {L_WR}, v{V_COL16}")
    for j in range(8):
        a(f"ds_read_b128 v[{XB+4*j}:{XB+4*j+3}], v1 offset:{256*j}")
    a(f"s_lshl_b32 s3, s{S_WAVE}, 6")
    a("v_mov_b32 v5, s3")
    a(f"ds_read_b128 v[16:19], v5 offset:{L_NODE}")
    a(f"ds_read_b32 v20, v5 offset:{L_NODE+16}")
    lane_id(LANE)
    a(f"s_and_b32 s3, s{S_WAVE}, 3")
    a("s_lshl_b32 s4, s3, 13")
    a(f"s_add_u32 s4, s4, {L_WT}")
    a(f"v_lshl_add_u32 v1, v{LANE}, 4, s4")
    a(f"v_mul_u32_u24 v2, {AGG_RS}, v{V_G}")
    a(f"v_add_u32 v2, v2, v{V_COL16}")
    a(f"v_add_u32 v2, {L_AGG}, v2")
    a(f"s_mov_b32 s4, {4*AGG_RS}")
    a("s_waitcnt lgkmcnt(0)")
    for x in range(8):
        a(f"ds_read_b128 v[{XB+32+4*x}:{XB+32+4*x+3}], v1 offset:{1024*x}")
    for i in range(5):
        a(f"v_and_b32 v{16+i}, 0xff, v{16+i}")
        a(f"v_mad_u32_u24 v{16+i}, v{16+i}, s4, v2")
    for i in range(5):
        for j in range(8):
            c = ACC + 32 * i + 4 * j; w = XB + 4 * j
            a(f"v_mul_f32 v{c}, v{c}, v{w}")
        for kk in range(1, 4):
            for j in range(8):
                c = ACC + 32 * i + 4 * j; w = XB + 4 * j
                a(f"v_fmac_f32 v{c}, v{c+kk}, v{w+kk}")
        o = 8 + 4 * (i % 2)
        for jj in range(4):
            c = ACC + 32 * i + 8 * jj
            a(f"v_cvt_pk_bf16_f32 v{o+jj}, v{c}, v{c+4}")
        a(f"ds_write_b128 v{16+i}, v[{o}:{o+3}]")
    a(f"s_lshr_b32 s5, s{S_WAVE}, 2")
    a(f"s_mul_i32 s6, s5, {16*AGG_RS}")
    a(f"s_add_u32 s6, s6, {L_AGG}")
    a(f"v_and_b32 v6, 15, v{LANE}")
    a(f"v_mul_u32_u24 v7, {AGG_RS}, v6")
    a(f"v_lshl_add_u32 v7, v{V_G}, 4, v7")
    a("v_add_u32 v7, s6, v7")
    a("v_lshlrev_b32 v5, 8, v6")
    a(f"v_lshl_add_u32 v5, v{V_G}, 4, v5")
    a(f"s_mul_i32 s6, s{S_B}, 625")
    a("s_add_u32 s7, s6, 640")
    a("s_add_u32 s6, s6, 15")
    a("s_lshr_b32 s6, s6, 4")
    a("s_lshr_b32 s7, s7, 4")
    a("s_sub_u32 s7, s7, s6")
    a("s_lshl_b32 s7, s7, 2")
    a("s_lshl_b32 s4, s5, 4")
    a("s_sub_u32 s7, s7, s4")
    a("s_sub_u32 s7, s7, 128")
    a(f"v_mov_b32 v21, {OOB}")
    a("v_cmp_gt_u32 vcc, s7, v6")
    a("s_lshl_b32 s6, s6, 10")
    a("s_nop 0")
    a("v_cndmask_b32 v21, v21, v5, vcc")
    a("s_lshl_b32 s7, s5, 12")
    a("s_add_u32 s6, s6, s7")
    a("s_lshl_b32 s7, s3, 6")
    a("s_add_u32 s6, s6, s7")
    a("s_waitcnt lgkmcnt(0)")
    a("s_barrier")
    stamp(6)
    BB = ACC
    for u in range(5):
        for t in range(4):
            r = BB + 16 * u + 4 * t
            a(f"ds_read_b128 v[{r}:{r+3}], v7 offset:{u*32*AGG_RS + t*64}")
    DD = ACC + 80
    def fin(u):
        d = DD + 8 * u
        o = BB + 4 * u
        for x in range(4):
            a(f"v_cvt_pk_bf16_f32 v{o+x}, v{d+2*x}, v{d+2*x+1}")
        a(f"buffer_store_dwordx4 v[{o}:{o+3}], v{21 if u == 4 else 5}, s[{S_OUT}:{S_OUT+3}], s6 offen {OMOD}")
        a(f"s_add_u32 s6, s6, {32*256}")
    for u in range(5):
        a(f"s_waitcnt lgkmcnt({min(15, 4*(4-u))})")
        for t in range(4):
            r = BB + 16 * u + 4 * t
            for hh in range(2):
                d = DD + 8 * u + 4 * hh; w = XB + 32 + 16 * hh + 4 * t
                c = "0" if t == 0 else f"v[{d}:{d+3}]"
                a(f"v_mfma_f32_16x16x32_bf16 v[{d}:{d+3}], v[{w}:{w+3}], v[{r}:{r+3}], {c}")
        if u > 0: fin(u - 1)
    a("s_nop 7")
    fin(4)
    stamp(7)
    if STAMP: a("s_waitcnt vmcnt(0)")
    stamp(8)
    stamp_flush(1, 8, 9, S_WAVE, 1)
    a("K2_end:")
    a("s_endpgm")
    a("K2_slow:")
    for grp in bg_slow:
        if "touch" not in grp[-1]:
            for x in grp: a(x)
    a(f"s_mov_b32 s{S_MODE}, 1")
    a(f"s_mov_b32 s{S_WIN}, 0")
    a(f"v_lshlrev_b32 v8, 10, v{LANE}")
    a(f"s_lshl_b32 s3, s{S_B}, 2")
    a(f"s_add_u32 s3, s3, {OFFS_OFF}")
    for h in range(4):
        a(f"buffer_load_dword v{10+2*h}, v8, s[{S_WS}:{S_WS+3}], s3 offen")
        a("s_add_u32 s3, s3, 65536")
    a(f"v_cmp_gt_u32 vcc, {P-192}, v{LANE}")
    a("s_waitcnt vmcnt(0)")
    for h in range(4):
        a(f"v_lshrrev_b32 v{10+2*h}, 16, v{10+2*h}")
    a("v_cndmask_b32 v16, 0, v16, vcc")
    a("v_max_u32 v10, v10, v12")
    a("v_max3_u32 v10, v10, v14, v16")
    wave_scan(10, "v_max_u32_dpp")
    a("s_nop 1")
    a(f"v_readlane_b32 s{S_MAXC}, v10, 63")
    a("K2_slow_win:")
    a(f"s_cmp_ge_u32 s{S_WIN}, s{S_MAXC}")
    a("s_cbranch_scc1 K2_slow_fin")
    def seg_setup():
        lane_id(LANE)
        a(f"s_lshl_b32 s3, s{S_WAVE}, 6")
        a(f"v_add_u32 v{TID}, s3, v{LANE}")
        a(f"v_lshrrev_b32 v8, 1, v{TID}")
        a(f"v_and_b32 v9, 1, v{TID}")
        a("v_lshlrev_b32 v10, 10, v8")
        a(f"s_lshl_b32 s3, s{S_B}, 2")
        a(f"s_add_u32 s3, s3, {OFFS_OFF}")
        a(f"buffer_load_dword v12, v10, s[{S_WS}:{S_WS+3}], s3 offen")
        a(f"v_mul_u32_u24 v10, {EPC}, v8")
        a(f"v_add3_u32 v10, v10, v9, s{S_WIN}")
        a(f"v_cmp_gt_u32 vcc, {P}, v8")
        a("s_waitcnt vmcnt(0)")
        a("v_lshrrev_b32 v11, 16, v12")
        a("v_and_b32 v12, 0xffff, v12")
        a("v_cndmask_b32 v11, 0, v11, vcc")
        a("v_add_u32 v10, v10, v12")
        a("v_sub_u32 v13, v11, v9")
        a(f"v_subrev_u32 v13, s{S_WIN}, v13")
        a("v_lshlrev_b32 v14, 4, v10")
        a("v_lshlrev_b32 v10, 2, v10")
    seg_setup()
    for r in range(NR):
        a(f"v_cmp_lt_i32 {M(r)}, {2*r}, v13")
    a("K2_slow_batch:")
    a("s_waitcnt vmcnt(0) lgkmcnt(0)")
    a("s_barrier")
    seg_setup()
    a(f"v_lshlrev_b32 v8, 2, v{TID}")
    a("v_mov_b32 v9, 0")
    a(f"v_cmp_gt_u32 vcc, {NPB*4+4}, v{TID}")
    a(f"s_and_saveexec_b64 s[{S_SAVE}:{S_SAVE+1}], vcc")
    a(f"ds_write_b32 v8, v9 offset:{L_HIST}")
    a("s_mov_b64 exec, -1")
    a("s_waitcnt lgkmcnt(0)")
    a("s_barrier")
    a("v_mov_b32 v17, 1")
    a(f"s_mov_b32 s3, {TAG_OFF}")
    a(f"s_mov_b64 s[{S_SAVE}:{S_SAVE+1}], 0")
    for r in range(NR):
        a(f"s_mov_b64 exec, {M(r)}")
        a(f"s_cbranch_execz K2_slow_skip{r}")
        a(f"buffer_load_dword v16, v10, s[{S_WS}:{S_WS+3}], s3 offen offset:{8*r}")
        a(f"buffer_load_dwordx4 v[{XB}:{XB+3}], v14, s[{S_WS}:{S_WS+3}], 0 offen offset:{32*r}")
        a("s_waitcnt vmcnt(0)")
        a("v_bfe_u32 v8, v16, 4, 6")
        a("v_lshlrev_b32 v9, 4, v8")
        a(f"ds_add_rtn_u32 v15, v9, v17 offset:{L_HIST}")
        a("v_and_b32 v16, 0xfffc00, v16")
        a("s_waitcnt lgkmcnt(0)")
        a(f"v_cmp_gt_u32 vcc, {CAPN}, v15")
        a(f"s_andn2_b64 {M(r)}, {M(r)}, vcc")
        a(f"s_or_b64 s[{S_SAVE}:{S_SAVE+1}], s[{S_SAVE}:{S_SAVE+1}], {M(r)}")
        a("s_mov_b64 exec, vcc")
        a("v_lshl_add_u32 v8, v8, 6, v15")
        a("v_lshlrev_b32 v9, 4, v8")
        a("v_lshlrev_b32 v8, 2, v8")
        a(f"ds_write_b128 v9, v[{XB}:{XB+3}] offset:{L_REC}")
        a(f"ds_write_b32 v8, v16 offset:{L_SOFF}")
        a("s_waitcnt lgkmcnt(0)")
        a(f"K2_slow_skip{r}:")
    a("s_mov_b64 exec, -1")
    a(f"v_mov_b32 v9, {L_FLAG}")
    a(f"s_cmp_eq_u64 s[{S_SAVE}:{S_SAVE+1}], 0")
    a("s_cbranch_scc1 K2_slow_nof")
    a("ds_write_b32 v9, v17")
    a("K2_slow_nof:")
    a("s_waitcnt lgkmcnt(0)")
    a("s_barrier")
    a(f"v_and_b32 v7, 7, v{LANE}")
    a(f"s_mul_i32 s3, s{S_WAVE}, 5")
    a("v_add_u32 v11, s3, v7")
    a(f"v_add_u32 v6, s3, v{V_G}")
    a("s_add_u32 s3, s3, 4")
    a("v_mov_b32 v1, s3")
    for (vn, vt) in ((11, 12), (6, 13), (1, 14)):
        a(f"v_lshlrev_b32 v{vt}, 4, v{vn}")
        a(f"ds_read_b32 v{vt}, v{vt} offset:{L_HIST}")
    a("ds_read_b32 v9, v9")
    a("s_waitcnt lgkmcnt(0)")
    for (vn, vt) in ((11, 12), (6, 13), (1, 14)):
        a(f"v_min_u32 v{vt}, {CAPN}, v{vt}")
        a(f"v_lshl_add_u32 v{vn}, v{vt}, 8, v{vn}")
    a(f"v_readfirstlane_b32 s{S_MODE}, v9")
    a("v_mov_b32 v12, 0")
    a("v_mov_b32 v13, 0")
    a(f"s_add_u32 s{S_MODE}, s{S_MODE}, 1")
    a(f"s_mov_b32 s{S_PASS}, 1")
    a("s_branch K2_sched")
    a("K2_slow_next:")
    a(f"s_cmp_eq_u32 s{S_MODE}, 2")
    a("s_cbranch_scc1 K2_slow_batch")
    a(f"s_add_u32 s{S_WIN}, s{S_WIN}, {2*NR}")
    a("s_waitcnt vmcnt(0) lgkmcnt(0)")
    a("s_branch K2_slow_win")
    a("K2_slow_fin:")
    a("s_branch K2_epi")
    a("K2_code_end:")
    a("s_endpgm")

def gen_report():
    k = "rep_kernel"
    a(f".globl {k}\n.p2align 8\n.type {k},@function\n{k}:")
    a("s_cmp_lg_u32 s2, 0")
    a("s_cbranch_scc1 R_end")
    a("s_load_dwordx4 s[4:7], s[0:1], 72")
    a("s_waitcnt lgkmcnt(0)")
    def red(reg, op):
        wave_scan(reg, op)
    a("v_mov_b32 v10, -1")
    for r in range(11, 30): a(f"v_mov_b32 v{r}, 0")
    a("v_mov_b32 v14, -1")
    a("v_mov_b32 v20, -1")
    a(f"v_lshlrev_b32 v1, 6, v0")
    a(f"v_add_u32 v1, {DBG_OFF}, v1")
    for kx in range(19):
        a("global_load_dwordx4 v[2:5], v1, s[6:7]")
        a("global_load_dwordx4 v[6:9], v1, s[6:7] offset:16")
        a("s_waitcnt vmcnt(0)")
        a("v_min_u32 v10, v10, v2")
        a("v_max_u32 v11, v11, v3")
        a("v_max_u32 v12, v12, v5")
        a("v_max_u32 v13, v13, v8")
        a("v_add_u32 v1, 4096, v1")
    a(f"v_lshlrev_b32 v1, 6, v0")
    a(f"v_add_u32 v1, {DBG_OFF + (1<<20)}, v1")
    for kx in range(31):
        a("global_load_dwordx4 v[2:5], v1, s[6:7]")
        a("global_load_dwordx4 v[6:9], v1, s[6:7] offset:16")
        a("global_load_dword v30, v1, s[6:7] offset:32")
        a("s_waitcnt vmcnt(0)")
        a("v_min_u32 v14, v14, v2")
        a("v_max_u32 v15, v15, v2")
        a("v_max_u32 v16, v16, v3")
        a("v_max_u32 v17, v17, v4")
        a("v_max_u32 v18, v18, v5")
        a("v_max_u32 v19, v19, v6")
        a("v_min_u32 v20, v20, v7")
        a("v_max_u32 v21, v21, v7")
        a("v_max_u32 v22, v22, v8")
        a("v_max_u32 v23, v23, v9")
        a("v_max_u32 v24, v24, v30")
        a("v_add_u32 v1, 4096, v1")
    for r in range(10, 25):
        red(r, "v_min_u32_dpp" if r in (10, 14, 20) else "v_max_u32_dpp")
    a("s_memrealtime s[8:9]")
    a("s_waitcnt lgkmcnt(0)")
    a("v_mov_b32 v25, s8")
    a("s_mov_b32 exec_lo, 0")
    a("s_mov_b32 exec_hi, 0x80000000")
    a("v_mov_b32 v1, 0")
    for r in range(11, 26):
        a(f"v_sub_u32 v2, v{r}, v10")
        a(f"global_store_dword v1, v2, s[4:5] offset:{4*(r-11)}")
    a("R_end:")
    a("s_endpgm")

def kd(name, nv, ns):
    return f""".p2align 6
.amdhsa_kernel {name}
  .amdhsa_next_free_vgpr {nv}
  .amdhsa_next_free_sgpr {ns}
  .amdhsa_accum_offset {(nv+3)//4*4}
  .amdhsa_group_segment_fixed_size 0
  .amdhsa_kernarg_size 88
  .amdhsa_user_sgpr_count 2
  .amdhsa_user_sgpr_kernarg_segment_ptr 1
  .amdhsa_system_sgpr_workgroup_id_x 1
.end_amdhsa_kernel"""

def main():
    hdr = open("cdna_kernels/" + NAME + ".s.ref").read().split("\n")
    hdr = [l for l in hdr[:12] if l.startswith(";")]
    print("\n".join(hdr))
    print(f"; @launch kernel=part_kernel grid=({K1_GRID},1,1) block=({K1_T},1,1) lds={K1_LDS}")
    print(f"; @launch kernel=main_kernel grid=(256,1,1) block=({K2_T},1,1) lds={K2_LDS}")
    if STAMP == 2: print("; @launch kernel=rep_kernel grid=(1,1,1) block=(64,1,1) lds=0")
    print('.amdgcn_target "amdgcn-amd-amdhsa--gfx950"')
    print(".text")
    gen_k1()
    gen_k2()
    if STAMP == 2: gen_report()
    print("\n".join(("" if (l.endswith(":") or l.startswith(".")) else "    ") + l for l in out))
    print('.section .rodata,"a"')
    print(kd("part_kernel", 64, 96 if STAMP else 48))
    print(kd("main_kernel", 256, 102))
    if STAMP == 2: print(kd("rep_kernel", 32, 16))

main()
```

```python
import sys, os

NAME = "gather_scatter__tensor_product_equiv_mace__graph"
N = 10000; E = 320000
P = 250; EPC = E // P
NB = 256; NPB = 40
NR = 10
CAPN = 64
env = lambda k, d: type(d)(os.environ.get(k, d))
STAMP = env("STAMP", 0)
STMOD = env("STMOD", "sc1")
K2TOUCH = env("K2TOUCH", 1)
K1TOUCH = env("K1TOUCH", 0)
K1T2 = env("K1T2", 0)
CODEPF = env("CODEPF", 1)
BAL = env("BAL", 1)
OMOD = env("OMOD", "sc0 sc1")
XP = env("XP", 0)
ILV = env("ILV", 1)
PRIO = env("PRIO", 1)
ROT = env("ROT", 0)
NOCOMP = env("NOCOMP", 0)
NOMEM = env("NOMEM", 0)

REC_OFF = 0
TAG_OFF = REC_OFF + E * 16
OFFS_OFF = TAG_OFF + E * 4
WT_OFF = OFFS_OFF + 256 * 1024
WR_OFF = WT_OFF + 32768
CG_OFF = WR_OFF + 2048
WS_USED = WT_OFF + 40960 + 4096
DBG_OFF = 8 << 20

out = []
def a(s): out.append(s)
FINE = env("FINE", 0)
def stamp(i):
    if FINE and i in (0, 1, 2, 5, 6, 7, 8): return
    if STAMP: a(f"s_memrealtime s[{64+2*i}:{65+2*i}]")
def fstamp(i):
    if FINE: a(f"s_memrealtime s[{64+2*i}:{65+2*i}]")
def stamp_flush(kidx, wavesper, n, swave, vt=1):
    if not STAMP: return
    a("s_mov_b64 exec, -1")
    a("s_load_dwordx2 s[90:91], s[0:1], 80")
    a(f"s_mul_i32 s92, s2, {wavesper}")
    a(f"s_add_u32 s92, s92, s{swave}")
    a(f"s_lshl_b32 s92, s92, 6")
    a(f"s_add_u32 s92, s92, {DBG_OFF + kidx*(1<<20)}")
    a(f"v_mov_b32 v{vt}, s92")
    a("s_waitcnt lgkmcnt(0)")
    a("s_mov_b64 exec, 1")
    for i in range(n):
        a(f"v_mov_b32 v{vt+1}, s{64+2*i}")
        a(f"global_store_dword v{vt}, v{vt+1}, s[90:91] offset:{4*i}")

def srd(d, base, nbytes):
    a(f"s_mov_b32 s{d}, s{base}")
    a(f"s_and_b32 s{d+1}, s{base+1}, 0xffff")
    a(f"s_mov_b32 s{d+2}, {nbytes}")
    a(f"s_mov_b32 s{d+3}, 0x20000")

def wave_scan(v, op="v_add_u32_dpp"):
    for sh in (1, 2, 4, 8):
        a("s_nop 1")
        a(f"{op} v{v}, v{v}, v{v} row_shr:{sh} row_mask:0xf bank_mask:0xf")
    a("s_nop 1")
    a(f"{op} v{v}, v{v}, v{v} row_bcast:15 row_mask:0xa bank_mask:0xf")
    a("s_nop 1")
    a(f"{op} v{v}, v{v}, v{v} row_bcast:31 row_mask:0xc bank_mask:0xf")

K1_T = 320
K1_HIST = 0; K1_OFFS = 1024; K1_TAG = 2048; K1_REC = K1_TAG + EPC * 4
K1_LDS = K1_REC + EPC * 16
NWPREP = 8
K1_GRID = P + NWPREP

def gen_k1():
    k = "part_kernel"
    a(f".globl {k}\n.p2align 8\n.type {k},@function\n{k}:")
    a(f"s_cmp_ge_u32 s2, {K1_GRID}")
    a("s_cbranch_scc1 K1_end")
    a(f"s_cmp_ge_u32 s2, {P}")
    a("s_cbranch_scc1 K1_wprep")
    stamp(0)
    a("s_load_dwordx4 s[4:7], s[0:1], 8")
    a("s_load_dwordx4 s[8:11], s[0:1], 24")
    a("s_load_dwordx2 s[12:13], s[0:1], 80")
    if K1TOUCH or K1T2: a("s_load_dwordx2 s[44:45], s[0:1], 0")
    a("v_lshlrev_b32 v1, 4, v0")
    a("v_lshlrev_b32 v2, 5, v0")
    a("v_lshlrev_b32 v3, 2, v0")
    a("v_mov_b32 v4, 0")
    a(f"ds_write_b32 v3, v4 offset:{K1_HIST}")
    a(f"s_mul_i32 s14, s2, {EPC*4}")
    a(f"s_mul_i32 s15, s2, {EPC*8}")
    a("v_lshrrev_b32 v5, 6, v0")
    a("s_waitcnt lgkmcnt(0)")
    srd(20, 6, E * 4)
    a("buffer_load_dwordx4 v[8:11], v1, s[20:23], s14 offen")
    srd(16, 4, E * 4)
    a("buffer_load_dwordx4 v[12:15], v1, s[16:19], s14 offen")
    srd(24, 8, E * 8)
    srd(28, 10, E * 8)
    srd(32, 12, WS_USED)
    a("v_readfirstlane_b32 s47, v5")
    a("s_barrier")
    a("buffer_load_dwordx4 v[16:19], v2, s[24:27], s15 offen")
    a("buffer_load_dwordx4 v[20:23], v2, s[24:27], s15 offen offset:16")
    a("buffer_load_dwordx4 v[24:27], v2, s[28:31], s15 offen")
    a("buffer_load_dwordx4 v[28:31], v2, s[28:31], s15 offen offset:16")
    a("s_mov_b32 s40, 429497")
    a("s_mov_b32 s41, 625")
    a("s_mov_b32 s42, 6711")
    a("v_mov_b32 v5, 1")
    a("v_and_b32 v6, 63, v0")
    a("v_lshlrev_b32 v6, 4, v6")
    a("s_waitcnt vmcnt(5)")
    stamp(1)
    for e in range(4):
        a(f"v_mul_u32_u24 v{32+e}, s40, v{8+e}")
        a(f"v_lshrrev_b32 v{32+e}, 24, v{32+e}")
        a(f"v_lshlrev_b32 v{36+e}, 2, v{32+e}")
        a(f"ds_add_rtn_u32 v{40+e}, v{36+e}, v5 offset:{K1_HIST}")
    a("s_waitcnt vmcnt(4)")
    for e in range(4):
        a(f"v_mad_u32_u24 v{32+e}, v{32+e}, s41, 15")
        a(f"v_lshrrev_b32 v{32+e}, 4, v{32+e}")
        a(f"v_sub_u32 v{8+e}, v{8+e}, v{32+e}")
        a(f"v_mul_u32_u24 v{32+e}, s42, v{12+e}")
        a(f"v_lshrrev_b32 v{32+e}, 22, v{32+e}")
        a(f"v_lshl_add_u32 v{8+e}, v{8+e}, 4, v{32+e}")
        a(f"v_lshl_add_u32 v{12+e}, v{12+e}, 10, v{8+e}")
    a("s_waitcnt lgkmcnt(0)")
    a("s_barrier")
    stamp(2)
    if K1TOUCH:
        srd(36, 44, N * 1024)
        a(f"s_mul_i32 s46, s2, {K1_T*16}")
        for r in range(K1TOUCH):
            a("buffer_load_dwordx4 v[60:63], v1, s[36:39], s46 offen")
            a(f"s_add_u32 s46, s46, {P*K1_T*16}")
    a(f"ds_read_b128 v[44:47], v6 offset:{K1_HIST}")
    a("s_waitcnt lgkmcnt(0)")
    a("v_add_u32 v48, v44, v45")
    a("v_add3_u32 v48, v48, v46, v47")
    a("v_mov_b32 v49, v48")
    wave_scan(49)
    a("v_sub_u32 v52, v49, v48")
    a("v_add_u32 v53, v52, v44")
    a("v_add_u32 v54, v53, v45")
    a("v_add_u32 v55, v54, v46")
    a(f"ds_write_b128 v6, v[52:55] offset:{K1_OFFS}")
    for e in range(4):
        a(f"ds_read_b32 v{32+e}, v{36+e} offset:{K1_OFFS}")
    a("s_cmp_lg_u32 s47, 0")
    a("s_cbranch_scc1 K1_noffs")
    a("s_lshl_b32 s43, s2, 10")
    a(f"s_add_u32 s43, s43, {OFFS_OFF}")
    for e in range(4):
        a(f"v_lshl_or_b32 v{56+e}, v{44+e}, 16, v{52+e}")
    a(f"buffer_store_dwordx4 v[56:59], v6, s[32:35], s43 offen {STMOD}")
    a(f"s_waitcnt vmcnt({K1TOUCH+1}) lgkmcnt(0)")
    a("s_branch K1_go")
    a("K1_noffs:")
    a(f"s_waitcnt vmcnt({K1TOUCH}) lgkmcnt(0)")
    a("K1_go:")
    stamp(3)
    for e in range(4):
        a(f"v_add_u32 v{32+e}, v{32+e}, v{40+e}")
        a(f"v_lshlrev_b32 v{36+e}, 4, v{32+e}")
        a(f"v_add_u32 v{36+e}, {K1_REC}, v{36+e}")
        a(f"v_lshlrev_b32 v{32+e}, 2, v{32+e}")
        a(f"ds_write2_b64 v{36+e}, v[{16+2*e}:{17+2*e}], v[{24+2*e}:{25+2*e}] offset0:0 offset1:1")
        a(f"ds_write_b32 v{32+e}, v{12+e} offset:{K1_TAG}")
    a(f"s_mul_i32 s43, s2, {EPC*16}")
    a(f"s_add_u32 s46, s14, {TAG_OFF}")
    a("s_waitcnt lgkmcnt(0)")
    a("s_barrier")
    stamp(4)
    a(f"ds_read_b128 v[24:27], v1 offset:{K1_TAG}")
    for r in range(4):
        a(f"ds_read_b128 v[{8+4*r}:{11+4*r}], v1 offset:{K1_REC + r*K1_T*16}")
    a("s_waitcnt lgkmcnt(4)")
    a(f"buffer_store_dwordx4 v[24:27], v1, s[32:35], s46 offen {STMOD}")
    for r in range(4):
        a(f"s_waitcnt lgkmcnt({3-r})")
        a(f"buffer_store_dwordx4 v[{8+4*r}:{11+4*r}], v1, s[32:35], s43 offen {STMOD}")
        a(f"s_add_u32 s43, s43, {K1_T*16}")
    if K1T2:
        srd(36, 44, N * 1024)
        a(f"s_mul_i32 s46, s2, {K1_T*16}")
        a(f"s_add_u32 s46, s46, {K1TOUCH*P*K1_T*16}")
        for r in range(K1T2):
            a("buffer_load_dwordx4 v[60:63], v1, s[36:39], s46 offen")
            a(f"s_add_u32 s46, s46, {P*K1_T*16}")
    stamp(5)
    if STAMP: a("s_waitcnt vmcnt(0)")
    stamp(6)
    stamp_flush(0, 5, 7, 47, 40)
    a("s_endpgm")
    a("K1_wprep:")
    a("s_load_dwordx4 s[4:7], s[0:1], 40")
    a("s_load_dwordx2 s[8:9], s[0:1], 56")
    a("s_load_dwordx2 s[12:13], s[0:1], 80")
    a(f"s_sub_u32 s14, s2, {P}")
    a("s_waitcnt lgkmcnt(0)")
    srd(16, 4, 128)
    srd(20, 6, 1024)
    srd(24, 8, 32768)
    srd(32, 12, WS_USED)
    a("v_cmp_gt_u32 vcc, 256, v0")
    a("s_and_saveexec_b64 s[36:37], vcc")
    a("s_cbranch_execz K1_wsmall")
    a("v_bfe_u32 v2, v0, 6, 2")
    a("v_bfe_u32 v3, v0, 4, 2")
    a("v_bfe_u32 v4, v0, 2, 2")
    a("v_and_b32 v5, 3, v0")
    a("v_lshlrev_b32 v6, 13, v2")
    a("v_lshl_add_u32 v6, v3, 11, v6")
    a("v_lshl_add_u32 v6, v4, 4, v6")
    a("v_lshl_add_u32 v6, v5, 1, v6")
    a("s_lshr_b32 s15, s14, 1")
    a("s_lshl_b32 s15, s15, 6")
    a("s_and_b32 s38, s14, 1")
    a("s_lshl_b32 s38, s38, 3")
    a("s_add_u32 s15, s15, s38")
    for q in range(8):
        a(f"buffer_load_ushort v{16+q}, v6, s[24:27], s15 offen offset:{q*256}")
    a("v_lshlrev_b32 v7, 4, v0")
    a("s_lshl_b32 s15, s14, 12")
    a(f"s_add_u32 s15, s15, {WT_OFF}")
    a("s_waitcnt vmcnt(0)")
    for q in range(4):
        a(f"v_lshl_or_b32 v{8+q}, v{17+2*q}, 16, v{16+2*q}")
    a("buffer_store_dwordx4 v[8:11], v7, s[32:35], s15 offen")
    a("s_endpgm")
    a("K1_wsmall:")
    a("s_mov_b64 exec, s[36:37]")
    a("v_subrev_u32 v1, 256, v0")
    a("s_cmp_lt_u32 s14, 2")
    a("s_cbranch_scc0 K1_wcg")
    a("s_lshl_b32 s15, s14, 6")
    a("v_add_u32 v1, s15, v1")
    a("v_lshlrev_b32 v2, 1, v1")
    for kk in range(4):
        a(f"buffer_load_ushort v{8+kk}, v2, s[20:23], 0 offen offset:{kk*256}")
    a("v_and_b32 v3, 7, v1")
    a("v_lshlrev_b32 v3, 4, v3")
    a("v_lshrrev_b32 v4, 3, v1")
    a("v_add_lshl_u32 v3, v3, v4, 4")
    a(f"s_mov_b32 s15, {WR_OFF}")
    a("s_waitcnt vmcnt(0)")
    for kk in range(4):
        a(f"v_lshlrev_b32 v{8+kk}, 16, v{8+kk}")
    a("buffer_store_dwordx4 v[8:11], v3, s[32:35], s15 offen")
    a("s_endpgm")
    a("K1_wcg:")
    a("s_cmp_eq_u32 s14, 2")
    a("s_cbranch_scc0 K1_wcode")
    a("v_lshrrev_b32 v2, 2, v1")
    a("v_lshlrev_b32 v2, 1, v2")
    for u in range(4):
        a(f"buffer_load_ushort v{16+u}, v2, s[16:19], 0 offen offset:{32*u}")
    a("v_and_b32 v3, 1, v1")
    a("v_lshlrev_b32 v3, 4, v3")
    a("v_and_b32 v4, 2, v1")
    a("v_cmp_eq_u32 vcc, 0, v4")
    a("v_lshlrev_b32 v6, 5, v1")
    a(f"s_mov_b32 s15, {CG_OFF}")
    a("s_waitcnt vmcnt(0)")
    for u in range(4):
        a(f"v_lshlrev_b32 v{16+u}, v3, v{16+u}")
        a(f"v_cndmask_b32 v{8+2*u}, 0, v{16+u}, vcc")
        a(f"v_cndmask_b32 v{9+2*u}, v{16+u}, 0, vcc")
    a("buffer_store_dwordx4 v[8:11], v6, s[32:35], s15 offen")
    a("buffer_store_dwordx4 v[12:15], v6, s[32:35], s15 offen offset:16")
    a("s_endpgm")
    a("K1_wcode:")
    if CODEPF:
        a("s_cmp_eq_u32 s14, 3")
        a("s_cbranch_scc0 K1_end")
        a("s_getpc_b64 s[40:41]")
        a("K1_pc:")
        a("s_add_u32 s40, s40, main_kernel-K1_pc")
        a("s_addc_u32 s41, s41, 0")
        a("v_lshlrev_b32 v2, 6, v1")
        for r in range(4):
            a("v_cmp_gt_u32 vcc, K2_code_end-main_kernel, v2")
            a("s_and_b64 exec, exec, vcc")
            a("s_cbranch_execz K1_wcode_done")
            a(f"global_load_dword v{8+r}, v2, s[40:41]")
            a("v_add_u32 v2, 4096, v2")
        a("K1_wcode_done:")
        a("s_waitcnt vmcnt(0)")
    a("K1_end:")
    a("s_endpgm")

K2_T = 512
SLOTS = NPB * CAPN + 8
DUMMY = NPB * CAPN
L_REC = 0
L_SOFF = L_REC + SLOTS * 16
L_HIST = L_SOFF + SLOTS * 4
L_FLAG = L_HIST + NPB * 16
L_PRE = L_FLAG + 16
L_NODE = L_PRE + NPB * 16 + 512
L_TAB = L_NODE + 512
L_LST = L_TAB + 1024
L_WT = (L_LST + 4096 + 255) // 256 * 256
L_WR = L_WT + 32768
L_AGG = L_WT + 32768 + 2048
AGG_RS = 272
K2_LDS = L_AGG + (NPB * 4 + 12) * AGG_RS
OOB = 0x7f000000
BARK = env("BARK", 4)
NXB = 4

ACC = 96; XB = 32; CG = 24; OPS = 20; AOP = 12; RECV = 8
V_GP = 7; V_SOFF = 6; V_T = 5; V_COL16 = 4; V_G = 3; V_ENT = 2; V_LADDR = 1; V_EASEL = 0
S_X = 8; S_WS = 12; S_OUT = 16
S_WAVE = 20; S_SELLO = 21; S_SELHI = 22; S_IDX = 23
S_S0 = 24; S_S1 = 26
S_EA = 28; S_EB = 29; S_IDX2 = 30; S_LEFT = 31; S_RC = 32; S_MORE = 33
S_T = 34; S_PASS = 35; S_MODE = 36; S_WIN = 37; S_MAXC = 38; S_B = 39
S_MASK = 40
S_SAVE = 60

def lane_id(v):
    a(f"v_mbcnt_lo_u32_b32 v{v}, -1, 0")
    a(f"v_mbcnt_hi_u32_b32 v{v}, -1, v{v}")

tail_code = []
uid = [0]
def ld_x(b):
    r = []
    for u in range(4):
        x = XB + 16 * b + 4 * u
        r.append(f"buffer_load_dwordx4 v[{x}:{x+3}], v{V_SOFF}, s[{S_X}:{S_X+3}], 0 offen offset:{u*256}")
    return r
def addr_fix():
    a(f"v_add_u32 v{V_SOFF}, v{V_SOFF}, v{V_COL16}")
    if NOMEM == 1: a(f"v_mov_b32 v{V_SOFF}, {OOB}")
    if NOMEM == 3: a(f"v_and_b32 v{V_SOFF}, 0xfffff, v{V_SOFF}")

def gen_k2():
    k = "main_kernel"
    a(f".globl {k}\n.p2align 8\n.type {k},@function\n{k}:")
    a("s_cmp_ge_u32 s2, 256")
    a("s_cbranch_scc1 K2_end")
    stamp(0)
    a("s_load_dwordx2 s[4:5], s[0:1], 0")
    a("s_load_dwordx2 s[6:7], s[0:1], 80")
    a("s_load_dwordx2 s[62:63], s[0:1], 64")
    a("s_and_b32 s3, s2, 7")
    a("s_lshl_b32 s3, s3, 5")
    a(f"s_lshr_b32 s{S_B}, s2, 3")
    a(f"s_add_u32 s{S_B}, s{S_B}, s3")
    TID = 23; LANE = 22
    a(f"v_mov_b32 v{TID}, v0")
    a(f"v_and_b32 v{LANE}, 63, v0")
    a("v_lshrrev_b32 v1, 6, v0")
    a("v_lshlrev_b32 v2, 2, v0")
    a("v_mov_b32 v3, 0")
    a(f"v_readfirstlane_b32 s{S_WAVE}, v1")
    a(f"v_cmp_gt_u32 vcc, {NPB*4+4}, v0")
    a(f"s_and_saveexec_b64 s[{S_SAVE}:{S_SAVE+1}], vcc")
    a(f"ds_write_b32 v2, v3 offset:{L_HIST}")
    a(f"s_mov_b64 exec, s[{S_SAVE}:{S_SAVE+1}]")
    a("v_lshrrev_b32 v8, 1, v0")
    a("v_and_b32 v9, 1, v0")
    a("v_lshlrev_b32 v10, 10, v8")
    a(f"s_lshl_b32 s3, s{S_B}, 2")
    a(f"s_add_u32 s3, s3, {OFFS_OFF}")
    a("s_waitcnt lgkmcnt(0)")
    srd(S_WS, 6, WS_USED)
    a(f"buffer_load_dword v12, v10, s[{S_WS}:{S_WS+3}], s3 offen")
    a(f"s_lshl_b32 s3, s{S_WAVE}, 8")
    a(f"s_add_u32 s3, s3, {L_WR}")
    a("s_mov_b32 m0, s3")
    a(f"s_mov_b32 s3, {WR_OFF}")
    a(f"buffer_load_dword v2, s[{S_WS}:{S_WS+3}], s3 offen lds")
    srd(S_X, 4, N * 1024)
    srd(S_OUT, 62, N * 1024)
    if CODEPF:
        a("s_getpc_b64 s[4:5]")
        a("K2_pc:")
        a(f"v_lshlrev_b32 v14, 7, v{TID}")
        a("v_cmp_gt_u32 vcc, K2_code_end-K2_pc, v14")
        a(f"s_and_saveexec_b64 s[{S_SAVE}:{S_SAVE+1}], vcc")
        a("s_cbranch_execz K2_nocpf")
        a("global_load_dword v15, v14, s[4:5]")
        a("K2_nocpf:")
        a(f"s_mov_b64 exec, s[{S_SAVE}:{S_SAVE+1}]")
    a("s_barrier")
    for r in range(4):
        a(f"v_mov_b32 v{16+r}, 0")
    a("s_nop 1")
    for r in range(10):
        a(f"v_mfma_f32_32x32x16_bf16 v[{ACC+16*r}:{ACC+16*r+15}], v[16:19], v[16:19], 0")
    a(f"v_and_b32 v{V_COL16}, 15, v{TID}")
    a(f"v_lshlrev_b32 v{V_COL16}, 4, v{V_COL16}")
    a(f"v_lshrrev_b32 v{V_G}, 4, v{LANE}")
    a(f"v_mul_u32_u24 v{V_EASEL}, 0x0202, v{V_G}")
    a(f"v_add_u32 v{V_EASEL}, 0x0100, v{V_EASEL}")
    a(f"v_lshlrev_b32 v{V_EASEL}, 16, v{V_EASEL}")
    a(f"v_or_b32 v{V_EASEL}, 0x0c0c, v{V_EASEL}")
    a(f"s_mov_b32 s{S_SELLO}, 0x05040100")
    a(f"s_mov_b32 s{S_SELHI}, 0x07060302")
    a(f"s_mov_b32 s{S_MODE}, 0")
    a(f"v_mul_u32_u24 v10, {EPC}, v8")
    a("v_add_u32 v10, v10, v9")
    a(f"v_lshlrev_b32 v16, 5, v{LANE}")
    a(f"v_cmp_gt_u32 vcc, {P}, v8")
    a("s_waitcnt vmcnt(0)")
    stamp(1)
    a("v_lshrrev_b32 v11, 16, v12")
    a("v_and_b32 v12, 0xffff, v12")
    a("v_cndmask_b32 v11, 0, v11, vcc")
    a("v_add_u32 v10, v10, v12")
    a("v_sub_u32 v13, v11, v9")
    a("v_lshlrev_b32 v14, 4, v10")
    a("v_lshlrev_b32 v10, 2, v10")
    a(f"s_mov_b32 s3, {TAG_OFF}")
    RB = XB; TG = XB + 40; RK = XB + 50
    M = lambda r: f"s[{S_MASK+2*r}:{S_MASK+2*r+1}]"
    for r in range(NR):
        a(f"v_cmp_lt_i32 {M(r)}, {2*r}, v13")
    for r in range(NR):
        a(f"s_mov_b64 exec, {M(r)}")
        a("s_cbranch_execz K2_lt_done")
        a(f"buffer_load_dword v{TG+r}, v10, s[{S_WS}:{S_WS+3}], s3 offen offset:{8*r}")
    a("K2_lt_done:")
    a("s_mov_b64 exec, -1")
    a(f"v_cmp_lt_u32 s[{S_SAVE}:{S_SAVE+1}], {2*NR}, v11")
    a("v_mov_b32 v17, 1")
    a(f"s_mov_b32 s3, {CG_OFF}")
    for r in range(NR):
        a(f"s_mov_b64 exec, {M(r)}")
        a(f"s_cbranch_execz K2_lp{r}")
        a(f"buffer_load_dwordx4 v[{RB+4*r}:{RB+4*r+3}], v14, s[{S_WS}:{S_WS+3}], 0 offen offset:{32*r}")
    a(f"s_waitcnt vmcnt({NR})")
    a("K2_ld_done:")
    for r in range(NR):
        tail_code.extend([f"K2_lp{r}:", f"s_waitcnt vmcnt({r})", "s_branch K2_ld_done"])
    stamp(2)
    for r in range(NR):
        a(f"s_mov_b64 exec, {M(r)}")
        a("s_cbranch_execz K2_h_done")
        a(f"v_and_b32 v9, 0x3fc, v{TG+r}")
        a(f"v_lshlrev_b32 v8, 3, v{TG+r}")
        a(f"v_lshlrev_b32 v8, v8, v17")
        a(f"ds_add_rtn_u32 v{RK+r}, v9, v8 offset:{L_HIST}")
    a("K2_h_done:")
    a("s_mov_b64 exec, -1")
    a(f"buffer_load_dwordx4 v[{CG}:{CG+3}], v16, s[{S_WS}:{S_WS+3}], s3 offen")
    a(f"buffer_load_dwordx4 v[{CG+4}:{CG+7}], v16, s[{S_WS}:{S_WS+3}], s3 offen offset:16")
    a("s_waitcnt lgkmcnt(0)")
    for r in range(NR):
        a(f"s_mov_b64 exec, {M(r)}")
        a("s_cbranch_execz K2_r_done")
        a(f"v_lshlrev_b32 v8, 3, v{TG+r}")
        a(f"v_bfe_u32 v{RK+r}, v{RK+r}, v8, 8")
        a(f"v_and_b32 v8, 0x3f0, v{TG+r}")
        a(f"v_cmp_lt_u32 vcc, {CAPN-1}, v{RK+r}")
        a(f"v_lshl_add_u32 v{RK+r}, v8, 2, v{RK+r}")
        a(f"s_or_b64 s[{S_SAVE}:{S_SAVE+1}], s[{S_SAVE}:{S_SAVE+1}], vcc")
    a("K2_r_done:")
    a("s_mov_b64 exec, -1")
    a(f"v_mov_b32 v9, {L_FLAG}")
    a(f"s_cmp_eq_u64 s[{S_SAVE}:{S_SAVE+1}], 0")
    a("s_cbranch_scc1 K2_noflag")
    a("ds_write_b32 v9, v17")
    a("K2_noflag:")
    a(f"v_lshlrev_b32 v8, 4, v{LANE}")
    a("s_waitcnt lgkmcnt(0)")
    a("s_barrier")
    stamp(3)
    a(f"ds_read_b128 v[12:15], v8 offset:{L_HIST}")
    a("ds_read_b32 v9, v9")
    a(f"v_lshlrev_b32 v{V_T}, 4, v{TID}")
    bg = []
    for r in range(4):
        bg.append([f"s_lshl_b32 s5, s{S_WAVE}, 10", f"s_add_u32 s5, s5, {L_WT + r*K2_T*16}", "s_mov_b32 m0, s5",
                   f"s_mov_b32 s5, {WT_OFF + r*K2_T*16}",
                   f"buffer_load_dwordx4 v{V_T}, s[{S_WS}:{S_WS+3}], s5 offen lds"])
    tch = []
    if K2TOUCH:
        per = K2_T * 16
        k1bytes = (K1TOUCH + K1T2) * P * K1_T * 16
        for r in range((N * 1024 - k1bytes + NB * per - 1) // (NB * per)):
            tch.append([f"s_mul_i32 s5, s{S_WAVE}, {20*AGG_RS}", f"s_add_u32 s5, s5, {L_AGG}", "s_mov_b32 m0, s5",
                        f"s_lshl_b32 s5, s{S_B}, 13", f"s_add_u32 s5, s5, {k1bytes + r*NB*per}",
                        f"buffer_load_dwordx4 v{V_T}, s[{S_X}:{S_X+3}], s5 offen lds ; touch"])
    bg = tch + bg
    nbg0 = len(bg)
    nbg_before_scatter = lambda: nbg0 - len(bg)
    def bgop(n=1):
        for _ in range(n):
            if bg:
                for x in bg.pop(0): a(x)
    bgop(2)
    a("s_waitcnt lgkmcnt(0)")
    a("s_mov_b32 s3, 0x01010101")
    a("v_mov_b32 v10, 0")
    PW = 18
    for q in range(4):
        H = 12 + q
        a(f"v_lshlrev_b32 v{PW+q}, 8, v{H}")
        a(f"v_lshl_add_u32 v{PW+q}, v{H}, 16, v{PW+q}")
        a(f"v_lshl_add_u32 v{PW+q}, v{H}, 24, v{PW+q}")
        if q > 0:
            a(f"v_mul_lo_u32 v11, v10, s3")
            a(f"v_add_u32 v{PW+q}, v{PW+q}, v11")
        a(f"v_sad_u8 v10, v{H}, 0, v10")
    a(f"v_cmp_gt_u32 vcc, {NPB}, v{LANE}")
    a(f"s_and_saveexec_b64 s[{S_SAVE}:{S_SAVE+1}], vcc")
    a(f"ds_write_b128 v8, v[{PW}:{PW+3}] offset:{L_PRE}")
    a(f"v_cmp_lt_u32 vcc, {CAPN}, v10")
    a(f"s_mov_b64 exec, s[{S_SAVE}:{S_SAVE+1}]")
    a("v_readfirstlane_b32 s3, v9")
    a("s_cmp_lg_u64 vcc, 0")
    a("s_cbranch_scc1 K2_slow")
    a("s_cmp_lg_u32 s3, 0")
    a("s_cbranch_scc1 K2_slow")
    fstamp(0)
    bg_slow = [list(x) for x in bg]
    PR = [12, 13, 14, 15, 16, 17, 18, 19, 20, 21]
    for r in range(NR):
        a(f"s_mov_b64 exec, {M(r)}")
        a("s_cbranch_execz K2_p_done")
        a(f"v_and_b32 v8, 0x3ff, v{TG+r}")
        a(f"ds_read_u8 v{PR[r]}, v8 offset:{L_PRE}")
    a("K2_p_done:")
    a("s_mov_b64 exec, -1")
    bgop(1)
    a(f"v_and_b32 v7, 7, v{LANE}")
    a("v_add_u32 v8, 3, v10")
    a("v_lshrrev_b32 v8, 2, v8")
    a("v_subrev_u32 v8, 5, v8")
    a("v_med3_i32 v8, v8, 0, 7")
    a(f"v_cmp_gt_u32 vcc, {NPB}, v{LANE}")
    a("v_mov_b32 v9, 63")
    a("s_nop 0")
    a("v_cndmask_b32 v8, 64, v8, vcc")
    KM = [24, 26, 28, 30, 32, 82, 84, 86]
    for q in range(8):
        a(f"v_cmp_eq_u32 s[{KM[q]}:{KM[q]+1}], {q}, v8")
    a("s_mov_b32 s3, 0")
    for q in range(7, -1, -1):
        a(f"s_mov_b64 exec, s[{KM[q]}:{KM[q]+1}]")
        a(f"v_mbcnt_lo_u32_b32 v9, s{KM[q]}, 0")
        a(f"v_mbcnt_hi_u32_b32 v9, s{KM[q]+1}, v9")
        a("v_add_u32 v9, s3, v9")
        a(f"s_bcnt1_i32_b64 s4, s[{KM[q]}:{KM[q]+1}]")
        a("s_add_u32 s3, s3, s4")
    a("s_mov_b64 exec, -1")
    a("v_lshlrev_b32 v9, 2, v9")
    a(f"v_lshl_add_u32 v8, v10, 8, v{LANE}")
    a("ds_permute_b32 v8, v9, v8")
    fstamp(1)
    a("v_and_b32 v9, 1, v7")
    a("v_mul_u32_u24 v9, 7, v9")
    a(f"v_xor_b32 v9, s{S_WAVE}, v9")
    a("v_lshl_add_u32 v9, v7, 3, v9")
    a("v_lshlrev_b32 v9, 2, v9")
    a(f"v_and_b32 v6, 1, v{V_G}")
    a("v_mul_u32_u24 v6, 7, v6")
    a(f"v_xor_b32 v6, s{S_WAVE}, v6")
    a(f"v_lshl_add_u32 v6, v{V_G}, 3, v6")
    a("v_lshlrev_b32 v6, 2, v6")
    a(f"s_lshl_b32 s3, s{S_WAVE}, 2")
    a("s_add_u32 s3, s3, 128")
    a("v_mov_b32 v1, s3")
    bgop(1)
    a("s_waitcnt lgkmcnt(0)")
    a("ds_bpermute_b32 v11, v9, v8")
    a("ds_bpermute_b32 v6, v6, v8")
    a("ds_bpermute_b32 v1, v1, v8")
    fstamp(2)
    a(f"s_waitcnt vmcnt({nbg_before_scatter()})")
    for r in range(NR):
        a(f"s_mov_b64 exec, {M(r)}")
        a("s_cbranch_execz K2_s_done")
        a(f"v_add_lshl_u32 v8, v{RK+r}, v{PR[r]}, 2")
        a(f"v_lshlrev_b32 v9, 2, v8")
        a(f"v_and_b32 v{TG+r}, 0xfffc00, v{TG+r}")
        a(f"ds_write_b128 v9, v[{RB+4*r}:{RB+4*r+3}] offset:{L_REC}")
        a(f"ds_write_b32 v8, v{TG+r} offset:{L_SOFF}")
    a("K2_s_done:")
    a("s_mov_b64 exec, -1")
    bgop(1)
    a("v_mov_b32 v12, 0")
    a("v_mov_b32 v13, 0")
    a(f"s_mov_b32 s{S_PASS}, 0")
    a("K2_sched:")
    fstamp(5)
    a(f"v_and_b32 v14, 15, v{LANE}")
    a(f"s_lshl_b32 s3, s{S_WAVE}, 6")
    a("v_lshl_add_u32 v15, v7, 2, s3")
    a("s_waitcnt lgkmcnt(0)")
    a(f"ds_write_b32 v15, v11 offset:{L_NODE}")
    BS = [(6, 12, 16, 17, 18), (1, 13, 19, 20, 21)]
    for (vi, vd, vq, vt, ve) in BS:
        a(f"v_and_b32 v{vt}, 0xff, v{vi}")
        a(f"v_lshl_add_u32 v{vt}, v{vt}, 4, v14")
        a(f"ds_read_u8 v{vt}, v{vt} offset:{L_PRE+1}")
        a(f"v_lshrrev_b32 v{vq}, 8, v{vi}")
        a(f"v_add_u32 v{vq}, 3, v{vq}")
        a(f"v_lshrrev_b32 v{vq}, 2, v{vq}")
    a(f"s_cmp_eq_u32 s{S_PASS}, 0")
    a("s_cselect_b32 s4, 15, 0")
    a("v_cmp_le_u32 vcc, s4, v14")
    a("s_waitcnt lgkmcnt(0)")
    for (vi, vd, vq, vt, ve) in BS:
        a(f"v_add_u32 v{vt}, 1, v{vt}")
        a(f"v_lshrrev_b32 v{vt}, 2, v{vt}")
        a(f"v_cndmask_b32 v{vt}, v{vt}, v{vq}, vcc")
        a(f"v_sub_u32 v{vt}, v{vt}, v14")
        a(f"v_add_u32 v{ve}, 1, v{vd}")
        a(f"v_min_i32 v{vt}, v{vt}, v{ve}")
    for sh in (1, 2, 4, 8):
        a("s_nop 0")
        for (vi, vd, vq, vt, ve) in BS:
            a(f"v_min_i32_dpp v{vt}, v{vt}, v{vt} row_shr:{sh} row_mask:0xf bank_mask:0xf")
    for (vi, vd, vq, vt, ve) in BS:
        a(f"v_subrev_u32 v{ve}, 15, v{vq}")
        a(f"v_max_i32 v{vt}, v{vt}, v{ve}")
    for (vi, vd, vq, vt, ve) in BS:
        a(f"v_add_u32 v{ve}, v{vt}, v14")
    a("s_nop 0")
    for (vi, vd, vq, vt, ve) in BS:
        a(f"v_mov_b32_dpp v{vd}, v{ve} row_shr:1 row_mask:0xf bank_mask:0xf")
    a(f"s_lshl_b32 s4, s{S_WAVE}, 7")
    a("v_lshl_add_u32 v15, v14, 3, s4")
    for k_, (vi, vd, vq, vt, ve) in enumerate(BS):
        a(f"v_sub_u32 v{vt}, v{ve}, v{vd}")
        a(f"v_lshl_or_b32 v{vt}, v{vt}, 7, v{vd}")
        if k_ == 0:
            a(f"v_add_u32 v{vi}, v15, v{V_G}")
            a(f"ds_write_b8 v{vi}, v{vt} offset:{L_TAB}")
        else:
            a(f"ds_write_b8 v15, v{vt} offset:{L_TAB+4}")
    a(f"v_add_u32 v15, s4, v{LANE}")
    a(f"ds_read_u8 v12, v15 offset:{L_TAB}")
    a(f"ds_read_u8 v13, v15 offset:{L_TAB+64}")
    fstamp(6)
    a("v_and_b32 v16, 0xff, v11")
    a("v_lshlrev_b32 v16, 6, v16")
    a("v_lshrrev_b32 v10, 8, v11")
    a("v_cmp_gt_u32 vcc, 5, v7")
    a("v_mov_b32 v20, 0")
    a("v_mov_b32 v21, 0")
    a("v_cndmask_b32 v10, 0, v10, vcc")
    a("s_waitcnt lgkmcnt(0)")
    a("v_cndmask_b32 v12, 0, v12, vcc")
    a("v_cndmask_b32 v13, 0, v13, vcc")
    a(f"v_cmp_lt_u32 s[{S_S0}:{S_S0+1}], 64, v12")
    a(f"v_cmp_lt_u32 s[{S_S1}:{S_S1+1}], 64, v13")
    a("v_and_b32 v12, 0x7f, v12")
    a("v_and_b32 v13, 0x7f, v13")
    a("v_lshl_add_u32 v12, v12, 2, v16")
    a("v_lshl_add_u32 v13, v13, 2, v16")
    a(f"s_bcnt1_i32_b64 s4, s[{S_S0}:{S_S0+1}]")
    a(f"s_bcnt1_i32_b64 s{S_LEFT}, s[{S_S1}:{S_S1+1}]")
    a(f"s_add_u32 s{S_LEFT}, s{S_LEFT}, s4")
    a(f"s_lshl_b32 s5, s{S_WAVE}, 7")
    a("s_add_u32 s4, s4, s5")
    a(f"v_mbcnt_lo_u32_b32 v17, s{S_S0}, 0")
    a(f"v_mbcnt_hi_u32_b32 v17, s{S_S0+1}, v17")
    a(f"v_mbcnt_lo_u32_b32 v18, s{S_S1}, 0")
    a(f"v_mbcnt_hi_u32_b32 v18, s{S_S1+1}, v18")
    a("v_add_lshl_u32 v17, s5, v17, 2")
    a("v_add_lshl_u32 v18, s4, v18, 2")
    a(f"v_add_lshl_u32 v19, s5, v{LANE}, 2")
    a(f"v_mov_b32 v15, {DUMMY}")
    a(f"ds_write_b32 v19, v15 offset:{L_LST}")
    a(f"ds_write_b32 v19, v15 offset:{L_LST+256}")
    a(f"s_mov_b64 exec, s[{S_S0}:{S_S0+1}]")
    a(f"ds_write_b32 v17, v12 offset:{L_LST}")
    a(f"s_mov_b64 exec, s[{S_S1}:{S_S1+1}]")
    a(f"ds_write_b32 v18, v13 offset:{L_LST}")
    a("s_mov_b64 exec, -1")
    a(f"v_and_b32 v{V_LADDR}, 3, v{LANE}")
    a(f"v_add_lshl_u32 v{V_LADDR}, s5, v{V_LADDR}, 2")
    a(f"ds_read_b32 v12, v{V_LADDR} offset:{L_LST}")
    a(f"ds_read_b32 v{V_ENT}, v{V_LADDR} offset:{L_LST+16}")
    fstamp(7)
    a(f"v_lshrrev_b32 v14, 3, v{LANE}")
    a("v_add_u32 v15, 3, v10")
    a("v_and_b32 v15, 0xfc, v15")
    a("v_add_u32 v14, v10, v14")
    a("v_cmp_lt_u32 vcc, v14, v15")
    a("v_add_u32 v14, v16, v14")
    a(f"v_add_u32 v15, {DUMMY}, v7")
    a(f"v_subrev_u32 v19, 24, v{LANE}")
    a(f"v_cmp_gt_u32 s[{S_SAVE}:{S_SAVE+1}], 4, v19")
    a(f"v_bfe_u32 v{V_GP}, v{LANE}, 2, 2")
    a("v_mov_b32 v22, 0")
    a("v_mov_b32 v23, 0")
    a(f"v_cndmask_b32 v14, v14, v15, s[{S_SAVE}:{S_SAVE+1}]")
    a(f"s_or_b64 exec, vcc, s[{S_SAVE}:{S_SAVE+1}]")
    a("v_lshlrev_b32 v15, 4, v14")
    a("v_lshlrev_b32 v14, 2, v14")
    a(f"v_mov_b32 v19, {OOB}")
    a(f"ds_write_b128 v15, v[20:23] offset:{L_REC}")
    a(f"ds_write_b32 v14, v19 offset:{L_SOFF}")
    a("s_mov_b64 exec, -1")
    a("s_waitcnt lgkmcnt(0)")
    fstamp(8)
    a("s_barrier")
    stamp(4)
    a(f"s_cmp_lg_u32 s{S_PASS}, 0")
    a("s_cbranch_scc1 K2_nobg")
    bgop(100)
    a("K2_nobg:")
    def rd_soff(se):
        return [f"v_add_lshl_u32 v{V_T}, s{se}, v{V_G}, 2", f"ds_read_b32 v{V_SOFF}, v{V_T} offset:{L_SOFF}"]
    def rd_rec(ve):
        return [f"v_add_lshl_u32 v{V_T}, v{ve}, v{V_GP}, 4", f"ds_read_b128 v[{RECV}:{RECV+3}], v{V_T} offset:{L_REC}"]
    for q in range(NXB):
        a(f"v_readlane_b32 s{4+q}, v12, {q}")
    a(f"s_mov_b32 s{S_RC}, 0")
    a(f"s_mov_b32 s{S_IDX2}, s{S_LEFT}")
    for x in rd_rec(12): a(x)
    for x in rd_soff(4): a(x)
    for q in range(NXB - 1):
        a(f"s_cmp_gt_u32 s{S_LEFT}, {q}")
        a("s_cbranch_scc0 K2_t0")
        a("s_waitcnt lgkmcnt(0)")
        addr_fix()
        for x in ld_x(q): a(x)
        for x in rd_soff(5 + q): a(x)
    a("s_branch K2_t0")
    NS = 5 * NXB
    for s_ in range(NS):
        i = s_ % 5; b = s_ % NXB
        if i == 0:
            a(f"K2_re{s_}:")
            a(f"s_add_u32 s{S_RC}, s{S_RC}, 1")
            if PRIO == 1:
                a(f"s_lshr_b32 s{S_T}, s{S_WAVE}, 2")
                a(f"s_add_u32 s{S_T}, s{S_T}, s{S_RC}")
                a("s_setprio 0")
                a(f"s_bitcmp1_b32 s{S_T}, 0")
                a(f"s_cbranch_scc0 K2_pr{s_}")
                a("s_setprio 1")
                a(f"K2_pr{s_}:")
            a(f"s_lshr_b64 s[{S_S0}:{S_S0+1}], s[{S_S0}:{S_S0+1}], 8")
            a(f"s_and_b32 s{S_T}, s{S_RC}, {BARK-1}")
            a(f"s_cbranch_scc0 K2_rx{s_}")
            t = [f"K2_rx{s_}:",
                 f"s_cmp_eq_u32 s{S_RC}, 16", "s_cbranch_scc1 K2_loop_done",
                 f"s_cmp_lg_u32 s{S_RC}, 8", f"s_cbranch_scc1 K2_ry{s_}",
                 f"s_mov_b64 s[{S_S0}:{S_S0+1}], s[{S_S1}:{S_S1+1}]",
                 f"s_cmp_lg_u32 s{S_IDX2}, s{S_LEFT}", f"s_cbranch_scc1 K2_ry{s_}",
                 "s_waitcnt vmcnt(0)",
                 f"K2_ry{s_}:",
                 f"s_cmp_lg_u32 s{S_PASS}, 0", f"s_cbranch_scc1 K2_t{s_}",
                 "s_barrier", f"s_branch K2_t{s_}"]
            tail_code.extend(t)
        a(f"K2_t{s_}:")
        a(f"s_bitcmp1_b32 s{S_S0}, {i}")
        nxt = (s_ + 16) % NS
        a(f"s_cbranch_scc0 K2_{'re' if nxt % 5 == 0 else 't'}{nxt}")
        a(f"s_sub_u32 s{S_LEFT}, s{S_LEFT}, 1")
        a("s_waitcnt lgkmcnt(0)")
        a(f"v_readlane_b32 s{S_EB}, v{V_ENT}, {b}")
        a(f"s_cmp_lt_u32 s{S_LEFT}, {NXB-1}")
        DT = XB + 16 * (NXB - 1)
        if b == 0:
            a(f"v_perm_b32 v{V_T}, v{RECV+1}, v{RECV}, v{V_EASEL}")
            a(f"v_lshlrev_b32 v{OPS}, 16, v{RECV+2}")
            a(f"v_and_b32 v{OPS+1}, 0xffff0000, v{RECV+2}")
            a(f"v_lshlrev_b32 v{OPS+2}, 16, v{RECV+3}")
            a(f"v_and_b32 v{OPS+3}, 0xffff0000, v{RECV+3}")
            for x in range(4):
                a(f"v_mul_f32 v{OPS+x}, v{OPS+x}, v{V_T}")
            a(f"v_cvt_pk_bf16_f32 v{RECV}, v{OPS}, v{OPS+1}")
            a(f"v_cvt_pk_bf16_f32 v{RECV+1}, v{OPS+2}, v{OPS+3}")
            addr_fix()
            a("s_nop 0")
            for u in range(4):
                a(f"v_mfma_f32_16x16x16_bf16 v[{DT+4*u}:{DT+4*u+3}], v[{RECV}:{RECV+1}], v[{CG+2*u}:{CG+2*u+1}], 0")
        else:
            addr_fix()
            a(f"s_cbranch_scc1 K2_nl{s_}")
            for x in ld_x((b + NXB - 1) % NXB): a(x)
            a(f"K2_nl{s_}:")
            for x in rd_soff(S_EB): a(x)
            if b == 2:
                for x in rd_rec(V_ENT): a(x)
            if b == 3:
                a(f"v_add_u32 v{V_LADDR}, 16, v{V_LADDR}")
                a(f"ds_read_b32 v{V_ENT}, v{V_LADDR} offset:{L_LST+16}")
        pre = 0 if b == 0 else 4
        a(f"s_cbranch_scc1 K2_wx{s_}")
        a(f"s_waitcnt vmcnt({4*(NXB-2)+pre})")
        a(f"K2_wr{s_}:")
        t = [f"K2_wx{s_}:", "s_waitcnt vmcnt(8)", f"s_cmp_eq_u32 s{S_LEFT}, 2", f"s_cbranch_scc1 K2_wr{s_}",
             "s_waitcnt vmcnt(4)", f"s_cmp_eq_u32 s{S_LEFT}, 1", f"s_cbranch_scc1 K2_wr{s_}",
             "s_waitcnt vmcnt(0)", f"s_cmp_eq_u32 s{S_LEFT}, 0", f"s_branch K2_wr{s_}"]
        tail_code.extend(t)
        def pm(j):
            if XP in (2, 3): return
            m = j >> 1; sel = S_SELHI if j & 1 else S_SELLO
            o = OPS + 2 * (j % 2)
            x = lambda u: XB + 16 * b + 4 * u + m
            a(f"v_perm_b32 v{o}, v{x(1)}, v{x(0)}, s{sel}")
            a(f"v_perm_b32 v{o+1}, v{x(3)}, v{x(2)}, s{sel}")
        def mf(j):
            if XP in (1, 3): return
            o = OPS + 2 * (j % 2); c = ACC + 32 * i + 4 * j
            a(f"v_mfma_f32_16x16x16_bf16 v[{c}:{c+3}], v[{AOP+2*b}:{AOP+2*b+1}], v[{o}:{o+1}], v[{c}:{c+3}]")
        pm(0); pm(1)
        if b == 0:
            a("s_nop 1")
            for r in range(4):
                a(f"v_cvt_pk_bf16_f32 v{AOP+2*r}, v{DT+r}, v{DT+4+r}")
            for r in range(4):
                a(f"v_cvt_pk_bf16_f32 v{AOP+2*r+1}, v{DT+8+r}, v{DT+12+r}")
            a(f"s_cbranch_scc1 K2_nl{s_}")
            for x in ld_x(NXB - 1): a(x)
            a(f"K2_nl{s_}:")
            for x in rd_soff(S_EB): a(x)
        mf(0)
        for j in range(2, 8):
            pm(j)
            mf(j - 1)
        a("s_nop 0")
        mf(7)
    a("s_branch K2_re0")
    for x in tail_code: a(x)
    a("K2_loop_done:")
    a(f"s_cmp_lg_u32 s{S_MODE}, 0")
    a("s_cbranch_scc1 K2_slow_next")
    a("K2_epi:")
    stamp(5)
    a("s_waitcnt vmcnt(0) lgkmcnt(0)")
    a(f"v_add_u32 v1, {L_WR}, v{V_COL16}")
    for j in range(8):
        a(f"ds_read_b128 v[{XB+4*j}:{XB+4*j+3}], v1 offset:{256*j}")
    a(f"s_lshl_b32 s3, s{S_WAVE}, 6")
    a("v_mov_b32 v5, s3")
    a(f"ds_read_b128 v[16:19], v5 offset:{L_NODE}")
    a(f"ds_read_b32 v20, v5 offset:{L_NODE+16}")
    lane_id(LANE)
    a(f"s_and_b32 s3, s{S_WAVE}, 3")
    a("s_lshl_b32 s4, s3, 13")
    a(f"s_add_u32 s4, s4, {L_WT}")
    a(f"v_lshl_add_u32 v1, v{LANE}, 4, s4")
    a(f"v_mul_u32_u24 v2, {AGG_RS}, v{V_G}")
    a(f"v_add_u32 v2, v2, v{V_COL16}")
    a(f"v_add_u32 v2, {L_AGG}, v2")
    a(f"s_mov_b32 s4, {4*AGG_RS}")
    a("s_waitcnt lgkmcnt(0)")
    for x in range(8):
        a(f"ds_read_b128 v[{XB+32+4*x}:{XB+32+4*x+3}], v1 offset:{1024*x}")
    for i in range(5):
        a(f"v_and_b32 v{16+i}, 0xff, v{16+i}")
        a(f"v_mad_u32_u24 v{16+i}, v{16+i}, s4, v2")
    for i in range(5):
        for j in range(8):
            c = ACC + 32 * i + 4 * j; w = XB + 4 * j
            a(f"v_mul_f32 v{c}, v{c}, v{w}")
        for kk in range(1, 4):
            for j in range(8):
                c = ACC + 32 * i + 4 * j; w = XB + 4 * j
                a(f"v_fmac_f32 v{c}, v{c+kk}, v{w+kk}")
        o = 8 + 4 * (i % 2)
        for jj in range(4):
            c = ACC + 32 * i + 8 * jj
            a(f"v_cvt_pk_bf16_f32 v{o+jj}, v{c}, v{c+4}")
        a(f"ds_write_b128 v{16+i}, v[{o}:{o+3}]")
    a(f"s_lshr_b32 s5, s{S_WAVE}, 2")
    a(f"s_mul_i32 s6, s5, {16*AGG_RS}")
    a(f"s_add_u32 s6, s6, {L_AGG}")
    a(f"v_and_b32 v6, 15, v{LANE}")
    a(f"v_mul_u32_u24 v7, {AGG_RS}, v6")
    a(f"v_lshl_add_u32 v7, v{V_G}, 4, v7")
    a("v_add_u32 v7, s6, v7")
    a("v_lshlrev_b32 v5, 8, v6")
    a(f"v_lshl_add_u32 v5, v{V_G}, 4, v5")
    a(f"s_mul_i32 s6, s{S_B}, 625")
    a("s_add_u32 s7, s6, 640")
    a("s_add_u32 s6, s6, 15")
    a("s_lshr_b32 s6, s6, 4")
    a("s_lshr_b32 s7, s7, 4")
    a("s_sub_u32 s7, s7, s6")
    a("s_lshl_b32 s7, s7, 2")
    a("s_lshl_b32 s4, s5, 4")
    a("s_sub_u32 s7, s7, s4")
    a("s_sub_u32 s7, s7, 128")
    a(f"v_mov_b32 v21, {OOB}")
    a("v_cmp_gt_u32 vcc, s7, v6")
    a("s_lshl_b32 s6, s6, 10")
    a("s_nop 0")
    a("v_cndmask_b32 v21, v21, v5, vcc")
    a("s_lshl_b32 s7, s5, 12")
    a("s_add_u32 s6, s6, s7")
    a("s_lshl_b32 s7, s3, 6")
    a("s_add_u32 s6, s6, s7")
    a("s_waitcnt lgkmcnt(0)")
    a("s_barrier")
    stamp(6)
    BB = ACC
    for u in range(5):
        for t in range(4):
            r = BB + 16 * u + 4 * t
            a(f"ds_read_b128 v[{r}:{r+3}], v7 offset:{u*32*AGG_RS + t*64}")
    DD = ACC + 80
    def fin(u):
        d = DD + 8 * u
        o = BB + 4 * u
        for x in range(4):
            a(f"v_cvt_pk_bf16_f32 v{o+x}, v{d+2*x}, v{d+2*x+1}")
        a(f"buffer_store_dwordx4 v[{o}:{o+3}], v{21 if u == 4 else 5}, s[{S_OUT}:{S_OUT+3}], s6 offen {OMOD}")
        a(f"s_add_u32 s6, s6, {32*256}")
    for u in range(5):
        a(f"s_waitcnt lgkmcnt({min(15, 4*(4-u))})")
        for t in range(4):
            r = BB + 16 * u + 4 * t
            for hh in range(2):
                d = DD + 8 * u + 4 * hh; w = XB + 32 + 16 * hh + 4 * t
                c = "0" if t == 0 else f"v[{d}:{d+3}]"
                a(f"v_mfma_f32_16x16x32_bf16 v[{d}:{d+3}], v[{w}:{w+3}], v[{r}:{r+3}], {c}")
        if u > 0: fin(u - 1)
    a("s_nop 7")
    fin(4)
    stamp(7)
    if STAMP: a("s_waitcnt vmcnt(0)")
    stamp(8)
    stamp_flush(1, 8, 9, S_WAVE, 1)
    a("K2_end:")
    a("s_endpgm")
    a("K2_slow:")
    for grp in bg_slow:
        if "touch" not in grp[-1]:
            for x in grp: a(x)
    a(f"s_mov_b32 s{S_MODE}, 1")
    a(f"s_mov_b32 s{S_WIN}, 0")
    a(f"v_lshlrev_b32 v8, 10, v{LANE}")
    a(f"s_lshl_b32 s3, s{S_B}, 2")
    a(f"s_add_u32 s3, s3, {OFFS_OFF}")
    for h in range(4):
        a(f"buffer_load_dword v{10+2*h}, v8, s[{S_WS}:{S_WS+3}], s3 offen")
        a("s_add_u32 s3, s3, 65536")
    a(f"v_cmp_gt_u32 vcc, {P-192}, v{LANE}")
    a("s_waitcnt vmcnt(0)")
    for h in range(4):
        a(f"v_lshrrev_b32 v{10+2*h}, 16, v{10+2*h}")
    a("v_cndmask_b32 v16, 0, v16, vcc")
    a("v_max_u32 v10, v10, v12")
    a("v_max3_u32 v10, v10, v14, v16")
    wave_scan(10, "v_max_u32_dpp")
    a("s_nop 1")
    a(f"v_readlane_b32 s{S_MAXC}, v10, 63")
    a("K2_slow_win:")
    a(f"s_cmp_ge_u32 s{S_WIN}, s{S_MAXC}")
    a("s_cbranch_scc1 K2_slow_fin")
    def seg_setup():
        lane_id(LANE)
        a(f"s_lshl_b32 s3, s{S_WAVE}, 6")
        a(f"v_add_u32 v{TID}, s3, v{LANE}")
        a(f"v_lshrrev_b32 v8, 1, v{TID}")
        a(f"v_and_b32 v9, 1, v{TID}")
        a("v_lshlrev_b32 v10, 10, v8")
        a(f"s_lshl_b32 s3, s{S_B}, 2")
        a(f"s_add_u32 s3, s3, {OFFS_OFF}")
        a(f"buffer_load_dword v12, v10, s[{S_WS}:{S_WS+3}], s3 offen")
        a(f"v_mul_u32_u24 v10, {EPC}, v8")
        a(f"v_add3_u32 v10, v10, v9, s{S_WIN}")
        a(f"v_cmp_gt_u32 vcc, {P}, v8")
        a("s_waitcnt vmcnt(0)")
        a("v_lshrrev_b32 v11, 16, v12")
        a("v_and_b32 v12, 0xffff, v12")
        a("v_cndmask_b32 v11, 0, v11, vcc")
        a("v_add_u32 v10, v10, v12")
        a("v_sub_u32 v13, v11, v9")
        a(f"v_subrev_u32 v13, s{S_WIN}, v13")
        a("v_lshlrev_b32 v14, 4, v10")
        a("v_lshlrev_b32 v10, 2, v10")
    seg_setup()
    for r in range(NR):
        a(f"v_cmp_lt_i32 {M(r)}, {2*r}, v13")
    a("K2_slow_batch:")
    a("s_waitcnt vmcnt(0) lgkmcnt(0)")
    a("s_barrier")
    seg_setup()
    a(f"v_lshlrev_b32 v8, 2, v{TID}")
    a("v_mov_b32 v9, 0")
    a(f"v_cmp_gt_u32 vcc, {NPB*4+4}, v{TID}")
    a(f"s_and_saveexec_b64 s[{S_SAVE}:{S_SAVE+1}], vcc")
    a(f"ds_write_b32 v8, v9 offset:{L_HIST}")
    a("s_mov_b64 exec, -1")
    a("s_waitcnt lgkmcnt(0)")
    a("s_barrier")
    a("v_mov_b32 v17, 1")
    a(f"s_mov_b32 s3, {TAG_OFF}")
    a(f"s_mov_b64 s[{S_SAVE}:{S_SAVE+1}], 0")
    for r in range(NR):
        a(f"s_mov_b64 exec, {M(r)}")
        a(f"s_cbranch_execz K2_slow_skip{r}")
        a(f"buffer_load_dword v16, v10, s[{S_WS}:{S_WS+3}], s3 offen offset:{8*r}")
        a(f"buffer_load_dwordx4 v[{XB}:{XB+3}], v14, s[{S_WS}:{S_WS+3}], 0 offen offset:{32*r}")
        a("s_waitcnt vmcnt(0)")
        a("v_bfe_u32 v8, v16, 4, 6")
        a("v_lshlrev_b32 v9, 4, v8")
        a(f"ds_add_rtn_u32 v15, v9, v17 offset:{L_HIST}")
        a("v_and_b32 v16, 0xfffc00, v16")
        a("s_waitcnt lgkmcnt(0)")
        a(f"v_cmp_gt_u32 vcc, {CAPN}, v15")
        a(f"s_andn2_b64 {M(r)}, {M(r)}, vcc")
        a(f"s_or_b64 s[{S_SAVE}:{S_SAVE+1}], s[{S_SAVE}:{S_SAVE+1}], {M(r)}")
        a("s_mov_b64 exec, vcc")
        a("v_lshl_add_u32 v8, v8, 6, v15")
        a("v_lshlrev_b32 v9, 4, v8")
        a("v_lshlrev_b32 v8, 2, v8")
        a(f"ds_write_b128 v9, v[{XB}:{XB+3}] offset:{L_REC}")
        a(f"ds_write_b32 v8, v16 offset:{L_SOFF}")
        a("s_waitcnt lgkmcnt(0)")
        a(f"K2_slow_skip{r}:")
    a("s_mov_b64 exec, -1")
    a(f"v_mov_b32 v9, {L_FLAG}")
    a(f"s_cmp_eq_u64 s[{S_SAVE}:{S_SAVE+1}], 0")
    a("s_cbranch_scc1 K2_slow_nof")
    a("ds_write_b32 v9, v17")
    a("K2_slow_nof:")
    a("s_waitcnt lgkmcnt(0)")
    a("s_barrier")
    a(f"v_and_b32 v7, 7, v{LANE}")
    a(f"s_mul_i32 s3, s{S_WAVE}, 5")
    a("v_add_u32 v11, s3, v7")
    a(f"v_add_u32 v6, s3, v{V_G}")
    a("s_add_u32 s3, s3, 4")
    a("v_mov_b32 v1, s3")
    for (vn, vt) in ((11, 12), (6, 13), (1, 14)):
        a(f"v_lshlrev_b32 v{vt}, 4, v{vn}")
        a(f"ds_read_b32 v{vt}, v{vt} offset:{L_HIST}")
    a("ds_read_b32 v9, v9")
    a("s_waitcnt lgkmcnt(0)")
    for (vn, vt) in ((11, 12), (6, 13), (1, 14)):
        a(f"v_min_u32 v{vt}, {CAPN}, v{vt}")
        a(f"v_lshl_add_u32 v{vn}, v{vt}, 8, v{vn}")
    a(f"v_readfirstlane_b32 s{S_MODE}, v9")
    a("v_mov_b32 v12, 0")
    a("v_mov_b32 v13, 0")
    a(f"s_add_u32 s{S_MODE}, s{S_MODE}, 1")
    a(f"s_mov_b32 s{S_PASS}, 1")
    a("s_branch K2_sched")
    a("K2_slow_next:")
    a(f"s_cmp_eq_u32 s{S_MODE}, 2")
    a("s_cbranch_scc1 K2_slow_batch")
    a(f"s_add_u32 s{S_WIN}, s{S_WIN}, {2*NR}")
    a("s_waitcnt vmcnt(0) lgkmcnt(0)")
    a("s_branch K2_slow_win")
    a("K2_slow_fin:")
    a("s_branch K2_epi")
    a("K2_code_end:")
    a("s_endpgm")

def gen_report():
    k = "rep_kernel"
    a(f".globl {k}\n.p2align 8\n.type {k},@function\n{k}:")
    a("s_cmp_lg_u32 s2, 0")
    a("s_cbranch_scc1 R_end")
    a("s_load_dwordx4 s[4:7], s[0:1], 72")
    a("s_waitcnt lgkmcnt(0)")
    def red(reg, op):
        wave_scan(reg, op)
    a("v_mov_b32 v10, -1")
    for r in range(11, 30): a(f"v_mov_b32 v{r}, 0")
    a("v_mov_b32 v14, -1")
    a("v_mov_b32 v20, -1")
    a(f"v_lshlrev_b32 v1, 6, v0")
    a(f"v_add_u32 v1, {DBG_OFF}, v1")
    for kx in range(19):
        a("global_load_dwordx4 v[2:5], v1, s[6:7]")
        a("global_load_dwordx4 v[6:9], v1, s[6:7] offset:16")
        a("s_waitcnt vmcnt(0)")
        a("v_min_u32 v10, v10, v2")
        a("v_max_u32 v11, v11, v3")
        a("v_max_u32 v12, v12, v5")
        a("v_max_u32 v13, v13, v8")
        a("v_add_u32 v1, 4096, v1")
    a(f"v_lshlrev_b32 v1, 6, v0")
    a(f"v_add_u32 v1, {DBG_OFF + (1<<20)}, v1")
    for kx in range(31):
        a("global_load_dwordx4 v[2:5], v1, s[6:7]")
        a("global_load_dwordx4 v[6:9], v1, s[6:7] offset:16")
        a("global_load_dword v30, v1, s[6:7] offset:32")
        a("s_waitcnt vmcnt(0)")
        a("v_min_u32 v14, v14, v2")
        a("v_max_u32 v15, v15, v2")
        a("v_max_u32 v16, v16, v3")
        a("v_max_u32 v17, v17, v4")
        a("v_max_u32 v18, v18, v5")
        a("v_max_u32 v19, v19, v6")
        a("v_min_u32 v20, v20, v7")
        a("v_max_u32 v21, v21, v7")
        a("v_max_u32 v22, v22, v8")
        a("v_max_u32 v23, v23, v9")
        a("v_max_u32 v24, v24, v30")
        a("v_add_u32 v1, 4096, v1")
    for r in range(10, 25):
        red(r, "v_min_u32_dpp" if r in (10, 14, 20) else "v_max_u32_dpp")
    a("s_memrealtime s[8:9]")
    a("s_waitcnt lgkmcnt(0)")
    a("v_mov_b32 v25, s8")
    a("s_mov_b32 exec_lo, 0")
    a("s_mov_b32 exec_hi, 0x80000000")
    a("v_mov_b32 v1, 0")
    for r in range(11, 26):
        a(f"v_sub_u32 v2, v{r}, v10")
        a(f"global_store_dword v1, v2, s[4:5] offset:{4*(r-11)}")
    a("R_end:")
    a("s_endpgm")

def kd(name, nv, ns):
    return f""".p2align 6
.amdhsa_kernel {name}
  .amdhsa_next_free_vgpr {nv}
  .amdhsa_next_free_sgpr {ns}
  .amdhsa_accum_offset {(nv+3)//4*4}
  .amdhsa_group_segment_fixed_size 0
  .amdhsa_kernarg_size 88
  .amdhsa_user_sgpr_count 2
  .amdhsa_user_sgpr_kernarg_segment_ptr 1
  .amdhsa_system_sgpr_workgroup_id_x 1
.end_amdhsa_kernel"""

def main():
    hdr = open("cdna_kernels/" + NAME + ".s.ref").read().split("\n")
    hdr = [l for l in hdr[:12] if l.startswith(";")]
    print("\n".join(hdr))
    print(f"; @launch kernel=part_kernel grid=({K1_GRID},1,1) block=({K1_T},1,1) lds={K1_LDS}")
    print(f"; @launch kernel=main_kernel grid=(256,1,1) block=({K2_T},1,1) lds={K2_LDS}")
    if STAMP == 2: print("; @launch kernel=rep_kernel grid=(1,1,1) block=(64,1,1) lds=0")
    print('.amdgcn_target "amdgcn-amd-amdhsa--gfx950"')
    print(".text")
    gen_k1()
    gen_k2()
    if STAMP == 2: gen_report()
    print("\n".join(("" if (l.endswith(":") or l.startswith(".")) else "    ") + l for l in out))
    print('.section .rodata,"a"')
    print(kd("part_kernel", 64, 96 if STAMP else 48))
    print(kd("main_kernel", 256, 102))
    if STAMP == 2: print(kd("rep_kernel", 32, 16))

main()
```

```python
import sys, os

NAME = "gather_scatter__tensor_product_equiv_mace__graph"
N = 10000; E = 320000
P = 250; EPC = E // P
NB = 256; NPB = 40
NR = 10
CAPN = 64
env = lambda k, d: type(d)(os.environ.get(k, d))
STAMP = env("STAMP", 0)
STMOD = env("STMOD", "sc1")
K2TOUCH = env("K2TOUCH", 1)
K1TOUCH = env("K1TOUCH", 0)
K1T2 = env("K1T2", 0)
LDMOD = env("LDMOD", "nt")
RMOD = env("RMOD", "")
CODEPF = env("CODEPF", 1)
BAL = env("BAL", 1)
OMOD = env("OMOD", "sc0 sc1")
XP = env("XP", 0)
ILV = env("ILV", 1)
PRIO = env("PRIO", 1)
ROT = env("ROT", 0)
NOCOMP = env("NOCOMP", 0)
NOMEM = env("NOMEM", 0)

REC_OFF = 0
TAG_OFF = REC_OFF + E * 16
OFFS_OFF = TAG_OFF + E * 4
WT_OFF = OFFS_OFF + 256 * 1024
WR_OFF = WT_OFF + 32768
CG_OFF = WR_OFF + 2048
WS_USED = WT_OFF + 40960 + 4096
DBG_OFF = 8 << 20

out = []
def a(s): out.append(s)
FINE = env("FINE", 0)
def stamp(i):
    if FINE and i in (0, 1, 2, 5, 6, 7, 8): return
    if STAMP: a(f"s_memrealtime s[{64+2*i}:{65+2*i}]")
def fstamp(i):
    if FINE: a(f"s_memrealtime s[{64+2*i}:{65+2*i}]")
def stamp_flush(kidx, wavesper, n, swave, vt=1):
    if not STAMP: return
    a("s_mov_b64 exec, -1")
    a("s_load_dwordx2 s[90:91], s[0:1], 80")
    a(f"s_mul_i32 s92, s2, {wavesper}")
    a(f"s_add_u32 s92, s92, s{swave}")
    a(f"s_lshl_b32 s92, s92, 6")
    a(f"s_add_u32 s92, s92, {DBG_OFF + kidx*(1<<20)}")
    a(f"v_mov_b32 v{vt}, s92")
    a("s_waitcnt lgkmcnt(0)")
    a("s_mov_b64 exec, 1")
    for i in range(n):
        a(f"v_mov_b32 v{vt+1}, s{64+2*i}")
        a(f"global_store_dword v{vt}, v{vt+1}, s[90:91] offset:{4*i}")

def srd(d, base, nbytes):
    a(f"s_mov_b32 s{d}, s{base}")
    a(f"s_and_b32 s{d+1}, s{base+1}, 0xffff")
    a(f"s_mov_b32 s{d+2}, {nbytes}")
    a(f"s_mov_b32 s{d+3}, 0x20000")

def wave_scan(v, op="v_add_u32_dpp"):
    for sh in (1, 2, 4, 8):
        a("s_nop 1")
        a(f"{op} v{v}, v{v}, v{v} row_shr:{sh} row_mask:0xf bank_mask:0xf")
    a("s_nop 1")
    a(f"{op} v{v}, v{v}, v{v} row_bcast:15 row_mask:0xa bank_mask:0xf")
    a("s_nop 1")
    a(f"{op} v{v}, v{v}, v{v} row_bcast:31 row_mask:0xc bank_mask:0xf")

K1_T = 320
K1_HIST = 0; K1_OFFS = 1024; K1_TAG = 2048; K1_REC = K1_TAG + EPC * 4
K1_LDS = K1_REC + EPC * 16
NWPREP = 8
K1_GRID = P + NWPREP

def gen_k1():
    k = "part_kernel"
    a(f".globl {k}\n.p2align 8\n.type {k},@function\n{k}:")
    a(f"s_cmp_ge_u32 s2, {K1_GRID}")
    a("s_cbranch_scc1 K1_end")
    a(f"s_cmp_ge_u32 s2, {P}")
    a("s_cbranch_scc1 K1_wprep")
    stamp(0)
    a("s_load_dwordx4 s[4:7], s[0:1], 8")
    a("s_load_dwordx4 s[8:11], s[0:1], 24")
    a("s_load_dwordx2 s[12:13], s[0:1], 80")
    if K1TOUCH or K1T2: a("s_load_dwordx2 s[44:45], s[0:1], 0")
    a("v_lshlrev_b32 v1, 4, v0")
    a("v_lshlrev_b32 v2, 5, v0")
    a("v_lshlrev_b32 v3, 2, v0")
    a("v_mov_b32 v4, 0")
    a(f"ds_write_b32 v3, v4 offset:{K1_HIST}")
    a(f"s_mul_i32 s14, s2, {EPC*4}")
    a(f"s_mul_i32 s15, s2, {EPC*8}")
    a("v_lshrrev_b32 v5, 6, v0")
    a("s_waitcnt lgkmcnt(0)")
    srd(20, 6, E * 4)
    a(f"buffer_load_dwordx4 v[8:11], v1, s[20:23], s14 offen {LDMOD}")
    srd(16, 4, E * 4)
    a(f"buffer_load_dwordx4 v[12:15], v1, s[16:19], s14 offen {LDMOD}")
    srd(24, 8, E * 8)
    srd(28, 10, E * 8)
    srd(32, 12, WS_USED)
    a("v_readfirstlane_b32 s47, v5")
    a("s_barrier")
    a(f"buffer_load_dwordx4 v[16:19], v2, s[24:27], s15 offen {LDMOD}")
    a(f"buffer_load_dwordx4 v[20:23], v2, s[24:27], s15 offen offset:16 {LDMOD}")
    a(f"buffer_load_dwordx4 v[24:27], v2, s[28:31], s15 offen {LDMOD}")
    a(f"buffer_load_dwordx4 v[28:31], v2, s[28:31], s15 offen offset:16 {LDMOD}")
    a("s_mov_b32 s40, 429497")
    a("s_mov_b32 s41, 625")
    a("s_mov_b32 s42, 6711")
    a("v_mov_b32 v5, 1")
    a("v_and_b32 v6, 63, v0")
    a("v_lshlrev_b32 v6, 4, v6")
    a("s_waitcnt vmcnt(5)")
    stamp(1)
    for e in range(4):
        a(f"v_mul_u32_u24 v{32+e}, s40, v{8+e}")
        a(f"v_lshrrev_b32 v{32+e}, 24, v{32+e}")
        a(f"v_lshlrev_b32 v{36+e}, 2, v{32+e}")
        a(f"ds_add_rtn_u32 v{40+e}, v{36+e}, v5 offset:{K1_HIST}")
    a("s_waitcnt vmcnt(4)")
    for e in range(4):
        a(f"v_mad_u32_u24 v{32+e}, v{32+e}, s41, 15")
        a(f"v_lshrrev_b32 v{32+e}, 4, v{32+e}")
        a(f"v_sub_u32 v{8+e}, v{8+e}, v{32+e}")
        a(f"v_mul_u32_u24 v{32+e}, s42, v{12+e}")
        a(f"v_lshrrev_b32 v{32+e}, 22, v{32+e}")
        a(f"v_lshl_add_u32 v{8+e}, v{8+e}, 4, v{32+e}")
        a(f"v_lshl_add_u32 v{12+e}, v{12+e}, 10, v{8+e}")
    a("s_waitcnt lgkmcnt(0)")
    a("s_barrier")
    stamp(2)
    if K1TOUCH:
        srd(36, 44, N * 1024)
        a(f"s_mul_i32 s46, s2, {K1_T*16}")
        for r in range(K1TOUCH):
            a("buffer_load_dwordx4 v[60:63], v1, s[36:39], s46 offen")
            a(f"s_add_u32 s46, s46, {P*K1_T*16}")
    a(f"ds_read_b128 v[44:47], v6 offset:{K1_HIST}")
    a("s_waitcnt lgkmcnt(0)")
    a("v_add_u32 v48, v44, v45")
    a("v_add3_u32 v48, v48, v46, v47")
    a("v_mov_b32 v49, v48")
    wave_scan(49)
    a("v_sub_u32 v52, v49, v48")
    a("v_add_u32 v53, v52, v44")
    a("v_add_u32 v54, v53, v45")
    a("v_add_u32 v55, v54, v46")
    a(f"ds_write_b128 v6, v[52:55] offset:{K1_OFFS}")
    for e in range(4):
        a(f"ds_read_b32 v{32+e}, v{36+e} offset:{K1_OFFS}")
    a("s_cmp_lg_u32 s47, 0")
    a("s_cbranch_scc1 K1_noffs")
    a("s_lshl_b32 s43, s2, 10")
    a(f"s_add_u32 s43, s43, {OFFS_OFF}")
    for e in range(4):
        a(f"v_lshl_or_b32 v{56+e}, v{44+e}, 16, v{52+e}")
    a(f"buffer_store_dwordx4 v[56:59], v6, s[32:35], s43 offen {STMOD}")
    a(f"s_waitcnt vmcnt({K1TOUCH+1}) lgkmcnt(0)")
    a("s_branch K1_go")
    a("K1_noffs:")
    a(f"s_waitcnt vmcnt({K1TOUCH}) lgkmcnt(0)")
    a("K1_go:")
    stamp(3)
    for e in range(4):
        a(f"v_add_u32 v{32+e}, v{32+e}, v{40+e}")
        a(f"v_lshlrev_b32 v{36+e}, 4, v{32+e}")
        a(f"v_add_u32 v{36+e}, {K1_REC}, v{36+e}")
        a(f"v_lshlrev_b32 v{32+e}, 2, v{32+e}")
        a(f"ds_write2_b64 v{36+e}, v[{16+2*e}:{17+2*e}], v[{24+2*e}:{25+2*e}] offset0:0 offset1:1")
        a(f"ds_write_b32 v{32+e}, v{12+e} offset:{K1_TAG}")
    a(f"s_mul_i32 s43, s2, {EPC*16}")
    a(f"s_add_u32 s46, s14, {TAG_OFF}")
    a("s_waitcnt lgkmcnt(0)")
    a("s_barrier")
    stamp(4)
    a(f"ds_read_b128 v[24:27], v1 offset:{K1_TAG}")
    for r in range(4):
        a(f"ds_read_b128 v[{8+4*r}:{11+4*r}], v1 offset:{K1_REC + r*K1_T*16}")
    a("s_waitcnt lgkmcnt(4)")
    a(f"buffer_store_dwordx4 v[24:27], v1, s[32:35], s46 offen {STMOD}")
    for r in range(4):
        a(f"s_waitcnt lgkmcnt({3-r})")
        a(f"buffer_store_dwordx4 v[{8+4*r}:{11+4*r}], v1, s[32:35], s43 offen {STMOD}")
        a(f"s_add_u32 s43, s43, {K1_T*16}")
    if K1T2:
        srd(36, 44, N * 1024)
        a(f"s_mul_i32 s46, s2, {K1_T*16}")
        a(f"s_add_u32 s46, s46, {K1TOUCH*P*K1_T*16}")
        for r in range(K1T2):
            a("buffer_load_dwordx4 v[60:63], v1, s[36:39], s46 offen")
            a(f"s_add_u32 s46, s46, {P*K1_T*16}")
    stamp(5)
    if STAMP: a("s_waitcnt vmcnt(0)")
    stamp(6)
    stamp_flush(0, 5, 7, 47, 40)
    a("s_endpgm")
    a("K1_wprep:")
    a("s_load_dwordx4 s[4:7], s[0:1], 40")
    a("s_load_dwordx2 s[8:9], s[0:1], 56")
    a("s_load_dwordx2 s[12:13], s[0:1], 80")
    a(f"s_sub_u32 s14, s2, {P}")
    a("s_waitcnt lgkmcnt(0)")
    srd(16, 4, 128)
    srd(20, 6, 1024)
    srd(24, 8, 32768)
    srd(32, 12, WS_USED)
    a("v_cmp_gt_u32 vcc, 256, v0")
    a("s_and_saveexec_b64 s[36:37], vcc")
    a("s_cbranch_execz K1_wsmall")
    a("v_bfe_u32 v2, v0, 6, 2")
    a("v_bfe_u32 v3, v0, 4, 2")
    a("v_bfe_u32 v4, v0, 2, 2")
    a("v_and_b32 v5, 3, v0")
    a("v_lshlrev_b32 v6, 13, v2")
    a("v_lshl_add_u32 v6, v3, 11, v6")
    a("v_lshl_add_u32 v6, v4, 4, v6")
    a("v_lshl_add_u32 v6, v5, 1, v6")
    a("s_lshr_b32 s15, s14, 1")
    a("s_lshl_b32 s15, s15, 6")
    a("s_and_b32 s38, s14, 1")
    a("s_lshl_b32 s38, s38, 3")
    a("s_add_u32 s15, s15, s38")
    for q in range(8):
        a(f"buffer_load_ushort v{16+q}, v6, s[24:27], s15 offen offset:{q*256}")
    a("v_lshlrev_b32 v7, 4, v0")
    a("s_lshl_b32 s15, s14, 12")
    a(f"s_add_u32 s15, s15, {WT_OFF}")
    a("s_waitcnt vmcnt(0)")
    for q in range(4):
        a(f"v_lshl_or_b32 v{8+q}, v{17+2*q}, 16, v{16+2*q}")
    a("buffer_store_dwordx4 v[8:11], v7, s[32:35], s15 offen")
    a("s_endpgm")
    a("K1_wsmall:")
    a("s_mov_b64 exec, s[36:37]")
    a("v_subrev_u32 v1, 256, v0")
    a("s_cmp_lt_u32 s14, 2")
    a("s_cbranch_scc0 K1_wcg")
    a("s_lshl_b32 s15, s14, 6")
    a("v_add_u32 v1, s15, v1")
    a("v_lshlrev_b32 v2, 1, v1")
    for kk in range(4):
        a(f"buffer_load_ushort v{8+kk}, v2, s[20:23], 0 offen offset:{kk*256}")
    a("v_and_b32 v3, 7, v1")
    a("v_lshlrev_b32 v3, 4, v3")
    a("v_lshrrev_b32 v4, 3, v1")
    a("v_add_lshl_u32 v3, v3, v4, 4")
    a(f"s_mov_b32 s15, {WR_OFF}")
    a("s_waitcnt vmcnt(0)")
    for kk in range(4):
        a(f"v_lshlrev_b32 v{8+kk}, 16, v{8+kk}")
    a("buffer_store_dwordx4 v[8:11], v3, s[32:35], s15 offen")
    a("s_endpgm")
    a("K1_wcg:")
    a("s_cmp_eq_u32 s14, 2")
    a("s_cbranch_scc0 K1_wcode")
    a("v_lshrrev_b32 v2, 2, v1")
    a("v_lshlrev_b32 v2, 1, v2")
    for u in range(4):
        a(f"buffer_load_ushort v{16+u}, v2, s[16:19], 0 offen offset:{32*u}")
    a("v_and_b32 v3, 1, v1")
    a("v_lshlrev_b32 v3, 4, v3")
    a("v_and_b32 v4, 2, v1")
    a("v_cmp_eq_u32 vcc, 0, v4")
    a("v_lshlrev_b32 v6, 5, v1")
    a(f"s_mov_b32 s15, {CG_OFF}")
    a("s_waitcnt vmcnt(0)")
    for u in range(4):
        a(f"v_lshlrev_b32 v{16+u}, v3, v{16+u}")
        a(f"v_cndmask_b32 v{8+2*u}, 0, v{16+u}, vcc")
        a(f"v_cndmask_b32 v{9+2*u}, v{16+u}, 0, vcc")
    a("buffer_store_dwordx4 v[8:11], v6, s[32:35], s15 offen")
    a("buffer_store_dwordx4 v[12:15], v6, s[32:35], s15 offen offset:16")
    a("s_endpgm")
    a("K1_wcode:")
    if CODEPF:
        a("s_cmp_eq_u32 s14, 3")
        a("s_cbranch_scc0 K1_end")
        a("s_getpc_b64 s[40:41]")
        a("K1_pc:")
        a("s_add_u32 s40, s40, main_kernel-K1_pc")
        a("s_addc_u32 s41, s41, 0")
        a("v_lshlrev_b32 v2, 6, v1")
        for r in range(4):
            a("v_cmp_gt_u32 vcc, K2_code_end-main_kernel, v2")
            a("s_and_b64 exec, exec, vcc")
            a("s_cbranch_execz K1_wcode_done")
            a(f"global_load_dword v{8+r}, v2, s[40:41]")
            a("v_add_u32 v2, 4096, v2")
        a("K1_wcode_done:")
        a("s_waitcnt vmcnt(0)")
    a("K1_end:")
    a("s_endpgm")

K2_T = 512
SLOTS = NPB * CAPN + 8
DUMMY = NPB * CAPN
L_REC = 0
L_SOFF = L_REC + SLOTS * 16
L_HIST = L_SOFF + SLOTS * 4
L_FLAG = L_HIST + NPB * 16
L_PRE = L_FLAG + 16
L_NODE = L_PRE + NPB * 16 + 512
L_TAB = L_NODE + 512
L_LST = L_TAB + 1024
L_WT = (L_LST + 4096 + 255) // 256 * 256
L_WR = L_WT + 32768
L_AGG = L_WT + 32768 + 2048
AGG_RS = 272
K2_LDS = L_AGG + (NPB * 4 + 12) * AGG_RS
OOB = 0x7f000000
BARK = env("BARK", 4)
NXB = 4

ACC = 96; XB = 32; CG = 24; OPS = 20; AOP = 12; RECV = 8
V_GP = 7; V_SOFF = 6; V_T = 5; V_COL16 = 4; V_G = 3; V_ENT = 2; V_LADDR = 1; V_EASEL = 0
S_X = 8; S_WS = 12; S_OUT = 16
S_WAVE = 20; S_SELLO = 21; S_SELHI = 22; S_IDX = 23
S_S0 = 24; S_S1 = 26
S_EA = 28; S_EB = 29; S_IDX2 = 30; S_LEFT = 31; S_RC = 32; S_MORE = 33
S_T = 34; S_PASS = 35; S_MODE = 36; S_WIN = 37; S_MAXC = 38; S_B = 39
S_MASK = 40
S_SAVE = 60

def lane_id(v):
    a(f"v_mbcnt_lo_u32_b32 v{v}, -1, 0")
    a(f"v_mbcnt_hi_u32_b32 v{v}, -1, v{v}")

tail_code = []
uid = [0]
def ld_x(b):
    r = []
    for u in range(4):
        x = XB + 16 * b + 4 * u
        r.append(f"buffer_load_dwordx4 v[{x}:{x+3}], v{V_SOFF}, s[{S_X}:{S_X+3}], 0 offen offset:{u*256}")
    return r
def addr_fix():
    a(f"v_add_u32 v{V_SOFF}, v{V_SOFF}, v{V_COL16}")
    if NOMEM == 1: a(f"v_mov_b32 v{V_SOFF}, {OOB}")
    if NOMEM == 3: a(f"v_and_b32 v{V_SOFF}, 0xfffff, v{V_SOFF}")

def gen_k2():
    k = "main_kernel"
    a(f".globl {k}\n.p2align 8\n.type {k},@function\n{k}:")
    a("s_cmp_ge_u32 s2, 256")
    a("s_cbranch_scc1 K2_end")
    stamp(0)
    a("s_load_dwordx2 s[4:5], s[0:1], 0")
    a("s_load_dwordx2 s[6:7], s[0:1], 80")
    a("s_load_dwordx2 s[62:63], s[0:1], 64")
    a("s_and_b32 s3, s2, 7")
    a("s_lshl_b32 s3, s3, 5")
    a(f"s_lshr_b32 s{S_B}, s2, 3")
    a(f"s_add_u32 s{S_B}, s{S_B}, s3")
    TID = 23; LANE = 22
    a(f"v_mov_b32 v{TID}, v0")
    a(f"v_and_b32 v{LANE}, 63, v0")
    a("v_lshrrev_b32 v1, 6, v0")
    a("v_lshlrev_b32 v2, 2, v0")
    a("v_mov_b32 v3, 0")
    a(f"v_readfirstlane_b32 s{S_WAVE}, v1")
    a(f"v_cmp_gt_u32 vcc, {NPB*4+4}, v0")
    a(f"s_and_saveexec_b64 s[{S_SAVE}:{S_SAVE+1}], vcc")
    a(f"ds_write_b32 v2, v3 offset:{L_HIST}")
    a(f"s_mov_b64 exec, s[{S_SAVE}:{S_SAVE+1}]")
    a("v_lshrrev_b32 v8, 1, v0")
    a("v_and_b32 v9, 1, v0")
    a("v_lshlrev_b32 v10, 10, v8")
    a(f"s_lshl_b32 s3, s{S_B}, 2")
    a(f"s_add_u32 s3, s3, {OFFS_OFF}")
    a("s_waitcnt lgkmcnt(0)")
    srd(S_WS, 6, WS_USED)
    a(f"buffer_load_dword v12, v10, s[{S_WS}:{S_WS+3}], s3 offen")
    a(f"s_lshl_b32 s3, s{S_WAVE}, 8")
    a(f"s_add_u32 s3, s3, {L_WR}")
    a("s_mov_b32 m0, s3")
    a(f"s_mov_b32 s3, {WR_OFF}")
    a(f"buffer_load_dword v2, s[{S_WS}:{S_WS+3}], s3 offen lds")
    srd(S_X, 4, N * 1024)
    srd(S_OUT, 62, N * 1024)
    if CODEPF:
        a("s_getpc_b64 s[4:5]")
        a("K2_pc:")
        a(f"v_lshlrev_b32 v14, 7, v{TID}")
        a("v_cmp_gt_u32 vcc, K2_code_end-K2_pc, v14")
        a(f"s_and_saveexec_b64 s[{S_SAVE}:{S_SAVE+1}], vcc")
        a("s_cbranch_execz K2_nocpf")
        a("global_load_dword v15, v14, s[4:5]")
        a("K2_nocpf:")
        a(f"s_mov_b64 exec, s[{S_SAVE}:{S_SAVE+1}]")
    a("s_barrier")
    for r in range(4):
        a(f"v_mov_b32 v{16+r}, 0")
    a("s_nop 1")
    for r in range(10):
        a(f"v_mfma_f32_32x32x16_bf16 v[{ACC+16*r}:{ACC+16*r+15}], v[16:19], v[16:19], 0")
    a(f"v_and_b32 v{V_COL16}, 15, v{TID}")
    a(f"v_lshlrev_b32 v{V_COL16}, 4, v{V_COL16}")
    a(f"v_lshrrev_b32 v{V_G}, 4, v{LANE}")
    a(f"v_mul_u32_u24 v{V_EASEL}, 0x0202, v{V_G}")
    a(f"v_add_u32 v{V_EASEL}, 0x0100, v{V_EASEL}")
    a(f"v_lshlrev_b32 v{V_EASEL}, 16, v{V_EASEL}")
    a(f"v_or_b32 v{V_EASEL}, 0x0c0c, v{V_EASEL}")
    a(f"v_and_b32 v7, 7, v{LANE}")
    a("v_and_b32 v2, 1, v7")
    a("v_mul_u32_u24 v2, 7, v2")
    a(f"v_xor_b32 v2, s{S_WAVE}, v2")
    a("v_lshl_add_u32 v2, v7, 3, v2")
    a("v_lshlrev_b32 v2, 2, v2")
    a(f"v_and_b32 v6, 1, v{V_G}")
    a("v_mul_u32_u24 v6, 7, v6")
    a(f"v_xor_b32 v6, s{S_WAVE}, v6")
    a(f"v_lshl_add_u32 v6, v{V_G}, 3, v6")
    a("v_lshlrev_b32 v6, 2, v6")
    a(f"s_lshl_b32 s3, s{S_WAVE}, 2")
    a("s_add_u32 s3, s3, 128")
    a("v_mov_b32 v1, s3")
    a(f"s_mov_b32 s{S_SELLO}, 0x05040100")
    a(f"s_mov_b32 s{S_SELHI}, 0x07060302")
    a(f"s_mov_b32 s{S_MODE}, 0")
    a(f"v_mul_u32_u24 v10, {EPC}, v8")
    a("v_add_u32 v10, v10, v9")
    a(f"v_lshlrev_b32 v16, 5, v{LANE}")
    a(f"v_cmp_gt_u32 vcc, {P}, v8")
    a("s_waitcnt vmcnt(0)")
    stamp(1)
    a("v_lshrrev_b32 v11, 16, v12")
    a("v_and_b32 v12, 0xffff, v12")
    a("v_cndmask_b32 v11, 0, v11, vcc")
    a("v_add_u32 v10, v10, v12")
    a("v_sub_u32 v13, v11, v9")
    a("v_lshlrev_b32 v14, 4, v10")
    a("v_lshlrev_b32 v10, 2, v10")
    a(f"s_mov_b32 s3, {TAG_OFF}")
    RB = XB; TG = XB + 40; RK = XB + 50
    M = lambda r: f"s[{S_MASK+2*r}:{S_MASK+2*r+1}]"
    for r in range(NR):
        a(f"v_cmp_lt_i32 {M(r)}, {2*r}, v13")
    for r in range(NR):
        a(f"s_mov_b64 exec, {M(r)}")
        a("s_cbranch_execz K2_lt_done")
        a(f"buffer_load_dword v{TG+r}, v10, s[{S_WS}:{S_WS+3}], s3 offen offset:{8*r}")
    a("K2_lt_done:")
    a("s_mov_b64 exec, -1")
    a(f"v_cmp_lt_u32 s[{S_SAVE}:{S_SAVE+1}], {2*NR}, v11")
    a("v_mov_b32 v17, 1")
    a(f"s_mov_b32 s3, {CG_OFF}")
    for r in range(NR):
        a(f"s_mov_b64 exec, {M(r)}")
        a(f"s_cbranch_execz K2_lp{r}")
        a(f"buffer_load_dwordx4 v[{RB+4*r}:{RB+4*r+3}], v14, s[{S_WS}:{S_WS+3}], 0 offen offset:{32*r}")
    a(f"s_waitcnt vmcnt({NR})")
    a("K2_ld_done:")
    for r in range(NR):
        tail_code.extend([f"K2_lp{r}:", f"s_waitcnt vmcnt({r})", "s_branch K2_ld_done"])
    stamp(2)
    for r in range(NR):
        a(f"s_mov_b64 exec, {M(r)}")
        a("s_cbranch_execz K2_h_done")
        a(f"v_and_b32 v9, 0x3fc, v{TG+r}")
        a(f"v_lshlrev_b32 v8, 3, v{TG+r}")
        a(f"v_lshlrev_b32 v8, v8, v17")
        a(f"ds_add_rtn_u32 v{RK+r}, v9, v8 offset:{L_HIST}")
    a("K2_h_done:")
    a("s_mov_b64 exec, -1")
    a(f"buffer_load_dwordx4 v[{CG}:{CG+3}], v16, s[{S_WS}:{S_WS+3}], s3 offen")
    a(f"buffer_load_dwordx4 v[{CG+4}:{CG+7}], v16, s[{S_WS}:{S_WS+3}], s3 offen offset:16")
    a("s_waitcnt lgkmcnt(0)")
    for r in range(NR):
        a(f"s_mov_b64 exec, {M(r)}")
        a("s_cbranch_execz K2_r_done")
        a(f"v_lshlrev_b32 v8, 3, v{TG+r}")
        a(f"v_bfe_u32 v{RK+r}, v{RK+r}, v8, 8")
        a(f"v_and_b32 v8, 0x3f0, v{TG+r}")
        a(f"v_cmp_lt_u32 vcc, {CAPN-1}, v{RK+r}")
        a(f"v_lshl_add_u32 v{RK+r}, v8, 2, v{RK+r}")
        a(f"s_or_b64 s[{S_SAVE}:{S_SAVE+1}], s[{S_SAVE}:{S_SAVE+1}], vcc")
    a("K2_r_done:")
    a("s_mov_b64 exec, -1")
    a(f"v_mov_b32 v9, {L_FLAG}")
    a(f"s_cmp_eq_u64 s[{S_SAVE}:{S_SAVE+1}], 0")
    a("s_cbranch_scc1 K2_noflag")
    a("ds_write_b32 v9, v17")
    a("K2_noflag:")
    a(f"v_lshlrev_b32 v8, 4, v{LANE}")
    a("s_waitcnt lgkmcnt(0)")
    a("s_barrier")
    stamp(3)
    a(f"ds_read_b128 v[12:15], v8 offset:{L_HIST}")
    a("ds_read_b32 v9, v9")
    a(f"v_lshlrev_b32 v{V_T}, 4, v{TID}")
    bg = []
    for r in range(4):
        bg.append([f"s_lshl_b32 s5, s{S_WAVE}, 10", f"s_add_u32 s5, s5, {L_WT + r*K2_T*16}", "s_mov_b32 m0, s5",
                   f"s_mov_b32 s5, {WT_OFF + r*K2_T*16}",
                   f"buffer_load_dwordx4 v{V_T}, s[{S_WS}:{S_WS+3}], s5 offen lds"])
    tch = []
    if K2TOUCH:
        per = K2_T * 16
        k1bytes = (K1TOUCH + K1T2) * P * K1_T * 16
        for r in range((N * 1024 - k1bytes + NB * per - 1) // (NB * per)):
            tch.append([f"s_mul_i32 s5, s{S_WAVE}, {20*AGG_RS}", f"s_add_u32 s5, s5, {L_AGG}", "s_mov_b32 m0, s5",
                        f"s_lshl_b32 s5, s{S_B}, 13", f"s_add_u32 s5, s5, {k1bytes + r*NB*per}",
                        f"buffer_load_dwordx4 v{V_T}, s[{S_X}:{S_X+3}], s5 offen lds ; touch"])
    bg = tch + bg
    nbg0 = len(bg)
    nbg_before_scatter = lambda: nbg0 - len(bg)
    def bgop(n=1):
        for _ in range(n):
            if bg:
                for x in bg.pop(0): a(x)
    bgop(2)
    a("s_waitcnt lgkmcnt(0)")
    a("s_mov_b32 s3, 0x01010101")
    a("v_mov_b32 v10, 0")
    PW = 18
    for q in range(4):
        H = 12 + q
        a(f"v_lshlrev_b32 v{PW+q}, 8, v{H}")
        a(f"v_lshl_add_u32 v{PW+q}, v{H}, 16, v{PW+q}")
        a(f"v_lshl_add_u32 v{PW+q}, v{H}, 24, v{PW+q}")
        if q > 0:
            a(f"v_mul_lo_u32 v11, v10, s3")
            a(f"v_add_u32 v{PW+q}, v{PW+q}, v11")
        a(f"v_sad_u8 v10, v{H}, 0, v10")
    a(f"v_cmp_gt_u32 vcc, {NPB}, v{LANE}")
    a(f"s_and_saveexec_b64 s[{S_SAVE}:{S_SAVE+1}], vcc")
    a(f"ds_write_b128 v8, v[{PW}:{PW+3}] offset:{L_PRE}")
    a(f"v_cmp_lt_u32 vcc, {CAPN}, v10")
    a(f"s_mov_b64 exec, s[{S_SAVE}:{S_SAVE+1}]")
    a("v_readfirstlane_b32 s3, v9")
    a("s_cmp_lg_u64 vcc, 0")
    a("s_cbranch_scc1 K2_slow")
    a("s_cmp_lg_u32 s3, 0")
    a("s_cbranch_scc1 K2_slow")
    fstamp(0)
    bg_slow = [list(x) for x in bg]
    PR = [12, 13, 14, 15, 16, 17, 18, 19, 20, 21]
    for r in range(NR):
        a(f"s_mov_b64 exec, {M(r)}")
        a("s_cbranch_execz K2_p_done")
        a(f"v_and_b32 v8, 0x3ff, v{TG+r}")
        a(f"ds_read_u8 v{PR[r]}, v8 offset:{L_PRE}")
    a("K2_p_done:")
    a("s_mov_b64 exec, -1")
    bgop(1)
    a("v_add_u32 v8, 3, v10")
    a("v_lshrrev_b32 v8, 2, v8")
    a("v_subrev_u32 v8, 5, v8")
    a("v_med3_i32 v8, v8, 0, 7")
    a(f"v_cmp_gt_u32 vcc, {NPB}, v{LANE}")
    a("v_mov_b32 v9, 63")
    a("s_nop 0")
    a("v_cndmask_b32 v8, 64, v8, vcc")
    KM = [24, 26, 28, 30, 32, 82, 84, 86]
    for q in range(8):
        a(f"v_cmp_eq_u32 s[{KM[q]}:{KM[q]+1}], {q}, v8")
    fstamp(1)
    a(f"s_waitcnt vmcnt({nbg_before_scatter()}) lgkmcnt(0)")
    for r in range(NR):
        a(f"s_mov_b64 exec, {M(r)}")
        a("s_cbranch_execz K2_s_done")
        a(f"v_add_lshl_u32 v8, v{RK+r}, v{PR[r]}, 2")
        a(f"v_lshlrev_b32 v11, 2, v8")
        a(f"v_and_b32 v{TG+r}, 0xfffc00, v{TG+r}")
        a(f"ds_write_b128 v11, v[{RB+4*r}:{RB+4*r+3}] offset:{L_REC}")
        a(f"ds_write_b32 v8, v{TG+r} offset:{L_SOFF}")
    a("K2_s_done:")
    fstamp(2)
    a("s_mov_b32 s3, 0")
    for q in range(7, -1, -1):
        a(f"s_mov_b64 exec, s[{KM[q]}:{KM[q]+1}]")
        a(f"v_mbcnt_lo_u32_b32 v9, s{KM[q]}, 0")
        a(f"v_mbcnt_hi_u32_b32 v9, s{KM[q]+1}, v9")
        a("v_add_u32 v9, s3, v9")
        a(f"s_bcnt1_i32_b64 s4, s[{KM[q]}:{KM[q]+1}]")
        a("s_add_u32 s3, s3, s4")
    a("s_mov_b64 exec, -1")
    a("v_lshlrev_b32 v9, 2, v9")
    a(f"v_lshl_add_u32 v8, v10, 8, v{LANE}")
    a("ds_permute_b32 v8, v9, v8")
    bgop(2)
    a("s_waitcnt lgkmcnt(0)")
    a("ds_bpermute_b32 v11, v2, v8")
    a("ds_bpermute_b32 v6, v6, v8")
    a("ds_bpermute_b32 v1, v1, v8")
    a("v_mov_b32 v12, 0")
    a("v_mov_b32 v13, 0")
    a(f"s_mov_b32 s{S_PASS}, 0")
    a("K2_sched:")
    fstamp(5)
    a(f"v_and_b32 v14, 15, v{LANE}")
    a(f"s_lshl_b32 s3, s{S_WAVE}, 6")
    a("v_lshl_add_u32 v15, v7, 2, s3")
    a("s_waitcnt lgkmcnt(0)")
    a(f"ds_write_b32 v15, v11 offset:{L_NODE}")
    BS = [(6, 12, 16, 17, 18), (1, 13, 19, 20, 21)]
    for (vi, vd, vq, vt, ve) in BS:
        a(f"v_and_b32 v{vt}, 0xff, v{vi}")
        a(f"v_lshl_add_u32 v{vt}, v{vt}, 4, v14")
        a(f"ds_read_u8 v{vt}, v{vt} offset:{L_PRE+1}")
        a(f"v_lshrrev_b32 v{vq}, 8, v{vi}")
        a(f"v_add_u32 v{vq}, 3, v{vq}")
        a(f"v_lshrrev_b32 v{vq}, 2, v{vq}")
    a(f"s_cmp_eq_u32 s{S_PASS}, 0")
    a("s_cselect_b32 s4, 15, 0")
    a("v_cmp_le_u32 vcc, s4, v14")
    a("s_waitcnt lgkmcnt(0)")
    for (vi, vd, vq, vt, ve) in BS:
        a(f"v_add_u32 v{vt}, 1, v{vt}")
        a(f"v_lshrrev_b32 v{vt}, 2, v{vt}")
        a(f"v_cndmask_b32 v{vt}, v{vt}, v{vq}, vcc")
        a(f"v_sub_u32 v{vt}, v{vt}, v14")
        a(f"v_add_u32 v{ve}, 1, v{vd}")
        a(f"v_min_i32 v{vt}, v{vt}, v{ve}")
    for sh in (1, 2, 4, 8):
        a("s_nop 0")
        for (vi, vd, vq, vt, ve) in BS:
            a(f"v_min_i32_dpp v{vt}, v{vt}, v{vt} row_shr:{sh} row_mask:0xf bank_mask:0xf")
    for (vi, vd, vq, vt, ve) in BS:
        a(f"v_subrev_u32 v{ve}, 15, v{vq}")
        a(f"v_max_i32 v{vt}, v{vt}, v{ve}")
    for (vi, vd, vq, vt, ve) in BS:
        a(f"v_add_u32 v{ve}, v{vt}, v14")
    a("s_nop 0")
    for (vi, vd, vq, vt, ve) in BS:
        a(f"v_mov_b32_dpp v{vd}, v{ve} row_shr:1 row_mask:0xf bank_mask:0xf")
    a(f"s_lshl_b32 s4, s{S_WAVE}, 7")
    a("v_lshl_add_u32 v15, v14, 3, s4")
    for k_, (vi, vd, vq, vt, ve) in enumerate(BS):
        a(f"v_sub_u32 v{vt}, v{ve}, v{vd}")
        a(f"v_lshl_or_b32 v{vt}, v{vt}, 7, v{vd}")
        if k_ == 0:
            a(f"v_add_u32 v{vi}, v15, v{V_G}")
            a(f"ds_write_b8 v{vi}, v{vt} offset:{L_TAB}")
        else:
            a(f"ds_write_b8 v15, v{vt} offset:{L_TAB+4}")
    a(f"v_add_u32 v15, s4, v{LANE}")
    a(f"ds_read_u8 v12, v15 offset:{L_TAB}")
    a(f"ds_read_u8 v13, v15 offset:{L_TAB+64}")
    fstamp(6)
    a("v_and_b32 v16, 0xff, v11")
    a("v_lshlrev_b32 v16, 6, v16")
    a("v_lshrrev_b32 v10, 8, v11")
    a("v_cmp_gt_u32 vcc, 5, v7")
    a("v_mov_b32 v20, 0")
    a("v_mov_b32 v21, 0")
    a("v_cndmask_b32 v10, 0, v10, vcc")
    a("s_waitcnt lgkmcnt(0)")
    a("v_cndmask_b32 v12, 0, v12, vcc")
    a("v_cndmask_b32 v13, 0, v13, vcc")
    a(f"v_cmp_lt_u32 s[{S_S0}:{S_S0+1}], 64, v12")
    a(f"v_cmp_lt_u32 s[{S_S1}:{S_S1+1}], 64, v13")
    a("v_and_b32 v12, 0x7f, v12")
    a("v_and_b32 v13, 0x7f, v13")
    a("v_lshl_add_u32 v12, v12, 2, v16")
    a("v_lshl_add_u32 v13, v13, 2, v16")
    a(f"s_bcnt1_i32_b64 s4, s[{S_S0}:{S_S0+1}]")
    a(f"s_bcnt1_i32_b64 s{S_LEFT}, s[{S_S1}:{S_S1+1}]")
    a(f"s_add_u32 s{S_LEFT}, s{S_LEFT}, s4")
    a(f"s_lshl_b32 s5, s{S_WAVE}, 7")
    a("s_add_u32 s4, s4, s5")
    a(f"v_mbcnt_lo_u32_b32 v17, s{S_S0}, 0")
    a(f"v_mbcnt_hi_u32_b32 v17, s{S_S0+1}, v17")
    a(f"v_mbcnt_lo_u32_b32 v18, s{S_S1}, 0")
    a(f"v_mbcnt_hi_u32_b32 v18, s{S_S1+1}, v18")
    a("v_add_lshl_u32 v17, s5, v17, 2")
    a("v_add_lshl_u32 v18, s4, v18, 2")
    a(f"v_add_lshl_u32 v19, s5, v{LANE}, 2")
    a(f"v_mov_b32 v15, {DUMMY}")
    a(f"ds_write_b32 v19, v15 offset:{L_LST}")
    a(f"ds_write_b32 v19, v15 offset:{L_LST+256}")
    a(f"s_mov_b64 exec, s[{S_S0}:{S_S0+1}]")
    a(f"ds_write_b32 v17, v12 offset:{L_LST}")
    a(f"s_mov_b64 exec, s[{S_S1}:{S_S1+1}]")
    a(f"ds_write_b32 v18, v13 offset:{L_LST}")
    a("s_mov_b64 exec, -1")
    a(f"v_and_b32 v{V_LADDR}, 3, v{LANE}")
    a(f"v_add_lshl_u32 v{V_LADDR}, s5, v{V_LADDR}, 2")
    a(f"ds_read_b32 v12, v{V_LADDR} offset:{L_LST}")
    a(f"ds_read_b32 v{V_ENT}, v{V_LADDR} offset:{L_LST+16}")
    fstamp(7)
    a(f"v_lshrrev_b32 v14, 3, v{LANE}")
    a("v_add_u32 v15, 3, v10")
    a("v_and_b32 v15, 0xfc, v15")
    a("v_add_u32 v14, v10, v14")
    a("v_cmp_lt_u32 vcc, v14, v15")
    a("v_add_u32 v14, v16, v14")
    a(f"v_add_u32 v15, {DUMMY}, v7")
    a(f"v_subrev_u32 v19, 24, v{LANE}")
    a(f"v_cmp_gt_u32 s[{S_SAVE}:{S_SAVE+1}], 4, v19")
    a(f"v_bfe_u32 v{V_GP}, v{LANE}, 2, 2")
    a("v_mov_b32 v22, 0")
    a("v_mov_b32 v23, 0")
    a(f"v_cndmask_b32 v14, v14, v15, s[{S_SAVE}:{S_SAVE+1}]")
    a(f"s_or_b64 exec, vcc, s[{S_SAVE}:{S_SAVE+1}]")
    a("v_lshlrev_b32 v15, 4, v14")
    a("v_lshlrev_b32 v14, 2, v14")
    a(f"v_mov_b32 v19, {OOB}")
    a(f"ds_write_b128 v15, v[20:23] offset:{L_REC}")
    a(f"ds_write_b32 v14, v19 offset:{L_SOFF}")
    a("s_mov_b64 exec, -1")
    a("s_waitcnt lgkmcnt(0)")
    fstamp(8)
    a("s_barrier")
    stamp(4)
    a(f"s_cmp_lg_u32 s{S_PASS}, 0")
    a("s_cbranch_scc1 K2_nobg")
    bgop(100)
    a("K2_nobg:")
    def rd_soff(se):
        return [f"v_add_lshl_u32 v{V_T}, s{se}, v{V_G}, 2", f"ds_read_b32 v{V_SOFF}, v{V_T} offset:{L_SOFF}"]
    def rd_rec(ve):
        return [f"v_add_lshl_u32 v{V_T}, v{ve}, v{V_GP}, 4", f"ds_read_b128 v[{RECV}:{RECV+3}], v{V_T} offset:{L_REC}"]
    for q in range(NXB):
        a(f"v_readlane_b32 s{4+q}, v12, {q}")
    a(f"s_mov_b32 s{S_RC}, 0")
    a(f"s_mov_b32 s{S_IDX2}, s{S_LEFT}")
    for x in rd_rec(12): a(x)
    for x in rd_soff(4): a(x)
    for q in range(NXB - 1):
        a(f"s_cmp_gt_u32 s{S_LEFT}, {q}")
        a("s_cbranch_scc0 K2_t0")
        a("s_waitcnt lgkmcnt(0)")
        addr_fix()
        for x in ld_x(q): a(x)
        for x in rd_soff(5 + q): a(x)
    a("s_branch K2_t0")
    NS = 5 * NXB
    for s_ in range(NS):
        i = s_ % 5; b = s_ % NXB
        if i == 0:
            a(f"K2_re{s_}:")
            a(f"s_add_u32 s{S_RC}, s{S_RC}, 1")
            if PRIO == 1:
                a(f"s_lshr_b32 s{S_T}, s{S_WAVE}, 2")
                a(f"s_add_u32 s{S_T}, s{S_T}, s{S_RC}")
                a("s_setprio 0")
                a(f"s_bitcmp1_b32 s{S_T}, 0")
                a(f"s_cbranch_scc0 K2_pr{s_}")
                a("s_setprio 1")
                a(f"K2_pr{s_}:")
            a(f"s_lshr_b64 s[{S_S0}:{S_S0+1}], s[{S_S0}:{S_S0+1}], 8")
            a(f"s_and_b32 s{S_T}, s{S_RC}, {BARK-1}")
            a(f"s_cbranch_scc0 K2_rx{s_}")
            t = [f"K2_rx{s_}:",
                 f"s_cmp_eq_u32 s{S_RC}, 16", "s_cbranch_scc1 K2_loop_done",
                 f"s_cmp_lg_u32 s{S_RC}, 8", f"s_cbranch_scc1 K2_ry{s_}",
                 f"s_mov_b64 s[{S_S0}:{S_S0+1}], s[{S_S1}:{S_S1+1}]",
                 f"s_cmp_lg_u32 s{S_IDX2}, s{S_LEFT}", f"s_cbranch_scc1 K2_ry{s_}",
                 "s_waitcnt vmcnt(0)",
                 f"K2_ry{s_}:",
                 f"s_cmp_lg_u32 s{S_PASS}, 0", f"s_cbranch_scc1 K2_t{s_}",
                 "s_barrier", f"s_branch K2_t{s_}"]
            tail_code.extend(t)
        a(f"K2_t{s_}:")
        a(f"s_bitcmp1_b32 s{S_S0}, {i}")
        nxt = (s_ + 16) % NS
        a(f"s_cbranch_scc0 K2_{'re' if nxt % 5 == 0 else 't'}{nxt}")
        a(f"s_sub_u32 s{S_LEFT}, s{S_LEFT}, 1")
        a("s_waitcnt lgkmcnt(0)")
        a(f"v_readlane_b32 s{S_EB}, v{V_ENT}, {b}")
        a(f"s_cmp_lt_u32 s{S_LEFT}, {NXB-1}")
        DT = XB + 16 * (NXB - 1)
        if b == 0:
            a(f"v_perm_b32 v{V_T}, v{RECV+1}, v{RECV}, v{V_EASEL}")
            a(f"v_lshlrev_b32 v{OPS}, 16, v{RECV+2}")
            a(f"v_and_b32 v{OPS+1}, 0xffff0000, v{RECV+2}")
            a(f"v_lshlrev_b32 v{OPS+2}, 16, v{RECV+3}")
            a(f"v_and_b32 v{OPS+3}, 0xffff0000, v{RECV+3}")
            for x in range(4):
                a(f"v_mul_f32 v{OPS+x}, v{OPS+x}, v{V_T}")
            a(f"v_cvt_pk_bf16_f32 v{RECV}, v{OPS}, v{OPS+1}")
            a(f"v_cvt_pk_bf16_f32 v{RECV+1}, v{OPS+2}, v{OPS+3}")
            addr_fix()
            a("s_nop 0")
            for u in range(4):
                a(f"v_mfma_f32_16x16x16_bf16 v[{DT+4*u}:{DT+4*u+3}], v[{RECV}:{RECV+1}], v[{CG+2*u}:{CG+2*u+1}], 0")
        else:
            addr_fix()
            a(f"s_cbranch_scc1 K2_nl{s_}")
            for x in ld_x((b + NXB - 1) % NXB): a(x)
            a(f"K2_nl{s_}:")
            for x in rd_soff(S_EB): a(x)
            if b == 2:
                for x in rd_rec(V_ENT): a(x)
            if b == 3:
                a(f"v_add_u32 v{V_LADDR}, 16, v{V_LADDR}")
                a(f"ds_read_b32 v{V_ENT}, v{V_LADDR} offset:{L_LST+16}")
        pre = 0 if b == 0 else 4
        a(f"s_cbranch_scc1 K2_wx{s_}")
        a(f"s_waitcnt vmcnt({4*(NXB-2)+pre})")
        a(f"K2_wr{s_}:")
        t = [f"K2_wx{s_}:", "s_waitcnt vmcnt(8)", f"s_cmp_eq_u32 s{S_LEFT}, 2", f"s_cbranch_scc1 K2_wr{s_}",
             "s_waitcnt vmcnt(4)", f"s_cmp_eq_u32 s{S_LEFT}, 1", f"s_cbranch_scc1 K2_wr{s_}",
             "s_waitcnt vmcnt(0)", f"s_cmp_eq_u32 s{S_LEFT}, 0", f"s_branch K2_wr{s_}"]
        tail_code.extend(t)
        def pm(j):
            if XP in (2, 3): return
            m = j >> 1; sel = S_SELHI if j & 1 else S_SELLO
            o = OPS + 2 * (j % 2)
            x = lambda u: XB + 16 * b + 4 * u + m
            a(f"v_perm_b32 v{o}, v{x(1)}, v{x(0)}, s{sel}")
            a(f"v_perm_b32 v{o+1}, v{x(3)}, v{x(2)}, s{sel}")
        def mf(j):
            if XP in (1, 3): return
            o = OPS + 2 * (j % 2); c = ACC + 32 * i + 4 * j
            a(f"v_mfma_f32_16x16x16_bf16 v[{c}:{c+3}], v[{AOP+2*b}:{AOP+2*b+1}], v[{o}:{o+1}], v[{c}:{c+3}]")
        pm(0); pm(1)
        if b == 0:
            a("s_nop 1")
            for r in range(4):
                a(f"v_cvt_pk_bf16_f32 v{AOP+2*r}, v{DT+r}, v{DT+4+r}")
            for r in range(4):
                a(f"v_cvt_pk_bf16_f32 v{AOP+2*r+1}, v{DT+8+r}, v{DT+12+r}")
            a(f"s_cbranch_scc1 K2_nl{s_}")
            for x in ld_x(NXB - 1): a(x)
            a(f"K2_nl{s_}:")
            for x in rd_soff(S_EB): a(x)
        mf(0)
        for j in range(2, 8):
            pm(j)
            mf(j - 1)
        a("s_nop 0")
        mf(7)
    a("s_branch K2_re0")
    for x in tail_code: a(x)
    a("K2_loop_done:")
    a(f"s_cmp_lg_u32 s{S_MODE}, 0")
    a("s_cbranch_scc1 K2_slow_next")
    a("K2_epi:")
    stamp(5)
    a("s_waitcnt vmcnt(0) lgkmcnt(0)")
    a(f"v_add_u32 v1, {L_WR}, v{V_COL16}")
    for j in range(8):
        a(f"ds_read_b128 v[{XB+4*j}:{XB+4*j+3}], v1 offset:{256*j}")
    a(f"s_lshl_b32 s3, s{S_WAVE}, 6")
    a("v_mov_b32 v5, s3")
    a(f"ds_read_b128 v[16:19], v5 offset:{L_NODE}")
    a(f"ds_read_b32 v20, v5 offset:{L_NODE+16}")
    lane_id(LANE)
    a(f"s_and_b32 s3, s{S_WAVE}, 3")
    a("s_lshl_b32 s4, s3, 13")
    a(f"s_add_u32 s4, s4, {L_WT}")
    a(f"v_lshl_add_u32 v1, v{LANE}, 4, s4")
    a(f"v_mul_u32_u24 v2, {AGG_RS}, v{V_G}")
    a(f"v_add_u32 v2, v2, v{V_COL16}")
    a(f"v_add_u32 v2, {L_AGG}, v2")
    a(f"s_mov_b32 s4, {4*AGG_RS}")
    a("s_waitcnt lgkmcnt(0)")
    for x in range(8):
        a(f"ds_read_b128 v[{XB+32+4*x}:{XB+32+4*x+3}], v1 offset:{1024*x}")
    for i in range(5):
        a(f"v_and_b32 v{16+i}, 0xff, v{16+i}")
        a(f"v_mad_u32_u24 v{16+i}, v{16+i}, s4, v2")
    for i in range(5):
        for j in range(8):
            c = ACC + 32 * i + 4 * j; w = XB + 4 * j
            a(f"v_mul_f32 v{c}, v{c}, v{w}")
        for kk in range(1, 4):
            for j in range(8):
                c = ACC + 32 * i + 4 * j; w = XB + 4 * j
                a(f"v_fmac_f32 v{c}, v{c+kk}, v{w+kk}")
        o = 8 + 4 * (i % 2)
        for jj in range(4):
            c = ACC + 32 * i + 8 * jj
            a(f"v_cvt_pk_bf16_f32 v{o+jj}, v{c}, v{c+4}")
        a(f"ds_write_b128 v{16+i}, v[{o}:{o+3}]")
    a(f"s_lshr_b32 s5, s{S_WAVE}, 2")
    a(f"s_mul_i32 s6, s5, {16*AGG_RS}")
    a(f"s_add_u32 s6, s6, {L_AGG}")
    a(f"v_and_b32 v6, 15, v{LANE}")
    a(f"v_mul_u32_u24 v7, {AGG_RS}, v6")
    a(f"v_lshl_add_u32 v7, v{V_G}, 4, v7")
    a("v_add_u32 v7, s6, v7")
    a("v_lshlrev_b32 v5, 8, v6")
    a(f"v_lshl_add_u32 v5, v{V_G}, 4, v5")
    a(f"s_mul_i32 s6, s{S_B}, 625")
    a("s_add_u32 s7, s6, 640")
    a("s_add_u32 s6, s6, 15")
    a("s_lshr_b32 s6, s6, 4")
    a("s_lshr_b32 s7, s7, 4")
    a("s_sub_u32 s7, s7, s6")
    a("s_lshl_b32 s7, s7, 2")
    a("s_lshl_b32 s4, s5, 4")
    a("s_sub_u32 s7, s7, s4")
    a("s_sub_u32 s7, s7, 128")
    a(f"v_mov_b32 v21, {OOB}")
    a("v_cmp_gt_u32 vcc, s7, v6")
    a("s_lshl_b32 s6, s6, 10")
    a("s_nop 0")
    a("v_cndmask_b32 v21, v21, v5, vcc")
    a("s_lshl_b32 s7, s5, 12")
    a("s_add_u32 s6, s6, s7")
    a("s_lshl_b32 s7, s3, 6")
    a("s_add_u32 s6, s6, s7")
    a("s_waitcnt lgkmcnt(0)")
    a("s_barrier")
    stamp(6)
    BB = ACC
    for u in range(5):
        for t in range(4):
            r = BB + 16 * u + 4 * t
            a(f"ds_read_b128 v[{r}:{r+3}], v7 offset:{u*32*AGG_RS + t*64}")
    DD = ACC + 80
    def fin(u):
        d = DD + 8 * u
        o = BB + 4 * u
        for x in range(4):
            a(f"v_cvt_pk_bf16_f32 v{o+x}, v{d+2*x}, v{d+2*x+1}")
        a(f"buffer_store_dwordx4 v[{o}:{o+3}], v{21 if u == 4 else 5}, s[{S_OUT}:{S_OUT+3}], s6 offen {OMOD}")
        a(f"s_add_u32 s6, s6, {32*256}")
    for u in range(5):
        a(f"s_waitcnt lgkmcnt({min(15, 4*(4-u))})")
        for t in range(4):
            r = BB + 16 * u + 4 * t
            for hh in range(2):
                d = DD + 8 * u + 4 * hh; w = XB + 32 + 16 * hh + 4 * t
                c = "0" if t == 0 else f"v[{d}:{d+3}]"
                a(f"v_mfma_f32_16x16x32_bf16 v[{d}:{d+3}], v[{w}:{w+3}], v[{r}:{r+3}], {c}")
        if u > 0: fin(u - 1)
    a("s_nop 7")
    fin(4)
    stamp(7)
    if STAMP: a("s_waitcnt vmcnt(0)")
    stamp(8)
    stamp_flush(1, 8, 9, S_WAVE, 1)
    a("K2_end:")
    a("s_endpgm")
    a("K2_slow:")
    for grp in bg_slow:
        if "touch" not in grp[-1]:
            for x in grp: a(x)
    a(f"s_mov_b32 s{S_MODE}, 1")
    a(f"s_mov_b32 s{S_WIN}, 0")
    a(f"v_lshlrev_b32 v8, 10, v{LANE}")
    a(f"s_lshl_b32 s3, s{S_B}, 2")
    a(f"s_add_u32 s3, s3, {OFFS_OFF}")
    for h in range(4):
        a(f"buffer_load_dword v{10+2*h}, v8, s[{S_WS}:{S_WS+3}], s3 offen")
        a("s_add_u32 s3, s3, 65536")
    a(f"v_cmp_gt_u32 vcc, {P-192}, v{LANE}")
    a("s_waitcnt vmcnt(0)")
    for h in range(4):
        a(f"v_lshrrev_b32 v{10+2*h}, 16, v{10+2*h}")
    a("v_cndmask_b32 v16, 0, v16, vcc")
    a("v_max_u32 v10, v10, v12")
    a("v_max3_u32 v10, v10, v14, v16")
    wave_scan(10, "v_max_u32_dpp")
    a("s_nop 1")
    a(f"v_readlane_b32 s{S_MAXC}, v10, 63")
    a("K2_slow_win:")
    a(f"s_cmp_ge_u32 s{S_WIN}, s{S_MAXC}")
    a("s_cbranch_scc1 K2_slow_fin")
    def seg_setup():
        lane_id(LANE)
        a(f"s_lshl_b32 s3, s{S_WAVE}, 6")
        a(f"v_add_u32 v{TID}, s3, v{LANE}")
        a(f"v_lshrrev_b32 v8, 1, v{TID}")
        a(f"v_and_b32 v9, 1, v{TID}")
        a("v_lshlrev_b32 v10, 10, v8")
        a(f"s_lshl_b32 s3, s{S_B}, 2")
        a(f"s_add_u32 s3, s3, {OFFS_OFF}")
        a(f"buffer_load_dword v12, v10, s[{S_WS}:{S_WS+3}], s3 offen")
        a(f"v_mul_u32_u24 v10, {EPC}, v8")
        a(f"v_add3_u32 v10, v10, v9, s{S_WIN}")
        a(f"v_cmp_gt_u32 vcc, {P}, v8")
        a("s_waitcnt vmcnt(0)")
        a("v_lshrrev_b32 v11, 16, v12")
        a("v_and_b32 v12, 0xffff, v12")
        a("v_cndmask_b32 v11, 0, v11, vcc")
        a("v_add_u32 v10, v10, v12")
        a("v_sub_u32 v13, v11, v9")
        a(f"v_subrev_u32 v13, s{S_WIN}, v13")
        a("v_lshlrev_b32 v14, 4, v10")
        a("v_lshlrev_b32 v10, 2, v10")
    seg_setup()
    for r in range(NR):
        a(f"v_cmp_lt_i32 {M(r)}, {2*r}, v13")
    a("K2_slow_batch:")
    a("s_waitcnt vmcnt(0) lgkmcnt(0)")
    a("s_barrier")
    seg_setup()
    a(f"v_lshlrev_b32 v8, 2, v{TID}")
    a("v_mov_b32 v9, 0")
    a(f"v_cmp_gt_u32 vcc, {NPB*4+4}, v{TID}")
    a(f"s_and_saveexec_b64 s[{S_SAVE}:{S_SAVE+1}], vcc")
    a(f"ds_write_b32 v8, v9 offset:{L_HIST}")
    a("s_mov_b64 exec, -1")
    a("s_waitcnt lgkmcnt(0)")
    a("s_barrier")
    a("v_mov_b32 v17, 1")
    a(f"s_mov_b32 s3, {TAG_OFF}")
    a(f"s_mov_b64 s[{S_SAVE}:{S_SAVE+1}], 0")
    for r in range(NR):
        a(f"s_mov_b64 exec, {M(r)}")
        a(f"s_cbranch_execz K2_slow_skip{r}")
        a(f"buffer_load_dword v16, v10, s[{S_WS}:{S_WS+3}], s3 offen offset:{8*r}")
        a(f"buffer_load_dwordx4 v[{XB}:{XB+3}], v14, s[{S_WS}:{S_WS+3}], 0 offen offset:{32*r}")
        a("s_waitcnt vmcnt(0)")
        a("v_bfe_u32 v8, v16, 4, 6")
        a("v_lshlrev_b32 v9, 4, v8")
        a(f"ds_add_rtn_u32 v15, v9, v17 offset:{L_HIST}")
        a("v_and_b32 v16, 0xfffc00, v16")
        a("s_waitcnt lgkmcnt(0)")
        a(f"v_cmp_gt_u32 vcc, {CAPN}, v15")
        a(f"s_andn2_b64 {M(r)}, {M(r)}, vcc")
        a(f"s_or_b64 s[{S_SAVE}:{S_SAVE+1}], s[{S_SAVE}:{S_SAVE+1}], {M(r)}")
        a("s_mov_b64 exec, vcc")
        a("v_lshl_add_u32 v8, v8, 6, v15")
        a("v_lshlrev_b32 v9, 4, v8")
        a("v_lshlrev_b32 v8, 2, v8")
        a(f"ds_write_b128 v9, v[{XB}:{XB+3}] offset:{L_REC}")
        a(f"ds_write_b32 v8, v16 offset:{L_SOFF}")
        a("s_waitcnt lgkmcnt(0)")
        a(f"K2_slow_skip{r}:")
    a("s_mov_b64 exec, -1")
    a(f"v_mov_b32 v9, {L_FLAG}")
    a(f"s_cmp_eq_u64 s[{S_SAVE}:{S_SAVE+1}], 0")
    a("s_cbranch_scc1 K2_slow_nof")
    a("ds_write_b32 v9, v17")
    a("K2_slow_nof:")
    a("s_waitcnt lgkmcnt(0)")
    a("s_barrier")
    a(f"v_and_b32 v7, 7, v{LANE}")
    a(f"s_mul_i32 s3, s{S_WAVE}, 5")
    a("v_add_u32 v11, s3, v7")
    a(f"v_add_u32 v6, s3, v{V_G}")
    a("s_add_u32 s3, s3, 4")
    a("v_mov_b32 v1, s3")
    for (vn, vt) in ((11, 12), (6, 13), (1, 14)):
        a(f"v_lshlrev_b32 v{vt}, 4, v{vn}")
        a(f"ds_read_b32 v{vt}, v{vt} offset:{L_HIST}")
    a("ds_read_b32 v9, v9")
    a("s_waitcnt lgkmcnt(0)")
    for (vn, vt) in ((11, 12), (6, 13), (1, 14)):
        a(f"v_min_u32 v{vt}, {CAPN}, v{vt}")
        a(f"v_lshl_add_u32 v{vn}, v{vt}, 8, v{vn}")
    a(f"v_readfirstlane_b32 s{S_MODE}, v9")
    a("v_mov_b32 v12, 0")
    a("v_mov_b32 v13, 0")
    a(f"s_add_u32 s{S_MODE}, s{S_MODE}, 1")
    a(f"s_mov_b32 s{S_PASS}, 1")
    a("s_branch K2_sched")
    a("K2_slow_next:")
    a(f"s_cmp_eq_u32 s{S_MODE}, 2")
    a("s_cbranch_scc1 K2_slow_batch")
    a(f"s_add_u32 s{S_WIN}, s{S_WIN}, {2*NR}")
    a("s_waitcnt vmcnt(0) lgkmcnt(0)")
    a("s_branch K2_slow_win")
    a("K2_slow_fin:")
    a("s_branch K2_epi")
    a("K2_code_end:")
    a("s_endpgm")

def gen_report():
    k = "rep_kernel"
    a(f".globl {k}\n.p2align 8\n.type {k},@function\n{k}:")
    a("s_cmp_lg_u32 s2, 0")
    a("s_cbranch_scc1 R_end")
    a("s_load_dwordx4 s[4:7], s[0:1], 72")
    a("s_waitcnt lgkmcnt(0)")
    def red(reg, op):
        wave_scan(reg, op)
    a("v_mov_b32 v10, -1")
    for r in range(11, 30): a(f"v_mov_b32 v{r}, 0")
    a("v_mov_b32 v14, -1")
    a("v_mov_b32 v20, -1")
    a(f"v_lshlrev_b32 v1, 6, v0")
    a(f"v_add_u32 v1, {DBG_OFF}, v1")
    for kx in range(19):
        a("global_load_dwordx4 v[2:5], v1, s[6:7]")
        a("global_load_dwordx4 v[6:9], v1, s[6:7] offset:16")
        a("s_waitcnt vmcnt(0)")
        a("v_min_u32 v10, v10, v2")
        a("v_max_u32 v11, v11, v3")
        a("v_max_u32 v12, v12, v5")
        a("v_max_u32 v13, v13, v8")
        a("v_add_u32 v1, 4096, v1")
    a(f"v_lshlrev_b32 v1, 6, v0")
    a(f"v_add_u32 v1, {DBG_OFF + (1<<20)}, v1")
    for kx in range(31):
        a("global_load_dwordx4 v[2:5], v1, s[6:7]")
        a("global_load_dwordx4 v[6:9], v1, s[6:7] offset:16")
        a("global_load_dword v30, v1, s[6:7] offset:32")
        a("s_waitcnt vmcnt(0)")
        a("v_min_u32 v14, v14, v2")
        a("v_max_u32 v15, v15, v2")
        a("v_max_u32 v16, v16, v3")
        a("v_max_u32 v17, v17, v4")
        a("v_max_u32 v18, v18, v5")
        a("v_max_u32 v19, v19, v6")
        a("v_min_u32 v20, v20, v7")
        a("v_max_u32 v21, v21, v7")
        a("v_max_u32 v22, v22, v8")
        a("v_max_u32 v23, v23, v9")
        a("v_max_u32 v24, v24, v30")
        a("v_add_u32 v1, 4096, v1")
    for r in range(10, 25):
        red(r, "v_min_u32_dpp" if r in (10, 14, 20) else "v_max_u32_dpp")
    a("s_memrealtime s[8:9]")
    a("s_waitcnt lgkmcnt(0)")
    a("v_mov_b32 v25, s8")
    a("s_mov_b32 exec_lo, 0")
    a("s_mov_b32 exec_hi, 0x80000000")
    a("v_mov_b32 v1, 0")
    for r in range(11, 26):
        a(f"v_sub_u32 v2, v{r}, v10")
        a(f"global_store_dword v1, v2, s[4:5] offset:{4*(r-11)}")
    a("R_end:")
    a("s_endpgm")

def kd(name, nv, ns):
    return f""".p2align 6
.amdhsa_kernel {name}
  .amdhsa_next_free_vgpr {nv}
  .amdhsa_next_free_sgpr {ns}
  .amdhsa_accum_offset {(nv+3)//4*4}
  .amdhsa_group_segment_fixed_size 0
  .amdhsa_kernarg_size 88
  .amdhsa_user_sgpr_count 2
  .amdhsa_user_sgpr_kernarg_segment_ptr 1
  .amdhsa_system_sgpr_workgroup_id_x 1
.end_amdhsa_kernel"""

def main():
    hdr = open("cdna_kernels/" + NAME + ".s.ref").read().split("\n")
    hdr = [l for l in hdr[:12] if l.startswith(";")]
    print("\n".join(hdr))
    print(f"; @launch kernel=part_kernel grid=({K1_GRID},1,1) block=({K1_T},1,1) lds={K1_LDS}")
    print(f"; @launch kernel=main_kernel grid=(256,1,1) block=({K2_T},1,1) lds={K2_LDS}")
    if STAMP == 2: print("; @launch kernel=rep_kernel grid=(1,1,1) block=(64,1,1) lds=0")
    print('.amdgcn_target "amdgcn-amd-amdhsa--gfx950"')
    print(".text")
    gen_k1()
    gen_k2()
    if STAMP == 2: gen_report()
    print("\n".join(("" if (l.endswith(":") or l.startswith(".")) else "    ") + l for l in out))
    print('.section .rodata,"a"')
    print(kd("part_kernel", 64, 96 if STAMP else 48))
    print(kd("main_kernel", 256, 102))
    if STAMP == 2: print(kd("rep_kernel", 32, 16))

main()
```

```python
import sys, os

NAME = "gather_scatter__tensor_product_equiv_mace__graph"
N = 10000; E = 320000
P = 250; EPC = E // P
NB = 256; NPB = 40
NR = 10
CAPN = 64
env = lambda k, d: type(d)(os.environ.get(k, d))
STAMP = env("STAMP", 0)
STMOD = env("STMOD", "sc1")
K2TOUCH = env("K2TOUCH", 1)
K1TOUCH = env("K1TOUCH", 0)
K1T2 = env("K1T2", 0)
LDMOD = env("LDMOD", "nt")
RMOD = env("RMOD", "")
CODEPF = env("CODEPF", 1)
BAL = env("BAL", 1)
OMOD = env("OMOD", "sc0 sc1")
XP = env("XP", 0)
ILV = env("ILV", 1)
PRIO = env("PRIO", 1)
ROT = env("ROT", 0)
NOCOMP = env("NOCOMP", 0)
NOMEM = env("NOMEM", 0)

REC_OFF = 0
TAG_OFF = REC_OFF + E * 16
OFFS_OFF = TAG_OFF + E * 4
WT_OFF = OFFS_OFF + 256 * 1024
WR_OFF = WT_OFF + 32768
CG_OFF = WR_OFF + 2048
WS_USED = WT_OFF + 40960 + 4096
DBG_OFF = 8 << 20

out = []
def a(s): out.append(s)
FINE = env("FINE", 0)
def stamp(i):
    if FINE and i in (0, 1, 2, 5, 6, 7, 8): return
    if STAMP: a(f"s_memrealtime s[{64+2*i}:{65+2*i}]")
def fstamp(i):
    if FINE: a(f"s_memrealtime s[{64+2*i}:{65+2*i}]")
def stamp_flush(kidx, wavesper, n, swave, vt=1):
    if not STAMP: return
    if STAMP == 4 and kidx == 1:
        k = env("LEAK", 0); k1 = env("LEAK1", 0)
        a("s_waitcnt lgkmcnt(0)")
        a("s_cmp_lg_u32 s2, 8")
        a("s_cbranch_scc1 K2_end")
        a(f"s_cmp_lg_u32 s{swave}, 0")
        a("s_cbranch_scc1 K2_end")
        a("s_load_dwordx2 s[90:91], s[0:1], 80")
        a(f"v_mov_b32 v1, {DBG_OFF + 8*5*64 + 4*k1}")
        a("s_waitcnt lgkmcnt(0)")
        a("global_load_dword v2, v1, s[90:91]")
        a("s_waitcnt vmcnt(0)")
        a("v_readfirstlane_b32 s93, v2")
        a("s_nop 3")
        a(f"s_sub_u32 s92, s{64+2*k}, s93")
        a("s_mul_i32 s92, s92, 10")
        a("s_min_u32 s92, s92, 100000")
        a("LK_loop:")
        a("s_memrealtime s[94:95]")
        a("s_waitcnt lgkmcnt(0)")
        a("s_sub_u32 s93, s94, s80")
        a("s_cmp_lt_u32 s93, s92")
        a("s_cbranch_scc1 LK_loop")
        return
    a("s_mov_b64 exec, -1")
    a("s_load_dwordx2 s[90:91], s[0:1], 80")
    a(f"s_mul_i32 s92, s2, {wavesper}")
    a(f"s_add_u32 s92, s92, s{swave}")
    a(f"s_lshl_b32 s92, s92, 6")
    a(f"s_add_u32 s92, s92, {DBG_OFF + kidx*(1<<20)}")
    a(f"v_mov_b32 v{vt}, s92")
    a("s_waitcnt lgkmcnt(0)")
    a("s_mov_b64 exec, 1")
    for i in range(n):
        a(f"v_mov_b32 v{vt+1}, s{64+2*i}")
        a(f"global_store_dword v{vt}, v{vt+1}, s[90:91] offset:{4*i}")

def srd(d, base, nbytes):
    a(f"s_mov_b32 s{d}, s{base}")
    a(f"s_and_b32 s{d+1}, s{base+1}, 0xffff")
    a(f"s_mov_b32 s{d+2}, {nbytes}")
    a(f"s_mov_b32 s{d+3}, 0x20000")

def wave_scan(v, op="v_add_u32_dpp"):
    for sh in (1, 2, 4, 8):
        a("s_nop 1")
        a(f"{op} v{v}, v{v}, v{v} row_shr:{sh} row_mask:0xf bank_mask:0xf")
    a("s_nop 1")
    a(f"{op} v{v}, v{v}, v{v} row_bcast:15 row_mask:0xa bank_mask:0xf")
    a("s_nop 1")
    a(f"{op} v{v}, v{v}, v{v} row_bcast:31 row_mask:0xc bank_mask:0xf")

K1_T = 320
K1_HIST = 0; K1_OFFS = 1024; K1_TAG = 2048; K1_REC = K1_TAG + EPC * 4
K1_LDS = K1_REC + EPC * 16
NWPREP = 8
K1_GRID = P + NWPREP

def gen_k1():
    k = "part_kernel"
    a(f".globl {k}\n.p2align 8\n.type {k},@function\n{k}:")
    a(f"s_cmp_ge_u32 s2, {K1_GRID}")
    a("s_cbranch_scc1 K1_end")
    a(f"s_cmp_ge_u32 s2, {P}")
    a("s_cbranch_scc1 K1_wprep")
    stamp(0)
    a("s_load_dwordx4 s[4:7], s[0:1], 8")
    a("s_load_dwordx4 s[8:11], s[0:1], 24")
    a("s_load_dwordx2 s[12:13], s[0:1], 80")
    if K1TOUCH or K1T2: a("s_load_dwordx2 s[44:45], s[0:1], 0")
    a("v_lshlrev_b32 v1, 4, v0")
    a("v_lshlrev_b32 v2, 5, v0")
    a("v_lshlrev_b32 v3, 2, v0")
    a("v_mov_b32 v4, 0")
    a(f"ds_write_b32 v3, v4 offset:{K1_HIST}")
    a(f"s_mul_i32 s14, s2, {EPC*4}")
    a(f"s_mul_i32 s15, s2, {EPC*8}")
    a("v_lshrrev_b32 v5, 6, v0")
    a("s_waitcnt lgkmcnt(0)")
    srd(20, 6, E * 4)
    a(f"buffer_load_dwordx4 v[8:11], v1, s[20:23], s14 offen {LDMOD}")
    srd(16, 4, E * 4)
    a(f"buffer_load_dwordx4 v[12:15], v1, s[16:19], s14 offen {LDMOD}")
    srd(24, 8, E * 8)
    srd(28, 10, E * 8)
    srd(32, 12, WS_USED)
    a("v_readfirstlane_b32 s47, v5")
    a("s_barrier")
    a(f"buffer_load_dwordx4 v[16:19], v2, s[24:27], s15 offen {LDMOD}")
    a(f"buffer_load_dwordx4 v[20:23], v2, s[24:27], s15 offen offset:16 {LDMOD}")
    a(f"buffer_load_dwordx4 v[24:27], v2, s[28:31], s15 offen {LDMOD}")
    a(f"buffer_load_dwordx4 v[28:31], v2, s[28:31], s15 offen offset:16 {LDMOD}")
    a("s_mov_b32 s40, 429497")
    a("s_mov_b32 s41, 625")
    a("s_mov_b32 s42, 6711")
    a("v_mov_b32 v5, 1")
    a("v_and_b32 v6, 63, v0")
    a("v_lshlrev_b32 v6, 4, v6")
    a("s_waitcnt vmcnt(5)")
    stamp(1)
    for e in range(4):
        a(f"v_mul_u32_u24 v{32+e}, s40, v{8+e}")
        a(f"v_lshrrev_b32 v{32+e}, 24, v{32+e}")
        a(f"v_lshlrev_b32 v{36+e}, 2, v{32+e}")
        a(f"ds_add_rtn_u32 v{40+e}, v{36+e}, v5 offset:{K1_HIST}")
    a("s_waitcnt vmcnt(4)")
    for e in range(4):
        a(f"v_mad_u32_u24 v{32+e}, v{32+e}, s41, 15")
        a(f"v_lshrrev_b32 v{32+e}, 4, v{32+e}")
        a(f"v_sub_u32 v{8+e}, v{8+e}, v{32+e}")
        a(f"v_mul_u32_u24 v{32+e}, s42, v{12+e}")
        a(f"v_lshrrev_b32 v{32+e}, 22, v{32+e}")
        a(f"v_lshl_add_u32 v{8+e}, v{8+e}, 4, v{32+e}")
        a(f"v_lshl_add_u32 v{12+e}, v{12+e}, 10, v{8+e}")
    a("s_waitcnt lgkmcnt(0)")
    a("s_barrier")
    stamp(2)
    if K1TOUCH:
        srd(36, 44, N * 1024)
        a(f"s_mul_i32 s46, s2, {K1_T*16}")
        for r in range(K1TOUCH):
            a("buffer_load_dwordx4 v[60:63], v1, s[36:39], s46 offen")
            a(f"s_add_u32 s46, s46, {P*K1_T*16}")
    a(f"ds_read_b128 v[44:47], v6 offset:{K1_HIST}")
    a("s_waitcnt lgkmcnt(0)")
    a("v_add_u32 v48, v44, v45")
    a("v_add3_u32 v48, v48, v46, v47")
    a("v_mov_b32 v49, v48")
    wave_scan(49)
    a("v_sub_u32 v52, v49, v48")
    a("v_add_u32 v53, v52, v44")
    a("v_add_u32 v54, v53, v45")
    a("v_add_u32 v55, v54, v46")
    a(f"ds_write_b128 v6, v[52:55] offset:{K1_OFFS}")
    for e in range(4):
        a(f"ds_read_b32 v{32+e}, v{36+e} offset:{K1_OFFS}")
    a("s_cmp_lg_u32 s47, 0")
    a("s_cbranch_scc1 K1_noffs")
    a("s_lshl_b32 s43, s2, 10")
    a(f"s_add_u32 s43, s43, {OFFS_OFF}")
    for e in range(4):
        a(f"v_lshl_or_b32 v{56+e}, v{44+e}, 16, v{52+e}")
    a(f"buffer_store_dwordx4 v[56:59], v6, s[32:35], s43 offen {STMOD}")
    a(f"s_waitcnt vmcnt({K1TOUCH+1}) lgkmcnt(0)")
    a("s_branch K1_go")
    a("K1_noffs:")
    a(f"s_waitcnt vmcnt({K1TOUCH}) lgkmcnt(0)")
    a("K1_go:")
    stamp(3)
    for e in range(4):
        a(f"v_add_u32 v{32+e}, v{32+e}, v{40+e}")
        a(f"v_lshlrev_b32 v{36+e}, 4, v{32+e}")
        a(f"v_add_u32 v{36+e}, {K1_REC}, v{36+e}")
        a(f"v_lshlrev_b32 v{32+e}, 2, v{32+e}")
        a(f"ds_write2_b64 v{36+e}, v[{16+2*e}:{17+2*e}], v[{24+2*e}:{25+2*e}] offset0:0 offset1:1")
        a(f"ds_write_b32 v{32+e}, v{12+e} offset:{K1_TAG}")
    a(f"s_mul_i32 s43, s2, {EPC*16}")
    a(f"s_add_u32 s46, s14, {TAG_OFF}")
    a("s_waitcnt lgkmcnt(0)")
    a("s_barrier")
    stamp(4)
    a(f"ds_read_b128 v[24:27], v1 offset:{K1_TAG}")
    for r in range(4):
        a(f"ds_read_b128 v[{8+4*r}:{11+4*r}], v1 offset:{K1_REC + r*K1_T*16}")
    a("s_waitcnt lgkmcnt(4)")
    a(f"buffer_store_dwordx4 v[24:27], v1, s[32:35], s46 offen {STMOD}")
    for r in range(4):
        a(f"s_waitcnt lgkmcnt({3-r})")
        a(f"buffer_store_dwordx4 v[{8+4*r}:{11+4*r}], v1, s[32:35], s43 offen {STMOD}")
        a(f"s_add_u32 s43, s43, {K1_T*16}")
    if K1T2:
        srd(36, 44, N * 1024)
        a(f"s_mul_i32 s46, s2, {K1_T*16}")
        a(f"s_add_u32 s46, s46, {K1TOUCH*P*K1_T*16}")
        for r in range(K1T2):
            a("buffer_load_dwordx4 v[60:63], v1, s[36:39], s46 offen")
            a(f"s_add_u32 s46, s46, {P*K1_T*16}")
    stamp(5)
    if STAMP: a("s_waitcnt vmcnt(0)")
    stamp(6)
    stamp_flush(0, 5, 7, 47, 40)
    a("s_endpgm")
    a("K1_wprep:")
    a("s_load_dwordx4 s[4:7], s[0:1], 40")
    a("s_load_dwordx2 s[8:9], s[0:1], 56")
    a("s_load_dwordx2 s[12:13], s[0:1], 80")
    a(f"s_sub_u32 s14, s2, {P}")
    a("s_waitcnt lgkmcnt(0)")
    srd(16, 4, 128)
    srd(20, 6, 1024)
    srd(24, 8, 32768)
    srd(32, 12, WS_USED)
    a("v_cmp_gt_u32 vcc, 256, v0")
    a("s_and_saveexec_b64 s[36:37], vcc")
    a("s_cbranch_execz K1_wsmall")
    a("v_bfe_u32 v2, v0, 6, 2")
    a("v_bfe_u32 v3, v0, 4, 2")
    a("v_bfe_u32 v4, v0, 2, 2")
    a("v_and_b32 v5, 3, v0")
    a("v_lshlrev_b32 v6, 13, v2")
    a("v_lshl_add_u32 v6, v3, 11, v6")
    a("v_lshl_add_u32 v6, v4, 4, v6")
    a("v_lshl_add_u32 v6, v5, 1, v6")
    a("s_lshr_b32 s15, s14, 1")
    a("s_lshl_b32 s15, s15, 6")
    a("s_and_b32 s38, s14, 1")
    a("s_lshl_b32 s38, s38, 3")
    a("s_add_u32 s15, s15, s38")
    for q in range(8):
        a(f"buffer_load_ushort v{16+q}, v6, s[24:27], s15 offen offset:{q*256}")
    a("v_lshlrev_b32 v7, 4, v0")
    a("s_lshl_b32 s15, s14, 12")
    a(f"s_add_u32 s15, s15, {WT_OFF}")
    a("s_waitcnt vmcnt(0)")
    for q in range(4):
        a(f"v_lshl_or_b32 v{8+q}, v{17+2*q}, 16, v{16+2*q}")
    a("buffer_store_dwordx4 v[8:11], v7, s[32:35], s15 offen")
    a("s_endpgm")
    a("K1_wsmall:")
    a("s_mov_b64 exec, s[36:37]")
    a("v_subrev_u32 v1, 256, v0")
    a("s_cmp_lt_u32 s14, 2")
    a("s_cbranch_scc0 K1_wcg")
    a("s_lshl_b32 s15, s14, 6")
    a("v_add_u32 v1, s15, v1")
    a("v_lshlrev_b32 v2, 1, v1")
    for kk in range(4):
        a(f"buffer_load_ushort v{8+kk}, v2, s[20:23], 0 offen offset:{kk*256}")
    a("v_and_b32 v3, 7, v1")
    a("v_lshlrev_b32 v3, 4, v3")
    a("v_lshrrev_b32 v4, 3, v1")
    a("v_add_lshl_u32 v3, v3, v4, 4")
    a(f"s_mov_b32 s15, {WR_OFF}")
    a("s_waitcnt vmcnt(0)")
    for kk in range(4):
        a(f"v_lshlrev_b32 v{8+kk}, 16, v{8+kk}")
    a("buffer_store_dwordx4 v[8:11], v3, s[32:35], s15 offen")
    a("s_endpgm")
    a("K1_wcg:")
    a("s_cmp_eq_u32 s14, 2")
    a("s_cbranch_scc0 K1_wcode")
    a("v_lshrrev_b32 v2, 2, v1")
    a("v_lshlrev_b32 v2, 1, v2")
    for u in range(4):
        a(f"buffer_load_ushort v{16+u}, v2, s[16:19], 0 offen offset:{32*u}")
    a("v_and_b32 v3, 1, v1")
    a("v_lshlrev_b32 v3, 4, v3")
    a("v_and_b32 v4, 2, v1")
    a("v_cmp_eq_u32 vcc, 0, v4")
    a("v_lshlrev_b32 v6, 5, v1")
    a(f"s_mov_b32 s15, {CG_OFF}")
    a("s_waitcnt vmcnt(0)")
    for u in range(4):
        a(f"v_lshlrev_b32 v{16+u}, v3, v{16+u}")
        a(f"v_cndmask_b32 v{8+2*u}, 0, v{16+u}, vcc")
        a(f"v_cndmask_b32 v{9+2*u}, v{16+u}, 0, vcc")
    a("buffer_store_dwordx4 v[8:11], v6, s[32:35], s15 offen")
    a("buffer_store_dwordx4 v[12:15], v6, s[32:35], s15 offen offset:16")
    a("s_endpgm")
    a("K1_wcode:")
    if CODEPF:
        a("s_cmp_eq_u32 s14, 3")
        a("s_cbranch_scc0 K1_end")
        a("s_getpc_b64 s[40:41]")
        a("K1_pc:")
        a("s_add_u32 s40, s40, main_kernel-K1_pc")
        a("s_addc_u32 s41, s41, 0")
        a("v_lshlrev_b32 v2, 6, v1")
        for r in range(4):
            a("v_cmp_gt_u32 vcc, K2_code_end-main_kernel, v2")
            a("s_and_b64 exec, exec, vcc")
            a("s_cbranch_execz K1_wcode_done")
            a(f"global_load_dword v{8+r}, v2, s[40:41]")
            a("v_add_u32 v2, 4096, v2")
        a("K1_wcode_done:")
        a("s_waitcnt vmcnt(0)")
    a("K1_end:")
    a("s_endpgm")

K2_T = 512
SLOTS = NPB * CAPN + 8
DUMMY = NPB * CAPN
L_REC = 0
L_SOFF = L_REC + SLOTS * 16
L_HIST = L_SOFF + SLOTS * 4
L_FLAG = L_HIST + NPB * 16
L_PRE = L_FLAG + 16
L_NODE = L_PRE + NPB * 16 + 512
L_TAB = L_NODE + 512
L_LST = L_TAB + 1024
L_WT = (L_LST + 4096 + 255) // 256 * 256
L_WR = L_WT + 32768
L_AGG = L_WT + 32768 + 2048
AGG_RS = 272
K2_LDS = L_AGG + (NPB * 4 + 12) * AGG_RS
OOB = 0x7f000000
BARK = env("BARK", 4)
NXB = 4

ACC = 96; XB = 32; CG = 24; OPS = 20; AOP = 12; RECV = 8
V_GP = 7; V_SOFF = 6; V_T = 5; V_COL16 = 4; V_G = 3; V_ENT = 2; V_LADDR = 1; V_EASEL = 0
S_X = 8; S_WS = 12; S_OUT = 16
S_WAVE = 20; S_SELLO = 21; S_SELHI = 22; S_IDX = 23
S_S0 = 24; S_S1 = 26
S_EA = 28; S_EB = 29; S_IDX2 = 30; S_LEFT = 31; S_RC = 32; S_MORE = 33
S_T = 34; S_PASS = 35; S_MODE = 36; S_WIN = 37; S_MAXC = 38; S_B = 39
S_MASK = 40
S_SAVE = 60

def lane_id(v):
    a(f"v_mbcnt_lo_u32_b32 v{v}, -1, 0")
    a(f"v_mbcnt_hi_u32_b32 v{v}, -1, v{v}")

tail_code = []
uid = [0]
def ld_x(b):
    r = []
    for u in range(4):
        x = XB + 16 * b + 4 * u
        r.append(f"buffer_load_dwordx4 v[{x}:{x+3}], v{V_SOFF}, s[{S_X}:{S_X+3}], 0 offen offset:{u*256}")
    return r
def addr_fix():
    a(f"v_add_u32 v{V_SOFF}, v{V_SOFF}, v{V_COL16}")
    if NOMEM == 1: a(f"v_mov_b32 v{V_SOFF}, {OOB}")
    if NOMEM == 3: a(f"v_and_b32 v{V_SOFF}, 0xfffff, v{V_SOFF}")

def gen_k2():
    k = "main_kernel"
    a(f".globl {k}\n.p2align 8\n.type {k},@function\n{k}:")
    a("s_cmp_ge_u32 s2, 256")
    a("s_cbranch_scc1 K2_end")
    stamp(0)
    a("s_load_dwordx2 s[4:5], s[0:1], 0")
    a("s_load_dwordx2 s[6:7], s[0:1], 80")
    a("s_load_dwordx2 s[62:63], s[0:1], 64")
    a("s_and_b32 s3, s2, 7")
    a("s_lshl_b32 s3, s3, 5")
    a(f"s_lshr_b32 s{S_B}, s2, 3")
    a(f"s_add_u32 s{S_B}, s{S_B}, s3")
    TID = 23; LANE = 22
    a(f"v_mov_b32 v{TID}, v0")
    a(f"v_and_b32 v{LANE}, 63, v0")
    a("v_lshrrev_b32 v1, 6, v0")
    a("v_lshlrev_b32 v2, 2, v0")
    a("v_mov_b32 v3, 0")
    a(f"v_readfirstlane_b32 s{S_WAVE}, v1")
    a(f"v_cmp_gt_u32 vcc, {NPB*4+4}, v0")
    a(f"s_and_saveexec_b64 s[{S_SAVE}:{S_SAVE+1}], vcc")
    a(f"ds_write_b32 v2, v3 offset:{L_HIST}")
    a(f"s_mov_b64 exec, s[{S_SAVE}:{S_SAVE+1}]")
    a("v_lshrrev_b32 v8, 1, v0")
    a("v_and_b32 v9, 1, v0")
    a("v_lshlrev_b32 v10, 10, v8")
    a(f"s_lshl_b32 s3, s{S_B}, 2")
    a(f"s_add_u32 s3, s3, {OFFS_OFF}")
    a("s_waitcnt lgkmcnt(0)")
    srd(S_WS, 6, WS_USED)
    a(f"buffer_load_dword v12, v10, s[{S_WS}:{S_WS+3}], s3 offen")
    a(f"s_lshl_b32 s3, s{S_WAVE}, 8")
    a(f"s_add_u32 s3, s3, {L_WR}")
    a("s_mov_b32 m0, s3")
    a(f"s_mov_b32 s3, {WR_OFF}")
    a(f"buffer_load_dword v2, s[{S_WS}:{S_WS+3}], s3 offen lds")
    srd(S_X, 4, N * 1024)
    srd(S_OUT, 62, N * 1024)
    if CODEPF:
        a("s_getpc_b64 s[4:5]")
        a("K2_pc:")
        a(f"v_lshlrev_b32 v14, 7, v{TID}")
        a("v_cmp_gt_u32 vcc, K2_code_end-K2_pc, v14")
        a(f"s_and_saveexec_b64 s[{S_SAVE}:{S_SAVE+1}], vcc")
        a("s_cbranch_execz K2_nocpf")
        a("global_load_dword v15, v14, s[4:5]")
        a("K2_nocpf:")
        a(f"s_mov_b64 exec, s[{S_SAVE}:{S_SAVE+1}]")
    a("s_barrier")
    for r in range(4):
        a(f"v_mov_b32 v{16+r}, 0")
    a("s_nop 1")
    for r in range(10):
        a(f"v_mfma_f32_32x32x16_bf16 v[{ACC+16*r}:{ACC+16*r+15}], v[16:19], v[16:19], 0")
    a(f"v_and_b32 v{V_COL16}, 15, v{TID}")
    a(f"v_lshlrev_b32 v{V_COL16}, 4, v{V_COL16}")
    a(f"v_lshrrev_b32 v{V_G}, 4, v{LANE}")
    a(f"v_mul_u32_u24 v{V_EASEL}, 0x0202, v{V_G}")
    a(f"v_add_u32 v{V_EASEL}, 0x0100, v{V_EASEL}")
    a(f"v_lshlrev_b32 v{V_EASEL}, 16, v{V_EASEL}")
    a(f"v_or_b32 v{V_EASEL}, 0x0c0c, v{V_EASEL}")
    a(f"v_and_b32 v7, 7, v{LANE}")
    a("v_and_b32 v2, 1, v7")
    a("v_mul_u32_u24 v2, 7, v2")
    a(f"v_xor_b32 v2, s{S_WAVE}, v2")
    a("v_lshl_add_u32 v2, v7, 3, v2")
    a("v_lshlrev_b32 v2, 2, v2")
    a(f"v_and_b32 v6, 1, v{V_G}")
    a("v_mul_u32_u24 v6, 7, v6")
    a(f"v_xor_b32 v6, s{S_WAVE}, v6")
    a(f"v_lshl_add_u32 v6, v{V_G}, 3, v6")
    a("v_lshlrev_b32 v6, 2, v6")
    a(f"s_lshl_b32 s3, s{S_WAVE}, 2")
    a("s_add_u32 s3, s3, 128")
    a("v_mov_b32 v1, s3")
    a(f"s_mov_b32 s{S_SELLO}, 0x05040100")
    a(f"s_mov_b32 s{S_SELHI}, 0x07060302")
    a(f"s_mov_b32 s{S_MODE}, 0")
    a(f"v_mul_u32_u24 v10, {EPC}, v8")
    a("v_add_u32 v10, v10, v9")
    a(f"v_lshlrev_b32 v16, 5, v{LANE}")
    a(f"v_cmp_gt_u32 vcc, {P}, v8")
    a("s_waitcnt vmcnt(0)")
    stamp(1)
    a("v_lshrrev_b32 v11, 16, v12")
    a("v_and_b32 v12, 0xffff, v12")
    a("v_cndmask_b32 v11, 0, v11, vcc")
    a("v_add_u32 v10, v10, v12")
    a("v_sub_u32 v13, v11, v9")
    a("v_lshlrev_b32 v14, 4, v10")
    a("v_lshlrev_b32 v10, 2, v10")
    a(f"s_mov_b32 s3, {TAG_OFF}")
    RB = XB; TG = XB + 40; RK = XB + 50
    M = lambda r: f"s[{S_MASK+2*r}:{S_MASK+2*r+1}]"
    for r in range(NR):
        a(f"v_cmp_lt_i32 {M(r)}, {2*r}, v13")
    for r in range(NR):
        a(f"s_mov_b64 exec, {M(r)}")
        a("s_cbranch_execz K2_lt_done")
        a(f"buffer_load_dword v{TG+r}, v10, s[{S_WS}:{S_WS+3}], s3 offen offset:{8*r}")
    a("K2_lt_done:")
    a("s_mov_b64 exec, -1")
    a(f"v_cmp_lt_u32 s[{S_SAVE}:{S_SAVE+1}], {2*NR}, v11")
    a("v_mov_b32 v17, 1")
    a(f"s_mov_b32 s3, {CG_OFF}")
    for r in range(NR):
        a(f"s_mov_b64 exec, {M(r)}")
        a(f"s_cbranch_execz K2_lp{r}")
        a(f"buffer_load_dwordx4 v[{RB+4*r}:{RB+4*r+3}], v14, s[{S_WS}:{S_WS+3}], 0 offen offset:{32*r}")
    a(f"s_waitcnt vmcnt({NR})")
    a("K2_ld_done:")
    for r in range(NR):
        tail_code.extend([f"K2_lp{r}:", f"s_waitcnt vmcnt({r})", "s_branch K2_ld_done"])
    stamp(2)
    for r in range(NR):
        a(f"s_mov_b64 exec, {M(r)}")
        a("s_cbranch_execz K2_h_done")
        a(f"v_and_b32 v9, 0x3fc, v{TG+r}")
        a(f"v_lshlrev_b32 v8, 3, v{TG+r}")
        a(f"v_lshlrev_b32 v8, v8, v17")
        a(f"ds_add_rtn_u32 v{RK+r}, v9, v8 offset:{L_HIST}")
    a("K2_h_done:")
    a("s_mov_b64 exec, -1")
    a(f"buffer_load_dwordx4 v[{CG}:{CG+3}], v16, s[{S_WS}:{S_WS+3}], s3 offen")
    a(f"buffer_load_dwordx4 v[{CG+4}:{CG+7}], v16, s[{S_WS}:{S_WS+3}], s3 offen offset:16")
    a("s_waitcnt lgkmcnt(0)")
    for r in range(NR):
        a(f"s_mov_b64 exec, {M(r)}")
        a("s_cbranch_execz K2_r_done")
        a(f"v_lshlrev_b32 v8, 3, v{TG+r}")
        a(f"v_bfe_u32 v{RK+r}, v{RK+r}, v8, 8")
        a(f"v_and_b32 v8, 0x3f0, v{TG+r}")
        a(f"v_cmp_lt_u32 vcc, {CAPN-1}, v{RK+r}")
        a(f"v_lshl_add_u32 v{RK+r}, v8, 2, v{RK+r}")
        a(f"s_or_b64 s[{S_SAVE}:{S_SAVE+1}], s[{S_SAVE}:{S_SAVE+1}], vcc")
    a("K2_r_done:")
    a("s_mov_b64 exec, -1")
    a(f"v_mov_b32 v9, {L_FLAG}")
    a(f"s_cmp_eq_u64 s[{S_SAVE}:{S_SAVE+1}], 0")
    a("s_cbranch_scc1 K2_noflag")
    a("ds_write_b32 v9, v17")
    a("K2_noflag:")
    a(f"v_lshlrev_b32 v8, 4, v{LANE}")
    a("s_waitcnt lgkmcnt(0)")
    a("s_barrier")
    stamp(3)
    a(f"ds_read_b128 v[12:15], v8 offset:{L_HIST}")
    a("ds_read_b32 v9, v9")
    a(f"v_lshlrev_b32 v{V_T}, 4, v{TID}")
    bg = []
    for r in range(4):
        bg.append([f"s_lshl_b32 s5, s{S_WAVE}, 10", f"s_add_u32 s5, s5, {L_WT + r*K2_T*16}", "s_mov_b32 m0, s5",
                   f"s_mov_b32 s5, {WT_OFF + r*K2_T*16}",
                   f"buffer_load_dwordx4 v{V_T}, s[{S_WS}:{S_WS+3}], s5 offen lds"])
    tch = []
    if K2TOUCH:
        per = K2_T * 16
        k1bytes = (K1TOUCH + K1T2) * P * K1_T * 16
        for r in range((N * 1024 - k1bytes + NB * per - 1) // (NB * per)):
            tch.append([f"s_mul_i32 s5, s{S_WAVE}, {20*AGG_RS}", f"s_add_u32 s5, s5, {L_AGG}", "s_mov_b32 m0, s5",
                        f"s_lshl_b32 s5, s{S_B}, 13", f"s_add_u32 s5, s5, {k1bytes + r*NB*per}",
                        f"buffer_load_dwordx4 v{V_T}, s[{S_X}:{S_X+3}], s5 offen lds ; touch"])
    bg = tch + bg
    nbg0 = len(bg)
    nbg_before_scatter = lambda: nbg0 - len(bg)
    def bgop(n=1):
        for _ in range(n):
            if bg:
                for x in bg.pop(0): a(x)
    bgop(2)
    a("s_waitcnt lgkmcnt(0)")
    a("s_mov_b32 s3, 0x01010101")
    a("v_mov_b32 v10, 0")
    PW = 18
    for q in range(4):
        H = 12 + q
        a(f"v_lshlrev_b32 v{PW+q}, 8, v{H}")
        a(f"v_lshl_add_u32 v{PW+q}, v{H}, 16, v{PW+q}")
        a(f"v_lshl_add_u32 v{PW+q}, v{H}, 24, v{PW+q}")
        if q > 0:
            a(f"v_mul_lo_u32 v11, v10, s3")
            a(f"v_add_u32 v{PW+q}, v{PW+q}, v11")
        a(f"v_sad_u8 v10, v{H}, 0, v10")
    a(f"v_cmp_gt_u32 vcc, {NPB}, v{LANE}")
    a(f"s_and_saveexec_b64 s[{S_SAVE}:{S_SAVE+1}], vcc")
    a(f"ds_write_b128 v8, v[{PW}:{PW+3}] offset:{L_PRE}")
    a(f"v_cmp_lt_u32 vcc, {CAPN}, v10")
    a(f"s_mov_b64 exec, s[{S_SAVE}:{S_SAVE+1}]")
    a("v_readfirstlane_b32 s3, v9")
    a("s_cmp_lg_u64 vcc, 0")
    a("s_cbranch_scc1 K2_slow")
    a("s_cmp_lg_u32 s3, 0")
    a("s_cbranch_scc1 K2_slow")
    fstamp(0)
    bg_slow = [list(x) for x in bg]
    PR = [12, 13, 14, 15, 16, 17, 18, 19, 20, 21]
    for r in range(NR):
        a(f"s_mov_b64 exec, {M(r)}")
        a("s_cbranch_execz K2_p_done")
        a(f"v_and_b32 v8, 0x3ff, v{TG+r}")
        a(f"ds_read_u8 v{PR[r]}, v8 offset:{L_PRE}")
    a("K2_p_done:")
    a("s_mov_b64 exec, -1")
    bgop(1)
    a("v_add_u32 v8, 3, v10")
    a("v_lshrrev_b32 v8, 2, v8")
    a("v_subrev_u32 v8, 5, v8")
    a("v_med3_i32 v8, v8, 0, 7")
    a(f"v_cmp_gt_u32 vcc, {NPB}, v{LANE}")
    a("v_mov_b32 v9, 63")
    a("s_nop 0")
    a("v_cndmask_b32 v8, 64, v8, vcc")
    KM = [24, 26, 28, 30, 32, 82, 84, 86]
    for q in range(8):
        a(f"v_cmp_eq_u32 s[{KM[q]}:{KM[q]+1}], {q}, v8")
    fstamp(1)
    a(f"s_waitcnt vmcnt({nbg_before_scatter()}) lgkmcnt(0)")
    for r in range(NR):
        a(f"s_mov_b64 exec, {M(r)}")
        a("s_cbranch_execz K2_s_done")
        a(f"v_add_lshl_u32 v8, v{RK+r}, v{PR[r]}, 2")
        a(f"v_lshlrev_b32 v11, 2, v8")
        a(f"v_and_b32 v{TG+r}, 0xfffc00, v{TG+r}")
        a(f"ds_write_b128 v11, v[{RB+4*r}:{RB+4*r+3}] offset:{L_REC}")
        a(f"ds_write_b32 v8, v{TG+r} offset:{L_SOFF}")
    a("K2_s_done:")
    fstamp(2)
    a("s_mov_b32 s3, 0")
    for q in range(7, -1, -1):
        a(f"s_mov_b64 exec, s[{KM[q]}:{KM[q]+1}]")
        a(f"v_mbcnt_lo_u32_b32 v9, s{KM[q]}, 0")
        a(f"v_mbcnt_hi_u32_b32 v9, s{KM[q]+1}, v9")
        a("v_add_u32 v9, s3, v9")
        a(f"s_bcnt1_i32_b64 s4, s[{KM[q]}:{KM[q]+1}]")
        a("s_add_u32 s3, s3, s4")
    a("s_mov_b64 exec, -1")
    a("v_lshlrev_b32 v9, 2, v9")
    a(f"v_lshl_add_u32 v8, v10, 8, v{LANE}")
    a("ds_permute_b32 v8, v9, v8")
    bgop(2)
    a("s_waitcnt lgkmcnt(0)")
    a("ds_bpermute_b32 v11, v2, v8")
    a("ds_bpermute_b32 v6, v6, v8")
    a("ds_bpermute_b32 v1, v1, v8")
    a("v_mov_b32 v12, 0")
    a("v_mov_b32 v13, 0")
    a(f"s_mov_b32 s{S_PASS}, 0")
    a("K2_sched:")
    fstamp(5)
    a(f"v_and_b32 v14, 15, v{LANE}")
    a(f"s_lshl_b32 s3, s{S_WAVE}, 6")
    a("v_lshl_add_u32 v15, v7, 2, s3")
    a("s_waitcnt lgkmcnt(0)")
    a(f"ds_write_b32 v15, v11 offset:{L_NODE}")
    BS = [(6, 12, 16, 17, 18), (1, 13, 19, 20, 21)]
    for (vi, vd, vq, vt, ve) in BS:
        a(f"v_and_b32 v{vt}, 0xff, v{vi}")
        a(f"v_lshl_add_u32 v{vt}, v{vt}, 4, v14")
        a(f"ds_read_u8 v{vt}, v{vt} offset:{L_PRE+1}")
        a(f"v_lshrrev_b32 v{vq}, 8, v{vi}")
        a(f"v_add_u32 v{vq}, 3, v{vq}")
        a(f"v_lshrrev_b32 v{vq}, 2, v{vq}")
    a(f"s_cmp_eq_u32 s{S_PASS}, 0")
    a("s_cselect_b32 s4, 15, 0")
    a("v_cmp_le_u32 vcc, s4, v14")
    a("s_waitcnt lgkmcnt(0)")
    for (vi, vd, vq, vt, ve) in BS:
        a(f"v_add_u32 v{vt}, 1, v{vt}")
        a(f"v_lshrrev_b32 v{vt}, 2, v{vt}")
        a(f"v_cndmask_b32 v{vt}, v{vt}, v{vq}, vcc")
        a(f"v_sub_u32 v{vt}, v{vt}, v14")
        a(f"v_add_u32 v{ve}, 1, v{vd}")
        a(f"v_min_i32 v{vt}, v{vt}, v{ve}")
    for sh in (1, 2, 4, 8):
        a("s_nop 0")
        for (vi, vd, vq, vt, ve) in BS:
            a(f"v_min_i32_dpp v{vt}, v{vt}, v{vt} row_shr:{sh} row_mask:0xf bank_mask:0xf")
    for (vi, vd, vq, vt, ve) in BS:
        a(f"v_subrev_u32 v{ve}, 15, v{vq}")
        a(f"v_max_i32 v{vt}, v{vt}, v{ve}")
    for (vi, vd, vq, vt, ve) in BS:
        a(f"v_add_u32 v{ve}, v{vt}, v14")
    a("s_nop 0")
    for (vi, vd, vq, vt, ve) in BS:
        a(f"v_mov_b32_dpp v{vd}, v{ve} row_shr:1 row_mask:0xf bank_mask:0xf")
    a(f"s_lshl_b32 s4, s{S_WAVE}, 7")
    a("v_lshl_add_u32 v15, v14, 3, s4")
    for k_, (vi, vd, vq, vt, ve) in enumerate(BS):
        a(f"v_sub_u32 v{vt}, v{ve}, v{vd}")
        a(f"v_lshl_or_b32 v{vt}, v{vt}, 7, v{vd}")
        if k_ == 0:
            a(f"v_add_u32 v{vi}, v15, v{V_G}")
            a(f"ds_write_b8 v{vi}, v{vt} offset:{L_TAB}")
        else:
            a(f"ds_write_b8 v15, v{vt} offset:{L_TAB+4}")
    a(f"v_add_u32 v15, s4, v{LANE}")
    a(f"ds_read_u8 v12, v15 offset:{L_TAB}")
    a(f"ds_read_u8 v13, v15 offset:{L_TAB+64}")
    fstamp(6)
    a("v_and_b32 v16, 0xff, v11")
    a("v_lshlrev_b32 v16, 6, v16")
    a("v_lshrrev_b32 v10, 8, v11")
    a("v_cmp_gt_u32 vcc, 5, v7")
    a("v_mov_b32 v20, 0")
    a("v_mov_b32 v21, 0")
    a("v_cndmask_b32 v10, 0, v10, vcc")
    a("s_waitcnt lgkmcnt(0)")
    a("v_cndmask_b32 v12, 0, v12, vcc")
    a("v_cndmask_b32 v13, 0, v13, vcc")
    a(f"v_cmp_lt_u32 s[{S_S0}:{S_S0+1}], 64, v12")
    a(f"v_cmp_lt_u32 s[{S_S1}:{S_S1+1}], 64, v13")
    a("v_and_b32 v12, 0x7f, v12")
    a("v_and_b32 v13, 0x7f, v13")
    a("v_lshl_add_u32 v12, v12, 2, v16")
    a("v_lshl_add_u32 v13, v13, 2, v16")
    a(f"s_bcnt1_i32_b64 s4, s[{S_S0}:{S_S0+1}]")
    a(f"s_bcnt1_i32_b64 s{S_LEFT}, s[{S_S1}:{S_S1+1}]")
    a(f"s_add_u32 s{S_LEFT}, s{S_LEFT}, s4")
    a(f"s_lshl_b32 s5, s{S_WAVE}, 7")
    a("s_add_u32 s4, s4, s5")
    a(f"v_mbcnt_lo_u32_b32 v17, s{S_S0}, 0")
    a(f"v_mbcnt_hi_u32_b32 v17, s{S_S0+1}, v17")
    a(f"v_mbcnt_lo_u32_b32 v18, s{S_S1}, 0")
    a(f"v_mbcnt_hi_u32_b32 v18, s{S_S1+1}, v18")
    a("v_add_lshl_u32 v17, s5, v17, 2")
    a("v_add_lshl_u32 v18, s4, v18, 2")
    a(f"v_add_lshl_u32 v19, s5, v{LANE}, 2")
    a(f"v_mov_b32 v15, {DUMMY}")
    a(f"ds_write_b32 v19, v15 offset:{L_LST}")
    a(f"ds_write_b32 v19, v15 offset:{L_LST+256}")
    a(f"s_mov_b64 exec, s[{S_S0}:{S_S0+1}]")
    a(f"ds_write_b32 v17, v12 offset:{L_LST}")
    a(f"s_mov_b64 exec, s[{S_S1}:{S_S1+1}]")
    a(f"ds_write_b32 v18, v13 offset:{L_LST}")
    a("s_mov_b64 exec, -1")
    a(f"v_and_b32 v{V_LADDR}, 3, v{LANE}")
    a(f"v_add_lshl_u32 v{V_LADDR}, s5, v{V_LADDR}, 2")
    a(f"ds_read_b32 v12, v{V_LADDR} offset:{L_LST}")
    a(f"ds_read_b32 v{V_ENT}, v{V_LADDR} offset:{L_LST+16}")
    fstamp(7)
    a(f"v_lshrrev_b32 v14, 3, v{LANE}")
    a("v_add_u32 v15, 3, v10")
    a("v_and_b32 v15, 0xfc, v15")
    a("v_add_u32 v14, v10, v14")
    a("v_cmp_lt_u32 vcc, v14, v15")
    a("v_add_u32 v14, v16, v14")
    a(f"v_add_u32 v15, {DUMMY}, v7")
    a(f"v_subrev_u32 v19, 24, v{LANE}")
    a(f"v_cmp_gt_u32 s[{S_SAVE}:{S_SAVE+1}], 4, v19")
    a(f"v_bfe_u32 v{V_GP}, v{LANE}, 2, 2")
    a("v_mov_b32 v22, 0")
    a("v_mov_b32 v23, 0")
    a(f"v_cndmask_b32 v14, v14, v15, s[{S_SAVE}:{S_SAVE+1}]")
    a(f"s_or_b64 exec, vcc, s[{S_SAVE}:{S_SAVE+1}]")
    a("v_lshlrev_b32 v15, 4, v14")
    a("v_lshlrev_b32 v14, 2, v14")
    a(f"v_mov_b32 v19, {OOB}")
    a(f"ds_write_b128 v15, v[20:23] offset:{L_REC}")
    a(f"ds_write_b32 v14, v19 offset:{L_SOFF}")
    a("s_mov_b64 exec, -1")
    a("s_waitcnt lgkmcnt(0)")
    fstamp(8)
    a("s_barrier")
    stamp(4)
    a(f"s_cmp_lg_u32 s{S_PASS}, 0")
    a("s_cbranch_scc1 K2_nobg")
    bgop(100)
    a("K2_nobg:")
    def rd_soff(se):
        return [f"v_add_lshl_u32 v{V_T}, s{se}, v{V_G}, 2", f"ds_read_b32 v{V_SOFF}, v{V_T} offset:{L_SOFF}"]
    def rd_rec(ve):
        return [f"v_add_lshl_u32 v{V_T}, v{ve}, v{V_GP}, 4", f"ds_read_b128 v[{RECV}:{RECV+3}], v{V_T} offset:{L_REC}"]
    for q in range(NXB):
        a(f"v_readlane_b32 s{4+q}, v12, {q}")
    a(f"s_mov_b32 s{S_RC}, 0")
    a(f"s_mov_b32 s{S_IDX2}, s{S_LEFT}")
    for x in rd_rec(12): a(x)
    for x in rd_soff(4): a(x)
    for q in range(NXB - 1):
        a(f"s_cmp_gt_u32 s{S_LEFT}, {q}")
        a("s_cbranch_scc0 K2_t0")
        a("s_waitcnt lgkmcnt(0)")
        addr_fix()
        for x in ld_x(q): a(x)
        for x in rd_soff(5 + q): a(x)
    a("s_branch K2_t0")
    NS = 5 * NXB
    for s_ in range(NS):
        i = s_ % 5; b = s_ % NXB
        if i == 0:
            a(f"K2_re{s_}:")
            a(f"s_add_u32 s{S_RC}, s{S_RC}, 1")
            if PRIO == 1:
                a(f"s_lshr_b32 s{S_T}, s{S_WAVE}, 2")
                a(f"s_add_u32 s{S_T}, s{S_T}, s{S_RC}")
                a("s_setprio 0")
                a(f"s_bitcmp1_b32 s{S_T}, 0")
                a(f"s_cbranch_scc0 K2_pr{s_}")
                a("s_setprio 1")
                a(f"K2_pr{s_}:")
            a(f"s_lshr_b64 s[{S_S0}:{S_S0+1}], s[{S_S0}:{S_S0+1}], 8")
            a(f"s_and_b32 s{S_T}, s{S_RC}, {BARK-1}")
            a(f"s_cbranch_scc0 K2_rx{s_}")
            t = [f"K2_rx{s_}:",
                 f"s_cmp_eq_u32 s{S_RC}, 16", "s_cbranch_scc1 K2_loop_done",
                 f"s_cmp_lg_u32 s{S_RC}, 8", f"s_cbranch_scc1 K2_ry{s_}",
                 f"s_mov_b64 s[{S_S0}:{S_S0+1}], s[{S_S1}:{S_S1+1}]",
                 f"s_cmp_lg_u32 s{S_IDX2}, s{S_LEFT}", f"s_cbranch_scc1 K2_ry{s_}",
                 "s_waitcnt vmcnt(0)",
                 f"K2_ry{s_}:",
                 f"s_cmp_lg_u32 s{S_PASS}, 0", f"s_cbranch_scc1 K2_t{s_}",
                 "s_barrier", f"s_branch K2_t{s_}"]
            tail_code.extend(t)
        a(f"K2_t{s_}:")
        a(f"s_bitcmp1_b32 s{S_S0}, {i}")
        nxt = (s_ + 16) % NS
        a(f"s_cbranch_scc0 K2_{'re' if nxt % 5 == 0 else 't'}{nxt}")
        a(f"s_sub_u32 s{S_LEFT}, s{S_LEFT}, 1")
        a("s_waitcnt lgkmcnt(0)")
        a(f"v_readlane_b32 s{S_EB}, v{V_ENT}, {b}")
        a(f"s_cmp_lt_u32 s{S_LEFT}, {NXB-1}")
        DT = XB + 16 * (NXB - 1)
        if b == 0:
            a(f"v_perm_b32 v{V_T}, v{RECV+1}, v{RECV}, v{V_EASEL}")
            a(f"v_lshlrev_b32 v{OPS}, 16, v{RECV+2}")
            a(f"v_and_b32 v{OPS+1}, 0xffff0000, v{RECV+2}")
            a(f"v_lshlrev_b32 v{OPS+2}, 16, v{RECV+3}")
            a(f"v_and_b32 v{OPS+3}, 0xffff0000, v{RECV+3}")
            for x in range(4):
                a(f"v_mul_f32 v{OPS+x}, v{OPS+x}, v{V_T}")
            a(f"v_cvt_pk_bf16_f32 v{RECV}, v{OPS}, v{OPS+1}")
            a(f"v_cvt_pk_bf16_f32 v{RECV+1}, v{OPS+2}, v{OPS+3}")
            addr_fix()
            a("s_nop 0")
            for u in range(4):
                a(f"v_mfma_f32_16x16x16_bf16 v[{DT+4*u}:{DT+4*u+3}], v[{RECV}:{RECV+1}], v[{CG+2*u}:{CG+2*u+1}], 0")
        else:
            addr_fix()
            a(f"s_cbranch_scc1 K2_nl{s_}")
            for x in ld_x((b + NXB - 1) % NXB): a(x)
            a(f"K2_nl{s_}:")
            for x in rd_soff(S_EB): a(x)
            if b == 2:
                for x in rd_rec(V_ENT): a(x)
            if b == 3:
                a(f"v_add_u32 v{V_LADDR}, 16, v{V_LADDR}")
                a(f"ds_read_b32 v{V_ENT}, v{V_LADDR} offset:{L_LST+16}")
        pre = 0 if b == 0 else 4
        a(f"s_cbranch_scc1 K2_wx{s_}")
        a(f"s_waitcnt vmcnt({4*(NXB-2)+pre})")
        a(f"K2_wr{s_}:")
        t = [f"K2_wx{s_}:", "s_waitcnt vmcnt(8)", f"s_cmp_eq_u32 s{S_LEFT}, 2", f"s_cbranch_scc1 K2_wr{s_}",
             "s_waitcnt vmcnt(4)", f"s_cmp_eq_u32 s{S_LEFT}, 1", f"s_cbranch_scc1 K2_wr{s_}",
             "s_waitcnt vmcnt(0)", f"s_cmp_eq_u32 s{S_LEFT}, 0", f"s_branch K2_wr{s_}"]
        tail_code.extend(t)
        def pm(j):
            if XP in (2, 3): return
            m = j >> 1; sel = S_SELHI if j & 1 else S_SELLO
            o = OPS + 2 * (j % 2)
            x = lambda u: XB + 16 * b + 4 * u + m
            a(f"v_perm_b32 v{o}, v{x(1)}, v{x(0)}, s{sel}")
            a(f"v_perm_b32 v{o+1}, v{x(3)}, v{x(2)}, s{sel}")
        def mf(j):
            if XP in (1, 3): return
            o = OPS + 2 * (j % 2); c = ACC + 32 * i + 4 * j
            a(f"v_mfma_f32_16x16x16_bf16 v[{c}:{c+3}], v[{AOP+2*b}:{AOP+2*b+1}], v[{o}:{o+1}], v[{c}:{c+3}]")
        pm(0); pm(1)
        if b == 0:
            a("s_nop 1")
            for r in range(4):
                a(f"v_cvt_pk_bf16_f32 v{AOP+2*r}, v{DT+r}, v{DT+4+r}")
            for r in range(4):
                a(f"v_cvt_pk_bf16_f32 v{AOP+2*r+1}, v{DT+8+r}, v{DT+12+r}")
            a(f"s_cbranch_scc1 K2_nl{s_}")
            for x in ld_x(NXB - 1): a(x)
            a(f"K2_nl{s_}:")
            for x in rd_soff(S_EB): a(x)
        mf(0)
        for j in range(2, 8):
            pm(j)
            mf(j - 1)
        a("s_nop 0")
        mf(7)
    a("s_branch K2_re0")
    for x in tail_code: a(x)
    a("K2_loop_done:")
    a(f"s_cmp_lg_u32 s{S_MODE}, 0")
    a("s_cbranch_scc1 K2_slow_next")
    a("K2_epi:")
    stamp(5)
    a("s_waitcnt vmcnt(0) lgkmcnt(0)")
    a(f"v_add_u32 v1, {L_WR}, v{V_COL16}")
    for j in range(8):
        a(f"ds_read_b128 v[{XB+4*j}:{XB+4*j+3}], v1 offset:{256*j}")
    a(f"s_lshl_b32 s3, s{S_WAVE}, 6")
    a("v_mov_b32 v5, s3")
    a(f"ds_read_b128 v[16:19], v5 offset:{L_NODE}")
    a(f"ds_read_b32 v20, v5 offset:{L_NODE+16}")
    lane_id(LANE)
    a(f"s_and_b32 s3, s{S_WAVE}, 3")
    a("s_lshl_b32 s4, s3, 13")
    a(f"s_add_u32 s4, s4, {L_WT}")
    a(f"v_lshl_add_u32 v1, v{LANE}, 4, s4")
    a(f"v_mul_u32_u24 v2, {AGG_RS}, v{V_G}")
    a(f"v_add_u32 v2, v2, v{V_COL16}")
    a(f"v_add_u32 v2, {L_AGG}, v2")
    a(f"s_mov_b32 s4, {4*AGG_RS}")
    a("s_waitcnt lgkmcnt(0)")
    for x in range(8):
        a(f"ds_read_b128 v[{XB+32+4*x}:{XB+32+4*x+3}], v1 offset:{1024*x}")
    for i in range(5):
        a(f"v_and_b32 v{16+i}, 0xff, v{16+i}")
        a(f"v_mad_u32_u24 v{16+i}, v{16+i}, s4, v2")
    for i in range(5):
        for j in range(8):
            c = ACC + 32 * i + 4 * j; w = XB + 4 * j
            a(f"v_mul_f32 v{c}, v{c}, v{w}")
        for kk in range(1, 4):
            for j in range(8):
                c = ACC + 32 * i + 4 * j; w = XB + 4 * j
                a(f"v_fmac_f32 v{c}, v{c+kk}, v{w+kk}")
        o = 8 + 4 * (i % 2)
        for jj in range(4):
            c = ACC + 32 * i + 8 * jj
            a(f"v_cvt_pk_bf16_f32 v{o+jj}, v{c}, v{c+4}")
        a(f"ds_write_b128 v{16+i}, v[{o}:{o+3}]")
    a(f"s_lshr_b32 s5, s{S_WAVE}, 2")
    a(f"s_mul_i32 s6, s5, {16*AGG_RS}")
    a(f"s_add_u32 s6, s6, {L_AGG}")
    a(f"v_and_b32 v6, 15, v{LANE}")
    a(f"v_mul_u32_u24 v7, {AGG_RS}, v6")
    a(f"v_lshl_add_u32 v7, v{V_G}, 4, v7")
    a("v_add_u32 v7, s6, v7")
    a("v_lshlrev_b32 v5, 8, v6")
    a(f"v_lshl_add_u32 v5, v{V_G}, 4, v5")
    a(f"s_mul_i32 s6, s{S_B}, 625")
    a("s_add_u32 s7, s6, 640")
    a("s_add_u32 s6, s6, 15")
    a("s_lshr_b32 s6, s6, 4")
    a("s_lshr_b32 s7, s7, 4")
    a("s_sub_u32 s7, s7, s6")
    a("s_lshl_b32 s7, s7, 2")
    a("s_lshl_b32 s4, s5, 4")
    a("s_sub_u32 s7, s7, s4")
    a("s_sub_u32 s7, s7, 128")
    a(f"v_mov_b32 v21, {OOB}")
    a("v_cmp_gt_u32 vcc, s7, v6")
    a("s_lshl_b32 s6, s6, 10")
    a("s_nop 0")
    a("v_cndmask_b32 v21, v21, v5, vcc")
    a("s_lshl_b32 s7, s5, 12")
    a("s_add_u32 s6, s6, s7")
    a("s_lshl_b32 s7, s3, 6")
    a("s_add_u32 s6, s6, s7")
    a("s_waitcnt lgkmcnt(0)")
    a("s_barrier")
    stamp(6)
    BB = ACC
    for u in range(5):
        for t in range(4):
            r = BB + 16 * u + 4 * t
            a(f"ds_read_b128 v[{r}:{r+3}], v7 offset:{u*32*AGG_RS + t*64}")
    DD = ACC + 80
    def fin(u):
        d = DD + 8 * u
        o = BB + 4 * u
        for x in range(4):
            a(f"v_cvt_pk_bf16_f32 v{o+x}, v{d+2*x}, v{d+2*x+1}")
        a(f"buffer_store_dwordx4 v[{o}:{o+3}], v{21 if u == 4 else 5}, s[{S_OUT}:{S_OUT+3}], s6 offen {OMOD}")
        a(f"s_add_u32 s6, s6, {32*256}")
    for u in range(5):
        a(f"s_waitcnt lgkmcnt({min(15, 4*(4-u))})")
        for t in range(4):
            r = BB + 16 * u + 4 * t
            for hh in range(2):
                d = DD + 8 * u + 4 * hh; w = XB + 32 + 16 * hh + 4 * t
                c = "0" if t == 0 else f"v[{d}:{d+3}]"
                a(f"v_mfma_f32_16x16x32_bf16 v[{d}:{d+3}], v[{w}:{w+3}], v[{r}:{r+3}], {c}")
        if u > 0: fin(u - 1)
    a("s_nop 7")
    fin(4)
    stamp(7)
    if STAMP: a("s_waitcnt vmcnt(0)")
    stamp(8)
    stamp_flush(1, 8, 9, S_WAVE, 1)
    a("K2_end:")
    a("s_endpgm")
    a("K2_slow:")
    for grp in bg_slow:
        if "touch" not in grp[-1]:
            for x in grp: a(x)
    a(f"s_mov_b32 s{S_MODE}, 1")
    a(f"s_mov_b32 s{S_WIN}, 0")
    a(f"v_lshlrev_b32 v8, 10, v{LANE}")
    a(f"s_lshl_b32 s3, s{S_B}, 2")
    a(f"s_add_u32 s3, s3, {OFFS_OFF}")
    for h in range(4):
        a(f"buffer_load_dword v{10+2*h}, v8, s[{S_WS}:{S_WS+3}], s3 offen")
        a("s_add_u32 s3, s3, 65536")
    a(f"v_cmp_gt_u32 vcc, {P-192}, v{LANE}")
    a("s_waitcnt vmcnt(0)")
    for h in range(4):
        a(f"v_lshrrev_b32 v{10+2*h}, 16, v{10+2*h}")
    a("v_cndmask_b32 v16, 0, v16, vcc")
    a("v_max_u32 v10, v10, v12")
    a("v_max3_u32 v10, v10, v14, v16")
    wave_scan(10, "v_max_u32_dpp")
    a("s_nop 1")
    a(f"v_readlane_b32 s{S_MAXC}, v10, 63")
    a("K2_slow_win:")
    a(f"s_cmp_ge_u32 s{S_WIN}, s{S_MAXC}")
    a("s_cbranch_scc1 K2_slow_fin")
    def seg_setup():
        lane_id(LANE)
        a(f"s_lshl_b32 s3, s{S_WAVE}, 6")
        a(f"v_add_u32 v{TID}, s3, v{LANE}")
        a(f"v_lshrrev_b32 v8, 1, v{TID}")
        a(f"v_and_b32 v9, 1, v{TID}")
        a("v_lshlrev_b32 v10, 10, v8")
        a(f"s_lshl_b32 s3, s{S_B}, 2")
        a(f"s_add_u32 s3, s3, {OFFS_OFF}")
        a(f"buffer_load_dword v12, v10, s[{S_WS}:{S_WS+3}], s3 offen")
        a(f"v_mul_u32_u24 v10, {EPC}, v8")
        a(f"v_add3_u32 v10, v10, v9, s{S_WIN}")
        a(f"v_cmp_gt_u32 vcc, {P}, v8")
        a("s_waitcnt vmcnt(0)")
        a("v_lshrrev_b32 v11, 16, v12")
        a("v_and_b32 v12, 0xffff, v12")
        a("v_cndmask_b32 v11, 0, v11, vcc")
        a("v_add_u32 v10, v10, v12")
        a("v_sub_u32 v13, v11, v9")
        a(f"v_subrev_u32 v13, s{S_WIN}, v13")
        a("v_lshlrev_b32 v14, 4, v10")
        a("v_lshlrev_b32 v10, 2, v10")
    seg_setup()
    for r in range(NR):
        a(f"v_cmp_lt_i32 {M(r)}, {2*r}, v13")
    a("K2_slow_batch:")
    a("s_waitcnt vmcnt(0) lgkmcnt(0)")
    a("s_barrier")
    seg_setup()
    a(f"v_lshlrev_b32 v8, 2, v{TID}")
    a("v_mov_b32 v9, 0")
    a(f"v_cmp_gt_u32 vcc, {NPB*4+4}, v{TID}")
    a(f"s_and_saveexec_b64 s[{S_SAVE}:{S_SAVE+1}], vcc")
    a(f"ds_write_b32 v8, v9 offset:{L_HIST}")
    a("s_mov_b64 exec, -1")
    a("s_waitcnt lgkmcnt(0)")
    a("s_barrier")
    a("v_mov_b32 v17, 1")
    a(f"s_mov_b32 s3, {TAG_OFF}")
    a(f"s_mov_b64 s[{S_SAVE}:{S_SAVE+1}], 0")
    for r in range(NR):
        a(f"s_mov_b64 exec, {M(r)}")
        a(f"s_cbranch_execz K2_slow_skip{r}")
        a(f"buffer_load_dword v16, v10, s[{S_WS}:{S_WS+3}], s3 offen offset:{8*r}")
        a(f"buffer_load_dwordx4 v[{XB}:{XB+3}], v14, s[{S_WS}:{S_WS+3}], 0 offen offset:{32*r}")
        a("s_waitcnt vmcnt(0)")
        a("v_bfe_u32 v8, v16, 4, 6")
        a("v_lshlrev_b32 v9, 4, v8")
        a(f"ds_add_rtn_u32 v15, v9, v17 offset:{L_HIST}")
        a("v_and_b32 v16, 0xfffc00, v16")
        a("s_waitcnt lgkmcnt(0)")
        a(f"v_cmp_gt_u32 vcc, {CAPN}, v15")
        a(f"s_andn2_b64 {M(r)}, {M(r)}, vcc")
        a(f"s_or_b64 s[{S_SAVE}:{S_SAVE+1}], s[{S_SAVE}:{S_SAVE+1}], {M(r)}")
        a("s_mov_b64 exec, vcc")
        a("v_lshl_add_u32 v8, v8, 6, v15")
        a("v_lshlrev_b32 v9, 4, v8")
        a("v_lshlrev_b32 v8, 2, v8")
        a(f"ds_write_b128 v9, v[{XB}:{XB+3}] offset:{L_REC}")
        a(f"ds_write_b32 v8, v16 offset:{L_SOFF}")
        a("s_waitcnt lgkmcnt(0)")
        a(f"K2_slow_skip{r}:")
    a("s_mov_b64 exec, -1")
    a(f"v_mov_b32 v9, {L_FLAG}")
    a(f"s_cmp_eq_u64 s[{S_SAVE}:{S_SAVE+1}], 0")
    a("s_cbranch_scc1 K2_slow_nof")
    a("ds_write_b32 v9, v17")
    a("K2_slow_nof:")
    a("s_waitcnt lgkmcnt(0)")
    a("s_barrier")
    a(f"v_and_b32 v7, 7, v{LANE}")
    a(f"s_mul_i32 s3, s{S_WAVE}, 5")
    a("v_add_u32 v11, s3, v7")
    a(f"v_add_u32 v6, s3, v{V_G}")
    a("s_add_u32 s3, s3, 4")
    a("v_mov_b32 v1, s3")
    for (vn, vt) in ((11, 12), (6, 13), (1, 14)):
        a(f"v_lshlrev_b32 v{vt}, 4, v{vn}")
        a(f"ds_read_b32 v{vt}, v{vt} offset:{L_HIST}")
    a("ds_read_b32 v9, v9")
    a("s_waitcnt lgkmcnt(0)")
    for (vn, vt) in ((11, 12), (6, 13), (1, 14)):
        a(f"v_min_u32 v{vt}, {CAPN}, v{vt}")
        a(f"v_lshl_add_u32 v{vn}, v{vt}, 8, v{vn}")
    a(f"v_readfirstlane_b32 s{S_MODE}, v9")
    a("v_mov_b32 v12, 0")
    a("v_mov_b32 v13, 0")
    a(f"s_add_u32 s{S_MODE}, s{S_MODE}, 1")
    a(f"s_mov_b32 s{S_PASS}, 1")
    a("s_branch K2_sched")
    a("K2_slow_next:")
    a(f"s_cmp_eq_u32 s{S_MODE}, 2")
    a("s_cbranch_scc1 K2_slow_batch")
    a(f"s_add_u32 s{S_WIN}, s{S_WIN}, {2*NR}")
    a("s_waitcnt vmcnt(0) lgkmcnt(0)")
    a("s_branch K2_slow_win")
    a("K2_slow_fin:")
    a("s_branch K2_epi")
    a("K2_code_end:")
    a("s_endpgm")

def gen_report():
    k = "rep_kernel"
    a(f".globl {k}\n.p2align 8\n.type {k},@function\n{k}:")
    a("s_cmp_lg_u32 s2, 0")
    a("s_cbranch_scc1 R_end")
    a("s_load_dwordx4 s[4:7], s[0:1], 72")
    a("s_waitcnt lgkmcnt(0)")
    def red(reg, op):
        wave_scan(reg, op)
    a("v_mov_b32 v10, -1")
    for r in range(11, 30): a(f"v_mov_b32 v{r}, 0")
    a("v_mov_b32 v14, -1")
    a("v_mov_b32 v20, -1")
    a(f"v_lshlrev_b32 v1, 6, v0")
    a(f"v_add_u32 v1, {DBG_OFF}, v1")
    for kx in range(19):
        a("global_load_dwordx4 v[2:5], v1, s[6:7]")
        a("global_load_dwordx4 v[6:9], v1, s[6:7] offset:16")
        a("s_waitcnt vmcnt(0)")
        a("v_min_u32 v10, v10, v2")
        a("v_max_u32 v11, v11, v3")
        a("v_max_u32 v12, v12, v5")
        a("v_max_u32 v13, v13, v8")
        a("v_add_u32 v1, 4096, v1")
    a(f"v_lshlrev_b32 v1, 6, v0")
    a(f"v_add_u32 v1, {DBG_OFF + (1<<20)}, v1")
    for kx in range(31):
        a("global_load_dwordx4 v[2:5], v1, s[6:7]")
        a("global_load_dwordx4 v[6:9], v1, s[6:7] offset:16")
        a("global_load_dword v30, v1, s[6:7] offset:32")
        a("s_waitcnt vmcnt(0)")
        a("v_min_u32 v14, v14, v2")
        a("v_max_u32 v15, v15, v2")
        a("v_max_u32 v16, v16, v3")
        a("v_max_u32 v17, v17, v4")
        a("v_max_u32 v18, v18, v5")
        a("v_max_u32 v19, v19, v6")
        a("v_min_u32 v20, v20, v7")
        a("v_max_u32 v21, v21, v7")
        a("v_max_u32 v22, v22, v8")
        a("v_max_u32 v23, v23, v9")
        a("v_max_u32 v24, v24, v30")
        a("v_add_u32 v1, 4096, v1")
    for r in range(10, 25):
        red(r, "v_min_u32_dpp" if r in (10, 14, 20) else "v_max_u32_dpp")
    a("s_memrealtime s[8:9]")
    a("s_waitcnt lgkmcnt(0)")
    a("v_mov_b32 v25, s8")
    a("s_mov_b32 exec_lo, 0")
    a("s_mov_b32 exec_hi, 0x80000000")
    a("v_mov_b32 v1, 0")
    for r in range(11, 26):
        a(f"v_sub_u32 v2, v{r}, v10")
        a(f"global_store_dword v1, v2, s[4:5] offset:{4*(r-11)}")
    a("R_end:")
    a("s_endpgm")

def kd(name, nv, ns):
    return f""".p2align 6
.amdhsa_kernel {name}
  .amdhsa_next_free_vgpr {nv}
  .amdhsa_next_free_sgpr {ns}
  .amdhsa_accum_offset {(nv+3)//4*4}
  .amdhsa_group_segment_fixed_size 0
  .amdhsa_kernarg_size 88
  .amdhsa_user_sgpr_count 2
  .amdhsa_user_sgpr_kernarg_segment_ptr 1
  .amdhsa_system_sgpr_workgroup_id_x 1
.end_amdhsa_kernel"""

def main():
    hdr = open("cdna_kernels/" + NAME + ".s.ref").read().split("\n")
    hdr = [l for l in hdr[:12] if l.startswith(";")]
    print("\n".join(hdr))
    print(f"; @launch kernel=part_kernel grid=({K1_GRID},1,1) block=({K1_T},1,1) lds={K1_LDS}")
    print(f"; @launch kernel=main_kernel grid=(256,1,1) block=({K2_T},1,1) lds={K2_LDS}")
    if STAMP == 2: print("; @launch kernel=rep_kernel grid=(1,1,1) block=(64,1,1) lds=0")
    print('.amdgcn_target "amdgcn-amd-amdhsa--gfx950"')
    print(".text")
    gen_k1()
    gen_k2()
    if STAMP == 2: gen_report()
    print("\n".join(("" if (l.endswith(":") or l.startswith(".")) else "    ") + l for l in out))
    print('.section .rodata,"a"')
    print(kd("part_kernel", 64, 96 if STAMP else 48))
    print(kd("main_kernel", 256, 102))
    if STAMP == 2: print(kd("rep_kernel", 32, 16))

main()
```

```python
import sys, os

NAME = "gather_scatter__tensor_product_equiv_mace__graph"
N = 10000; E = 320000
P = 250; EPC = E // P
NB = 256; NPB = 40
NR = 10
CAPN = 64
env = lambda k, d: type(d)(os.environ.get(k, d))
STAMP = env("STAMP", 0)
STMOD = env("STMOD", "sc1")
K2TOUCH = env("K2TOUCH", 1)
K1TOUCH = env("K1TOUCH", 0)
K1T2 = env("K1T2", 0)
WTG = env("WTG", 1)
PWN = env("PWN", 0)
EARLY = env("EARLY", 0)
LDMOD = env("LDMOD", "")
RMOD = env("RMOD", "")
CODEPF = env("CODEPF", 1)
BAL = env("BAL", 1)
OMOD = env("OMOD", "sc0 sc1")
XP = env("XP", 0)
ILV = env("ILV", 1)
PRIO = env("PRIO", 1)
ROT = env("ROT", 0)
NOCOMP = env("NOCOMP", 0)
NOMEM = env("NOMEM", 0)

REC_OFF = 0
TAG_OFF = REC_OFF + E * 16
OFFS_OFF = TAG_OFF + E * 4
WT_OFF = OFFS_OFF + 256 * 1024
WR_OFF = WT_OFF + 32768
CG_OFF = WR_OFF + 2048
WS_USED = WT_OFF + 40960 + 4096
DBG_OFF = 8 << 20

out = []
def a(s): out.append(s)
FINE = env("FINE", 0)
def stamp(i):
    if FINE == 1 and i in (0, 1, 2, 5, 6, 7, 8): return
    if FINE == 2: return
    if STAMP: a(f"s_memrealtime s[{64+2*i}:{65+2*i}]")
def fstamp(i):
    if FINE == 1: a(f"s_memrealtime s[{64+2*i}:{65+2*i}]")
def estamp(i):
    if FINE == 2: a(f"s_memrealtime s[{64+2*i}:{65+2*i}]")
def stamp_flush(kidx, wavesper, n, swave, vt=1):
    if not STAMP: return
    if STAMP == 4 and kidx == 1:
        k = env("LEAK", 0); k1 = env("LEAK1", 0)
        a("s_waitcnt lgkmcnt(0)")
        a("s_cmp_lg_u32 s2, 8")
        a("s_cbranch_scc1 K2_end")
        a(f"s_cmp_lg_u32 s{swave}, 0")
        a("s_cbranch_scc1 K2_end")
        a("s_load_dwordx2 s[90:91], s[0:1], 80")
        a(f"v_mov_b32 v1, {DBG_OFF + 8*5*64 + 4*k1}")
        a("s_waitcnt lgkmcnt(0)")
        a("global_load_dword v2, v1, s[90:91]")
        a("s_waitcnt vmcnt(0)")
        a("v_readfirstlane_b32 s93, v2")
        a("s_nop 3")
        a(f"s_sub_u32 s92, s{64+2*k}, s93")
        a("s_mul_i32 s92, s92, 10")
        a("s_min_u32 s92, s92, 100000")
        a("LK_loop:")
        a("s_memrealtime s[94:95]")
        a("s_waitcnt lgkmcnt(0)")
        a("s_sub_u32 s93, s94, s80")
        a("s_cmp_lt_u32 s93, s92")
        a("s_cbranch_scc1 LK_loop")
        return
    a("s_mov_b64 exec, -1")
    a("s_load_dwordx2 s[90:91], s[0:1], 80")
    a(f"s_mul_i32 s92, s2, {wavesper}")
    a(f"s_add_u32 s92, s92, s{swave}")
    a(f"s_lshl_b32 s92, s92, 6")
    a(f"s_add_u32 s92, s92, {DBG_OFF + kidx*(1<<20)}")
    a(f"v_mov_b32 v{vt}, s92")
    a("s_waitcnt lgkmcnt(0)")
    a("s_mov_b64 exec, 1")
    for i in range(n):
        a(f"v_mov_b32 v{vt+1}, s{64+2*i}")
        a(f"global_store_dword v{vt}, v{vt+1}, s[90:91] offset:{4*i}")

def srd(d, base, nbytes):
    a(f"s_mov_b32 s{d}, s{base}")
    a(f"s_and_b32 s{d+1}, s{base+1}, 0xffff")
    a(f"s_mov_b32 s{d+2}, {nbytes}")
    a(f"s_mov_b32 s{d+3}, 0x20000")

def wave_scan(v, op="v_add_u32_dpp"):
    for sh in (1, 2, 4, 8):
        a("s_nop 1")
        a(f"{op} v{v}, v{v}, v{v} row_shr:{sh} row_mask:0xf bank_mask:0xf")
    a("s_nop 1")
    a(f"{op} v{v}, v{v}, v{v} row_bcast:15 row_mask:0xa bank_mask:0xf")
    a("s_nop 1")
    a(f"{op} v{v}, v{v}, v{v} row_bcast:31 row_mask:0xc bank_mask:0xf")

K1_T = 320
K1_HIST = 0; K1_OFFS = 1024; K1_TAG = 2048; K1_REC = K1_TAG + EPC * 4
K1_LDS = K1_REC + EPC * 16
NWPREP = 8
K1_GRID = P + NWPREP

def gen_k1():
    k = "part_kernel"
    a(f".globl {k}\n.p2align 8\n.type {k},@function\n{k}:")
    a(f"s_cmp_ge_u32 s2, {K1_GRID}")
    a("s_cbranch_scc1 K1_end")
    a(f"s_cmp_ge_u32 s2, {P}")
    a("s_cbranch_scc1 K1_wprep")
    stamp(0)
    a("s_load_dwordx4 s[4:7], s[0:1], 8")
    a("s_load_dwordx4 s[8:11], s[0:1], 24")
    a("s_load_dwordx2 s[12:13], s[0:1], 80")
    if K1TOUCH or K1T2: a("s_load_dwordx2 s[44:45], s[0:1], 0")
    a("v_lshlrev_b32 v1, 4, v0")
    a("v_lshlrev_b32 v2, 5, v0")
    a("v_lshlrev_b32 v3, 2, v0")
    a("v_mov_b32 v4, 0")
    a(f"ds_write_b32 v3, v4 offset:{K1_HIST}")
    a(f"s_mul_i32 s14, s2, {EPC*4}")
    a(f"s_mul_i32 s15, s2, {EPC*8}")
    a("v_lshrrev_b32 v5, 6, v0")
    a("s_waitcnt lgkmcnt(0)")
    srd(20, 6, E * 4)
    a(f"buffer_load_dwordx4 v[8:11], v1, s[20:23], s14 offen {LDMOD}")
    srd(16, 4, E * 4)
    a(f"buffer_load_dwordx4 v[12:15], v1, s[16:19], s14 offen {LDMOD}")
    srd(24, 8, E * 8)
    srd(28, 10, E * 8)
    srd(32, 12, WS_USED)
    a("v_readfirstlane_b32 s47, v5")
    a("s_barrier")
    a(f"buffer_load_dwordx4 v[16:19], v2, s[24:27], s15 offen {LDMOD}")
    a(f"buffer_load_dwordx4 v[20:23], v2, s[24:27], s15 offen offset:16 {LDMOD}")
    a(f"buffer_load_dwordx4 v[24:27], v2, s[28:31], s15 offen {LDMOD}")
    a(f"buffer_load_dwordx4 v[28:31], v2, s[28:31], s15 offen offset:16 {LDMOD}")
    a("s_mov_b32 s40, 429497")
    a("s_mov_b32 s41, 625")
    a("s_mov_b32 s42, 6711")
    a("v_mov_b32 v5, 1")
    a("v_and_b32 v6, 63, v0")
    a("v_lshlrev_b32 v6, 4, v6")
    a("s_waitcnt vmcnt(5)")
    stamp(1)
    for e in range(4):
        a(f"v_mul_u32_u24 v{32+e}, s40, v{8+e}")
        a(f"v_lshrrev_b32 v{32+e}, 24, v{32+e}")
        a(f"v_lshlrev_b32 v{36+e}, 2, v{32+e}")
        a(f"ds_add_rtn_u32 v{40+e}, v{36+e}, v5 offset:{K1_HIST}")
    a("s_waitcnt vmcnt(4)")
    for e in range(4):
        a(f"v_mad_u32_u24 v{32+e}, v{32+e}, s41, 15")
        a(f"v_lshrrev_b32 v{32+e}, 4, v{32+e}")
        a(f"v_sub_u32 v{8+e}, v{8+e}, v{32+e}")
        a(f"v_mul_u32_u24 v{32+e}, s42, v{12+e}")
        a(f"v_lshrrev_b32 v{32+e}, 22, v{32+e}")
        a(f"v_lshl_add_u32 v{8+e}, v{8+e}, 4, v{32+e}")
        a(f"v_lshl_add_u32 v{12+e}, v{12+e}, 10, v{8+e}")
    a("s_waitcnt lgkmcnt(0)")
    a("s_barrier")
    stamp(2)
    if K1TOUCH:
        srd(36, 44, N * 1024)
        a(f"s_mul_i32 s46, s2, {K1_T*16}")
        for r in range(K1TOUCH):
            a("buffer_load_dwordx4 v[60:63], v1, s[36:39], s46 offen")
            a(f"s_add_u32 s46, s46, {P*K1_T*16}")
    a(f"ds_read_b128 v[44:47], v6 offset:{K1_HIST}")
    a("s_waitcnt lgkmcnt(0)")
    a("v_add_u32 v48, v44, v45")
    a("v_add3_u32 v48, v48, v46, v47")
    a("v_mov_b32 v49, v48")
    wave_scan(49)
    a("v_sub_u32 v52, v49, v48")
    a("v_add_u32 v53, v52, v44")
    a("v_add_u32 v54, v53, v45")
    a("v_add_u32 v55, v54, v46")
    a(f"ds_write_b128 v6, v[52:55] offset:{K1_OFFS}")
    for e in range(4):
        a(f"ds_read_b32 v{32+e}, v{36+e} offset:{K1_OFFS}")
    a("s_cmp_lg_u32 s47, 0")
    a("s_cbranch_scc1 K1_noffs")
    a("s_lshl_b32 s43, s2, 10")
    a(f"s_add_u32 s43, s43, {OFFS_OFF}")
    for e in range(4):
        a(f"v_lshl_or_b32 v{56+e}, v{44+e}, 16, v{52+e}")
    a(f"buffer_store_dwordx4 v[56:59], v6, s[32:35], s43 offen {STMOD}")
    a(f"s_waitcnt vmcnt({K1TOUCH+1}) lgkmcnt(0)")
    a("s_branch K1_go")
    a("K1_noffs:")
    a(f"s_waitcnt vmcnt({K1TOUCH}) lgkmcnt(0)")
    a("K1_go:")
    stamp(3)
    for e in range(4):
        a(f"v_add_u32 v{32+e}, v{32+e}, v{40+e}")
        a(f"v_lshlrev_b32 v{36+e}, 4, v{32+e}")
        a(f"v_add_u32 v{36+e}, {K1_REC}, v{36+e}")
        a(f"v_lshlrev_b32 v{32+e}, 2, v{32+e}")
        a(f"ds_write2_b64 v{36+e}, v[{16+2*e}:{17+2*e}], v[{24+2*e}:{25+2*e}] offset0:0 offset1:1")
        a(f"ds_write_b32 v{32+e}, v{12+e} offset:{K1_TAG}")
    a(f"s_mul_i32 s43, s2, {EPC*16}")
    a(f"s_add_u32 s46, s14, {TAG_OFF}")
    a("s_waitcnt lgkmcnt(0)")
    a("s_barrier")
    stamp(4)
    a(f"ds_read_b128 v[24:27], v1 offset:{K1_TAG}")
    for r in range(4):
        a(f"ds_read_b128 v[{8+4*r}:{11+4*r}], v1 offset:{K1_REC + r*K1_T*16}")
    a("s_waitcnt lgkmcnt(4)")
    a(f"buffer_store_dwordx4 v[24:27], v1, s[32:35], s46 offen {STMOD}")
    for r in range(4):
        a(f"s_waitcnt lgkmcnt({3-r})")
        a(f"buffer_store_dwordx4 v[{8+4*r}:{11+4*r}], v1, s[32:35], s43 offen {STMOD}")
        a(f"s_add_u32 s43, s43, {K1_T*16}")
    if K1T2:
        srd(36, 44, N * 1024)
        a(f"s_mul_i32 s46, s2, {K1_T*16}")
        a(f"s_add_u32 s46, s46, {K1TOUCH*P*K1_T*16}")
        for r in range(K1T2):
            a("buffer_load_dwordx4 v[60:63], v1, s[36:39], s46 offen")
            a(f"s_add_u32 s46, s46, {P*K1_T*16}")
    stamp(5)
    if STAMP: a("s_waitcnt vmcnt(0)")
    stamp(6)
    stamp_flush(0, 5, 7, 47, 40)
    a("s_endpgm")
    a("K1_wprep:")
    a("s_load_dwordx4 s[4:7], s[0:1], 40")
    a("s_load_dwordx2 s[8:9], s[0:1], 56")
    a("s_load_dwordx2 s[12:13], s[0:1], 80")
    a(f"s_sub_u32 s14, s2, {P}")
    a("s_waitcnt lgkmcnt(0)")
    srd(16, 4, 128)
    srd(20, 6, 1024)
    srd(24, 8, 32768)
    srd(32, 12, WS_USED)
    a("v_cmp_gt_u32 vcc, 256, v0")
    a("s_and_saveexec_b64 s[36:37], vcc")
    a("s_cbranch_execz K1_wsmall")
    a("v_bfe_u32 v2, v0, 6, 2")
    a("v_bfe_u32 v3, v0, 4, 2")
    a("v_bfe_u32 v4, v0, 2, 2")
    a("v_and_b32 v5, 3, v0")
    a("v_lshlrev_b32 v6, 13, v2")
    a("v_lshl_add_u32 v6, v3, 11, v6")
    a("v_lshl_add_u32 v6, v4, 4, v6")
    a("v_lshl_add_u32 v6, v5, 1, v6")
    a("s_lshr_b32 s15, s14, 1")
    a("s_lshl_b32 s15, s15, 6")
    a("s_and_b32 s38, s14, 1")
    a("s_lshl_b32 s38, s38, 3")
    a("s_add_u32 s15, s15, s38")
    for q in range(8):
        a(f"buffer_load_ushort v{16+q}, v6, s[24:27], s15 offen offset:{q*256}")
    a("v_lshlrev_b32 v7, 4, v0")
    a("s_lshl_b32 s15, s14, 12")
    a(f"s_add_u32 s15, s15, {WT_OFF}")
    a("s_waitcnt vmcnt(0)")
    for q in range(4):
        a(f"v_lshl_or_b32 v{8+q}, v{17+2*q}, 16, v{16+2*q}")
    a("buffer_store_dwordx4 v[8:11], v7, s[32:35], s15 offen")
    a("s_endpgm")
    a("K1_wsmall:")
    a("s_mov_b64 exec, s[36:37]")
    a("v_subrev_u32 v1, 256, v0")
    a("s_cmp_lt_u32 s14, 2")
    a("s_cbranch_scc0 K1_wcg")
    a("s_lshl_b32 s15, s14, 6")
    a("v_add_u32 v1, s15, v1")
    a("v_lshlrev_b32 v2, 1, v1")
    for kk in range(4):
        a(f"buffer_load_ushort v{8+kk}, v2, s[20:23], 0 offen offset:{kk*256}")
    a("v_and_b32 v3, 7, v1")
    a("v_lshlrev_b32 v3, 4, v3")
    a("v_lshrrev_b32 v4, 3, v1")
    a("v_add_lshl_u32 v3, v3, v4, 4")
    a(f"s_mov_b32 s15, {WR_OFF}")
    a("s_waitcnt vmcnt(0)")
    for kk in range(4):
        a(f"v_lshlrev_b32 v{8+kk}, 16, v{8+kk}")
    a("buffer_store_dwordx4 v[8:11], v3, s[32:35], s15 offen")
    a("s_endpgm")
    a("K1_wcg:")
    a("s_cmp_eq_u32 s14, 2")
    a("s_cbranch_scc0 K1_wcode")
    a("v_lshrrev_b32 v2, 2, v1")
    a("v_lshlrev_b32 v2, 1, v2")
    for u in range(4):
        a(f"buffer_load_ushort v{16+u}, v2, s[16:19], 0 offen offset:{32*u}")
    a("v_and_b32 v3, 1, v1")
    a("v_lshlrev_b32 v3, 4, v3")
    a("v_and_b32 v4, 2, v1")
    a("v_cmp_eq_u32 vcc, 0, v4")
    a("v_lshlrev_b32 v6, 5, v1")
    a(f"s_mov_b32 s15, {CG_OFF}")
    a("s_waitcnt vmcnt(0)")
    for u in range(4):
        a(f"v_lshlrev_b32 v{16+u}, v3, v{16+u}")
        a(f"v_cndmask_b32 v{8+2*u}, 0, v{16+u}, vcc")
        a(f"v_cndmask_b32 v{9+2*u}, v{16+u}, 0, vcc")
    a("buffer_store_dwordx4 v[8:11], v6, s[32:35], s15 offen")
    a("buffer_store_dwordx4 v[12:15], v6, s[32:35], s15 offen offset:16")
    a("s_endpgm")
    a("K1_wcode:")
    if CODEPF:
        a("s_cmp_eq_u32 s14, 3")
        a("s_cbranch_scc0 K1_end")
        a("s_getpc_b64 s[40:41]")
        a("K1_pc:")
        a("s_add_u32 s40, s40, main_kernel-K1_pc")
        a("s_addc_u32 s41, s41, 0")
        a("v_lshlrev_b32 v2, 6, v1")
        for r in range(4):
            a("v_cmp_gt_u32 vcc, K2_code_end-main_kernel, v2")
            a("s_and_b64 exec, exec, vcc")
            a("s_cbranch_execz K1_wcode_done")
            a(f"global_load_dword v{8+r}, v2, s[40:41]")
            a("v_add_u32 v2, 4096, v2")
        a("K1_wcode_done:")
        a("s_waitcnt vmcnt(0)")
    a("K1_end:")
    a("s_endpgm")

K2_T = 512
SLOTS = NPB * CAPN + 8
DUMMY = NPB * CAPN
L_REC = 0
L_SOFF = L_REC + SLOTS * 16
L_HIST = L_SOFF + SLOTS * 4
L_FLAG = L_HIST + NPB * 16
L_PRE = L_FLAG + 16
L_NODE = L_PRE + NPB * 16 + 512
L_TAB = L_NODE + 512
L_LST = L_TAB + 1024
L_WT = (L_LST + 4096 + 255) // 256 * 256
L_WR = L_WT + 32768
L_AGG = L_WT + 32768 + 2048
AGG_RS = 272
K2_LDS = L_AGG + (NPB * 4 + 12) * AGG_RS
OOB = 0x7f000000
BARK = env("BARK", 4)
NXB = 4

ACC = 96; XB = 32; CG = 24; OPS = 20; AOP = 12; RECV = 8
V_GP = 7; V_SOFF = 6; V_T = 5; V_COL16 = 4; V_G = 3; V_ENT = 2; V_LADDR = 1; V_EASEL = 0
S_X = 8; S_WS = 12; S_OUT = 16
S_WAVE = 20; S_SELLO = 21; S_SELHI = 22; S_IDX = 23
S_S0 = 24; S_S1 = 26
S_EA = 28; S_EB = 29; S_IDX2 = 30; S_LEFT = 31; S_RC = 32; S_MORE = 33
S_T = 34; S_PASS = 35; S_MODE = 36; S_WIN = 37; S_MAXC = 38; S_B = 39
S_MASK = 40
S_SAVE = 60

def lane_id(v):
    a(f"v_mbcnt_lo_u32_b32 v{v}, -1, 0")
    a(f"v_mbcnt_hi_u32_b32 v{v}, -1, v{v}")

tail_code = []
uid = [0]
def ld_x(b):
    r = []
    for u in range(4):
        x = XB + 16 * b + 4 * u
        r.append(f"buffer_load_dwordx4 v[{x}:{x+3}], v{V_SOFF}, s[{S_X}:{S_X+3}], 0 offen offset:{u*256}")
    return r
def addr_fix():
    a(f"v_add_u32 v{V_SOFF}, v{V_SOFF}, v{V_COL16}")
    if NOMEM == 1: a(f"v_mov_b32 v{V_SOFF}, {OOB}")
    if NOMEM == 3: a(f"v_and_b32 v{V_SOFF}, 0xfffff, v{V_SOFF}")

def make_touch():
    tch = []
    if K2TOUCH:
        per = K2_T * 16
        hd = [f"s_mul_i32 s5, s{S_WAVE}, {20*AGG_RS}", f"s_add_u32 s5, s5, {L_AGG}", "s_mov_b32 m0, s5"]
        ld = f"buffer_load_dwordx4 v{V_T}, s[{S_X}:{S_X+3}], s5 offen lds ; touch"
        for r in range(PWN):
            tch.append(hd + ["s_lshr_b32 s5, s2, 3", "s_lshl_b32 s5, s5, 13", f"s_add_u32 s5, s5, {r*32*per}", ld])
        k1bytes = max((K1TOUCH + K1T2) * P * K1_T * 16, PWN * 32 * per)
        for r in range((N * 1024 - k1bytes + NB * per - 1) // (NB * per)):
            tch.append(hd + [f"s_lshl_b32 s5, s{S_B}, 13", f"s_add_u32 s5, s5, {k1bytes + r*NB*per}", ld])
    return tch

def gen_k2():
    k = "main_kernel"
    a(f".globl {k}\n.p2align 8\n.type {k},@function\n{k}:")
    a("s_cmp_ge_u32 s2, 256")
    a("s_cbranch_scc1 K2_end")
    stamp(0)
    a("s_load_dwordx2 s[4:5], s[0:1], 0")
    a("s_load_dwordx2 s[6:7], s[0:1], 80")
    a("s_load_dwordx2 s[62:63], s[0:1], 64")
    a("s_and_b32 s3, s2, 7")
    a("s_lshl_b32 s3, s3, 5")
    a(f"s_lshr_b32 s{S_B}, s2, 3")
    a(f"s_add_u32 s{S_B}, s{S_B}, s3")
    TID = 23; LANE = 22
    a(f"v_mov_b32 v{TID}, v0")
    a(f"v_and_b32 v{LANE}, 63, v0")
    a("v_lshrrev_b32 v1, 6, v0")
    a("v_lshlrev_b32 v2, 2, v0")
    a("v_mov_b32 v3, 0")
    a(f"v_readfirstlane_b32 s{S_WAVE}, v1")
    a(f"v_cmp_gt_u32 vcc, {NPB*4+4}, v0")
    a(f"s_and_saveexec_b64 s[{S_SAVE}:{S_SAVE+1}], vcc")
    a(f"ds_write_b32 v2, v3 offset:{L_HIST}")
    a(f"s_mov_b64 exec, s[{S_SAVE}:{S_SAVE+1}]")
    a("v_lshrrev_b32 v8, 1, v0")
    a("v_and_b32 v9, 1, v0")
    a("v_lshlrev_b32 v10, 10, v8")
    a(f"s_lshl_b32 s3, s{S_B}, 2")
    a(f"s_add_u32 s3, s3, {OFFS_OFF}")
    a("s_waitcnt lgkmcnt(0)")
    srd(S_WS, 6, WS_USED)
    a(f"buffer_load_dword v12, v10, s[{S_WS}:{S_WS+3}], s3 offen")
    a(f"s_lshl_b32 s3, s{S_WAVE}, 8")
    a(f"s_add_u32 s3, s3, {L_WR}")
    a("s_mov_b32 m0, s3")
    a(f"s_mov_b32 s3, {WR_OFF}")
    a(f"buffer_load_dword v2, s[{S_WS}:{S_WS+3}], s3 offen lds")
    srd(S_X, 4, N * 1024)
    srd(S_OUT, 62, N * 1024)
    if CODEPF:
        a("s_getpc_b64 s[4:5]")
        a("K2_pc:")
        a(f"v_lshlrev_b32 v14, 7, v{TID}")
        a("v_cmp_gt_u32 vcc, K2_code_end-K2_pc, v14")
        a(f"s_and_saveexec_b64 s[{S_SAVE}:{S_SAVE+1}], vcc")
        a("s_cbranch_execz K2_nocpf")
        a("global_load_dword v15, v14, s[4:5]")
        a("K2_nocpf:")
        a(f"s_mov_b64 exec, s[{S_SAVE}:{S_SAVE+1}]")
    if EARLY:
        a(f"v_lshlrev_b32 v{V_T}, 4, v{TID}")
        for g_ in make_touch()[:EARLY]:
            for x in g_: a(x)
    a("s_barrier")
    for r in range(4):
        a(f"v_mov_b32 v{16+r}, 0")
    a("s_nop 1")
    for r in range(10):
        a(f"v_mfma_f32_32x32x16_bf16 v[{ACC+16*r}:{ACC+16*r+15}], v[16:19], v[16:19], 0")
    a(f"v_and_b32 v{V_COL16}, 15, v{TID}")
    a(f"v_lshlrev_b32 v{V_COL16}, 4, v{V_COL16}")
    a(f"v_lshrrev_b32 v{V_G}, 4, v{LANE}")
    a(f"v_mul_u32_u24 v{V_EASEL}, 0x0202, v{V_G}")
    a(f"v_add_u32 v{V_EASEL}, 0x0100, v{V_EASEL}")
    a(f"v_lshlrev_b32 v{V_EASEL}, 16, v{V_EASEL}")
    a(f"v_or_b32 v{V_EASEL}, 0x0c0c, v{V_EASEL}")
    a(f"v_and_b32 v7, 7, v{LANE}")
    a("v_and_b32 v2, 1, v7")
    a("v_mul_u32_u24 v2, 7, v2")
    a(f"v_xor_b32 v2, s{S_WAVE}, v2")
    a("v_lshl_add_u32 v2, v7, 3, v2")
    a("v_lshlrev_b32 v2, 2, v2")
    a(f"v_and_b32 v6, 1, v{V_G}")
    a("v_mul_u32_u24 v6, 7, v6")
    a(f"v_xor_b32 v6, s{S_WAVE}, v6")
    a(f"v_lshl_add_u32 v6, v{V_G}, 3, v6")
    a("v_lshlrev_b32 v6, 2, v6")
    a(f"s_lshl_b32 s3, s{S_WAVE}, 2")
    a("s_add_u32 s3, s3, 128")
    a("v_mov_b32 v1, s3")
    a(f"s_mov_b32 s{S_SELLO}, 0x05040100")
    a(f"s_mov_b32 s{S_SELHI}, 0x07060302")
    a(f"s_mov_b32 s{S_MODE}, 0")
    a(f"v_mul_u32_u24 v10, {EPC}, v8")
    a("v_add_u32 v10, v10, v9")
    a(f"v_lshlrev_b32 v16, 5, v{LANE}")
    a(f"v_cmp_gt_u32 vcc, {P}, v8")
    a(f"s_waitcnt vmcnt({EARLY})")
    stamp(1)
    a("v_lshrrev_b32 v11, 16, v12")
    a("v_and_b32 v12, 0xffff, v12")
    a("v_cndmask_b32 v11, 0, v11, vcc")
    a("v_add_u32 v10, v10, v12")
    a("v_sub_u32 v13, v11, v9")
    a("v_lshlrev_b32 v14, 4, v10")
    a("v_lshlrev_b32 v10, 2, v10")
    a(f"s_mov_b32 s3, {TAG_OFF}")
    RB = XB; TG = XB + 40; RK = XB + 50
    M = lambda r: f"s[{S_MASK+2*r}:{S_MASK+2*r+1}]"
    for r in range(NR):
        a(f"v_cmp_lt_i32 {M(r)}, {2*r}, v13")
    for r in range(NR):
        a(f"s_mov_b64 exec, {M(r)}")
        a("s_cbranch_execz K2_lt_done")
        a(f"buffer_load_dword v{TG+r}, v10, s[{S_WS}:{S_WS+3}], s3 offen offset:{8*r}")
    a("K2_lt_done:")
    a("s_mov_b64 exec, -1")
    a(f"v_cmp_lt_u32 s[{S_SAVE}:{S_SAVE+1}], {2*NR}, v11")
    a("v_mov_b32 v17, 1")
    a(f"s_mov_b32 s3, {CG_OFF}")
    for r in range(NR):
        a(f"s_mov_b64 exec, {M(r)}")
        a(f"s_cbranch_execz K2_lp{r}")
        a(f"buffer_load_dwordx4 v[{RB+4*r}:{RB+4*r+3}], v14, s[{S_WS}:{S_WS+3}], 0 offen offset:{32*r}")
    a(f"s_waitcnt vmcnt({NR})")
    a("K2_ld_done:")
    for r in range(NR):
        tail_code.extend([f"K2_lp{r}:", f"s_waitcnt vmcnt({r})", "s_branch K2_ld_done"])
    stamp(2)
    for r in range(NR):
        a(f"s_mov_b64 exec, {M(r)}")
        a("s_cbranch_execz K2_h_done")
        a(f"v_and_b32 v9, 0x3fc, v{TG+r}")
        a(f"v_lshlrev_b32 v8, 3, v{TG+r}")
        a(f"v_lshlrev_b32 v8, v8, v17")
        a(f"ds_add_rtn_u32 v{RK+r}, v9, v8 offset:{L_HIST}")
    a("K2_h_done:")
    a("s_mov_b64 exec, -1")
    a(f"buffer_load_dwordx4 v[{CG}:{CG+3}], v16, s[{S_WS}:{S_WS+3}], s3 offen")
    a(f"buffer_load_dwordx4 v[{CG+4}:{CG+7}], v16, s[{S_WS}:{S_WS+3}], s3 offen offset:16")
    a("s_waitcnt lgkmcnt(0)")
    for r in range(NR):
        a(f"s_mov_b64 exec, {M(r)}")
        a("s_cbranch_execz K2_r_done")
        a(f"v_lshlrev_b32 v8, 3, v{TG+r}")
        a(f"v_bfe_u32 v{RK+r}, v{RK+r}, v8, 8")
        a(f"v_and_b32 v8, 0x3f0, v{TG+r}")
        a(f"v_cmp_lt_u32 vcc, {CAPN-1}, v{RK+r}")
        a(f"v_lshl_add_u32 v{RK+r}, v8, 2, v{RK+r}")
        a(f"s_or_b64 s[{S_SAVE}:{S_SAVE+1}], s[{S_SAVE}:{S_SAVE+1}], vcc")
    a("K2_r_done:")
    a("s_mov_b64 exec, -1")
    a(f"v_mov_b32 v9, {L_FLAG}")
    a(f"s_cmp_eq_u64 s[{S_SAVE}:{S_SAVE+1}], 0")
    a("s_cbranch_scc1 K2_noflag")
    a("ds_write_b32 v9, v17")
    a("K2_noflag:")
    a(f"v_lshlrev_b32 v8, 4, v{LANE}")
    a("s_waitcnt lgkmcnt(0)")
    a("s_barrier")
    stamp(3)
    a(f"ds_read_b128 v[12:15], v8 offset:{L_HIST}")
    a("ds_read_b32 v9, v9")
    a(f"v_lshlrev_b32 v{V_T}, 4, v{TID}")
    bg = []
    for r in range(0 if WTG else 4):
        bg.append([f"s_lshl_b32 s5, s{S_WAVE}, 10", f"s_add_u32 s5, s5, {L_WT + r*K2_T*16}", "s_mov_b32 m0, s5",
                   f"s_mov_b32 s5, {WT_OFF + r*K2_T*16}",
                   f"buffer_load_dwordx4 v{V_T}, s[{S_WS}:{S_WS+3}], s5 offen lds"])
    tch = make_touch()[EARLY:]
    bg = tch + bg
    nbg0 = len(bg)
    nbg_before_scatter = lambda: nbg0 - len(bg)
    def bgop(n=1):
        for _ in range(n):
            if bg:
                for x in bg.pop(0): a(x)
    bgop(2)
    a("s_waitcnt lgkmcnt(0)")
    a("s_mov_b32 s3, 0x01010101")
    a("v_mov_b32 v10, 0")
    PW = 18
    for q in range(4):
        H = 12 + q
        a(f"v_lshlrev_b32 v{PW+q}, 8, v{H}")
        a(f"v_lshl_add_u32 v{PW+q}, v{H}, 16, v{PW+q}")
        a(f"v_lshl_add_u32 v{PW+q}, v{H}, 24, v{PW+q}")
        if q > 0:
            a(f"v_mul_lo_u32 v11, v10, s3")
            a(f"v_add_u32 v{PW+q}, v{PW+q}, v11")
        a(f"v_sad_u8 v10, v{H}, 0, v10")
    a(f"v_cmp_gt_u32 vcc, {NPB}, v{LANE}")
    a(f"s_and_saveexec_b64 s[{S_SAVE}:{S_SAVE+1}], vcc")
    a(f"ds_write_b128 v8, v[{PW}:{PW+3}] offset:{L_PRE}")
    a(f"v_cmp_lt_u32 vcc, {CAPN}, v10")
    a(f"s_mov_b64 exec, s[{S_SAVE}:{S_SAVE+1}]")
    a("v_readfirstlane_b32 s3, v9")
    a("s_cmp_lg_u64 vcc, 0")
    a("s_cbranch_scc1 K2_slow")
    a("s_cmp_lg_u32 s3, 0")
    a("s_cbranch_scc1 K2_slow")
    fstamp(0)
    bg_slow = [list(x) for x in bg]
    PR = [12, 13, 14, 15, 16, 17, 18, 19, 20, 21]
    for r in range(NR):
        a(f"s_mov_b64 exec, {M(r)}")
        a("s_cbranch_execz K2_p_done")
        a(f"v_and_b32 v8, 0x3ff, v{TG+r}")
        a(f"ds_read_u8 v{PR[r]}, v8 offset:{L_PRE}")
    a("K2_p_done:")
    a("s_mov_b64 exec, -1")
    bgop(1)
    a("v_add_u32 v8, 3, v10")
    a("v_lshrrev_b32 v8, 2, v8")
    a("v_subrev_u32 v8, 5, v8")
    a("v_med3_i32 v8, v8, 0, 7")
    a(f"v_cmp_gt_u32 vcc, {NPB}, v{LANE}")
    a("v_mov_b32 v9, 63")
    a("s_nop 0")
    a("v_cndmask_b32 v8, 64, v8, vcc")
    KM = [24, 26, 28, 30, 32, 82, 84, 86]
    for q in range(8):
        a(f"v_cmp_eq_u32 s[{KM[q]}:{KM[q]+1}], {q}, v8")
    fstamp(1)
    a(f"s_waitcnt vmcnt({nbg_before_scatter()}) lgkmcnt(0)")
    for r in range(NR):
        a(f"s_mov_b64 exec, {M(r)}")
        a("s_cbranch_execz K2_s_done")
        a(f"v_add_lshl_u32 v8, v{RK+r}, v{PR[r]}, 2")
        a(f"v_lshlrev_b32 v11, 2, v8")
        a(f"v_and_b32 v{TG+r}, 0xfffc00, v{TG+r}")
        a(f"ds_write_b128 v11, v[{RB+4*r}:{RB+4*r+3}] offset:{L_REC}")
        a(f"ds_write_b32 v8, v{TG+r} offset:{L_SOFF}")
    a("K2_s_done:")
    fstamp(2)
    a("s_mov_b32 s3, 0")
    for q in range(7, -1, -1):
        a(f"s_mov_b64 exec, s[{KM[q]}:{KM[q]+1}]")
        a(f"v_mbcnt_lo_u32_b32 v9, s{KM[q]}, 0")
        a(f"v_mbcnt_hi_u32_b32 v9, s{KM[q]+1}, v9")
        a("v_add_u32 v9, s3, v9")
        a(f"s_bcnt1_i32_b64 s4, s[{KM[q]}:{KM[q]+1}]")
        a("s_add_u32 s3, s3, s4")
    a("s_mov_b64 exec, -1")
    a("v_lshlrev_b32 v9, 2, v9")
    a(f"v_lshl_add_u32 v8, v10, 8, v{LANE}")
    a("ds_permute_b32 v8, v9, v8")
    bgop(2)
    a("s_waitcnt lgkmcnt(0)")
    a("ds_bpermute_b32 v11, v2, v8")
    a("ds_bpermute_b32 v6, v6, v8")
    a("ds_bpermute_b32 v1, v1, v8")
    a("v_mov_b32 v12, 0")
    a("v_mov_b32 v13, 0")
    a(f"s_mov_b32 s{S_PASS}, 0")
    a("K2_sched:")
    fstamp(5)
    a(f"v_and_b32 v14, 15, v{LANE}")
    a(f"s_lshl_b32 s3, s{S_WAVE}, 6")
    a("v_lshl_add_u32 v15, v7, 2, s3")
    a("s_waitcnt lgkmcnt(0)")
    a(f"ds_write_b32 v15, v11 offset:{L_NODE}")
    BS = [(6, 12, 16, 17, 18), (1, 13, 19, 20, 21)]
    for (vi, vd, vq, vt, ve) in BS:
        a(f"v_and_b32 v{vt}, 0xff, v{vi}")
        a(f"v_lshl_add_u32 v{vt}, v{vt}, 4, v14")
        a(f"ds_read_u8 v{vt}, v{vt} offset:{L_PRE+1}")
        a(f"v_lshrrev_b32 v{vq}, 8, v{vi}")
        a(f"v_add_u32 v{vq}, 3, v{vq}")
        a(f"v_lshrrev_b32 v{vq}, 2, v{vq}")
    a(f"s_cmp_eq_u32 s{S_PASS}, 0")
    a("s_cselect_b32 s4, 15, 0")
    a("v_cmp_le_u32 vcc, s4, v14")
    a("s_waitcnt lgkmcnt(0)")
    for (vi, vd, vq, vt, ve) in BS:
        a(f"v_add_u32 v{vt}, 1, v{vt}")
        a(f"v_lshrrev_b32 v{vt}, 2, v{vt}")
        a(f"v_cndmask_b32 v{vt}, v{vt}, v{vq}, vcc")
        a(f"v_sub_u32 v{vt}, v{vt}, v14")
        a(f"v_add_u32 v{ve}, 1, v{vd}")
        a(f"v_min_i32 v{vt}, v{vt}, v{ve}")
    for sh in (1, 2, 4, 8):
        a("s_nop 0")
        for (vi, vd, vq, vt, ve) in BS:
            a(f"v_min_i32_dpp v{vt}, v{vt}, v{vt} row_shr:{sh} row_mask:0xf bank_mask:0xf")
    for (vi, vd, vq, vt, ve) in BS:
        a(f"v_subrev_u32 v{ve}, 15, v{vq}")
        a(f"v_max_i32 v{vt}, v{vt}, v{ve}")
    for (vi, vd, vq, vt, ve) in BS:
        a(f"v_add_u32 v{ve}, v{vt}, v14")
    a("s_nop 0")
    for (vi, vd, vq, vt, ve) in BS:
        a(f"v_mov_b32_dpp v{vd}, v{ve} row_shr:1 row_mask:0xf bank_mask:0xf")
    a(f"s_lshl_b32 s4, s{S_WAVE}, 7")
    a("v_lshl_add_u32 v15, v14, 3, s4")
    for k_, (vi, vd, vq, vt, ve) in enumerate(BS):
        a(f"v_sub_u32 v{vt}, v{ve}, v{vd}")
        a(f"v_lshl_or_b32 v{vt}, v{vt}, 7, v{vd}")
        if k_ == 0:
            a(f"v_add_u32 v{vi}, v15, v{V_G}")
            a(f"ds_write_b8 v{vi}, v{vt} offset:{L_TAB}")
        else:
            a(f"ds_write_b8 v15, v{vt} offset:{L_TAB+4}")
    a(f"v_add_u32 v15, s4, v{LANE}")
    a(f"ds_read_u8 v12, v15 offset:{L_TAB}")
    a(f"ds_read_u8 v13, v15 offset:{L_TAB+64}")
    fstamp(6)
    a("v_and_b32 v16, 0xff, v11")
    a("v_lshlrev_b32 v16, 6, v16")
    a("v_lshrrev_b32 v10, 8, v11")
    a("v_cmp_gt_u32 vcc, 5, v7")
    a("v_mov_b32 v20, 0")
    a("v_mov_b32 v21, 0")
    a("v_cndmask_b32 v10, 0, v10, vcc")
    a("s_waitcnt lgkmcnt(0)")
    a("v_cndmask_b32 v12, 0, v12, vcc")
    a("v_cndmask_b32 v13, 0, v13, vcc")
    a(f"v_cmp_lt_u32 s[{S_S0}:{S_S0+1}], 64, v12")
    a(f"v_cmp_lt_u32 s[{S_S1}:{S_S1+1}], 64, v13")
    a("v_and_b32 v12, 0x7f, v12")
    a("v_and_b32 v13, 0x7f, v13")
    a("v_lshl_add_u32 v12, v12, 2, v16")
    a("v_lshl_add_u32 v13, v13, 2, v16")
    a(f"s_bcnt1_i32_b64 s4, s[{S_S0}:{S_S0+1}]")
    a(f"s_bcnt1_i32_b64 s{S_LEFT}, s[{S_S1}:{S_S1+1}]")
    a(f"s_add_u32 s{S_LEFT}, s{S_LEFT}, s4")
    a(f"s_lshl_b32 s5, s{S_WAVE}, 7")
    a("s_add_u32 s4, s4, s5")
    a(f"v_mbcnt_lo_u32_b32 v17, s{S_S0}, 0")
    a(f"v_mbcnt_hi_u32_b32 v17, s{S_S0+1}, v17")
    a(f"v_mbcnt_lo_u32_b32 v18, s{S_S1}, 0")
    a(f"v_mbcnt_hi_u32_b32 v18, s{S_S1+1}, v18")
    a("v_add_lshl_u32 v17, s5, v17, 2")
    a("v_add_lshl_u32 v18, s4, v18, 2")
    a(f"v_add_lshl_u32 v19, s5, v{LANE}, 2")
    a(f"v_mov_b32 v15, {DUMMY}")
    a(f"ds_write_b32 v19, v15 offset:{L_LST}")
    a(f"ds_write_b32 v19, v15 offset:{L_LST+256}")
    a(f"s_mov_b64 exec, s[{S_S0}:{S_S0+1}]")
    a(f"ds_write_b32 v17, v12 offset:{L_LST}")
    a(f"s_mov_b64 exec, s[{S_S1}:{S_S1+1}]")
    a(f"ds_write_b32 v18, v13 offset:{L_LST}")
    a("s_mov_b64 exec, -1")
    a(f"v_and_b32 v{V_LADDR}, 3, v{LANE}")
    a(f"v_add_lshl_u32 v{V_LADDR}, s5, v{V_LADDR}, 2")
    a(f"ds_read_b32 v12, v{V_LADDR} offset:{L_LST}")
    a(f"ds_read_b32 v{V_ENT}, v{V_LADDR} offset:{L_LST+16}")
    fstamp(7)
    a(f"v_lshrrev_b32 v14, 3, v{LANE}")
    a("v_add_u32 v15, 3, v10")
    a("v_and_b32 v15, 0xfc, v15")
    a("v_add_u32 v14, v10, v14")
    a("v_cmp_lt_u32 vcc, v14, v15")
    a("v_add_u32 v14, v16, v14")
    a(f"v_add_u32 v15, {DUMMY}, v7")
    a(f"v_subrev_u32 v19, 24, v{LANE}")
    a(f"v_cmp_gt_u32 s[{S_SAVE}:{S_SAVE+1}], 4, v19")
    a(f"v_bfe_u32 v{V_GP}, v{LANE}, 2, 2")
    a("v_mov_b32 v22, 0")
    a("v_mov_b32 v23, 0")
    a(f"v_cndmask_b32 v14, v14, v15, s[{S_SAVE}:{S_SAVE+1}]")
    a(f"s_or_b64 exec, vcc, s[{S_SAVE}:{S_SAVE+1}]")
    a("v_lshlrev_b32 v15, 4, v14")
    a("v_lshlrev_b32 v14, 2, v14")
    a(f"v_mov_b32 v19, {OOB}")
    a(f"ds_write_b128 v15, v[20:23] offset:{L_REC}")
    a(f"ds_write_b32 v14, v19 offset:{L_SOFF}")
    a("s_mov_b64 exec, -1")
    a("s_waitcnt lgkmcnt(0)")
    fstamp(8)
    a("s_barrier")
    stamp(4)
    a(f"s_cmp_lg_u32 s{S_PASS}, 0")
    a("s_cbranch_scc1 K2_nobg")
    bgop(100)
    a("K2_nobg:")
    def rd_soff(se):
        return [f"v_add_lshl_u32 v{V_T}, s{se}, v{V_G}, 2", f"ds_read_b32 v{V_SOFF}, v{V_T} offset:{L_SOFF}"]
    def rd_rec(ve):
        return [f"v_add_lshl_u32 v{V_T}, v{ve}, v{V_GP}, 4", f"ds_read_b128 v[{RECV}:{RECV+3}], v{V_T} offset:{L_REC}"]
    for q in range(NXB):
        a(f"v_readlane_b32 s{4+q}, v12, {q}")
    a(f"s_mov_b32 s{S_RC}, 0")
    a(f"s_mov_b32 s{S_IDX2}, s{S_LEFT}")
    for x in rd_rec(12): a(x)
    for x in rd_soff(4): a(x)
    for q in range(NXB - 1):
        a(f"s_cmp_gt_u32 s{S_LEFT}, {q}")
        a("s_cbranch_scc0 K2_t0")
        a("s_waitcnt lgkmcnt(0)")
        addr_fix()
        for x in ld_x(q): a(x)
        for x in rd_soff(5 + q): a(x)
    a("s_branch K2_t0")
    NS = 5 * NXB
    for s_ in range(NS):
        i = s_ % 5; b = s_ % NXB
        if i == 0:
            a(f"K2_re{s_}:")
            a(f"s_add_u32 s{S_RC}, s{S_RC}, 1")
            if PRIO == 1:
                a(f"s_lshr_b32 s{S_T}, s{S_WAVE}, 2")
                a(f"s_add_u32 s{S_T}, s{S_T}, s{S_RC}")
                a("s_setprio 0")
                a(f"s_bitcmp1_b32 s{S_T}, 0")
                a(f"s_cbranch_scc0 K2_pr{s_}")
                a("s_setprio 1")
                a(f"K2_pr{s_}:")
            a(f"s_lshr_b64 s[{S_S0}:{S_S0+1}], s[{S_S0}:{S_S0+1}], 8")
            a(f"s_and_b32 s{S_T}, s{S_RC}, {BARK-1}")
            a(f"s_cbranch_scc0 K2_rx{s_}")
            t = [f"K2_rx{s_}:",
                 f"s_cmp_eq_u32 s{S_RC}, 16", "s_cbranch_scc1 K2_loop_done",
                 f"s_cmp_lg_u32 s{S_RC}, 8", f"s_cbranch_scc1 K2_ry{s_}",
                 f"s_mov_b64 s[{S_S0}:{S_S0+1}], s[{S_S1}:{S_S1+1}]",
                 f"s_cmp_lg_u32 s{S_IDX2}, s{S_LEFT}", f"s_cbranch_scc1 K2_ry{s_}",
                 "s_waitcnt vmcnt(0)",
                 f"K2_ry{s_}:",
                 f"s_cmp_lg_u32 s{S_PASS}, 0", f"s_cbranch_scc1 K2_t{s_}",
                 "s_barrier", f"s_branch K2_t{s_}"]
            tail_code.extend(t)
        a(f"K2_t{s_}:")
        a(f"s_bitcmp1_b32 s{S_S0}, {i}")
        nxt = (s_ + 16) % NS
        a(f"s_cbranch_scc0 K2_{'re' if nxt % 5 == 0 else 't'}{nxt}")
        a(f"s_sub_u32 s{S_LEFT}, s{S_LEFT}, 1")
        a("s_waitcnt lgkmcnt(0)")
        a(f"v_readlane_b32 s{S_EB}, v{V_ENT}, {b}")
        a(f"s_cmp_lt_u32 s{S_LEFT}, {NXB-1}")
        DT = XB + 16 * (NXB - 1)
        if b == 0:
            a(f"v_perm_b32 v{V_T}, v{RECV+1}, v{RECV}, v{V_EASEL}")
            a(f"v_lshlrev_b32 v{OPS}, 16, v{RECV+2}")
            a(f"v_and_b32 v{OPS+1}, 0xffff0000, v{RECV+2}")
            a(f"v_lshlrev_b32 v{OPS+2}, 16, v{RECV+3}")
            a(f"v_and_b32 v{OPS+3}, 0xffff0000, v{RECV+3}")
            for x in range(4):
                a(f"v_mul_f32 v{OPS+x}, v{OPS+x}, v{V_T}")
            a(f"v_cvt_pk_bf16_f32 v{RECV}, v{OPS}, v{OPS+1}")
            a(f"v_cvt_pk_bf16_f32 v{RECV+1}, v{OPS+2}, v{OPS+3}")
            addr_fix()
            a("s_nop 0")
            for u in range(4):
                a(f"v_mfma_f32_16x16x16_bf16 v[{DT+4*u}:{DT+4*u+3}], v[{RECV}:{RECV+1}], v[{CG+2*u}:{CG+2*u+1}], 0")
        else:
            addr_fix()
            a(f"s_cbranch_scc1 K2_nl{s_}")
            for x in ld_x((b + NXB - 1) % NXB): a(x)
            a(f"K2_nl{s_}:")
            for x in rd_soff(S_EB): a(x)
            if b == 2:
                for x in rd_rec(V_ENT): a(x)
            if b == 3:
                a(f"v_add_u32 v{V_LADDR}, 16, v{V_LADDR}")
                a(f"ds_read_b32 v{V_ENT}, v{V_LADDR} offset:{L_LST+16}")
        pre = 0 if b == 0 else 4
        a(f"s_cbranch_scc1 K2_wx{s_}")
        a(f"s_waitcnt vmcnt({4*(NXB-2)+pre})")
        a(f"K2_wr{s_}:")
        t = [f"K2_wx{s_}:", "s_waitcnt vmcnt(8)", f"s_cmp_eq_u32 s{S_LEFT}, 2", f"s_cbranch_scc1 K2_wr{s_}",
             "s_waitcnt vmcnt(4)", f"s_cmp_eq_u32 s{S_LEFT}, 1", f"s_cbranch_scc1 K2_wr{s_}",
             "s_waitcnt vmcnt(0)", f"s_cmp_eq_u32 s{S_LEFT}, 0", f"s_branch K2_wr{s_}"]
        tail_code.extend(t)
        def pm(j):
            if XP in (2, 3): return
            m = j >> 1; sel = S_SELHI if j & 1 else S_SELLO
            o = OPS + 2 * (j % 2)
            x = lambda u: XB + 16 * b + 4 * u + m
            a(f"v_perm_b32 v{o}, v{x(1)}, v{x(0)}, s{sel}")
            a(f"v_perm_b32 v{o+1}, v{x(3)}, v{x(2)}, s{sel}")
        def mf(j):
            if XP in (1, 3): return
            o = OPS + 2 * (j % 2); c = ACC + 32 * i + 4 * j
            a(f"v_mfma_f32_16x16x16_bf16 v[{c}:{c+3}], v[{AOP+2*b}:{AOP+2*b+1}], v[{o}:{o+1}], v[{c}:{c+3}]")
        pm(0); pm(1)
        if b == 0:
            a("s_nop 1")
            for r in range(4):
                a(f"v_cvt_pk_bf16_f32 v{AOP+2*r}, v{DT+r}, v{DT+4+r}")
            for r in range(4):
                a(f"v_cvt_pk_bf16_f32 v{AOP+2*r+1}, v{DT+8+r}, v{DT+12+r}")
            a(f"s_cbranch_scc1 K2_nl{s_}")
            for x in ld_x(NXB - 1): a(x)
            a(f"K2_nl{s_}:")
            for x in rd_soff(S_EB): a(x)
        mf(0)
        for j in range(2, 8):
            pm(j)
            mf(j - 1)
        a("s_nop 0")
        mf(7)
    a("s_branch K2_re0")
    for x in tail_code: a(x)
    a("K2_loop_done:")
    a(f"s_cmp_lg_u32 s{S_MODE}, 0")
    a("s_cbranch_scc1 K2_slow_next")
    a("K2_epi:")
    stamp(5)
    estamp(3)
    a("s_waitcnt vmcnt(0) lgkmcnt(0)")
    lane_id(LANE)
    a(f"s_and_b32 s3, s{S_WAVE}, 3")
    a("s_lshl_b32 s4, s3, 13")
    if WTG:
        a(f"v_lshlrev_b32 v2, 4, v{LANE}")
        a(f"s_add_u32 s4, s4, {WT_OFF}")
        for x in range(8):
            if x == 4: a("s_add_u32 s4, s4, 4096")
            a(f"buffer_load_dwordx4 v[{XB+32+4*x}:{XB+32+4*x+3}], v2, s[{S_WS}:{S_WS+3}], s4 offen offset:{1024*(x%4)}")
    a(f"v_add_u32 v1, {L_WR}, v{V_COL16}")
    for j in range(8):
        a(f"ds_read_b128 v[{XB+4*j}:{XB+4*j+3}], v1 offset:{256*j}")
    a(f"s_lshl_b32 s5, s{S_WAVE}, 6")
    a("v_mov_b32 v5, s5")
    a(f"ds_read_b128 v[16:19], v5 offset:{L_NODE}")
    a(f"ds_read_b32 v20, v5 offset:{L_NODE+16}")
    if not WTG:
        a(f"s_add_u32 s4, s4, {L_WT}")
        a(f"v_lshl_add_u32 v1, v{LANE}, 4, s4")
    a(f"v_mul_u32_u24 v2, {AGG_RS}, v{V_G}")
    a(f"v_add_u32 v2, v2, v{V_COL16}")
    a(f"v_add_u32 v2, {L_AGG}, v2")
    a(f"s_mov_b32 s4, {4*AGG_RS}")
    a("s_waitcnt lgkmcnt(0)")
    estamp(0)
    if not WTG:
        for x in range(8):
            a(f"ds_read_b128 v[{XB+32+4*x}:{XB+32+4*x+3}], v1 offset:{1024*x}")
    for i in range(5):
        a(f"v_and_b32 v{16+i}, 0xff, v{16+i}")
        a(f"v_mad_u32_u24 v{16+i}, v{16+i}, s4, v2")
    for i in range(5):
        for j in range(8):
            c = ACC + 32 * i + 4 * j; w = XB + 4 * j
            a(f"v_mul_f32 v{c}, v{c}, v{w}")
        for kk in range(1, 4):
            for j in range(8):
                c = ACC + 32 * i + 4 * j; w = XB + 4 * j
                a(f"v_fmac_f32 v{c}, v{c+kk}, v{w+kk}")
        o = 8 + 4 * (i % 2)
        for jj in range(4):
            c = ACC + 32 * i + 8 * jj
            a(f"v_cvt_pk_bf16_f32 v{o+jj}, v{c}, v{c+4}")
        a(f"ds_write_b128 v{16+i}, v[{o}:{o+3}]")
    a(f"s_lshr_b32 s5, s{S_WAVE}, 2")
    a(f"s_mul_i32 s6, s5, {16*AGG_RS}")
    a(f"s_add_u32 s6, s6, {L_AGG}")
    a(f"v_and_b32 v6, 15, v{LANE}")
    a(f"v_mul_u32_u24 v7, {AGG_RS}, v6")
    a(f"v_lshl_add_u32 v7, v{V_G}, 4, v7")
    a("v_add_u32 v7, s6, v7")
    a("v_lshlrev_b32 v5, 8, v6")
    a(f"v_lshl_add_u32 v5, v{V_G}, 4, v5")
    a(f"s_mul_i32 s6, s{S_B}, 625")
    a("s_add_u32 s7, s6, 640")
    a("s_add_u32 s6, s6, 15")
    a("s_lshr_b32 s6, s6, 4")
    a("s_lshr_b32 s7, s7, 4")
    a("s_sub_u32 s7, s7, s6")
    a("s_lshl_b32 s7, s7, 2")
    a("s_lshl_b32 s4, s5, 4")
    a("s_sub_u32 s7, s7, s4")
    a("s_sub_u32 s7, s7, 128")
    a(f"v_mov_b32 v21, {OOB}")
    a("v_cmp_gt_u32 vcc, s7, v6")
    a("s_lshl_b32 s6, s6, 10")
    a("s_nop 0")
    a("v_cndmask_b32 v21, v21, v5, vcc")
    a("s_lshl_b32 s7, s5, 12")
    a("s_add_u32 s6, s6, s7")
    a("s_lshl_b32 s7, s3, 6")
    a("s_add_u32 s6, s6, s7")
    a("s_waitcnt lgkmcnt(0)")
    estamp(1)
    a("s_barrier")
    stamp(6)
    estamp(2)
    BB = ACC
    def rdb(u):
        for t in range(4):
            r = BB + 16 * u + 4 * t
            a(f"ds_read_b128 v[{r}:{r+3}], v7 offset:{u*32*AGG_RS + t*64}")
    rdb(0); rdb(1)
    if WTG: a("s_waitcnt vmcnt(0)")
    estamp(5)
    DD = ACC + 80
    def fin(u):
        d = DD + 8 * u
        o = DD + 40 + 4 * u
        for x in range(4):
            a(f"v_cvt_pk_bf16_f32 v{o+x}, v{d+2*x}, v{d+2*x+1}")
        a(f"buffer_store_dwordx4 v[{o}:{o+3}], v{21 if u == 4 else 5}, s[{S_OUT}:{S_OUT+3}], s6 offen {OMOD}")
        a(f"s_add_u32 s6, s6, {32*256}")
    for u in range(5):
        for t in range(4):
            r = BB + 16 * u + 4 * t
            rem = (3 - t) + (4 if u < 4 else 0)
            a(f"s_waitcnt lgkmcnt({rem})")
            for hh in range(2):
                d = DD + 8 * u + 4 * hh; w = XB + 32 + 16 * hh + 4 * t
                c = "0" if t == 0 else f"v[{d}:{d+3}]"
                a(f"v_mfma_f32_16x16x32_bf16 v[{d}:{d+3}], v[{w}:{w+3}], v[{r}:{r+3}], {c}")
        if u + 2 < 5: rdb(u + 2)
        if u == 0: estamp(6)
        if u == 2: estamp(7)
        if u > 0: fin(u - 1)
    a("s_nop 7")
    fin(4)
    estamp(8)
    if FINE == 2: a("s_waitcnt vmcnt(0)")
    estamp(4)
    stamp(7)
    if STAMP: a("s_waitcnt vmcnt(0)")
    stamp(8)
    stamp_flush(1, 8, 9, S_WAVE, 1)
    a("K2_end:")
    a("s_endpgm")
    a("K2_slow:")
    for grp in bg_slow:
        if "touch" not in grp[-1]:
            for x in grp: a(x)
    a(f"s_mov_b32 s{S_MODE}, 1")
    a(f"s_mov_b32 s{S_WIN}, 0")
    a(f"v_lshlrev_b32 v8, 10, v{LANE}")
    a(f"s_lshl_b32 s3, s{S_B}, 2")
    a(f"s_add_u32 s3, s3, {OFFS_OFF}")
    for h in range(4):
        a(f"buffer_load_dword v{10+2*h}, v8, s[{S_WS}:{S_WS+3}], s3 offen")
        a("s_add_u32 s3, s3, 65536")
    a(f"v_cmp_gt_u32 vcc, {P-192}, v{LANE}")
    a("s_waitcnt vmcnt(0)")
    for h in range(4):
        a(f"v_lshrrev_b32 v{10+2*h}, 16, v{10+2*h}")
    a("v_cndmask_b32 v16, 0, v16, vcc")
    a("v_max_u32 v10, v10, v12")
    a("v_max3_u32 v10, v10, v14, v16")
    wave_scan(10, "v_max_u32_dpp")
    a("s_nop 1")
    a(f"v_readlane_b32 s{S_MAXC}, v10, 63")
    a("K2_slow_win:")
    a(f"s_cmp_ge_u32 s{S_WIN}, s{S_MAXC}")
    a("s_cbranch_scc1 K2_slow_fin")
    def seg_setup():
        lane_id(LANE)
        a(f"s_lshl_b32 s3, s{S_WAVE}, 6")
        a(f"v_add_u32 v{TID}, s3, v{LANE}")
        a(f"v_lshrrev_b32 v8, 1, v{TID}")
        a(f"v_and_b32 v9, 1, v{TID}")
        a("v_lshlrev_b32 v10, 10, v8")
        a(f"s_lshl_b32 s3, s{S_B}, 2")
        a(f"s_add_u32 s3, s3, {OFFS_OFF}")
        a(f"buffer_load_dword v12, v10, s[{S_WS}:{S_WS+3}], s3 offen")
        a(f"v_mul_u32_u24 v10, {EPC}, v8")
        a(f"v_add3_u32 v10, v10, v9, s{S_WIN}")
        a(f"v_cmp_gt_u32 vcc, {P}, v8")
        a("s_waitcnt vmcnt(0)")
        a("v_lshrrev_b32 v11, 16, v12")
        a("v_and_b32 v12, 0xffff, v12")
        a("v_cndmask_b32 v11, 0, v11, vcc")
        a("v_add_u32 v10, v10, v12")
        a("v_sub_u32 v13, v11, v9")
        a(f"v_subrev_u32 v13, s{S_WIN}, v13")
        a("v_lshlrev_b32 v14, 4, v10")
        a("v_lshlrev_b32 v10, 2, v10")
    seg_setup()
    for r in range(NR):
        a(f"v_cmp_lt_i32 {M(r)}, {2*r}, v13")
    a("K2_slow_batch:")
    a("s_waitcnt vmcnt(0) lgkmcnt(0)")
    a("s_barrier")
    seg_setup()
    a(f"v_lshlrev_b32 v8, 2, v{TID}")
    a("v_mov_b32 v9, 0")
    a(f"v_cmp_gt_u32 vcc, {NPB*4+4}, v{TID}")
    a(f"s_and_saveexec_b64 s[{S_SAVE}:{S_SAVE+1}], vcc")
    a(f"ds_write_b32 v8, v9 offset:{L_HIST}")
    a("s_mov_b64 exec, -1")
    a("s_waitcnt lgkmcnt(0)")
    a("s_barrier")
    a("v_mov_b32 v17, 1")
    a(f"s_mov_b32 s3, {TAG_OFF}")
    a(f"s_mov_b64 s[{S_SAVE}:{S_SAVE+1}], 0")
    for r in range(NR):
        a(f"s_mov_b64 exec, {M(r)}")
        a(f"s_cbranch_execz K2_slow_skip{r}")
        a(f"buffer_load_dword v16, v10, s[{S_WS}:{S_WS+3}], s3 offen offset:{8*r}")
        a(f"buffer_load_dwordx4 v[{XB}:{XB+3}], v14, s[{S_WS}:{S_WS+3}], 0 offen offset:{32*r}")
        a("s_waitcnt vmcnt(0)")
        a("v_bfe_u32 v8, v16, 4, 6")
        a("v_lshlrev_b32 v9, 4, v8")
        a(f"ds_add_rtn_u32 v15, v9, v17 offset:{L_HIST}")
        a("v_and_b32 v16, 0xfffc00, v16")
        a("s_waitcnt lgkmcnt(0)")
        a(f"v_cmp_gt_u32 vcc, {CAPN}, v15")
        a(f"s_andn2_b64 {M(r)}, {M(r)}, vcc")
        a(f"s_or_b64 s[{S_SAVE}:{S_SAVE+1}], s[{S_SAVE}:{S_SAVE+1}], {M(r)}")
        a("s_mov_b64 exec, vcc")
        a("v_lshl_add_u32 v8, v8, 6, v15")
        a("v_lshlrev_b32 v9, 4, v8")
        a("v_lshlrev_b32 v8, 2, v8")
        a(f"ds_write_b128 v9, v[{XB}:{XB+3}] offset:{L_REC}")
        a(f"ds_write_b32 v8, v16 offset:{L_SOFF}")
        a("s_waitcnt lgkmcnt(0)")
        a(f"K2_slow_skip{r}:")
    a("s_mov_b64 exec, -1")
    a(f"v_mov_b32 v9, {L_FLAG}")
    a(f"s_cmp_eq_u64 s[{S_SAVE}:{S_SAVE+1}], 0")
    a("s_cbranch_scc1 K2_slow_nof")
    a("ds_write_b32 v9, v17")
    a("K2_slow_nof:")
    a("s_waitcnt lgkmcnt(0)")
    a("s_barrier")
    a(f"v_and_b32 v7, 7, v{LANE}")
    a(f"s_mul_i32 s3, s{S_WAVE}, 5")
    a("v_add_u32 v11, s3, v7")
    a(f"v_add_u32 v6, s3, v{V_G}")
    a("s_add_u32 s3, s3, 4")
    a("v_mov_b32 v1, s3")
    for (vn, vt) in ((11, 12), (6, 13), (1, 14)):
        a(f"v_lshlrev_b32 v{vt}, 4, v{vn}")
        a(f"ds_read_b32 v{vt}, v{vt} offset:{L_HIST}")
    a("ds_read_b32 v9, v9")
    a("s_waitcnt lgkmcnt(0)")
    for (vn, vt) in ((11, 12), (6, 13), (1, 14)):
        a(f"v_min_u32 v{vt}, {CAPN}, v{vt}")
        a(f"v_lshl_add_u32 v{vn}, v{vt}, 8, v{vn}")
    a(f"v_readfirstlane_b32 s{S_MODE}, v9")
    a("v_mov_b32 v12, 0")
    a("v_mov_b32 v13, 0")
    a(f"s_add_u32 s{S_MODE}, s{S_MODE}, 1")
    a(f"s_mov_b32 s{S_PASS}, 1")
    a("s_branch K2_sched")
    a("K2_slow_next:")
    a(f"s_cmp_eq_u32 s{S_MODE}, 2")
    a("s_cbranch_scc1 K2_slow_batch")
    a(f"s_add_u32 s{S_WIN}, s{S_WIN}, {2*NR}")
    a("s_waitcnt vmcnt(0) lgkmcnt(0)")
    a("s_branch K2_slow_win")
    a("K2_slow_fin:")
    a("s_branch K2_epi")
    a("K2_code_end:")
    a("s_endpgm")

def gen_report():
    k = "rep_kernel"
    a(f".globl {k}\n.p2align 8\n.type {k},@function\n{k}:")
    a("s_cmp_lg_u32 s2, 0")
    a("s_cbranch_scc1 R_end")
    a("s_load_dwordx4 s[4:7], s[0:1], 72")
    a("s_waitcnt lgkmcnt(0)")
    def red(reg, op):
        wave_scan(reg, op)
    a("v_mov_b32 v10, -1")
    for r in range(11, 30): a(f"v_mov_b32 v{r}, 0")
    a("v_mov_b32 v14, -1")
    a("v_mov_b32 v20, -1")
    a(f"v_lshlrev_b32 v1, 6, v0")
    a(f"v_add_u32 v1, {DBG_OFF}, v1")
    for kx in range(19):
        a("global_load_dwordx4 v[2:5], v1, s[6:7]")
        a("global_load_dwordx4 v[6:9], v1, s[6:7] offset:16")
        a("s_waitcnt vmcnt(0)")
        a("v_min_u32 v10, v10, v2")
        a("v_max_u32 v11, v11, v3")
        a("v_max_u32 v12, v12, v5")
        a("v_max_u32 v13, v13, v8")
        a("v_add_u32 v1, 4096, v1")
    a(f"v_lshlrev_b32 v1, 6, v0")
    a(f"v_add_u32 v1, {DBG_OFF + (1<<20)}, v1")
    for kx in range(31):
        a("global_load_dwordx4 v[2:5], v1, s[6:7]")
        a("global_load_dwordx4 v[6:9], v1, s[6:7] offset:16")
        a("global_load_dword v30, v1, s[6:7] offset:32")
        a("s_waitcnt vmcnt(0)")
        a("v_min_u32 v14, v14, v2")
        a("v_max_u32 v15, v15, v2")
        a("v_max_u32 v16, v16, v3")
        a("v_max_u32 v17, v17, v4")
        a("v_max_u32 v18, v18, v5")
        a("v_max_u32 v19, v19, v6")
        a("v_min_u32 v20, v20, v7")
        a("v_max_u32 v21, v21, v7")
        a("v_max_u32 v22, v22, v8")
        a("v_max_u32 v23, v23, v9")
        a("v_max_u32 v24, v24, v30")
        a("v_add_u32 v1, 4096, v1")
    for r in range(10, 25):
        red(r, "v_min_u32_dpp" if r in (10, 14, 20) else "v_max_u32_dpp")
    a("s_memrealtime s[8:9]")
    a("s_waitcnt lgkmcnt(0)")
    a("v_mov_b32 v25, s8")
    a("s_mov_b32 exec_lo, 0")
    a("s_mov_b32 exec_hi, 0x80000000")
    a("v_mov_b32 v1, 0")
    for r in range(11, 26):
        a(f"v_sub_u32 v2, v{r}, v10")
        a(f"global_store_dword v1, v2, s[4:5] offset:{4*(r-11)}")
    a("R_end:")
    a("s_endpgm")

def kd(name, nv, ns):
    return f""".p2align 6
.amdhsa_kernel {name}
  .amdhsa_next_free_vgpr {nv}
  .amdhsa_next_free_sgpr {ns}
  .amdhsa_accum_offset {(nv+3)//4*4}
  .amdhsa_group_segment_fixed_size 0
  .amdhsa_kernarg_size 88
  .amdhsa_user_sgpr_count 2
  .amdhsa_user_sgpr_kernarg_segment_ptr 1
  .amdhsa_system_sgpr_workgroup_id_x 1
.end_amdhsa_kernel"""

def main():
    hdr = open("cdna_kernels/" + NAME + ".s.ref").read().split("\n")
    hdr = [l for l in hdr[:12] if l.startswith(";")]
    print("\n".join(hdr))
    print(f"; @launch kernel=part_kernel grid=({K1_GRID},1,1) block=({K1_T},1,1) lds={K1_LDS}")
    print(f"; @launch kernel=main_kernel grid=(256,1,1) block=({K2_T},1,1) lds={K2_LDS}")
    if STAMP == 2: print("; @launch kernel=rep_kernel grid=(1,1,1) block=(64,1,1) lds=0")
    print('.amdgcn_target "amdgcn-amd-amdhsa--gfx950"')
    print(".text")
    gen_k1()
    gen_k2()
    if STAMP == 2: gen_report()
    print("\n".join(("" if (l.endswith(":") or l.startswith(".")) else "    ") + l for l in out))
    print('.section .rodata,"a"')
    print(kd("part_kernel", 64, 96 if STAMP else 48))
    print(kd("main_kernel", 256, 102))
    if STAMP == 2: print(kd("rep_kernel", 32, 16))

main()
```
